```python
import torch

def _softmax(x, axis=-1):
    return torch.softmax(x, dim=axis)
def _gelu(x):
    return torch.nn.functional.gelu(x, approximate="tanh")
def _silu(x):
    return torch.nn.functional.silu(x)
def _sigmoid(x):
    return torch.sigmoid(x)
def _layernorm(x, axis=-1, eps=1e-5):
    m = x.mean(dim=axis, keepdim=True)
    v = x.var(dim=axis, keepdim=True, unbiased=False)
    return (x - m) / torch.sqrt(v + eps)
def _scatter_add(tgt, idx, src, axis=0):
    return tgt.clone().index_add_(axis, idx, src)
def _segment_sum(src, seg, n):
    out = torch.zeros((n,) + src.shape[1:], dtype=src.dtype)
    return out.index_add_(0, seg, src)
def _pad(x, pw):
    flat = tuple(v for pair in reversed(pw) for v in pair)
    return torch.nn.functional.pad(x, flat)

kernel_name = 'interleave_layers__linear_kernel_hedgehog__mixer_s_mlp__prompt'

def setup_inputs():

    _w = (lambda a: (lambda t: t.to(torch.bfloat16) if t.is_floating_point() else t)(torch.as_tensor(a)))
    def _A_setup():
        B, S, D, H = 1, 2048, 512, 32
        Dh = D // H
        return {
            "x": _w((lambda *s: torch.randn(*s, dtype=torch.bfloat16) * 0.05)(B, S, D)),
            "wqkv": _w((lambda *s: torch.randn(*s, dtype=torch.bfloat16) * 0.2)(D, 3 * D)),
            "w_phi": _w((lambda *s: torch.randn(*s, dtype=torch.bfloat16) * 0.2)(H, Dh, Dh) * (Dh ** -0.5)),
            "wo": _w((lambda *s: torch.randn(*s, dtype=torch.bfloat16) * 0.05)(D, D)),
        }
    _A_in = _A_setup()

    def _B_setup():
        B, S, D, F = 1, 2048, 512, 1376
        return {
            "x":  _w((lambda *s: torch.randn(*s, dtype=torch.bfloat16) * 0.05)(B, S, D)),
            "w1": _w((lambda *s: torch.randn(*s, dtype=torch.bfloat16) * 3.2)(D, D) * (D ** -0.5)),
            "w2": _w((lambda *s: torch.randn(*s, dtype=torch.bfloat16) * 3.2)(D, D) * (D ** -0.5)),
            "w3": _w((lambda *s: torch.randn(*s, dtype=torch.bfloat16) * 3.2)(D, F) * (D ** -0.5)),
            "w4": _w((lambda *s: torch.randn(*s, dtype=torch.bfloat16) * 3.2)(F, D) * (F ** -0.5)),
        }
    _B_in = _B_setup()

    return {
        "A_x": _A_in["x"],
        "A_wqkv": _A_in["wqkv"],
        "A_w_phi": _A_in["w_phi"],
        "A_wo": _A_in["wo"],
        "B_x": _B_in["x"],
        "B_w1": _B_in["w1"],
        "B_w2": _B_in["w2"],
        "B_w3": _B_in["w3"],
        "B_w4": _B_in["w4"],
    }

def reference(A_x, A_wqkv, A_w_phi, A_wo, B_x, B_w1, B_w2, B_w3, B_w4):
    def _A_ref(x, wqkv, w_phi, wo):
        B, S, D = x.shape
        H = 32; Dh = D // H
        qkv = (lambda x, *d: x.permute(*d))((x @ wqkv).reshape(B, S, 3, H, Dh), 2, 0, 3, 1, 4)
        q, k, v = qkv[0], qkv[1], qkv[2]
        pq = torch.einsum("bhsd,hdf->bhsf", q, w_phi)
        pk = torch.einsum("bhsd,hdf->bhsf", k, w_phi)
        phi_q = torch.concatenate([_softmax(pq, axis=-1), _softmax(-pq, axis=-1)], axis=-1)
        phi_k = torch.concatenate([_softmax(pk, axis=-1), _softmax(-pk, axis=-1)], axis=-1)
        kv = torch.einsum("bhsf,bhsd->bhfd", phi_k, v)
        z  = torch.einsum("bhsf->bhf", phi_k)
        num = torch.einsum("bhqf,bhfd->bhqd", phi_q, kv)
        den = torch.einsum("bhqf,bhf->bhq", phi_q, z)[..., None] + 1e-6
        o = num / den
        return (lambda x, *d: x.permute(*d))(o, 0, 2, 1, 3).reshape(B, S, D) @ wo

    def _B_ref(x, w1, w2, w3, w4):
        B, S, D = x.shape
        h = _gelu(_layernorm(x, axis=-1) @ w1)
        c = D // 4
        g0 = _pad(h[:, :, 0*c:1*c], ((0, 0), (1, 0), (0, 0)))[:, :S, :]
        g1 = _pad(h[:, :, 1*c:2*c], ((0, 0), (0, 1), (0, 0)))[:, 1:, :]
        g2 = _pad(h[:, :, 2*c:3*c], ((0, 0), (2, 0), (0, 0)))[:, :S, :]
        g3 = _pad(h[:, :, 3*c:   ], ((0, 0), (0, 2), (0, 0)))[:, 2:, :]
        hs = torch.concatenate([g0, g1, g2, g3], axis=-1) @ w2
        x1 = x + hs
        h2 = _gelu(_layernorm(x1, axis=-1) @ w3) @ w4
        return x1 + h2

    x = A_x
    x = x + _A_ref(_layernorm(x, axis=-1), A_wqkv, A_w_phi, A_wo)
    x = x + _B_ref(_layernorm(x, axis=-1), B_w1, B_w2, B_w3, B_w4)
    x = x + _A_ref(_layernorm(x, axis=-1), A_wqkv, A_w_phi, A_wo)
    x = x + _B_ref(_layernorm(x, axis=-1), B_w1, B_w2, B_w3, B_w4)
    return x
```

```python
import re

TRANS = ("v_exp_f32", "v_log_f32", "v_rcp_f32", "v_rsq_f32", "v_sqrt_f32", "v_sin_f32", "v_cos_f32")


def _expand(tok):
    t = tok.strip()
    t = t.lstrip("-")
    m = re.fullmatch(r"abs\((.*)\)", t)
    if m:
        t = m.group(1)
    m = re.fullmatch(r"\|(.*)\|", t)
    if m:
        t = m.group(1)
    m = re.fullmatch(r"([vas])(\d+)", t)
    if m:
        return {(m.group(1), int(m.group(2)))}
    m = re.fullmatch(r"([vas])\[(\d+):(\d+)\]", t)
    if m:
        return {(m.group(1), i) for i in range(int(m.group(2)), int(m.group(3)) + 1)}
    if t in ("vcc", "vcc_lo", "vcc_hi"):
        return {("s", "vcc")}
    if t in ("exec", "exec_lo", "exec_hi"):
        return {("s", "exec")}
    if t == "m0":
        return {("s", "m0")}
    if t == "scc":
        return {("s", "scc")}
    return set()


class Ins:
    __slots__ = ("text", "mn", "ops", "mods", "dst", "src", "kind", "A", "B", "C", "passes", "states", "lds")


def parse(line):
    s = line.split(";")[0].strip()
    i = Ins()
    i.text = line
    i.dst = set()
    i.src = set()
    i.kind = "other"
    i.states = 1
    i.lds = False
    i.A = i.B = i.C = set()
    i.passes = 0
    if not s or s.endswith(":") or s.startswith("."):
        i.kind = "label" if s.endswith(":") else "none"
        i.states = 0
        i.mn = ""
        return i
    parts = s.split(None, 1)
    mn = parts[0]
    i.mn = mn
    rest = parts[1] if len(parts) > 1 else ""
    ops = []
    cur = ""
    depth = 0
    for ch in rest:
        if ch in "[(":
            depth += 1
        if ch in "])":
            depth -= 1
        if ch == "," and depth == 0:
            ops.append(cur.strip())
            cur = ""
        else:
            cur += ch
    if cur.strip():
        ops.append(cur.strip())
    mods = ""
    if ops:
        sp = ops[-1].split(None, 1)
        if len(sp) > 1 and not ops[-1].startswith("hwreg"):
            ops[-1] = sp[0]
            mods = sp[1]
    i.ops = ops
    i.mods = mods
    E = [_expand(o) for o in ops]
    if mn == "s_nop":
        i.kind = "nop"
        i.states = int(ops[0], 0) + 1
        return i
    if mn.startswith("v_mfma"):
        i.kind = "mfma"
        i.dst = E[0]
        i.A, i.B, i.C = E[1], E[2], E[3]
        i.src = E[1] | E[2] | E[3]
        i.passes = 8 if "32x32" in mn else 4
        return i
    if mn.startswith("v_"):
        i.kind = "valu"
        base = mn.replace("_e32", "").replace("_e64", "").replace("_dpp", "")
        if base.startswith("v_permlane") and "swap" in base:
            i.dst = E[0] | E[1]
            i.src = E[0] | E[1]
        elif base in ("v_add_co_u32", "v_sub_co_u32", "v_addc_co_u32", "v_subb_co_u32"):
            i.dst = E[0] | E[1]
            for x in E[2:]:
                i.src |= x
        else:
            i.dst = set(E[0])
            for x in E[1:]:
                i.src |= x
            if base in ("v_fmac_f32", "v_dot2c_f32_bf16", "v_writelane_b32") or "dpp" in mn:
                i.src |= E[0]
        return i
    if mn.startswith("ds_"):
        i.kind = "ds"
        if mn.startswith("ds_read") or mn.startswith("ds_bpermute") or mn.startswith("ds_swizzle") or mn.startswith("ds_permute"):
            i.dst = set(E[0])
            for x in E[1:]:
                i.src |= x
        else:
            for x in E:
                i.src |= x
        return i
    if mn.startswith("buffer_") or mn.startswith("global_"):
        i.kind = "vmem"
        if mn in ("buffer_wbl2", "buffer_inv"):
            return i
        islds = re.search(r"\blds\b", mods) is not None
        i.lds = islds
        if "load" in mn and not islds:
            i.dst = set(E[0])
            for x in E[1:]:
                i.src |= x
            if "d16" in mn:
                i.src |= E[0]
        elif "atomic" in mn and re.search(r"\bsc0\b", mods):
            i.dst = set(E[0])
            for x in E:
                i.src |= x
        else:
            for x in E:
                i.src |= x
            if islds:
                i.src |= {("s", "m0")}
        return i
    if mn.startswith("s_"):
        i.kind = "salu"
        if mn in ("s_waitcnt", "s_barrier", "s_endpgm", "s_branch", "s_setprio", "s_sleep") or mn.startswith("s_cbranch"):
            i.kind = "other"
            return i
        if mn.startswith("s_cmp"):
            for x in E:
                i.src |= x
            return i
        if mn.startswith("s_load") or mn.startswith("s_buffer_load"):
            i.kind = "smem"
        i.dst = set(E[0])
        for x in E[1:]:
            i.src |= x
        return i
    return i


def vregs(S):
    return {r for r in S if r[0] in "va"}


def sregs(S):
    return {r for r in S if r[0] == "s"}


def need(p, c):
    n = 0
    if p.kind == "valu":
        wv = vregs(p.dst)
        ws = sregs(p.dst)
        pbase = p.mn.replace("_e32", "").replace("_e64", "")
        isdot = pbase.startswith("v_dot")
        if pbase.startswith("v_pk_") and c.kind == "mfma":
            n = max(n, 2)
        if wv:
            if c.kind == "mfma" and wv & c.src:
                n = max(n, 2)
            if c.kind == "valu":
                if c.mn.startswith("v_permlane") and wv & c.src:
                    n = max(n, 2)
                if "dpp" in c.mn and wv & c.src:
                    n = max(n, 2)
                if (c.mn.startswith("v_readlane") or c.mn.startswith("v_readfirstlane")) and wv & c.src:
                    n = max(n, 1)
                if pbase in TRANS and c.mn.replace("_e32", "").replace("_e64", "") not in TRANS and wv & c.src:
                    n = max(n, 1)
            if isdot and wv & (c.src | c.dst):
                same = c.mn == p.mn
                if same and len(c.ops) == 4 and not (wv & (_expand(c.ops[1]) | _expand(c.ops[2]))):
                    pass
                else:
                    n = max(n, 3)
        if ws:
            if c.kind == "valu" and ws & c.src:
                n = max(n, 4 if c.mn.startswith("v_readlane") or c.mn.startswith("v_writelane") else 2)
            if c.kind in ("vmem",) and ws & c.src:
                n = max(n, 5)
            if c.kind == "mfma" and ("s", "exec") in ws:
                n = max(n, 4)
    if p.kind == "mfma":
        P = p.passes
        D = p.dst
        if c.kind == "mfma":
            if c.C & D:
                if c.C == D and c.passes == P:
                    pass
                else:
                    n = max(n, P + 2)
            elif c.dst & D:
                n = max(n, P + 2)
            if (c.A | c.B) & D:
                n = max(n, P + 4)
        elif c.kind in ("valu", "vmem", "ds"):
            if (c.src | c.dst) & D:
                n = max(n, P + 4)
            if c.kind == "valu" and c.dst & p.C:
                n = max(n, P - 1)
    if p.kind == "salu" and ("s", "m0") in p.dst and c.kind == "vmem" and c.lds:
        n = max(n, 1)
    if p.kind == "vmem" and ("store" in p.mn) and ("x4" in p.mn or "x3" in p.mn):
        data = _expand(p.ops[0])
        if c.dst & data:
            n = max(n, 2 if c.kind == "valu" else 1)
    return n


def hazard_pass(lines):
    out = []
    hist = []
    for line in lines:
        c = parse(line)
        if c.kind in ("none",):
            out.append(line)
            continue
        if c.kind == "label":
            out.append(line)
            continue
        if c.kind != "nop":
            d = 0
            req = 0
            for p in reversed(hist):
                if d >= 24:
                    break
                nn = need(p, c)
                if nn > d:
                    req = max(req, nn - d)
                d += p.states
            if req > 0:
                while req > 0:
                    k = min(req, 16)
                    nop = parse("s_nop %d" % (k - 1))
                    out.append("    s_nop %d" % (k - 1))
                    hist.append(nop)
                    req -= k
        out.append(line)
        hist.append(c)
        if len(hist) > 64:
            hist = hist[-64:]
    return out


class Kern:
    def __init__(self, name):
        self.name = name
        self.lines = []
        self.vm = []
        self.nv = 1
        self.maxv = 1

    def e(self, s):
        self.lines.append("    " + s)

    def c(self, s):
        self.lines.append("    ; " + s)

    def label(self, s):
        self.lines.append(s + ":")

    def vmem(self, s, tag):
        self.e(s)
        self.vm.append(tag)

    def wait_vm(self, tags, extra=""):
        if isinstance(tags, str):
            tags = [tags]
        last = -1
        for i, t in enumerate(self.vm):
            if t in tags:
                last = i
        assert last >= 0, tags
        n = len(self.vm) - 1 - last
        n = min(n, 63)
        self.e("s_waitcnt vmcnt(%d)%s" % (n, extra))

    def alloc(self, n=1, align=1):
        a = max(align, 1)
        if n >= 2:
            a = max(a, 2)
        self.nv = (self.nv + a - 1) // a * a
        r = self.nv
        self.nv += n
        self.maxv = max(self.maxv, self.nv)
        assert self.nv <= 256, "out of VGPRs in %s" % self.name
        return r

    def mark(self):
        return self.nv

    def release(self, m):
        self.nv = m


def vr(b, n=1):
    return "v%d" % b if n == 1 else "v[%d:%d]" % (b, b + n - 1)


def interleave(*lists):
    out = []
    n = max(len(l) for l in lists)
    for i in range(n):
        for l in lists:
            if i < len(l):
                out.append(l[i])
    return out
```

```python
import sys
import os

sys.path.insert(0, os.path.dirname(os.path.abspath(__file__)))
from asmlib import Kern, vr, interleave, hazard_pass

NAME = "interleave_layers__linear_kernel_hedgehog__mixer_s_mlp__prompt"
S, D, F = 2048, 512, 1376

IN_X, IN_WQKV, IN_WPHI, IN_WO, IN_BX, IN_W1, IN_W2, IN_W3, IN_W4, OUT, DBG, WS = range(12)


def PTR(i):
    return 64 + 2 * i


MB = 1 << 20
WS_XA = 0 * MB
WS_XB = 2 * MB
WS_PHIQ = 4 * MB
WS_KVP = 8 * MB
WS_KVR = 10 * MB
WS_H = 12 * MB
WS_ST = 14 * MB
WS_X1 = 16 * MB
WS_H3 = 18 * MB

XBYTES = S * D * 2
LOG2E = 1.4426950408889634


def f32bits(x):
    import struct
    return struct.unpack("<I", struct.pack("<f", x))[0]


def make_srd(k, slot, buf, size):
    kind = buf[0]
    if kind == "ws":
        off = buf[1]
        k.e("s_add_u32 s%d, s%d, 0x%x" % (slot, PTR(WS), off))
        k.e("s_addc_u32 s%d, s%d, 0" % (slot + 1, PTR(WS) + 1))
    else:
        idx = buf[1]
        k.e("s_mov_b32 s%d, s%d" % (slot, PTR(idx)))
        k.e("s_mov_b32 s%d, s%d" % (slot + 1, PTR(idx) + 1))
    k.e("s_mov_b32 s%d, 0x%x" % (slot + 2, size))
    k.e("s_mov_b32 s%d, 0x00020000" % (slot + 3))


def srd(slot):
    return "s[%d:%d]" % (slot, slot + 3)


S_WAVE, S_RB, S_CB, S_WBASE, S_WL, S_T0, S_T1, S_T2 = 32, 33, 34, 35, 36, 37, 38, 39
S_ONES, S_L2E, S_EPS, S_C1, S_C2, S_INV = 40, 41, 42, 43, 44, 45
S_TOKB, S_X16 = 46, 47
SRD_X, SRD_W, SRD_O, SRD_R, SRD_R2, SRD_R3 = 8, 12, 16, 20, 24, 28


class G:
    pass


def prologue(k, nwg, wide):
    g = G()
    k.e("s_cmp_ge_u32 s2, %d" % nwg)
    k.e("s_cbranch_scc1 L_end_%s" % k.name)
    k.e("s_load_dwordx16 s[64:79], s[0:1], 0")
    k.e("s_load_dwordx8 s[80:87], s[0:1], 64")
    g.w = k.alloc()
    g.l = k.alloc()
    g.g = k.alloc()
    g.m = k.alloc()
    k.e("v_lshrrev_b32 v%d, 6, v0" % g.w)
    k.e("v_and_b32 v%d, 63, v0" % g.l)
    k.e("v_readfirstlane_b32 s%d, v%d" % (S_WAVE, g.w))
    k.e("v_lshrrev_b32 v%d, 4, v%d" % (g.g, g.l))
    k.e("v_and_b32 v%d, 15, v%d" % (g.m, g.l))
    k.e("s_and_b32 s%d, s2, 7" % S_T0)
    k.e("s_lshr_b32 s%d, s2, 3" % S_T1)
    if wide == "n512":
        k.e("s_lshr_b32 s%d, s%d, 3" % (S_RB, S_T1))
        k.e("s_lshl_b32 s%d, s%d, 2" % (S_T2, S_T0))
        k.e("s_add_u32 s%d, s%d, s%d" % (S_RB, S_RB, S_T2))
        k.e("s_and_b32 s%d, s%d, 7" % (S_CB, S_T1))
    else:
        k.e("s_lshr_b32 s%d, s%d, 4" % (S_RB, S_T1))
        k.e("s_lshl_b32 s%d, s%d, 1" % (S_T2, S_T0))
        k.e("s_add_u32 s%d, s%d, s%d" % (S_RB, S_RB, S_T2))
        k.e("s_and_b32 s%d, s%d, 15" % (S_CB, S_T1))
    k.e("s_mov_b32 s%d, 0x3f803f80" % S_ONES)
    k.e("s_mov_b32 s%d, 0x%08x" % (S_L2E, f32bits(LOG2E)))
    return g


def allreduce(x, t, op):
    return [
        "v_mov_b32 v%d, v%d" % (t, x),
        "v_permlane32_swap_b32 v%d, v%d" % (x, t),
        "%s v%d, v%d, v%d" % (op, x, x, t),
        "v_mov_b32 v%d, v%d" % (t, x),
        "v_permlane16_swap_b32 v%d, v%d" % (x, t),
        "%s v%d, v%d, v%d" % (op, x, x, t),
    ]


def round_bf16(x):
    return ["v_cvt_pk_bf16_f32 v%d, v%d, v%d" % (x, x, x), "v_lshlrev_b32 v%d, 16, v%d" % (x, x)]


def layernorm(k, xr, tmp):
    a = [tmp + i for i in range(4)]
    b = [tmp + 4 + i for i in range(4)]
    t0, t1, rinv, cc = tmp + 8, tmp + 9, tmp + 10, tmp + 11
    n = len(xr)
    for i, r in enumerate(xr):
        j = i % 4
        if i < 4:
            k.e("v_dot2_f32_bf16 v%d, v%d, s%d, 0" % (a[j], r, S_ONES))
            k.e("v_dot2_f32_bf16 v%d, v%d, v%d, 0" % (b[j], r, r))
        else:
            k.e("v_dot2_f32_bf16 v%d, v%d, s%d, v%d" % (a[j], r, S_ONES, a[j]))
            k.e("v_dot2_f32_bf16 v%d, v%d, v%d, v%d" % (b[j], r, r, b[j]))
    k.e("v_add_f32 v%d, v%d, v%d" % (a[0], a[0], a[1]))
    k.e("v_add_f32 v%d, v%d, v%d" % (b[0], b[0], b[1]))
    k.e("v_add_f32 v%d, v%d, v%d" % (a[2], a[2], a[3]))
    k.e("v_add_f32 v%d, v%d, v%d" % (b[2], b[2], b[3]))
    k.e("v_add_f32 v%d, v%d, v%d" % (a[0], a[0], a[2]))
    k.e("v_add_f32 v%d, v%d, v%d" % (b[0], b[0], b[2]))
    for s_ in interleave(allreduce(a[0], t0, "v_add_f32"), allreduce(b[0], t1, "v_add_f32")):
        k.e(s_)
    mean, ex2 = a[0], b[0]
    k.e("v_mul_f32 v%d, 0x%08x, v%d" % (mean, f32bits(1.0 / 512), mean))
    k.e("v_mul_f32 v%d, 0x%08x, v%d" % (ex2, f32bits(1.0 / 512), ex2))
    var = b[1]
    k.e("v_fma_f32 v%d, -v%d, v%d, v%d" % (var, mean, mean, ex2))
    k.e("v_max_f32 v%d, 0, v%d" % (var, var))
    for s_ in interleave(round_bf16(mean), round_bf16(var)):
        k.e(s_)
    k.e("v_add_f32 v%d, 0x%08x, v%d" % (var, f32bits(1e-5), var))
    for s_ in round_bf16(var):
        k.e(s_)
    k.e("v_sqrt_f32 v%d, v%d" % (var, var))
    for s_ in round_bf16(var):
        k.e(s_)
    k.e("v_rcp_f32 v%d, v%d" % (rinv, var))
    k.e("v_mul_f32 v%d, v%d, v%d" % (cc, mean, rinv))
    k.e("v_sub_f32 v%d, 0, v%d" % (cc, cc))
    lo, hi, lo2, hi2 = a[1], a[2], a[3], b[2]
    for i in range(0, n, 2):
        r, r2 = xr[i], xr[i + 1]
        k.e("v_lshlrev_b32 v%d, 16, v%d" % (lo, r))
        k.e("v_and_b32 v%d, 0xffff0000, v%d" % (hi, r))
        k.e("v_lshlrev_b32 v%d, 16, v%d" % (lo2, r2))
        k.e("v_and_b32 v%d, 0xffff0000, v%d" % (hi2, r2))
        k.e("v_fma_f32 v%d, v%d, v%d, v%d" % (lo, lo, rinv, cc))
        k.e("v_fma_f32 v%d, v%d, v%d, v%d" % (hi, hi, rinv, cc))
        k.e("v_fma_f32 v%d, v%d, v%d, v%d" % (lo2, lo2, rinv, cc))
        k.e("v_fma_f32 v%d, v%d, v%d, v%d" % (hi2, hi2, rinv, cc))
        k.e("v_cvt_pk_bf16_f32 v%d, v%d, v%d" % (r, lo, hi))
        k.e("v_cvt_pk_bf16_f32 v%d, v%d, v%d" % (r2, lo2, hi2))
    return rinv, cc


def gelu4(a, t):
    o = []
    o.append("v_cvt_pk_bf16_f32 v%d, v%d, v%d" % (t, a, a + 1))
    o.append("v_cvt_pk_bf16_f32 v%d, v%d, v%d" % (t + 1, a + 2, a + 3))
    o.append("v_lshlrev_b32 v%d, 16, v%d" % (a, t))
    o.append("v_and_b32 v%d, 0xffff0000, v%d" % (a + 1, t))
    o.append("v_lshlrev_b32 v%d, 16, v%d" % (a + 2, t + 1))
    o.append("v_and_b32 v%d, 0xffff0000, v%d" % (a + 3, t + 1))
    for i in range(4):
        o.append("v_mul_f32 v%d, v%d, v%d" % (t + i, a + i, a + i))
    for i in range(4):
        o.append("v_fma_f32 v%d, v%d, s%d, 1.0" % (t + i, t + i, S_C1))
    for i in range(4):
        o.append("v_mul_f32 v%d, v%d, v%d" % (t + i, t + i, a + i))
    for i in range(4):
        o.append("v_mul_f32 v%d, s%d, v%d" % (t + i, S_C2, t + i))
    for i in range(4):
        o.append("v_exp_f32 v%d, v%d" % (t + i, t + i))
    for i in range(4):
        o.append("v_add_f32 v%d, 1.0, v%d" % (t + i, t + i))
    for i in range(4):
        o.append("v_rcp_f32 v%d, v%d" % (t + i, t + i))
    for i in range(4):
        o.append("v_mul_f32 v%d, v%d, v%d" % (a + i, a + i, t + i))
    o.append("v_cvt_pk_bf16_f32 v%d, v%d, v%d" % (a, a, a + 1))
    o.append("v_cvt_pk_bf16_f32 v%d, v%d, v%d" % (a + 1, a + 2, a + 3))
    return o


def gelu_consts(k):
    import math
    k.e("s_mov_b32 s%d, 0x%08x" % (S_C1, f32bits(0.044715)))
    k.e("s_mov_b32 s%d, 0x%08x" % (S_C2, f32bits(-2.0 * LOG2E * math.sqrt(2.0 / math.pi))))


class W:
    pass


def setup_w(k, g, wrow, swz_bit, k2map, NU, KCAP_STEPS):
    w = W()
    w.wrow = wrow
    w.NU = NU
    w.kcap = KCAP_STEPS
    w.ustride = KCAP_STEPS * 32 * 64
    w.k2map = k2map
    w.vwo = k.alloc()
    t = k.alloc()
    t2 = k.alloc()
    k.e("v_lshrrev_b32 v%d, 2, v%d" % (t, g.l))
    k.e("s_mov_b32 s%d, %d" % (S_T0, wrow))
    k.e("v_mul_lo_u32 v%d, s%d, v%d" % (w.vwo, S_T0, t))
    k.e("v_lshrrev_b32 v%d, %d, v%d" % (t, 2 + swz_bit - 1, g.l))
    k.e("v_and_b32 v%d, 2, v%d" % (t, t))
    k.e("v_and_b32 v%d, 3, v%d" % (t2, g.l))
    k.e("v_xor_b32 v%d, v%d, v%d" % (t, t, t2))
    k.e("v_lshl_add_u32 v%d, v%d, 4, v%d" % (w.vwo, t, w.vwo))
    w.tb = {}
    b0 = k.alloc()
    b1 = k.alloc()
    k.e("v_lshrrev_b32 v%d, 2, v%d" % (t, g.l))
    k.e("v_and_b32 v%d, 3, v%d" % (t, t))
    k.e("v_lshlrev_b32 v%d, 6, v%d" % (t, t))
    k.e("v_lshl_add_u32 v%d, v%d, 3, v%d" % (t, t2, t))
    k.e("v_lshl_add_u32 v%d, v%d, %d, v%d" % (t, g.g, 8 if k2map else 9, t))
    k.e("v_and_b32 v%d, 1, v%d" % (t2, g.g))
    k.e("v_lshl_add_u32 v%d, v%d, 5, v%d" % (b0, t2, t))
    k.e("v_xor_b32 v%d, 1, v%d" % (t2, t2))
    k.e("v_lshl_add_u32 v%d, v%d, 5, v%d" % (b1, t2, t))
    w.tb[(0, 0)] = b0
    w.tb[(1, 0)] = b1
    nhi = (NU * w.ustride + 65535) // 65536
    for h in range(1, nhi):
        for tt in (0, 1):
            r = k.alloc()
            k.e("v_add_u32 v%d, 0x%x, v%d" % (r, 65536 * h, w.tb[(tt, 0)]))
            w.tb[(tt, h)] = r
    return w


def tr_reads(k, w, dst, u, t, s):
    sp = s % w.kcap
    for hs in (0, 1):
        off = u * w.ustride + 2048 * sp + (1024 if w.k2map else 256) * hs
        h, o = off >> 16, off & 0xffff
        k.e("ds_read_b64_tr_b16 %s, v%d offset:%d" % (vr(dst + 2 * hs, 2), w.tb[(t, h)], o))


def dma(k, w, soff, m0off, tag):
    k.e("s_add_u32 s%d, s%d, 0x%x" % (S_T0, S_WBASE, soff))
    k.e("s_add_u32 m0, s%d, 0x%x" % (S_WL, m0off))
    k.vmem("buffer_load_dwordx4 v%d, %s, s%d offen lds" % (w.vwo, srd(SRD_W), S_T0), tag)


def gemm_loop(k, w, KS, CS, MT, xfrag, acc, swapped_units=(), late_dma=None):
    NU = w.NU
    frags = [(u, t) for u in range(NU) for t in (0, 1)]
    n = len(frags)
    wb = [[k.alloc(4, 4) for _ in frags] for _ in range(2)]
    k.wait_vm("w0")
    k.e("s_barrier")
    for i, (u, t) in enumerate(frags):
        tr_reads(k, w, wb[0][i], u, t, 0)
    first = set()
    for s in range(KS):
        for i, (u, t) in enumerate(frags):
            if s + 1 < KS:
                if i == 0 and (s + 1) % CS == 0:
                    c = (s + 1) // CS
                    k.wait_vm("w%d" % c)
                    k.e("s_barrier")
                    if late_dma and c in late_dma:
                        late_dma[c]()
                tr_reads(k, w, wb[(s + 1) % 2][i], u, t, s + 1)
                k.e("s_waitcnt lgkmcnt(%d)" % (2 * n))
            else:
                k.e("s_waitcnt lgkmcnt(%d)" % (2 * (n - 1 - i)))
            for mt in range(MT):
                a = acc[u][t][mt]
                cin = vr(a, 4) if (u, t, mt) in first else "0"
                first.add((u, t, mt))
                wf = vr(wb[s % 2][i], 4)
                xf = vr(xfrag(s, mt), 4)
                if u in swapped_units:
                    k.e("v_mfma_f32_16x16x32_bf16 %s, %s, %s, %s" % (vr(a, 4), xf, wf, cin))
                else:
                    k.e("v_mfma_f32_16x16x32_bf16 %s, %s, %s, %s" % (vr(a, 4), wf, xf, cin))


def tok_base(k, g, MT, rowbytes):
    k.e("s_mul_i32 s%d, s%d, %d" % (S_TOKB, S_RB, 64 * MT))
    k.e("s_mul_i32 s%d, s%d, %d" % (S_T0, S_WAVE, 16 * MT))
    k.e("s_add_u32 s%d, s%d, s%d" % (S_TOKB, S_TOKB, S_T0))


def row_off(k, g, rowbytes, gshift):
    r = k.alloc()
    k.e("v_add_u32 v%d, s%d, v%d" % (r, S_TOKB, g.m))
    k.e("s_mov_b32 s%d, %d" % (S_T0, rowbytes))
    k.e("v_mul_lo_u32 v%d, s%d, v%d" % (r, S_T0, r))
    k.e("v_lshl_add_u32 v%d, v%d, %d, v%d" % (r, g.g, gshift, r))
    return r


def finish(k):
    k.label("L_end_%s" % k.name)
    k.e("s_endpgm")


def softmax_pair(p, t, outp):
    mx, mn, t0, t1 = t, t + 1, t + 2, t + 3
    ep = [t + 4 + i for i in range(4)]
    em = [t + 8 + i for i in range(4)]
    o = []
    o.append("v_max3_f32 v%d, v%d, v%d, v%d" % (mx, p, p + 1, p + 2))
    o.append("v_min3_f32 v%d, v%d, v%d, v%d" % (mn, p, p + 1, p + 2))
    o.append("v_max_f32 v%d, v%d, v%d" % (mx, mx, p + 3))
    o.append("v_min_f32 v%d, v%d, v%d" % (mn, mn, p + 3))
    o += interleave(allreduce(mx, t0, "v_max_f32"), allreduce(mn, t1, "v_min_f32"))
    o.append("v_mul_f32 v%d, s%d, v%d" % (mx, S_L2E, mx))
    o.append("v_mul_f32 v%d, s%d, v%d" % (mn, S_L2E, mn))
    for i in range(4):
        o.append("v_fma_f32 v%d, v%d, s%d, -v%d" % (ep[i], p + i, S_L2E, mx))
        o.append("v_fma_f32 v%d, -v%d, s%d, v%d" % (em[i], p + i, S_L2E, mn))
    for i in range(4):
        o.append("v_exp_f32 v%d, v%d" % (ep[i], ep[i]))
        o.append("v_exp_f32 v%d, v%d" % (em[i], em[i]))
    sp, sm = mx, mn
    o.append("v_add_f32 v%d, v%d, v%d" % (sp, ep[0], ep[1]))
    o.append("v_add_f32 v%d, v%d, v%d" % (sm, em[0], em[1]))
    o.append("v_add_f32 v%d, v%d, v%d" % (t0, ep[2], ep[3]))
    o.append("v_add_f32 v%d, v%d, v%d" % (t1, em[2], em[3]))
    o.append("v_add_f32 v%d, v%d, v%d" % (sp, sp, t0))
    o.append("v_add_f32 v%d, v%d, v%d" % (sm, sm, t1))
    o += interleave(allreduce(sp, t0, "v_add_f32"), allreduce(sm, t1, "v_add_f32"))
    o.append("v_rcp_f32 v%d, v%d" % (sp, sp))
    o.append("v_rcp_f32 v%d, v%d" % (sm, sm))
    o.append("s_nop 0")
    for i in range(4):
        o.append("v_mul_f32 v%d, v%d, v%d" % (ep[i], ep[i], sp))
        o.append("v_mul_f32 v%d, v%d, v%d" % (em[i], em[i], sm))
    o.append("v_cvt_pk_bf16_f32 v%d, v%d, v%d" % (outp, ep[0], ep[1]))
    o.append("v_cvt_pk_bf16_f32 v%d, v%d, v%d" % (outp + 1, ep[2], ep[3]))
    o.append("v_cvt_pk_bf16_f32 v%d, v%d, v%d" % (outp + 2, em[0], em[1]))
    o.append("v_cvt_pk_bf16_f32 v%d, v%d, v%d" % (outp + 3, em[2], em[3]))
    return o


def k_qkv(name, xin):
    k = Kern(name)
    MT, NU, KS, CS = 2, 3, 16, 4
    g = prologue(k, 256, "wide")
    tok_base(k, g, MT, 1024)
    vxo = row_off(k, g, 1024, 4)
    w = setup_w(k, g, 3072, 3, False, NU, KS)
    vph = k.alloc()
    k.e("v_lshlrev_b32 v%d, 7, v%d" % (vph, g.g))
    k.e("v_lshl_add_u32 v%d, v%d, 1, v%d" % (vph, g.m, vph))
    k.e("s_lshl_b32 s%d, s%d, 10" % (S_T0, S_CB))
    k.e("v_add_u32 v%d, s%d, v%d" % (vph, S_T0, vph))
    wphi = [k.alloc(2, 2) for _ in range(2)]
    wphi_hi = [k.alloc(2, 2) for _ in range(2)]
    ident = k.alloc(2, 2)
    ones = k.alloc(2, 2)
    t = k.alloc()
    t2 = k.alloc()
    k.e("v_mov_b32 v%d, 0x3f803f80" % ones)
    k.e("v_mov_b32 v%d, 0x3f803f80" % (ones + 1))
    k.e("v_and_b32 v%d, 1, v%d" % (t, g.m))
    k.e("v_lshlrev_b32 v%d, 4, v%d" % (t, t))
    k.e("v_mov_b32 v%d, 0x3f80" % t2)
    k.e("v_lshlrev_b32 v%d, v%d, v%d" % (t2, t, t2))
    k.e("v_lshrrev_b32 v%d, 2, v%d" % (t, g.m))
    k.e("v_cmp_eq_u32 vcc, v%d, v%d" % (t, g.g))
    k.e("v_cndmask_b32 v%d, 0, v%d, vcc" % (t2, t2))
    k.e("v_and_b32 v%d, 2, v%d" % (t, g.m))
    k.e("v_cmp_eq_u32 vcc, 0, v%d" % t)
    k.e("v_cndmask_b32 v%d, 0, v%d, vcc" % (ident, t2))
    k.e("v_cndmask_b32 v%d, v%d, 0, vcc" % (ident + 1, t2))
    X = [[k.alloc(4, 4) for _ in range(KS)] for _ in range(MT)]
    acc = [[[k.alloc(4, 4) for _ in range(MT)] for _ in range(2)] for _ in range(NU)]
    k.e("s_waitcnt lgkmcnt(0)")
    make_srd(k, SRD_X, xin, XBYTES)
    make_srd(k, SRD_W, ("in", IN_WQKV), 512 * 3072)
    make_srd(k, SRD_R, ("in", IN_WPHI), 32 * 512)
    make_srd(k, SRD_O, ("ws", WS_PHIQ), S * 2048)
    make_srd(k, SRD_R2, ("ws", WS_KVP), 16 * 32 * 4096)
    k.e("s_mov_b32 s%d, %d" % (S_X16, 16 * 1024))
    for mt in range(MT):
        for s in range(KS):
            k.vmem("buffer_load_dwordx4 %s, v%d, %s, %s offen offset:%d" % (
                vr(X[mt][s], 4), vxo, srd(SRD_X), ("s%d" % S_X16) if mt else "0", 64 * s), "x%d" % mt)
    for hh in range(2):
        for j in range(4):
            k.vmem("buffer_load_ushort v%d, v%d, %s, 0 offen offset:%d" % (
                (wphi[hh] if j & 1 == 0 else wphi_hi[hh]) + (j >> 1), vph, srd(SRD_R), 512 * hh + 32 * j), "ph")
    k.e("s_mul_i32 s%d, s%d, %d" % (S_WBASE, S_WAVE, 16 * 3072))
    k.e("s_lshl_b32 s%d, s%d, 6" % (S_T0, S_CB))
    k.e("s_add_u32 s%d, s%d, s%d" % (S_WBASE, S_WBASE, S_T0))
    k.e("s_lshl_b32 s%d, s%d, 10" % (S_WL, S_WAVE))
    for j in range(8):
        for u in range(NU):
            dma(k, w, u * 1024 + j * 64 * 3072, u * w.ustride + j * 4096, "w%d" % (j // 2))
    mk = k.mark()
    tmp = k.alloc(12)
    for mt in range(MT):
        k.wait_vm("x%d" % mt)
        layernorm(k, [X[mt][s] + i for s in range(KS) for i in range(4)], tmp)
    k.release(mk)
    gemm_loop(k, w, KS, CS, MT, lambda s, mt: X[mt][s], acc, swapped_units=(2,))
    xb = X[0][0]
    pool = [xb]

    def ta(n, al=2):
        b = (pool[0] + al - 1) // al * al
        pool[0] = b + n
        assert pool[0] <= xb + 128
        return b

    kvacc = [[ta(4, 4) for _ in range(4)] for _ in range(2)]
    vso = ta(1)
    k.e("v_add_u32 v%d, s%d, v%d" % (vso, S_TOKB, g.m))
    k.e("v_lshlrev_b32 v%d, 11, v%d" % (vso, vso))
    k.e("v_lshl_add_u32 v%d, v%d, 4, v%d" % (vso, g.g, vso))
    k.e("s_lshl_b32 s%d, s%d, 7" % (S_T0, S_CB))
    k.e("v_add_u32 v%d, s%d, v%d" % (vso, S_T0, vso))
    k.e("s_mov_b32 s%d, %d" % (S_T1, 16 * 2048))
    qb, kb, vb = ta(2), ta(2), ta(2)
    pq, pk = ta(4, 4), ta(4, 4)
    tq, tk = ta(12), ta(12)
    oq, ok = ta(4, 4), ta(4, 4)
    tp, tm = ta(4, 4), ta(4, 4)
    tpp, tmp_ = ta(2), ta(2)
    k.wait_vm("ph")
    for hh in range(2):
        for j in range(2):
            k.e("v_lshl_or_b32 v%d, v%d, 16, v%d" % (wphi[hh] + j, wphi_hi[hh] + j, wphi[hh] + j))
    first = True
    for mt in range(MT):
        for hh in range(2):
            aq, ak, av = acc[0][hh][mt], acc[1][hh][mt], acc[2][hh][mt]
            for (dst, a) in ((qb, aq), (kb, ak), (vb, av)):
                k.e("v_cvt_pk_bf16_f32 v%d, v%d, v%d" % (dst, a, a + 1))
                k.e("v_cvt_pk_bf16_f32 v%d, v%d, v%d" % (dst + 1, a + 2, a + 3))
            k.e("v_mfma_f32_16x16x16_bf16 %s, %s, %s, 0" % (vr(pq, 4), vr(wphi[hh], 2), vr(qb, 2)))
            k.e("v_mfma_f32_16x16x16_bf16 %s, %s, %s, 0" % (vr(pk, 4), vr(wphi[hh], 2), vr(kb, 2)))
            for s_ in interleave(softmax_pair(pq, tq, oq), softmax_pair(pk, tk, ok)):
                k.e(s_)
            k.vmem("buffer_store_dwordx4 %s, v%d, %s, %s offen offset:%d" % (
                vr(oq, 4), vso, srd(SRD_O), ("s%d" % S_T1) if mt else "0", 64 * hh), "st")
            k.e("v_mfma_f32_16x16x16_bf16 %s, %s, %s, 0" % (vr(tp, 4), vr(ok, 2), vr(ident, 2)))
            k.e("v_mfma_f32_16x16x16_bf16 %s, %s, %s, 0" % (vr(tm, 4), vr(ok + 2, 2), vr(ident, 2)))
            k.e("v_cvt_pk_bf16_f32 v%d, v%d, v%d" % (tpp, tp, tp + 1))
            k.e("v_cvt_pk_bf16_f32 v%d, v%d, v%d" % (tpp + 1, tp + 2, tp + 3))
            k.e("v_cvt_pk_bf16_f32 v%d, v%d, v%d" % (tmp_, tm, tm + 1))
            k.e("v_cvt_pk_bf16_f32 v%d, v%d, v%d" % (tmp_ + 1, tm + 2, tm + 3))
            kk = kvacc[hh]
            for (dst, a_, b_) in ((kk[0], tpp, vb), (kk[1], tmp_, vb), (kk[2], tpp, ones), (kk[3], tmp_, ones)):
                k.e("v_mfma_f32_16x16x16_bf16 %s, %s, %s, %s" % (
                    vr(dst, 4), vr(a_, 2), vr(b_, 2), "0" if mt == 0 else vr(dst, 4)))
    k.e("s_barrier")
    vl = ta(1)
    k.e("s_lshl_b32 s%d, s%d, 13" % (S_T0, S_WAVE))
    k.e("v_lshlrev_b32 v%d, 5, v%d" % (vl, g.l))
    vl2 = ta(1)
    k.e("v_add_u32 v%d, s%d, v%d" % (vl2, S_T0, vl))
    for hh in range(2):
        for b in range(4):
            k.e("ds_write_b128 v%d, %s offset:%d" % (vl2, vr(kvacc[hh][b], 4), hh * 4096 + (b >> 1) * 2048 + (b & 1) * 16))
    k.e("s_waitcnt lgkmcnt(0)")
    k.e("s_barrier")
    k.e("s_lshl_b32 s%d, s%d, 11" % (S_T0, S_WAVE))
    k.e("v_add_u32 v%d, s%d, v%d" % (vl2, S_T0, vl))
    rd = [ta(8, 4) for _ in range(4)]
    for ww in range(4):
        k.e("ds_read_b128 %s, v%d offset:%d" % (vr(rd[ww], 4), vl2, ww * 8192))
        k.e("ds_read_b128 %s, v%d offset:%d" % (vr(rd[ww] + 4, 4), vl2, ww * 8192 + 16))
    k.e("s_lshl_b32 s%d, s%d, 6" % (S_T0, S_RB))
    k.e("s_lshl_b32 s%d, s%d, 2" % (S_T1, S_CB))
    k.e("s_add_u32 s%d, s%d, s%d" % (S_T0, S_T0, S_T1))
    k.e("s_add_u32 s%d, s%d, s%d" % (S_T0, S_T0, S_WAVE))
    k.e("s_lshl_b32 s%d, s%d, 11" % (S_T0, S_T0))
    k.e("s_waitcnt lgkmcnt(0)")
    for i in range(8):
        k.e("v_add_f32 v%d, v%d, v%d" % (rd[0] + i, rd[0] + i, rd[1] + i))
        k.e("v_add_f32 v%d, v%d, v%d" % (rd[2] + i, rd[2] + i, rd[3] + i))
    for i in range(8):
        k.e("v_add_f32 v%d, v%d, v%d" % (rd[0] + i, rd[0] + i, rd[2] + i))
    k.vmem("buffer_store_dwordx4 %s, v%d, %s, s%d offen" % (vr(rd[0], 4), vl, srd(SRD_R2), S_T0), "st")
    k.vmem("buffer_store_dwordx4 %s, v%d, %s, s%d offen offset:16" % (vr(rd[0] + 4, 4), vl, srd(SRD_R2), S_T0), "st")
    finish(k)
    return k, 256, 3 * 16 * 2048


def k_red(name):
    k = Kern(name)
    k.e("s_cmp_ge_u32 s2, 16")
    k.e("s_cbranch_scc1 L_end_%s" % k.name)
    k.e("s_load_dwordx8 s[80:87], s[0:1], 64")
    vo = k.alloc()
    vd = k.alloc()
    vt = k.alloc()
    vz = k.alloc()
    k.e("s_lshl_b32 s%d, s2, 8" % S_T0)
    k.e("v_add_u32 v%d, s%d, v0" % (vt, S_T0))
    k.e("v_lshlrev_b32 v%d, 5, v%d" % (vo, vt))
    k.e("v_lshrrev_b32 v%d, 7, v%d" % (vd, vt))
    k.e("v_and_b32 v%d, 63, v%d" % (vz, vt))
    vb = k.alloc()
    v1 = k.alloc()
    v2 = k.alloc()
    k.e("v_bfe_u32 v%d, v%d, 6, 1" % (vb, vt))
    k.e("v_lshlrev_b32 v%d, 10, v%d" % (v1, vd))
    k.e("v_lshl_add_u32 v%d, v%d, 4, v%d" % (v1, vz, v1))
    k.e("v_lshlrev_b32 v%d, 6, v%d" % (v2, vd))
    k.e("v_add_u32 v%d, v%d, v%d" % (v2, vz, v2))
    k.e("v_add_u32 v%d, 0x8000, v%d" % (v2, v2))
    k.e("v_and_b32 v%d, 15, v%d" % (vz, vz))
    k.e("v_cmp_ne_u32 vcc, 0, v%d" % vz)
    k.e("v_mov_b32 v%d, 0x7ffffff0" % vz)
    k.e("v_cndmask_b32 v%d, v%d, v%d, vcc" % (v2, v2, vz))
    k.e("v_cmp_eq_u32 vcc, 0, v%d" % vb)
    k.e("v_cndmask_b32 v%d, v%d, v%d, vcc" % (vd, v2, v1))
    k.e("s_waitcnt lgkmcnt(0)")
    make_srd(k, SRD_X, ("ws", WS_KVP), 16 * 32 * 4096)
    make_srd(k, SRD_O, ("ws", WS_KVR), 32768 + 2048)
    regs = [k.alloc(8, 4) for _ in range(16)]
    for rb in range(16):
        k.e("s_mov_b32 s%d, 0x%x" % (S_T0, rb * 32 * 4096))
        k.vmem("buffer_load_dwordx4 %s, v%d, %s, s%d offen" % (vr(regs[rb], 4), vo, srd(SRD_X), S_T0), "l%d" % rb)
        k.vmem("buffer_load_dwordx4 %s, v%d, %s, s%d offen offset:16" % (vr(regs[rb] + 4, 4), vo, srd(SRD_X), S_T0), "l%d" % rb)
    for rb in range(1, 16):
        k.wait_vm("l%d" % rb)
        for i in range(8):
            k.e("v_add_f32 v%d, v%d, v%d" % (regs[0] + i, regs[0] + i, regs[rb] + i))
    o = regs[1]
    for i in range(4):
        k.e("v_cvt_pk_bf16_f32 v%d, v%d, v%d" % (o + i, regs[0] + 2 * i, regs[0] + 2 * i + 1))
    k.vmem("buffer_store_dwordx4 %s, v%d, %s, 0 offen" % (vr(o, 4), vd, srd(SRD_O)), "st")
    finish(k)
    return k, 16, 0


def out_off(k, g):
    r = k.alloc()
    k.e("v_add_u32 v%d, s%d, v%d" % (r, S_TOKB, g.m))
    k.e("v_lshlrev_b32 v%d, 10, v%d" % (r, r))
    k.e("v_lshl_add_u32 v%d, v%d, 3, v%d" % (r, g.g, r))
    k.e("s_lshl_b32 s%d, s%d, 7" % (S_T0, S_CB))
    k.e("v_add_u32 v%d, s%d, v%d" % (r, S_T0, r))
    return r


def unpack2(dst, src):
    return [
        "v_lshlrev_b32 v%d, 16, v%d" % (dst, src),
        "v_and_b32 v%d, 0xffff0000, v%d" % (dst + 1, src),
        "v_lshlrev_b32 v%d, 16, v%d" % (dst + 2, src + 1),
        "v_and_b32 v%d, 0xffff0000, v%d" % (dst + 3, src + 1),
    ]


def pack2(dst, src):
    return [
        "v_cvt_pk_bf16_f32 v%d, v%d, v%d" % (dst, src, src + 1),
        "v_cvt_pk_bf16_f32 v%d, v%d, v%d" % (dst + 1, src + 2, src + 3),
    ]


def round4(a):
    return pack2(a, a)[:1] + ["v_cvt_pk_bf16_f32 v%d, v%d, v%d" % (a + 2, a + 2, a + 3),
                              "v_and_b32 v%d, 0xffff0000, v%d" % (a + 1, a),
                              "v_and_b32 v%d, 0xffff0000, v%d" % (a + 3, a + 2),
                              "v_lshlrev_b32 v%d, 16, v%d" % (a, a),
                              "v_lshlrev_b32 v%d, 16, v%d" % (a + 2, a + 2)]


def add4(a, b):
    return ["v_add_f32 v%d, v%d, v%d" % (a + i, a + i, b + i) for i in range(4)]


def w_dma_512(k, w, wrow, KS, CS, xload=None):
    k.e("s_mul_i32 s%d, s%d, %d" % (S_WBASE, S_WAVE, 16 * wrow))
    k.e("s_lshl_b32 s%d, s%d, 7" % (S_T0, S_CB))
    k.e("s_add_u32 s%d, s%d, s%d" % (S_WBASE, S_WBASE, S_T0))
    k.e("s_lshl_b32 s%d, s%d, 10" % (S_WL, S_WAVE))
    for j in range(KS // 2):
        if xload and j % (CS // 2) == 0:
            xload(j // (CS // 2))
        for u in range(2):
            dma(k, w, u * 64 + j * 64 * wrow, u * w.ustride + j * 4096, "w%d" % (j // (CS // 2)))


def k_wo(name, xin, xout):
    k = Kern(name)
    MT, NU, KS, CS = 1, 2, 16, 4
    g = prologue(k, 256, "n512")
    tok_base(k, g, MT, 2048)
    vpo = row_off(k, g, 2048, 4)
    voo = out_off(k, g)
    w = setup_w(k, g, 1024, 2, True, NU, KS)
    PQ = [k.alloc(4, 4) for _ in range(32)]
    O = [PQ[2 * s] for s in range(KS)]
    res = [k.alloc(2, 2) for _ in range(4)]
    vlin = k.alloc()
    vkv = k.alloc()
    vz = k.alloc()
    k.e("v_lshlrev_b32 v%d, 4, v%d" % (vlin, g.l))
    k.e("v_add_u32 v%d, 0x10000, v%d" % (vkv, vlin))
    k.e("v_lshlrev_b32 v%d, 4, v%d" % (vz, g.g))
    k.e("v_add_u32 v%d, 0x18000, v%d" % (vz, vz))
    k.e("s_mov_b32 s%d, 0x%08x" % (S_EPS, f32bits(1e-6)))
    k.e("s_waitcnt lgkmcnt(0)")
    make_srd(k, SRD_X, ("ws", WS_PHIQ), S * 2048)
    make_srd(k, SRD_W, ("in", IN_WO), 512 * 1024)
    make_srd(k, SRD_R, xin, XBYTES)
    make_srd(k, SRD_O, xout, XBYTES)
    make_srd(k, SRD_R2, ("ws", WS_KVR), 32768 + 4096)
    k.e("s_lshl_b32 s%d, s%d, 13" % (S_T1, S_WAVE))
    for i in range(8):
        k.e("s_add_u32 s%d, s%d, 0x%x" % (S_T0, S_T1, i * 1024))
        k.e("s_add_u32 m0, s%d, 0x%x" % (S_T1, 0x10000 + i * 1024))
        k.vmem("buffer_load_dwordx4 v%d, %s, s%d offen lds" % (vlin, srd(SRD_R2), S_T0), "kv")
    k.e("s_lshl_b32 s%d, s%d, 10" % (S_T1, S_WAVE))
    k.e("s_add_u32 s%d, s%d, 0x8000" % (S_T0, S_T1))
    k.e("s_add_u32 m0, s%d, 0x18000" % S_T1)
    k.vmem("buffer_load_dwordx4 v%d, %s, s%d offen lds" % (vlin, srd(SRD_R2), S_T0), "kv")
    for h in range(32):
        k.vmem("buffer_load_dwordx4 %s, v%d, %s, 0 offen offset:%d" % (vr(PQ[h], 4), vpo, srd(SRD_X), 64 * h), "pq%d" % (h // 4))
    for i in range(4):
        k.vmem("buffer_load_dwordx2 %s, v%d, %s, 0 offen offset:%d" % (vr(res[i], 2), voo, srd(SRD_R), 32 * i), "res")
    w_dma_512(k, w, 1024, KS, CS)
    k.wait_vm("kv")
    k.e("s_barrier")
    mk = k.mark()
    GH = 4
    kvf = [[k.alloc(4, 4) for _ in range(GH)] for _ in range(2)]
    zf = [[k.alloc(4, 4) for _ in range(GH)] for _ in range(2)]
    num = [k.alloc(4, 4) for _ in range(GH)]
    den = [k.alloc(4, 4) for _ in range(GH)]

    def rd(grp):
        for i in range(GH):
            h = grp * GH + i
            k.e("ds_read_b128 %s, v%d offset:%d" % (vr(kvf[grp % 2][i], 4), vkv, h * 1024))
            k.e("ds_read_b128 %s, v%d offset:%d" % (vr(zf[grp % 2][i], 4), vz, h * 64))

    rd(0)
    for grp in range(32 // GH):
        if grp + 1 < 32 // GH:
            rd(grp + 1)
            k.e("s_waitcnt lgkmcnt(%d)" % (2 * GH))
        else:
            k.e("s_waitcnt lgkmcnt(0)")
        k.wait_vm("pq%d" % grp)
        for i in range(GH):
            h = grp * GH + i
            k.e("v_mfma_f32_16x16x32_bf16 %s, %s, %s, 0" % (vr(num[i], 4), vr(kvf[grp % 2][i], 4), vr(PQ[h], 4)))
            k.e("v_mfma_f32_16x16x32_bf16 %s, %s, %s, 0" % (vr(den[i], 4), vr(zf[grp % 2][i], 4), vr(PQ[h], 4)))
        for i in range(GH):
            k.e("v_add_f32 v%d, s%d, v%d" % (den[i], S_EPS, den[i]))
        for i in range(GH):
            k.e("v_rcp_f32 v%d, v%d" % (den[i], den[i]))
        for i in range(GH):
            for j in range(4):
                k.e("v_mul_f32 v%d, v%d, v%d" % (num[i] + j, num[i] + j, den[i]))
        for i in range(GH):
            h = grp * GH + i
            for s_ in pack2(O[h // 2] + 2 * (h & 1), num[i]):
                k.e(s_)
    k.release(mk)
    acc = [[[k.alloc(4, 4)] for _ in range(2)] for _ in range(NU)]
    gemm_loop(k, w, KS, CS, MT, lambda s, mt: O[s], acc)
    k.wait_vm("res")
    seqs = []
    for u in range(2):
        for t in range(2):
            i = 2 * u + t
            a = acc[u][t][0]
            tt = PQ[2 * i + 1]
            sq = round4(a) + unpack2(tt, res[i]) + add4(a, tt) + pack2(a, a)
            seqs.append(sq)
    for s_ in interleave(*seqs):
        k.e(s_)
    for u in range(2):
        for t in range(2):
            i = 2 * u + t
            k.vmem("buffer_store_dwordx2 %s, v%d, %s, 0 offen offset:%d" % (vr(acc[u][t][0], 2), voo, srd(SRD_O), 32 * i), "st")
    finish(k)
    return k, 256, 0x10000 + 32768 + 4096


def k_w1(name, xin):
    k = Kern(name)
    MT, NU, KS, CS = 1, 2, 16, 4
    g = prologue(k, 256, "n512")
    tok_base(k, g, MT, 1024)
    vxo = row_off(k, g, 1024, 4)
    voo = out_off(k, g)
    w = setup_w(k, g, 1024, 3, False, NU, KS)
    gelu_consts(k)
    X = [k.alloc(4, 4) for _ in range(KS)]
    acc = [[[k.alloc(4, 4)] for _ in range(2)] for _ in range(NU)]
    vst = k.alloc()
    k.e("v_add_u32 v%d, s%d, v%d" % (vst, S_TOKB, g.m))
    k.e("v_lshlrev_b32 v%d, 3, v%d" % (vst, vst))
    k.e("s_waitcnt lgkmcnt(0)")
    make_srd(k, SRD_X, xin, XBYTES)
    make_srd(k, SRD_W, ("in", IN_W1), 512 * 1024)
    make_srd(k, SRD_O, ("ws", WS_H), XBYTES)
    make_srd(k, SRD_R, ("ws", WS_ST), S * 8)
    for s in range(KS):
        k.vmem("buffer_load_dwordx4 %s, v%d, %s, 0 offen offset:%d" % (vr(X[s], 4), vxo, srd(SRD_X), 64 * s), "x")
    w_dma_512(k, w, 1024, KS, CS)
    mk = k.mark()
    tmp = k.alloc(12, 2)
    k.wait_vm("x")
    xr = [X[s] + i for s in range(KS) for i in range(4)]
    rinv, cc = layernorm(k, xr, tmp)
    assert cc == rinv + 1 and rinv % 2 == 0
    k.e("s_mov_b64 exec, 0xffff")
    k.vmem("buffer_store_dwordx2 %s, v%d, %s, 0 offen" % (vr(rinv, 2), vst, srd(SRD_R)), "st")
    k.e("s_mov_b64 exec, -1")
    tmp2 = k.alloc(12, 2)
    layernorm(k, xr, tmp2)
    k.release(mk)
    gemm_loop(k, w, KS, CS, MT, lambda s, mt: X[s], acc)
    tb = X[0]
    seqs = []
    for u in range(2):
        for t in range(2):
            seqs.append(gelu4(acc[u][t][0], tb + 4 * (2 * u + t)))
    for s_ in interleave(*seqs):
        k.e(s_)
    for u in range(2):
        for t in range(2):
            i = 2 * u + t
            k.vmem("buffer_store_dwordx2 %s, v%d, %s, 0 offen offset:%d" % (vr(acc[u][t][0], 2), voo, srd(SRD_O), 32 * i), "st")
    finish(k)
    return k, 256, 2 * 16 * 2048


def k_w2(name, xin):
    k = Kern(name)
    MT, NU, KS, CS = 1, 2, 16, 4
    g = prologue(k, 256, "n512")
    tok_base(k, g, MT, 1024)
    vxo = row_off(k, g, 1024, 4)
    voo = out_off(k, g)
    w = setup_w(k, g, 1024, 3, False, NU, KS)
    X = [k.alloc(4, 4) for _ in range(KS)]
    acc = [[[k.alloc(4, 4)] for _ in range(2)] for _ in range(NU)]
    res = [k.alloc(2, 2) for _ in range(4)]
    st = k.alloc(2, 2)
    vst = k.alloc()
    k.e("v_add_u32 v%d, s%d, v%d" % (vst, S_TOKB, g.m))
    k.e("v_lshlrev_b32 v%d, 3, v%d" % (vst, vst))
    vsh = []
    for d in (-1, 1, -2, 2):
        r = k.alloc()
        k.e("v_add_u32 v%d, 0x%x, v%d" % (r, (d * 1024) & 0xffffffff, vxo))
        vsh.append(r)
    k.e("s_waitcnt lgkmcnt(0)")
    make_srd(k, SRD_X, ("ws", WS_H), XBYTES)
    make_srd(k, SRD_W, ("in", IN_W2), 512 * 1024)
    make_srd(k, SRD_O, ("ws", WS_X1), XBYTES)
    make_srd(k, SRD_R, xin, XBYTES)
    make_srd(k, SRD_R2, ("ws", WS_ST), S * 8)

    def xload(c):
        for s in range(c * CS, (c + 1) * CS):
            k.vmem("buffer_load_dwordx4 %s, v%d, %s, 0 offen offset:%d" % (vr(X[s], 4), vsh[s // 4], srd(SRD_X), 64 * s), "x")

    w_dma_512(k, w, 1024, KS, CS, xload)
    for i in range(4):
        k.vmem("buffer_load_dwordx2 %s, v%d, %s, 0 offen offset:%d" % (vr(res[i], 2), voo, srd(SRD_R), 32 * i), "res")
    k.vmem("buffer_load_dwordx2 %s, v%d, %s, 0 offen" % (vr(st, 2), vst, srd(SRD_R2)), "res")
    gemm_loop(k, w, KS, CS, MT, lambda s, mt: X[s], acc)
    k.wait_vm("res")
    tb = X[0]
    seqs = []
    for u in range(2):
        for t in range(2):
            i = 2 * u + t
            a = acc[u][t][0]
            tt = tb + 4 * i
            sq = round4(a) + unpack2(tt, res[i])
            sq += ["v_fma_f32 v%d, v%d, v%d, v%d" % (tt + j, tt + j, st, st + 1) for j in range(4)]
            sq += round4(tt) + add4(a, tt) + pack2(a, a)
            seqs.append(sq)
    for s_ in interleave(*seqs):
        k.e(s_)
    for u in range(2):
        for t in range(2):
            i = 2 * u + t
            k.vmem("buffer_store_dwordx2 %s, v%d, %s, 0 offen offset:%d" % (vr(acc[u][t][0], 2), voo, srd(SRD_O), 32 * i), "st")
    finish(k)
    return k, 256, 2 * 16 * 2048


def k_w3(name):
    k = Kern(name)
    MT, NU, KS, CS = 2, 3, 16, 4
    g = prologue(k, 256, "wide")
    tok_base(k, g, MT, 1024)
    vxo = row_off(k, g, 1024, 4)
    w = setup_w(k, g, 2752, 3, False, NU, KS)
    gelu_consts(k)
    k.e("s_mul_i32 s%d, s%d, 43" % (S_CB, S_CB))
    k.e("s_lshr_b32 s%d, s%d, 4" % (S_CB, S_CB))
    k.e("s_min_u32 s%d, s%d, 40" % (S_CB, S_CB))
    voo = row_off(k, g, 2752, 3)
    k.e("s_lshl_b32 s%d, s%d, 6" % (S_T0, S_CB))
    k.e("v_add_u32 v%d, s%d, v%d" % (voo, S_T0, voo))
    X = [[k.alloc(4, 4) for _ in range(KS)] for _ in range(MT)]
    acc = [[[k.alloc(4, 4) for _ in range(MT)] for _ in range(2)] for _ in range(NU)]
    k.e("s_waitcnt lgkmcnt(0)")
    make_srd(k, SRD_X, ("ws", WS_X1), XBYTES)
    make_srd(k, SRD_W, ("in", IN_W3), 512 * 2752)
    make_srd(k, SRD_O, ("ws", WS_H3), S * 2752)
    k.e("s_mov_b32 s%d, %d" % (S_X16, 16 * 1024))
    for mt in range(MT):
        for s in range(KS):
            k.vmem("buffer_load_dwordx4 %s, v%d, %s, %s offen offset:%d" % (
                vr(X[mt][s], 4), vxo, srd(SRD_X), ("s%d" % S_X16) if mt else "0", 64 * s), "x%d" % mt)
    k.e("s_mul_i32 s%d, s%d, %d" % (S_WBASE, S_WAVE, 16 * 2752))
    k.e("s_lshl_b32 s%d, s%d, 6" % (S_T0, S_CB))
    k.e("s_add_u32 s%d, s%d, s%d" % (S_WBASE, S_WBASE, S_T0))
    k.e("s_lshl_b32 s%d, s%d, 10" % (S_WL, S_WAVE))
    for j in range(8):
        for u in range(NU):
            dma(k, w, u * 64 + j * 64 * 2752, u * w.ustride + j * 4096, "w%d" % (j // 2))
    mk = k.mark()
    tmp = k.alloc(12)
    for mt in range(MT):
        k.wait_vm("x%d" % mt)
        layernorm(k, [X[mt][s] + i for s in range(KS) for i in range(4)], tmp)
    k.release(mk)
    gemm_loop(k, w, KS, CS, MT, lambda s, mt: X[mt][s], acc)
    tb = X[0][0]
    k.e("s_mov_b32 s%d, %d" % (S_X16, 16 * 2752))
    for mt in range(MT):
        seqs = []
        for u in range(NU):
            for t in range(2):
                seqs.append(gelu4(acc[u][t][mt], tb + 4 * (2 * u + t)))
        for s_ in interleave(*seqs):
            k.e(s_)
        for u in range(NU):
            for t in range(2):
                i = 2 * u + t
                k.vmem("buffer_store_dwordx2 %s, v%d, %s, %s offen offset:%d" % (
                    vr(acc[u][t][mt], 2), voo, srd(SRD_O), ("s%d" % S_X16) if mt else "0", 32 * i), "st")
    finish(k)
    return k, 256, 3 * 16 * 2048


def k_w4(name, xin, xout):
    k = Kern(name)
    MT, NU, KS, CS = 1, 2, 43, 4
    KCAP = 40
    g = prologue(k, 256, "n512")
    tok_base(k, g, MT, 2752)
    vxo = row_off(k, g, 2752, 4)
    voo = out_off(k, g)
    w = setup_w(k, g, 1024, 3, False, NU, KCAP)
    X = [k.alloc(4, 4) for _ in range(KS)]
    acc = [[[k.alloc(4, 4)] for _ in range(2)] for _ in range(NU)]
    res = [k.alloc(2, 2) for _ in range(4)]
    res1 = [k.alloc(2, 2) for _ in range(4)]
    k.e("s_waitcnt lgkmcnt(0)")
    make_srd(k, SRD_X, ("ws", WS_H3), S * 2752)
    make_srd(k, SRD_W, ("in", IN_W4), F * 1024)
    make_srd(k, SRD_O, xout, XBYTES)
    make_srd(k, SRD_R, xin, XBYTES)
    make_srd(k, SRD_R2, ("ws", WS_X1), XBYTES)
    k.e("s_and_b32 s%d, s%d, 1" % (S_T0, S_WAVE))
    k.e("s_lshr_b32 s%d, s%d, 1" % (S_T1, S_WAVE))
    k.e("s_lshl_b32 s%d, s%d, 6" % (S_WBASE, S_T0))
    k.e("s_lshl_b32 s%d, s%d, 14" % (S_T2, S_T1))
    k.e("s_add_u32 s%d, s%d, s%d" % (S_WBASE, S_WBASE, S_T2))
    k.e("s_lshl_b32 s%d, s%d, 7" % (S_T2, S_CB))
    k.e("s_add_u32 s%d, s%d, s%d" % (S_WBASE, S_WBASE, S_T2))
    k.e("s_mul_i32 s%d, s%d, %d" % (S_WL, S_T0, w.ustride))
    k.e("s_lshl_b32 s%d, s%d, 10" % (S_T2, S_T1))
    k.e("s_add_u32 s%d, s%d, s%d" % (S_WL, S_WL, S_T2))

    def xload(s):
        k.vmem("buffer_load_dwordx4 %s, v%d, %s, 0 offen offset:%d" % (vr(X[s], 4), vxo, srd(SRD_X), 64 * s), "x")

    def wd(j):
        dma(k, w, j * 32 * 1024, (j % KCAP) * 2048, "w%d" % (j // CS))

    for c in range(KCAP // CS):
        for s in range(c * CS, (c + 1) * CS):
            xload(s)
        for s in range(c * CS, (c + 1) * CS):
            wd(s)
    for s in range(KCAP, KS):
        xload(s)
    for i in range(4):
        k.vmem("buffer_load_dwordx2 %s, v%d, %s, 0 offen offset:%d" % (vr(res[i], 2), voo, srd(SRD_R), 32 * i), "res")
        k.vmem("buffer_load_dwordx2 %s, v%d, %s, 0 offen offset:%d" % (vr(res1[i], 2), voo, srd(SRD_R2), 32 * i), "res")

    def late():
        for s in range(KCAP, KS):
            wd(s)

    gemm_loop(k, w, KS, CS, MT, lambda s, mt: X[s], acc, late_dma={1: late})
    tb = X[0]
    seqs = []
    for u in range(2):
        for t in range(2):
            i = 2 * u + t
            a = acc[u][t][0]
            tt = tb + 4 * i
            sq = round4(a) + unpack2(tt, res1[i]) + add4(a, tt) + round4(a) + unpack2(tt, res[i]) + add4(a, tt) + pack2(a, a)
            seqs.append(sq)
    for s_ in interleave(*seqs):
        k.e(s_)
    for u in range(2):
        for t in range(2):
            i = 2 * u + t
            k.vmem("buffer_store_dwordx2 %s, v%d, %s, 0 offen offset:%d" % (vr(acc[u][t][0], 2), voo, srd(SRD_O), 32 * i), "st")
    finish(k)
    return k, 256, 2 * KCAP * 2048


HEADER = """; Kernarg layout for this problem (96 bytes, ptrs only, base s[0:1]):
;   offset  88: d_ws      268435456 bytes workspace
"""


def build():
    kernels = []
    launches = []
    xin0 = ("in", IN_X)
    xa = ("ws", WS_XA)
    xb = ("ws", WS_XB)
    xo = ("in", OUT)

    def add(kk):
        kernels.append(kk)
        launches.append(kk)

    red = k_red("red_kernel")
    w3 = k_w3("w3_kernel")
    for layer, (x0, x2) in enumerate(((xin0, xb), (xb, xo))):
        add(k_qkv("qkv%d_kernel" % layer, x0))
        if layer == 0:
            add(red)
        else:
            launches.append(red)
        add(k_wo("wo%d_kernel" % layer, x0, xa))
        if layer == 0:
            add(k_w1("w1_kernel", xa))
            add(k_w2("w2_kernel", xa))
            add(w3)
        else:
            launches.append(kernels[3])
            launches.append(kernels[4])
            launches.append(w3)
        add(k_w4("w4%d_kernel" % layer, xa, x2))
    out = [HEADER.rstrip("\n")]
    for (k, nwg, lds) in launches:
        out.append("; @launch kernel=%s grid=(%d,1,1) block=(256,1,1) lds=%d" % (k.name, nwg, lds))
    out.append('.amdgcn_target "amdgcn-amd-amdhsa--gfx950"')
    out.append(".text")
    for (k, nwg, lds) in kernels:
        out.append(".globl %s" % k.name)
        out.append(".p2align 8")
        out.append(".type %s,@function" % k.name)
        out.append("%s:" % k.name)
        out += hazard_pass(k.lines)
    out.append('.section .rodata,"a"')
    for (k, nwg, lds) in kernels:
        nv = (k.maxv + 7) // 8 * 8
        out.append(".p2align 6")
        out.append(".amdhsa_kernel %s" % k.name)
        out.append("  .amdhsa_next_free_vgpr %d" % nv)
        out.append("  .amdhsa_next_free_sgpr 102")
        out.append("  .amdhsa_accum_offset %d" % nv)
        out.append("  .amdhsa_group_segment_fixed_size 0")
        out.append("  .amdhsa_kernarg_size 96")
        out.append("  .amdhsa_user_sgpr_count 2")
        out.append("  .amdhsa_user_sgpr_kernarg_segment_ptr 1")
        out.append("  .amdhsa_system_sgpr_workgroup_id_x 1")
        out.append(".end_amdhsa_kernel")
    return "\n".join(out) + "\n"


if __name__ == "__main__":
    path = sys.argv[1] if len(sys.argv) > 1 else "cdna_kernels/%s.s" % NAME
    open(path, "w").write(build())
    print("wrote", path)
```

```python
import sys
import os
import math
import struct

sys.path.insert(0, os.path.dirname(os.path.abspath(__file__)))
from asmlib import Kern, vr, interleave, hazard_pass

NAME = "interleave_layers__linear_kernel_hedgehog__mixer_s_mlp__prompt"
S, D, F = 2048, 512, 1376

IN_X, IN_WQKV, IN_WPHI, IN_WO, IN_BX, IN_W1, IN_W2, IN_W3, IN_W4, OUT, DBG, WS = range(12)


def PTR(i):
    return 64 + 2 * i


MB = 1 << 20
WS_X0 = 0 * MB
WS_XA = 2 * MB
WS_XB = 4 * MB
WS_PHIQ = 6 * MB
WS_KVP = 10 * MB
WS_KVR = 12 * MB
WS_H = 14 * MB
WS_X1 = 16 * MB
WS_H3 = 18 * MB
WS_ST = 24 * MB
ST_X0, ST_XA, ST_XB, ST_X1 = [WS_ST + i * 0x20000 for i in range(4)]
WS_CS = 25 * MB
CS_QKV, CS_W1, CS_W3 = WS_CS, WS_CS + 0x2000, WS_CS + 0x4000

XBYTES = S * D * 2
LOG2E = 1.4426950408889634


def f32bits(x):
    return struct.unpack("<I", struct.pack("<f", x))[0]


def make_srd(k, slot, buf, size):
    kind = buf[0]
    if kind == "ws":
        off = buf[1]
        k.e("s_add_u32 s%d, s%d, 0x%x" % (slot, PTR(WS), off))
        k.e("s_addc_u32 s%d, s%d, 0" % (slot + 1, PTR(WS) + 1))
    else:
        idx = buf[1]
        k.e("s_mov_b32 s%d, s%d" % (slot, PTR(idx)))
        k.e("s_mov_b32 s%d, s%d" % (slot + 1, PTR(idx) + 1))
    k.e("s_mov_b32 s%d, 0x%x" % (slot + 2, size))
    k.e("s_mov_b32 s%d, 0x00020000" % (slot + 3))


def srd(slot):
    return "s[%d:%d]" % (slot, slot + 3)


S_WAVE, S_RB, S_CB, S_WBASE, S_WL, S_T0, S_T1, S_T2 = 32, 33, 34, 35, 36, 37, 38, 39
S_ONES, S_L2E, S_EPS, S_C1, S_C2, S_XO = 40, 41, 42, 43, 44, 45
S_TOKB, S_OB = 46, 47
SRD_X, SRD_W, SRD_O, SRD_R, SRD_R2, SRD_R3 = 8, 12, 16, 20, 24, 28
SRD_S, SRD_SO = 48, 52
SRD_C = 56

STAMP = int(os.environ.get("STAMP", "0"))
STAMP_SLOTS = list(range(60, 64)) + list(range(90, 102))


class G:
    pass


def stamp(k):
    if not STAMP:
        return
    i = getattr(k, "nstamp", 0)
    k.nstamp = i + 1
    k.e("s_memtime s[88:89]")
    k.e("s_waitcnt lgkmcnt(0)")
    k.e("s_mov_b32 s%d, s88" % STAMP_SLOTS[i])


def finish(k):
    if STAMP:
        stamp(k)
        k.e("s_waitcnt vmcnt(0)")
        stamp(k)
        k.e("s_cmp_lg_u32 s2, %d" % (STAMP - 1))
        k.e("s_cbranch_scc1 L_end_%s" % k.name)
        k.e("v_cmp_gt_u32 vcc, 64, v0")
        k.e("s_cbranch_vccz L_end_%s" % k.name)
        make_srd(k, 8, ("in", DBG), 256)
        k.e("v_mov_b32 v1, 0")
        for i in range(k.nstamp):
            k.e("v_mov_b32 v2, s%d" % STAMP_SLOTS[i])
            k.e("buffer_store_dword v2, v1, s[8:11], 0 offen offset:%d" % (4 * i))
            k.e("s_nop 1")
    k.label("L_end_%s" % k.name)
    k.e("s_endpgm")


def prologue(k, nwg, wide):
    g = G()
    k.e("s_cmp_ge_u32 s2, %d" % nwg)
    k.e("s_cbranch_scc1 L_end_%s" % k.name)
    stamp(k)
    k.e("s_load_dwordx16 s[64:79], s[0:1], 0")
    k.e("s_load_dwordx8 s[80:87], s[0:1], 64")
    g.w = k.alloc()
    g.l = k.alloc()
    g.g = k.alloc()
    g.m = k.alloc()
    g.lin = k.alloc()
    k.e("v_lshrrev_b32 v%d, 6, v0" % g.w)
    k.e("v_and_b32 v%d, 63, v0" % g.l)
    k.e("v_readfirstlane_b32 s%d, v%d" % (S_WAVE, g.w))
    k.e("v_lshrrev_b32 v%d, 4, v%d" % (g.g, g.l))
    k.e("v_and_b32 v%d, 15, v%d" % (g.m, g.l))
    k.e("v_lshlrev_b32 v%d, 4, v%d" % (g.lin, g.l))
    k.e("s_and_b32 s%d, s2, 7" % S_T0)
    k.e("s_lshr_b32 s%d, s2, 3" % S_T1)
    if wide == "n512":
        k.e("s_lshr_b32 s%d, s%d, 3" % (S_RB, S_T1))
        k.e("s_lshl_b32 s%d, s%d, 2" % (S_T2, S_T0))
        k.e("s_add_u32 s%d, s%d, s%d" % (S_RB, S_RB, S_T2))
        k.e("s_and_b32 s%d, s%d, 7" % (S_CB, S_T1))
    else:
        k.e("s_lshr_b32 s%d, s%d, 4" % (S_RB, S_T1))
        k.e("s_lshl_b32 s%d, s%d, 1" % (S_T2, S_T0))
        k.e("s_add_u32 s%d, s%d, s%d" % (S_RB, S_RB, S_T2))
        k.e("s_and_b32 s%d, s%d, 15" % (S_CB, S_T1))
    k.e("s_mov_b32 s%d, 0x3f803f80" % S_ONES)
    k.e("s_mov_b32 s%d, 0x%08x" % (S_L2E, f32bits(LOG2E)))
    return g


def allreduce(x, t, op):
    return [
        "v_mov_b32 v%d, v%d" % (t, x),
        "v_permlane32_swap_b32 v%d, v%d" % (x, t),
        "%s v%d, v%d, v%d" % (op, x, x, t),
        "v_mov_b32 v%d, v%d" % (t, x),
        "v_permlane16_swap_b32 v%d, v%d" % (x, t),
        "%s v%d, v%d, v%d" % (op, x, x, t),
    ]


def round_bf16(x):
    return ["v_cvt_pk_bf16_f32 v%d, v%d, v%d" % (x, x, x), "v_lshlrev_b32 v%d, 16, v%d" % (x, x)]


def stats_finish(st, double=False):
    o = []
    s_, q_, t0, t1 = st, st + 1, st + 2, st + 3
    o.append("v_add_f32 v%d, v%d, v%d" % (s_, st, st + 2))
    o.append("v_add_f32 v%d, v%d, v%d" % (q_, st + 1, st + 3))
    o += interleave(allreduce(s_, t0, "v_add_f32"), allreduce(q_, t1, "v_add_f32"))
    o.append("v_mul_f32 v%d, 0x%08x, v%d" % (s_, f32bits(1.0 / 512), s_))
    o.append("v_mul_f32 v%d, 0x%08x, v%d" % (q_, f32bits(1.0 / 512), q_))
    o.append("v_fma_f32 v%d, -v%d, v%d, v%d" % (q_, s_, s_, q_))
    o.append("v_max_f32 v%d, 0, v%d" % (q_, q_))
    o.append("v_add_f32 v%d, 0x%08x, v%d" % (t0, f32bits(1e-5), q_))
    o.append("v_rsq_f32 v%d, v%d" % (t0, t0))
    if double:
        o.append("v_mul_f32 v%d, v%d, v%d" % (t1, t0, t0))
        o.append("v_fma_f32 v%d, v%d, v%d, 0x%08x" % (t1, t1, q_, f32bits(1e-5)) if False else
                 "v_mul_f32 v%d, v%d, v%d" % (t1, t1, q_))
        o.append("v_add_f32 v%d, 0x%08x, v%d" % (t1, f32bits(1e-5), t1))
        o.append("v_rsq_f32 v%d, v%d" % (t1, t1))
        o.append("s_nop 0")
        o.append("v_mul_f32 v%d, v%d, v%d" % (t0, t0, t1))
    o.append("v_mul_f32 v%d, v%d, v%d" % (st + 1, s_, t0))
    o.append("v_sub_f32 v%d, 0, v%d" % (st + 1, st + 1))
    o.append("v_mov_b32 v%d, v%d" % (st, t0))
    return o


def gelu4(a, t, dst):
    o = []
    o.append("v_cvt_pk_bf16_f32 v%d, v%d, v%d" % (t, a, a + 1))
    o.append("v_cvt_pk_bf16_f32 v%d, v%d, v%d" % (t + 1, a + 2, a + 3))
    o.append("v_lshlrev_b32 v%d, 16, v%d" % (a, t))
    o.append("v_and_b32 v%d, 0xffff0000, v%d" % (a + 1, t))
    o.append("v_lshlrev_b32 v%d, 16, v%d" % (a + 2, t + 1))
    o.append("v_and_b32 v%d, 0xffff0000, v%d" % (a + 3, t + 1))
    for i in range(4):
        o.append("v_mul_f32 v%d, v%d, v%d" % (t + i, a + i, a + i))
    for i in range(4):
        o.append("v_fma_f32 v%d, v%d, s%d, 1.0" % (t + i, t + i, S_C1))
    for i in range(4):
        o.append("v_mul_f32 v%d, v%d, v%d" % (t + i, t + i, a + i))
    for i in range(4):
        o.append("v_mul_f32 v%d, s%d, v%d" % (t + i, S_C2, t + i))
    for i in range(4):
        o.append("v_exp_f32 v%d, v%d" % (t + i, t + i))
    for i in range(4):
        o.append("v_add_f32 v%d, 1.0, v%d" % (t + i, t + i))
    for i in range(4):
        o.append("v_rcp_f32 v%d, v%d" % (t + i, t + i))
    for i in range(4):
        o.append("v_mul_f32 v%d, v%d, v%d" % (t + i, a + i, t + i))
    o.append("v_cvt_pk_bf16_f32 v%d, v%d, v%d" % (dst, t, t + 1))
    o.append("v_cvt_pk_bf16_f32 v%d, v%d, v%d" % (dst + 1, t + 2, t + 3))
    return o


def gelu_consts(k):
    k.e("s_mov_b32 s%d, 0x%08x" % (S_C1, f32bits(0.044715)))
    k.e("s_mov_b32 s%d, 0x%08x" % (S_C2, f32bits(-2.0 * LOG2E * math.sqrt(2.0 / math.pi))))


def ln_apply(a, cs, st, t):
    o = []
    for i in range(4):
        o.append("v_mul_f32 v%d, v%d, v%d" % (t + i, cs + i, st + 1))
    for i in range(4):
        o.append("v_fma_f32 v%d, v%d, v%d, v%d" % (a + i, a + i, st, t + i))
    return o


class W:
    pass


def setup_w(k, g, wrow, swz_bit, k2map, NU, KCAP_STEPS):
    w = W()
    w.wrow = wrow
    w.NU = NU
    w.kcap = KCAP_STEPS
    w.ustride = KCAP_STEPS * 32 * 64
    w.k2map = k2map
    w.vwo = k.alloc()
    t = k.alloc()
    t2 = k.alloc()
    k.e("v_lshrrev_b32 v%d, 2, v%d" % (t, g.l))
    k.e("s_mov_b32 s%d, %d" % (S_T0, wrow))
    k.e("v_mul_lo_u32 v%d, s%d, v%d" % (w.vwo, S_T0, t))
    k.e("v_lshrrev_b32 v%d, %d, v%d" % (t, 2 + swz_bit - 1, g.l))
    k.e("v_and_b32 v%d, 2, v%d" % (t, t))
    k.e("v_and_b32 v%d, 3, v%d" % (t2, g.l))
    k.e("v_xor_b32 v%d, v%d, v%d" % (t, t, t2))
    k.e("v_lshl_add_u32 v%d, v%d, 4, v%d" % (w.vwo, t, w.vwo))
    w.tb = {}
    b0 = k.alloc()
    b1 = k.alloc()
    k.e("v_lshrrev_b32 v%d, 2, v%d" % (t, g.l))
    k.e("v_and_b32 v%d, 3, v%d" % (t, t))
    k.e("v_lshlrev_b32 v%d, 6, v%d" % (t, t))
    k.e("v_lshl_add_u32 v%d, v%d, 3, v%d" % (t, t2, t))
    k.e("v_lshl_add_u32 v%d, v%d, %d, v%d" % (t, g.g, 8 if k2map else 9, t))
    k.e("v_and_b32 v%d, 1, v%d" % (t2, g.g))
    k.e("v_lshl_add_u32 v%d, v%d, 5, v%d" % (b0, t2, t))
    k.e("v_xor_b32 v%d, 1, v%d" % (t2, t2))
    k.e("v_lshl_add_u32 v%d, v%d, 5, v%d" % (b1, t2, t))
    w.tb[(0, 0)] = b0
    w.tb[(1, 0)] = b1
    nhi = (NU * w.ustride + 65535) // 65536
    for h in range(1, nhi):
        for tt in (0, 1):
            r = k.alloc()
            k.e("v_add_u32 v%d, 0x%x, v%d" % (r, 65536 * h, w.tb[(tt, 0)]))
            w.tb[(tt, h)] = r
    return w


def tr_reads(k, w, dst, u, t, s):
    sp = s % w.kcap
    for hs in (0, 1):
        off = u * w.ustride + 2048 * sp + (1024 if w.k2map else 256) * hs
        h, o = off >> 16, off & 0xffff
        k.e("ds_read_b64_tr_b16 %s, v%d offset:%d" % (vr(dst + 2 * hs, 2), w.tb[(t, h)], o))


def dma(k, w, soff, m0off, tag):
    k.e("s_add_u32 s%d, s%d, 0x%x" % (S_T0, S_WBASE, soff))
    k.e("s_add_u32 m0, s%d, 0x%x" % (S_WL, m0off))
    k.vmem("buffer_load_dwordx4 v%d, %s, s%d offen lds" % (w.vwo, srd(SRD_W), S_T0), tag)


def gemm_loop(k, w, KS, CS, MT, xfrag, acc, late_dma=None, mid=None):
    NU = w.NU
    frags = [(u, t) for u in range(NU) for t in (0, 1)]
    n = len(frags)
    wb = [[k.alloc(4, 4) for _ in frags] for _ in range(2)]
    stamp(k)
    k.wait_vm("c0")
    k.e("s_barrier")
    stamp(k)
    for i, (u, t) in enumerate(frags):
        tr_reads(k, w, wb[0][i], u, t, 0)
    first = set()
    for s in range(KS):
        for i, (u, t) in enumerate(frags):
            if s + 1 < KS:
                if i == 0 and (s + 1) % CS == 0:
                    c = (s + 1) // CS
                    k.wait_vm("c%d" % c)
                    k.e("s_barrier")
                    if late_dma and c in late_dma:
                        late_dma[c]()
                tr_reads(k, w, wb[(s + 1) % 2][i], u, t, s + 1)
                k.e("s_waitcnt lgkmcnt(%d)" % (2 * n))
            else:
                k.e("s_waitcnt lgkmcnt(%d)" % (2 * (n - 1 - i)))
            for mt in range(MT):
                a = acc[u][t][mt]
                cin = vr(a, 4) if (u, t, mt) in first else "0"
                first.add((u, t, mt))
                k.e("v_mfma_f32_16x16x32_bf16 %s, %s, %s, %s" % (vr(a, 4), vr(wb[s % 2][i], 4), vr(xfrag(s, mt), 4), cin))
        if mid and s in mid:
            mid[s]()
    stamp(k)
    return [r for l in wb for r in l]


def tok_base(k, MT):
    k.e("s_mul_i32 s%d, s%d, %d" % (S_TOKB, S_RB, 64 * MT))
    k.e("s_mul_i32 s%d, s%d, %d" % (S_T0, S_WAVE, 16 * MT))
    k.e("s_add_u32 s%d, s%d, s%d" % (S_TOKB, S_TOKB, S_T0))


def t16_base(k, sreg, K):
    k.e("s_mul_i32 s%d, s%d, %d" % (sreg, S_TOKB, K * 2))


def xload(k, g, dst, K, mt, s, tag, vaddr=None):
    off = mt * K * 32 + s * 1024
    hi, lo = off // 4096 * 4096, off % 4096
    if getattr(k, "_xhi", None) != hi:
        k.e("s_add_u32 s%d, s%d, 0x%x" % (S_T1, S_XO, hi))
        k._xhi = hi
    k.vmem("buffer_load_dwordx4 %s, v%d, %s, s%d offen offset:%d" % (
        vr(dst, 4), g.lin if vaddr is None else vaddr, srd(SRD_X), S_T1, lo), tag)


def stats_load(k, g, MT):
    v = k.alloc()
    k.e("v_add_u32 v%d, s%d, v%d" % (v, S_TOKB, g.m))
    k.e("v_lshlrev_b32 v%d, 6, v%d" % (v, v))
    k.e("v_lshl_add_u32 v%d, v%d, 4, v%d" % (v, g.g, v))
    st = [k.alloc(4, 4) for _ in range(MT)]

    def issue():
        for mt in range(MT):
            k.vmem("buffer_load_dwordx4 %s, v%d, %s, 0 offen offset:%d" % (vr(st[mt], 4), v, srd(SRD_S), 1024 * mt), "stat")
    return st, issue


def swz_off(k, g):
    r = k.alloc()
    t = k.alloc()
    k.e("v_and_b32 v%d, 1, v%d" % (t, g.g))
    k.e("v_lshlrev_b32 v%d, 9, v%d" % (r, t))
    k.e("v_lshrrev_b32 v%d, 1, v%d" % (t, g.g))
    k.e("v_lshl_add_u32 v%d, v%d, 8, v%d" % (r, t, r))
    k.e("v_lshl_add_u32 v%d, v%d, 4, v%d" % (r, g.m, r))
    return r


def swap_pair(p):
    return ["v_permlane16_swap_b32 v%d, v%d" % (p, p + 2), "v_permlane16_swap_b32 v%d, v%d" % (p + 1, p + 3)]


def unpack2(dst, src):
    return [
        "v_lshlrev_b32 v%d, 16, v%d" % (dst, src),
        "v_and_b32 v%d, 0xffff0000, v%d" % (dst + 1, src),
        "v_lshlrev_b32 v%d, 16, v%d" % (dst + 2, src + 1),
        "v_and_b32 v%d, 0xffff0000, v%d" % (dst + 3, src + 1),
    ]


def pack2(dst, src):
    return [
        "v_cvt_pk_bf16_f32 v%d, v%d, v%d" % (dst, src, src + 1),
        "v_cvt_pk_bf16_f32 v%d, v%d, v%d" % (dst + 1, src + 2, src + 3),
    ]


def round4(a):
    return ["v_cvt_pk_bf16_f32 v%d, v%d, v%d" % (a, a, a + 1),
            "v_cvt_pk_bf16_f32 v%d, v%d, v%d" % (a + 2, a + 2, a + 3),
            "v_and_b32 v%d, 0xffff0000, v%d" % (a + 1, a),
            "v_and_b32 v%d, 0xffff0000, v%d" % (a + 3, a + 2),
            "v_lshlrev_b32 v%d, 16, v%d" % (a, a),
            "v_lshlrev_b32 v%d, 16, v%d" % (a + 2, a + 2)]


def add4(a, b):
    return ["v_add_f32 v%d, v%d, v%d" % (a + i, a + i, b + i) for i in range(4)]


def stats_store(k, g, packed, t):
    s_, q_, t0, t1 = t, t + 1, t + 2, t + 3
    for i, r in enumerate(packed):
        k.e("v_dot2_f32_bf16 v%d, v%d, s%d, %s" % (s_, r, S_ONES, "0" if i == 0 else "v%d" % s_))
        k.e("v_dot2_f32_bf16 v%d, v%d, v%d, %s" % (q_, r, r, "0" if i == 0 else "v%d" % q_))
    for s in interleave(allreduce(s_, t0, "v_add_f32"), allreduce(q_, t1, "v_add_f32")):
        k.e(s)
    k.e("v_add_u32 v%d, s%d, v%d" % (t0, S_TOKB, g.m))
    k.e("v_lshlrev_b32 v%d, 6, v%d" % (t0, t0))
    k.e("s_lshl_b32 s%d, s%d, 3" % (S_T0, S_CB))
    k.e("s_mov_b64 exec, 0xffff")
    k.vmem("buffer_store_dwordx2 %s, v%d, %s, s%d offen" % (vr(s_, 2), t0, srd(SRD_SO), S_T0), "st")
    k.e("s_mov_b64 exec, -1")


def k_prep(name):
    k = Kern(name)
    NCS = 24 + 8 + 22
    k.e("s_cmp_ge_u32 s2, %d" % (128 + NCS))
    k.e("s_cbranch_scc1 L_end_%s" % k.name)
    stamp(k)
    k.e("s_load_dwordx16 s[64:79], s[0:1], 0")
    k.e("s_load_dwordx8 s[80:87], s[0:1], 64")
    w_, l_ = k.alloc(), k.alloc()
    k.e("v_lshrrev_b32 v%d, 6, v0" % w_)
    k.e("v_and_b32 v%d, 63, v0" % l_)
    k.e("v_readfirstlane_b32 s%d, v%d" % (S_WAVE, w_))
    k.e("s_mov_b32 s%d, 0x3f803f80" % S_ONES)
    k.e("s_cmp_ge_u32 s2, 128")
    k.e("s_cbranch_scc1 L_cs_%s" % k.name)
    vl, vd = k.alloc(), k.alloc()
    k.e("v_lshlrev_b32 v%d, 4, v%d" % (vl, l_))
    k.e("v_lshlrev_b32 v%d, 8, v%d" % (vd, l_))
    k.e("s_lshl_b32 s%d, s2, 14" % S_T0)
    k.e("s_lshl_b32 s%d, s%d, 12" % (S_T1, S_WAVE))
    k.e("s_add_u32 s%d, s%d, s%d" % (S_T1, S_T1, S_T0))
    k.e("s_lshl_b32 s%d, s%d, 6" % (S_T2, S_WAVE))
    k.e("s_add_u32 s%d, s%d, s%d" % (S_T2, S_T2, S_T0))
    k.e("s_waitcnt lgkmcnt(0)")
    make_srd(k, SRD_X, ("in", IN_X), XBYTES)
    make_srd(k, SRD_O, ("ws", WS_X0), XBYTES)
    make_srd(k, SRD_SO, ("ws", ST_X0), S * 64)
    R = [k.alloc(4, 4) for _ in range(4)]
    for i in range(4):
        k.vmem("buffer_load_dwordx4 %s, v%d, %s, s%d offen offset:%d" % (vr(R[i], 4), vl, srd(SRD_X), S_T1, 1024 * i), "x%d" % i)
    sq = [k.alloc(4, 4) for _ in range(4)]
    for i in range(4):
        k.wait_vm("x%d" % i)
        k.vmem("buffer_store_dwordx4 %s, v%d, %s, s%d offen offset:%d" % (vr(R[i], 4), vd, srd(SRD_O), S_T2, 16 * i), "st")
        s_, q_ = sq[i], sq[i] + 1
        for j in range(4):
            k.e("v_dot2_f32_bf16 v%d, v%d, s%d, %s" % (s_, R[i] + j, S_ONES, "0" if j == 0 else "v%d" % s_))
            k.e("v_dot2_f32_bf16 v%d, v%d, v%d, %s" % (q_, R[i] + j, R[i] + j, "0" if j == 0 else "v%d" % q_))
    for rot in (8, 4, 2, 1):
        for i in range(4):
            for r in (sq[i], sq[i] + 1):
                k.e("v_add_f32_dpp v%d, v%d, v%d row_ror:%d row_mask:0xf bank_mask:0xf" % (r, r, r, rot))
    for i in range(4):
        for s in interleave(allreduce(sq[i], sq[i] + 2, "v_add_f32"), allreduce(sq[i] + 1, sq[i] + 3, "v_add_f32")):
            k.e(s)
    vz = k.alloc()
    k.e("v_cmp_eq_u32 vcc, 0, v%d" % l_)
    for i in range(4):
        k.e("v_cndmask_b32 v%d, 0, v%d, vcc" % (sq[i], sq[i]))
        k.e("v_cndmask_b32 v%d, 0, v%d, vcc" % (sq[i] + 1, sq[i] + 1))
    k.e("v_lshlrev_b32 v%d, 3, v%d" % (vz, l_))
    k.e("s_lshl_b32 s%d, s2, 10" % S_T0)
    k.e("s_lshl_b32 s%d, s%d, 8" % (S_T1, S_WAVE))
    k.e("s_add_u32 s%d, s%d, s%d" % (S_T0, S_T0, S_T1))
    k.e("s_mov_b64 exec, 0xff")
    for i in range(4):
        k.vmem("buffer_store_dwordx2 %s, v%d, %s, s%d offen offset:%d" % (vr(sq[i], 2), vz, srd(SRD_SO), S_T0, 64 * i), "st")
    k.e("s_mov_b64 exec, -1")
    k.e("s_branch L_end_%s" % k.name)
    k.label("L_cs_%s" % k.name)
    k.e("s_sub_u32 s%d, s2, 128" % S_T0)
    k.e("s_waitcnt lgkmcnt(0)")
    k.e("s_mov_b32 s%d, s%d" % (SRD_W, PTR(IN_WQKV)))
    k.e("s_mov_b32 s%d, s%d" % (SRD_W + 1, PTR(IN_WQKV) + 1))
    k.e("s_mov_b32 s%d, %d" % (SRD_W + 2, 512 * 3072))
    k.e("s_mov_b32 s%d, 0x00020000" % (SRD_W + 3))
    k.e("s_mov_b32 s%d, 3072" % S_T1)
    k.e("s_mov_b32 s%d, 0" % S_T2)
    k.e("s_cmp_lt_u32 s%d, 24" % S_T0)
    k.e("s_cbranch_scc1 L_sel_%s" % k.name)
    k.e("s_mov_b32 s%d, s%d" % (SRD_W, PTR(IN_W1)))
    k.e("s_mov_b32 s%d, s%d" % (SRD_W + 1, PTR(IN_W1) + 1))
    k.e("s_mov_b32 s%d, %d" % (SRD_W + 2, 512 * 1024))
    k.e("s_mov_b32 s%d, 1024" % S_T1)
    k.e("s_mov_b32 s%d, 0x2000" % S_T2)
    k.e("s_sub_u32 s%d, s%d, 24" % (S_T0, S_T0))
    k.e("s_cmp_lt_u32 s%d, 8" % S_T0)
    k.e("s_cbranch_scc1 L_sel_%s" % k.name)
    k.e("s_mov_b32 s%d, s%d" % (SRD_W, PTR(IN_W3)))
    k.e("s_mov_b32 s%d, s%d" % (SRD_W + 1, PTR(IN_W3) + 1))
    k.e("s_mov_b32 s%d, %d" % (SRD_W + 2, 512 * 2752))
    k.e("s_mov_b32 s%d, 2752" % S_T1)
    k.e("s_mov_b32 s%d, 0x4000" % S_T2)
    k.e("s_sub_u32 s%d, s%d, 8" % (S_T0, S_T0))
    k.label("L_sel_%s" % k.name)
    make_srd(k, SRD_O, ("ws", WS_CS), 0x6000)
    k.release(3)
    va, vt, vc = k.alloc(), k.alloc(), k.alloc()
    k.e("v_lshrrev_b32 v%d, 5, v0" % vt)
    k.e("v_lshlrev_b32 v%d, 6, v%d" % (vt, vt))
    k.e("v_mul_lo_u32 v%d, s%d, v%d" % (va, S_T1, vt))
    k.e("v_and_b32 v%d, 31, v0" % vc)
    k.e("v_lshl_add_u32 v%d, v%d, 2, v%d" % (va, vc, va))
    k.e("s_lshl_b32 s%d, s%d, 7" % (S_WBASE, S_T0))
    k.e("v_lshl_add_u32 v%d, v%d, 2, s%d" % (vt, vc, S_WBASE))
    k.e("v_cmp_le_u32 vcc, s%d, v%d" % (S_T1, vt))
    k.e("v_mov_b32 v%d, 0x7ffffff0" % vt)
    k.e("v_cndmask_b32 v%d, v%d, v%d, vcc" % (va, va, vt))
    L = [k.alloc() for _ in range(64)]
    for i in range(64):
        k.vmem("buffer_load_dword v%d, v%d, %s, s%d offen" % (L[i], va, srd(SRD_W), S_WBASE), "l%d" % (i // 8))
        if i < 63:
            k.e("s_add_u32 s%d, s%d, s%d" % (S_WBASE, S_WBASE, S_T1))
    lo, hi, t0, t1 = k.alloc(2, 2), None, k.alloc(), k.alloc()
    hi = lo + 1
    k.e("v_mov_b32 v%d, 0" % lo)
    k.e("v_mov_b32 v%d, 0" % hi)
    for i in range(64):
        if i % 8 == 0:
            k.wait_vm("l%d" % (i // 8))
        k.e("v_lshlrev_b32 v%d, 16, v%d" % (t0, L[i]))
        k.e("v_and_b32 v%d, 0xffff0000, v%d" % (t1, L[i]))
        k.e("v_add_f32 v%d, v%d, v%d" % (lo, lo, t0))
        k.e("v_add_f32 v%d, v%d, v%d" % (hi, hi, t1))
    k.e("v_lshlrev_b32 v%d, 3, v0" % t0)
    k.e("ds_write_b64 v%d, %s" % (t0, vr(lo, 2)))
    k.e("s_waitcnt lgkmcnt(0)")
    k.e("s_barrier")
    k.e("v_lshlrev_b32 v%d, 3, v%d" % (t0, vc))
    rr = [k.alloc(2, 2) for _ in range(8)]
    for i in range(8):
        k.e("ds_read_b64 %s, v%d offset:%d" % (vr(rr[i], 2), t0, 256 * i))
    k.e("s_waitcnt lgkmcnt(0)")
    for i in range(1, 8):
        k.e("v_add_f32 v%d, v%d, v%d" % (rr[0], rr[0], rr[i]))
        k.e("v_add_f32 v%d, v%d, v%d" % (rr[0] + 1, rr[0] + 1, rr[i] + 1))
    k.e("s_lshl_b32 s%d, s%d, 8" % (S_T0, S_T0))
    k.e("s_add_u32 s%d, s%d, s%d" % (S_T0, S_T0, S_T2))
    k.e("v_cmp_gt_u32 vcc, 32, v0")
    k.e("s_and_b64 exec, exec, vcc")
    k.vmem("buffer_store_dwordx2 %s, v%d, %s, s%d offen" % (vr(rr[0], 2), t0, srd(SRD_O), S_T0), "st")
    k.label("L_end_%s" % k.name)
    k.e("s_endpgm")
    return k, 128 + NCS, 2048


def softmax_pair(p, t, outp):
    mx, mn, t0, t1 = t, t + 1, t + 2, t + 3
    ep = [t + 4 + i for i in range(4)]
    em = [t + 8 + i for i in range(4)]
    o = []
    o.append("v_max3_f32 v%d, v%d, v%d, v%d" % (mx, p, p + 1, p + 2))
    o.append("v_min3_f32 v%d, v%d, v%d, v%d" % (mn, p, p + 1, p + 2))
    o.append("v_max_f32 v%d, v%d, v%d" % (mx, mx, p + 3))
    o.append("v_min_f32 v%d, v%d, v%d" % (mn, mn, p + 3))
    o += interleave(allreduce(mx, t0, "v_max_f32"), allreduce(mn, t1, "v_min_f32"))
    o.append("v_mul_f32 v%d, s%d, v%d" % (mx, S_L2E, mx))
    o.append("v_mul_f32 v%d, s%d, v%d" % (mn, S_L2E, mn))
    for i in range(4):
        o.append("v_fma_f32 v%d, v%d, s%d, -v%d" % (ep[i], p + i, S_L2E, mx))
        o.append("v_fma_f32 v%d, -v%d, s%d, v%d" % (em[i], p + i, S_L2E, mn))
    for i in range(4):
        o.append("v_exp_f32 v%d, v%d" % (ep[i], ep[i]))
        o.append("v_exp_f32 v%d, v%d" % (em[i], em[i]))
    sp, sm = mx, mn
    o.append("v_add_f32 v%d, v%d, v%d" % (sp, ep[0], ep[1]))
    o.append("v_add_f32 v%d, v%d, v%d" % (sm, em[0], em[1]))
    o.append("v_add_f32 v%d, v%d, v%d" % (t0, ep[2], ep[3]))
    o.append("v_add_f32 v%d, v%d, v%d" % (t1, em[2], em[3]))
    o.append("v_add_f32 v%d, v%d, v%d" % (sp, sp, t0))
    o.append("v_add_f32 v%d, v%d, v%d" % (sm, sm, t1))
    o += interleave(allreduce(sp, t0, "v_add_f32"), allreduce(sm, t1, "v_add_f32"))
    o.append("v_rcp_f32 v%d, v%d" % (sp, sp))
    o.append("v_rcp_f32 v%d, v%d" % (sm, sm))
    o.append("s_nop 0")
    for i in range(4):
        o.append("v_mul_f32 v%d, v%d, v%d" % (ep[i], ep[i], sp))
        o.append("v_mul_f32 v%d, v%d, v%d" % (em[i], em[i], sm))
    o.append("v_cvt_pk_bf16_f32 v%d, v%d, v%d" % (outp, ep[0], ep[1]))
    o.append("v_cvt_pk_bf16_f32 v%d, v%d, v%d" % (outp + 1, ep[2], ep[3]))
    o.append("v_cvt_pk_bf16_f32 v%d, v%d, v%d" % (outp + 2, em[0], em[1]))
    o.append("v_cvt_pk_bf16_f32 v%d, v%d, v%d" % (outp + 3, em[2], em[3]))
    return o


def k_qkv(name, xin, stin):
    k = Kern(name)
    MT, NU, KS, CS = 2, 3, 16, 4
    g = prologue(k, 256, "wide")
    tok_base(k, MT)
    t16_base(k, S_XO, 512)
    w = setup_w(k, g, 3072, 3, False, NU, KS)
    vph = k.alloc()
    k.e("v_lshlrev_b32 v%d, 7, v%d" % (vph, g.g))
    k.e("v_lshl_add_u32 v%d, v%d, 1, v%d" % (vph, g.m, vph))
    k.e("s_lshl_b32 s%d, s%d, 10" % (S_T0, S_CB))
    k.e("v_add_u32 v%d, s%d, v%d" % (vph, S_T0, vph))
    st, st_issue = stats_load(k, g, MT)
    vcs = k.alloc()
    k.e("v_lshlrev_b32 v%d, 4, v%d" % (vcs, g.g))
    X = [[k.alloc(4, 4) for _ in range(KS)] for _ in range(MT)]
    cs = [[X[0][2 * u + tt] for tt in range(2)] for u in range(NU)]
    wphi = [X[0][6], X[0][6] + 2]
    wphi_hi = [X[0][7], X[0][7] + 2]
    acc = [[[k.alloc(4, 4) for _ in range(MT)] for _ in range(2)] for _ in range(NU)]
    k.e("s_waitcnt lgkmcnt(0)")
    make_srd(k, SRD_X, xin, XBYTES)
    make_srd(k, SRD_W, ("in", IN_WQKV), 512 * 3072)
    make_srd(k, SRD_R, ("in", IN_WPHI), 32 * 512)
    make_srd(k, SRD_O, ("ws", WS_PHIQ), S * 2048)
    make_srd(k, SRD_R2, ("ws", WS_KVP), 16 * 32 * 4096)
    make_srd(k, SRD_S, ("ws", stin), S * 64)
    make_srd(k, SRD_C, ("ws", CS_QKV), 1536 * 4)
    k.e("s_mul_i32 s%d, s%d, %d" % (S_WBASE, S_WAVE, 16 * 3072))
    k.e("s_lshl_b32 s%d, s%d, 6" % (S_T0, S_CB))
    k.e("s_add_u32 s%d, s%d, s%d" % (S_WBASE, S_WBASE, S_T0))
    k.e("s_lshl_b32 s%d, s%d, 10" % (S_WL, S_WAVE))
    for c in range(KS // CS):
        for mt in range(MT):
            for s in range(c * CS, (c + 1) * CS):
                xload(k, g, X[mt][s], 512, mt, s, "c%d" % c)
        for j in range(2 * c, 2 * c + 2):
            for u in range(NU):
                dma(k, w, u * 1024 + j * 64 * 3072, u * w.ustride + j * 4096, "c%d" % c)
    st_issue()

    def cs_issue():
        k.e("s_lshl_b32 s%d, s%d, 7" % (S_T0, S_CB))
        for u in range(NU):
            if u:
                k.e("s_add_u32 s%d, s%d, 2048" % (S_T0, S_T0))
            for tt in range(2):
                k.vmem("buffer_load_dwordx4 %s, v%d, %s, s%d offen offset:%d" % (
                    vr(cs[u][tt], 4), vcs, srd(SRD_C), S_T0, tt * 64), "stat")
        for hh in range(2):
            for j in range(4):
                k.vmem("buffer_load_ushort v%d, v%d, %s, 0 offen offset:%d" % (
                    (wphi[hh] if j & 1 == 0 else wphi_hi[hh]) + (j >> 1), vph, srd(SRD_R), 512 * hh + 32 * j), "stat")
    wbr = gemm_loop(k, w, KS, CS, MT, lambda s, mt: X[mt][s], acc, mid={8: cs_issue})
    xb = X[0][0]
    pool = [xb + 32]

    def ta(n, al=2):
        b = (pool[0] + al - 1) // al * al
        pool[0] = b + n
        assert pool[0] <= xb + 128
        return b

    ident = ta(2)
    ones = ta(2)
    t = ta(1)
    t2 = ta(1)
    k.e("v_mov_b32 v%d, 0x3f803f80" % ones)
    k.e("v_mov_b32 v%d, 0x3f803f80" % (ones + 1))
    k.e("v_and_b32 v%d, 1, v%d" % (t, g.m))
    k.e("v_lshlrev_b32 v%d, 4, v%d" % (t, t))
    k.e("v_mov_b32 v%d, 0x3f80" % t2)
    k.e("v_lshlrev_b32 v%d, v%d, v%d" % (t2, t, t2))
    k.e("v_lshrrev_b32 v%d, 2, v%d" % (t, g.m))
    k.e("v_cmp_eq_u32 vcc, v%d, v%d" % (t, g.g))
    k.e("v_cndmask_b32 v%d, 0, v%d, vcc" % (t2, t2))
    k.e("v_and_b32 v%d, 2, v%d" % (t, g.m))
    k.e("v_cmp_eq_u32 vcc, 0, v%d" % t)
    k.e("v_cndmask_b32 v%d, 0, v%d, vcc" % (ident, t2))
    k.e("v_cndmask_b32 v%d, v%d, 0, vcc" % (ident + 1, t2))
    k.wait_vm("stat")
    for s_ in interleave(*[stats_finish(st[mt]) for mt in range(MT)]):
        k.e(s_)
    for hh in range(2):
        for j in range(2):
            k.e("v_lshl_or_b32 v%d, v%d, 16, v%d" % (wphi[hh] + j, wphi_hi[hh] + j, wphi[hh] + j))
    kvacc = [[wbr[4 * hh + b] for b in range(4)] for hh in range(2)]
    k.e("s_lshl_b32 s%d, s%d, 11" % (S_OB, S_TOKB))
    k.e("s_lshl_b32 s%d, s%d, 11" % (S_T0, S_CB))
    k.e("s_add_u32 s%d, s%d, s%d" % (S_OB, S_OB, S_T0))
    k.e("s_add_u32 s%d, s%d, 0x8000" % (S_T1, S_OB))
    pmark = pool[0]
    qb, kb, vb = ta(2), ta(2), ta(2)
    pq, pk = ta(4, 4), ta(4, 4)
    tq, tk = ta(12), ta(12)
    lt = [tq, tq + 4, tq + 8]
    oq, ok = ta(4, 4), ta(4, 4)
    tp, tm, tv = ta(4, 4), ta(4, 4), ta(4, 4)
    tpp, tmp_, tvp = ta(2), ta(2), ta(2)
    for mt in range(MT):
        for hh in range(2):
            seqs = []
            for u, dst in enumerate((qb, kb, vb)):
                a = acc[u][hh][mt]
                seqs.append(ln_apply(a, cs[u][hh], st[mt], lt[u]) + pack2(dst, a))
            for s_ in interleave(*seqs):
                k.e(s_)
            k.e("v_mfma_f32_16x16x16_bf16 %s, %s, %s, 0" % (vr(pq, 4), vr(wphi[hh], 2), vr(qb, 2)))
            k.e("v_mfma_f32_16x16x16_bf16 %s, %s, %s, 0" % (vr(pk, 4), vr(wphi[hh], 2), vr(kb, 2)))
            k.e("v_mfma_f32_16x16x16_bf16 %s, %s, %s, 0" % (vr(tv, 4), vr(vb, 2), vr(ident, 2)))
            for s_ in interleave(softmax_pair(pq, tq, oq), softmax_pair(pk, tk, ok)):
                k.e(s_)
            k.vmem("buffer_store_dwordx4 %s, v%d, %s, s%d offen offset:%d" % (
                vr(oq, 4), g.lin, srd(SRD_O), S_T1 if mt else S_OB, 1024 * hh), "st")
            k.e("v_mfma_f32_16x16x16_bf16 %s, %s, %s, 0" % (vr(tp, 4), vr(ok, 2), vr(ident, 2)))
            k.e("v_mfma_f32_16x16x16_bf16 %s, %s, %s, 0" % (vr(tm, 4), vr(ok + 2, 2), vr(ident, 2)))
            for s_ in pack2(tvp, tv) + pack2(tpp, tp) + pack2(tmp_, tm):
                k.e(s_)
            kk = kvacc[hh]
            for (dst, a_, b_) in ((kk[0], tpp, tvp), (kk[1], tmp_, tvp), (kk[2], tpp, ones), (kk[3], tmp_, ones)):
                k.e("v_mfma_f32_16x16x16_bf16 %s, %s, %s, %s" % (
                    vr(dst, 4), vr(a_, 2), vr(b_, 2), "0" if mt == 0 else vr(dst, 4)))
    k.e("s_barrier")
    pool[0] = pmark
    vl = ta(1)
    k.e("s_lshl_b32 s%d, s%d, 13" % (S_T0, S_WAVE))
    k.e("v_lshlrev_b32 v%d, 5, v%d" % (vl, g.l))
    vl2 = ta(1)
    k.e("v_add_u32 v%d, s%d, v%d" % (vl2, S_T0, vl))
    for hh in range(2):
        for b in range(4):
            k.e("ds_write_b128 v%d, %s offset:%d" % (vl2, vr(kvacc[hh][b], 4), hh * 4096 + (b >> 1) * 2048 + (b & 1) * 16))
    k.e("s_waitcnt lgkmcnt(0)")
    k.e("s_barrier")
    k.e("s_lshl_b32 s%d, s%d, 11" % (S_T0, S_WAVE))
    k.e("v_add_u32 v%d, s%d, v%d" % (vl2, S_T0, vl))
    rd = [ta(8, 4) for _ in range(4)]
    for ww in range(4):
        k.e("ds_read_b128 %s, v%d offset:%d" % (vr(rd[ww], 4), vl2, ww * 8192))
        k.e("ds_read_b128 %s, v%d offset:%d" % (vr(rd[ww] + 4, 4), vl2, ww * 8192 + 16))
    k.e("s_lshl_b32 s%d, s%d, 6" % (S_T0, S_RB))
    k.e("s_lshl_b32 s%d, s%d, 2" % (S_T1, S_CB))
    k.e("s_add_u32 s%d, s%d, s%d" % (S_T0, S_T0, S_T1))
    k.e("s_add_u32 s%d, s%d, s%d" % (S_T0, S_T0, S_WAVE))
    k.e("s_lshl_b32 s%d, s%d, 11" % (S_T0, S_T0))
    k.e("s_waitcnt lgkmcnt(0)")
    for i in range(8):
        k.e("v_add_f32 v%d, v%d, v%d" % (rd[0] + i, rd[0] + i, rd[1] + i))
        k.e("v_add_f32 v%d, v%d, v%d" % (rd[2] + i, rd[2] + i, rd[3] + i))
    for i in range(8):
        k.e("v_add_f32 v%d, v%d, v%d" % (rd[0] + i, rd[0] + i, rd[2] + i))
    k.vmem("buffer_store_dwordx4 %s, v%d, %s, s%d offen" % (vr(rd[0], 4), vl, srd(SRD_R2), S_T0), "st")
    k.vmem("buffer_store_dwordx4 %s, v%d, %s, s%d offen offset:16" % (vr(rd[0] + 4, 4), vl, srd(SRD_R2), S_T0), "st")
    finish(k)
    return k, 256, 3 * 16 * 2048


def k_red(name):
    k = Kern(name)
    k.e("s_cmp_ge_u32 s2, 16")
    k.e("s_cbranch_scc1 L_end_%s" % k.name)
    stamp(k)
    k.e("s_load_dwordx8 s[80:87], s[0:1], 64")
    vo, vd, vt, vz = k.alloc(), k.alloc(), k.alloc(), k.alloc()
    k.e("s_lshl_b32 s%d, s2, 8" % S_T0)
    k.e("v_add_u32 v%d, s%d, v0" % (vt, S_T0))
    k.e("v_lshlrev_b32 v%d, 5, v%d" % (vo, vt))
    k.e("v_lshrrev_b32 v%d, 7, v%d" % (vd, vt))
    k.e("v_and_b32 v%d, 63, v%d" % (vz, vt))
    vb, v1, v2 = k.alloc(), k.alloc(), k.alloc()
    k.e("v_bfe_u32 v%d, v%d, 6, 1" % (vb, vt))
    k.e("v_lshlrev_b32 v%d, 10, v%d" % (v1, vd))
    k.e("v_lshl_add_u32 v%d, v%d, 4, v%d" % (v1, vz, v1))
    k.e("v_lshlrev_b32 v%d, 6, v%d" % (v2, vd))
    k.e("v_add_u32 v%d, v%d, v%d" % (v2, vz, v2))
    k.e("v_add_u32 v%d, 0x8000, v%d" % (v2, v2))
    k.e("v_and_b32 v%d, 15, v%d" % (vz, vz))
    k.e("v_cmp_ne_u32 vcc, 0, v%d" % vz)
    k.e("v_mov_b32 v%d, 0x7ffffff0" % vz)
    k.e("v_cndmask_b32 v%d, v%d, v%d, vcc" % (v2, v2, vz))
    k.e("v_cmp_eq_u32 vcc, 0, v%d" % vb)
    k.e("v_cndmask_b32 v%d, v%d, v%d, vcc" % (vd, v2, v1))
    k.e("s_waitcnt lgkmcnt(0)")
    make_srd(k, SRD_X, ("ws", WS_KVP), 16 * 32 * 4096)
    make_srd(k, SRD_O, ("ws", WS_KVR), 32768 + 2048)
    regs = [k.alloc(8, 4) for _ in range(16)]
    for rb in range(16):
        k.e("s_mov_b32 s%d, 0x%x" % (S_T0, rb * 32 * 4096))
        k.vmem("buffer_load_dwordx4 %s, v%d, %s, s%d offen" % (vr(regs[rb], 4), vo, srd(SRD_X), S_T0), "l%d" % rb)
        k.vmem("buffer_load_dwordx4 %s, v%d, %s, s%d offen offset:16" % (vr(regs[rb] + 4, 4), vo, srd(SRD_X), S_T0), "l%d" % rb)
    for rb in range(1, 16):
        k.wait_vm("l%d" % rb)
        for i in range(8):
            k.e("v_add_f32 v%d, v%d, v%d" % (regs[0] + i, regs[0] + i, regs[rb] + i))
    o = regs[1]
    for i in range(4):
        k.e("v_cvt_pk_bf16_f32 v%d, v%d, v%d" % (o + i, regs[0] + 2 * i, regs[0] + 2 * i + 1))
    k.vmem("buffer_store_dwordx4 %s, v%d, %s, 0 offen" % (vr(o, 4), vd, srd(SRD_O)), "st")
    finish(k)
    return k, 16, 0


def w_bases_512(k, wrow):
    k.e("s_mul_i32 s%d, s%d, %d" % (S_WBASE, S_WAVE, 16 * wrow))
    k.e("s_lshl_b32 s%d, s%d, 7" % (S_T0, S_CB))
    k.e("s_add_u32 s%d, s%d, s%d" % (S_WBASE, S_WBASE, S_T0))
    k.e("s_lshl_b32 s%d, s%d, 10" % (S_WL, S_WAVE))


def w_dma_chunk(k, w, wrow, c):
    for j in (2 * c, 2 * c + 1):
        for u in range(2):
            dma(k, w, u * 64 + j * 64 * wrow, u * w.ustride + j * 4096, "c%d" % c)


def out_base(k):
    k.e("s_lshl_b32 s%d, s%d, 10" % (S_OB, S_TOKB))
    k.e("s_lshl_b32 s%d, s%d, 11" % (S_T0, S_CB))
    k.e("s_add_u32 s%d, s%d, s%d" % (S_OB, S_OB, S_T0))


def res_load(k, vsw, slot, tag, regs=None):
    r = regs if regs is not None else [k.alloc(4, 4) for _ in range(2)]

    def issue():
        for u in range(2):
            k.vmem("buffer_load_dwordx4 %s, v%d, %s, s%d offen offset:%d" % (vr(r[u], 4), vsw, srd(slot), S_OB, 1024 * u), tag)
    return r, issue


def store_pairs(k, vsw, pk):
    for u in range(2):
        for s_ in swap_pair(pk[u]):
            k.e(s_)
    for u in range(2):
        k.vmem("buffer_store_dwordx4 %s, v%d, %s, s%d offen offset:%d" % (vr(pk[u], 4), vsw, srd(SRD_O), S_OB, 1024 * u), "st")


def k_wo(name, xin, xout, stout):
    k = Kern(name)
    MT, NU, KS, CS = 1, 2, 16, 4
    g = prologue(k, 256, "n512")
    tok_base(k, MT)
    t16_base(k, S_XO, 1024)
    out_base(k)
    vsw = swz_off(k, g)
    w = setup_w(k, g, 1024, 2, True, NU, KS)
    PQ = [k.alloc(4, 4) for _ in range(32)]
    O = [PQ[2 * s] for s in range(KS)]
    res, res_issue = res_load(k, vsw, SRD_R, "res")
    vkv = k.alloc()
    vz = k.alloc()
    k.e("v_add_u32 v%d, 0x10000, v%d" % (vkv, g.lin))
    k.e("v_lshlrev_b32 v%d, 4, v%d" % (vz, g.g))
    k.e("v_add_u32 v%d, 0x18000, v%d" % (vz, vz))
    k.e("s_mov_b32 s%d, 0x%08x" % (S_EPS, f32bits(1e-6)))
    k.e("s_waitcnt lgkmcnt(0)")
    make_srd(k, SRD_X, ("ws", WS_PHIQ), S * 2048)
    make_srd(k, SRD_W, ("in", IN_WO), 512 * 1024)
    make_srd(k, SRD_R, xin, XBYTES)
    make_srd(k, SRD_O, xout, XBYTES)
    make_srd(k, SRD_R2, ("ws", WS_KVR), 32768 + 4096)
    make_srd(k, SRD_SO, ("ws", stout), S * 64)
    k.e("s_lshl_b32 s%d, s%d, 13" % (S_T2, S_WAVE))
    for i in range(8):
        k.e("s_add_u32 s%d, s%d, 0x%x" % (S_T0, S_T2, i * 1024))
        k.e("s_add_u32 m0, s%d, 0x%x" % (S_T2, 0x10000 + i * 1024))
        k.vmem("buffer_load_dwordx4 v%d, %s, s%d offen lds" % (g.lin, srd(SRD_R2), S_T0), "kv")
    k.e("s_lshl_b32 s%d, s%d, 10" % (S_T2, S_WAVE))
    k.e("s_add_u32 s%d, s%d, 0x8000" % (S_T0, S_T2))
    k.e("s_add_u32 m0, s%d, 0x18000" % S_T2)
    k.vmem("buffer_load_dwordx4 v%d, %s, s%d offen lds" % (g.lin, srd(SRD_R2), S_T0), "kv")
    w_bases_512(k, 1024)
    for c in range(4):
        for h in range(8 * c, 8 * c + 8):
            xload(k, g, PQ[h], 1024, 0, h, "pq%d" % (h // 4))
        w_dma_chunk(k, w, 1024, c)
    res_issue()
    k.wait_vm("kv")
    k.e("s_barrier")
    mk = k.mark()
    GH = 4
    kvf = [[k.alloc(4, 4) for _ in range(GH)] for _ in range(2)]
    zf = [[k.alloc(4, 4) for _ in range(GH)] for _ in range(2)]
    num = [k.alloc(4, 4) for _ in range(GH)]
    den = [k.alloc(4, 4) for _ in range(GH)]

    def rd(grp):
        for i in range(GH):
            h = grp * GH + i
            k.e("ds_read_b128 %s, v%d offset:%d" % (vr(kvf[grp % 2][i], 4), vkv, h * 1024))
            k.e("ds_read_b128 %s, v%d offset:%d" % (vr(zf[grp % 2][i], 4), vz, h * 64))

    rd(0)
    for grp in range(32 // GH):
        if grp + 1 < 32 // GH:
            rd(grp + 1)
            k.e("s_waitcnt lgkmcnt(%d)" % (2 * GH))
        else:
            k.e("s_waitcnt lgkmcnt(0)")
        k.wait_vm("pq%d" % grp)
        for i in range(GH):
            h = grp * GH + i
            k.e("v_mfma_f32_16x16x32_bf16 %s, %s, %s, 0" % (vr(num[i], 4), vr(kvf[grp % 2][i], 4), vr(PQ[h], 4)))
            k.e("v_mfma_f32_16x16x32_bf16 %s, %s, %s, 0" % (vr(den[i], 4), vr(zf[grp % 2][i], 4), vr(PQ[h], 4)))
        for i in range(GH):
            k.e("v_add_f32 v%d, s%d, v%d" % (den[i], S_EPS, den[i]))
        for i in range(GH):
            k.e("v_rcp_f32 v%d, v%d" % (den[i], den[i]))
        for i in range(GH):
            for j in range(4):
                k.e("v_mul_f32 v%d, v%d, v%d" % (num[i] + j, num[i] + j, den[i]))
        for i in range(GH):
            h = grp * GH + i
            for s_ in pack2(O[h // 2] + 2 * (h & 1), num[i]):
                k.e(s_)
    k.release(mk)
    acc = [[[k.alloc(4, 4)] for _ in range(2)] for _ in range(NU)]
    gemm_loop(k, w, KS, CS, MT, lambda s, mt: O[s], acc)
    k.wait_vm("res")
    seqs = []
    pk = [PQ[9], PQ[11]]
    for u in range(2):
        for s_ in swap_pair(res[u]):
            k.e(s_)
    for u in range(2):
        for t in range(2):
            i = 2 * u + t
            a = acc[u][t][0]
            tt = PQ[2 * i + 1]
            seqs.append(round4(a) + unpack2(tt, res[u] + 2 * t) + add4(a, tt) + pack2(pk[u] + 2 * t, a))
    for s_ in interleave(*seqs):
        k.e(s_)
    stats_store(k, g, [pk[u] + i for u in range(2) for i in range(4)], PQ[13])
    store_pairs(k, vsw, pk)
    finish(k)
    return k, 256, 0x10000 + 32768 + 4096


def cs_load(k, g, tag):
    vcs = k.alloc()
    k.e("v_lshlrev_b32 v%d, 4, v%d" % (vcs, g.g))
    cs = [[k.alloc(4, 4) for _ in range(2)] for _ in range(2)]

    def issue():
        k.e("s_lshl_b32 s%d, s%d, 8" % (S_T0, S_CB))
        for u in range(2):
            for t in range(2):
                k.vmem("buffer_load_dwordx4 %s, v%d, %s, s%d offen offset:%d" % (
                    vr(cs[u][t], 4), vcs, srd(SRD_C), S_T0, 128 * u + 64 * t), tag)
    return cs, issue


def k_w1(name, xin, stin):
    k = Kern(name)
    MT, NU, KS, CS = 1, 2, 16, 4
    g = prologue(k, 256, "n512")
    tok_base(k, MT)
    t16_base(k, S_XO, 512)
    out_base(k)
    vsw = swz_off(k, g)
    w = setup_w(k, g, 1024, 3, False, NU, KS)
    gelu_consts(k)
    X = [k.alloc(4, 4) for _ in range(KS)]
    acc = [[[k.alloc(4, 4)] for _ in range(2)] for _ in range(NU)]
    st, st_issue = stats_load(k, g, MT)
    cs, cs_issue = cs_load(k, g, "stat")
    k.e("s_waitcnt lgkmcnt(0)")
    make_srd(k, SRD_X, xin, XBYTES)
    make_srd(k, SRD_W, ("in", IN_W1), 512 * 1024)
    make_srd(k, SRD_O, ("ws", WS_H), XBYTES)
    make_srd(k, SRD_S, ("ws", stin), S * 64)
    make_srd(k, SRD_C, ("ws", CS_W1), 512 * 4)
    w_bases_512(k, 1024)
    for c in range(4):
        for s in range(4 * c, 4 * c + 4):
            xload(k, g, X[s], 512, 0, s, "c%d" % c)
        w_dma_chunk(k, w, 1024, c)
    st_issue()
    cs_issue()
    gemm_loop(k, w, KS, CS, MT, lambda s, mt: X[s], acc)
    k.wait_vm("stat")
    for s_ in stats_finish(st[0], double=True):
        k.e(s_)
    seqs = []
    pk = [X[8], X[9]]
    for u in range(2):
        for t in range(2):
            i = 2 * u + t
            a = acc[u][t][0]
            seqs.append(ln_apply(a, cs[u][t], st[0], X[i]) + gelu4(a, X[i], pk[u] + 2 * t))
    for s_ in interleave(*seqs):
        k.e(s_)
    store_pairs(k, vsw, pk)
    finish(k)
    return k, 256, 2 * 16 * 2048


def k_w2(name, xin, stin):
    k = Kern(name)
    MT, NU, KS, CS = 1, 2, 16, 4
    g = prologue(k, 256, "n512")
    tok_base(k, MT)
    out_base(k)
    vsw = swz_off(k, g)
    w = setup_w(k, g, 1024, 3, False, NU, KS)
    X = [k.alloc(4, 4) for _ in range(KS)]
    acc = [[[k.alloc(4, 4)] for _ in range(2)] for _ in range(NU)]
    res, res_issue = res_load(k, vsw, SRD_R, "stat")
    st, st_issue = stats_load(k, g, MT)
    vsh = []
    t = k.alloc()
    for d in (-1, 1, -2, 2):
        r = k.alloc()
        k.e("s_add_i32 s%d, s%d, %d" % (S_T0, S_TOKB, d))
        k.e("v_add_u32 v%d, s%d, v%d" % (t, S_T0, g.m))
        k.e("v_ashrrev_i32 v%d, 4, v%d" % (r, t))
        k.e("v_lshlrev_b32 v%d, 14, v%d" % (r, r))
        k.e("v_and_b32 v%d, 15, v%d" % (t, t))
        k.e("v_lshl_add_u32 v%d, v%d, 4, v%d" % (r, t, r))
        k.e("v_lshl_add_u32 v%d, v%d, 8, v%d" % (r, g.g, r))
        vsh.append(r)
    k.e("s_mov_b32 s%d, 0" % S_XO)
    k.e("s_waitcnt lgkmcnt(0)")
    make_srd(k, SRD_X, ("ws", WS_H), XBYTES)
    make_srd(k, SRD_W, ("in", IN_W2), 512 * 1024)
    make_srd(k, SRD_O, ("ws", WS_X1), XBYTES)
    make_srd(k, SRD_R, xin, XBYTES)
    make_srd(k, SRD_S, ("ws", stin), S * 64)
    make_srd(k, SRD_SO, ("ws", ST_X1), S * 64)
    w_bases_512(k, 1024)
    for c in range(4):
        if c:
            k.e("v_add_u32 v%d, 0x%x, v%d" % (vsh[c], 4096 * c, vsh[c]))
        for s in range(4 * c, 4 * c + 4):
            k.vmem("buffer_load_dwordx4 %s, v%d, %s, 0 offen offset:%d" % (vr(X[s], 4), vsh[c], srd(SRD_X), 1024 * (s % 4)), "c%d" % c)
        w_dma_chunk(k, w, 1024, c)
    res_issue()
    st_issue()
    gemm_loop(k, w, KS, CS, MT, lambda s, mt: X[s], acc)
    k.wait_vm("stat")
    for s_ in interleave(stats_finish(st[0]), swap_pair(res[0]) + swap_pair(res[1])):
        k.e(s_)
    seqs = []
    pk = [X[8], X[9]]
    for u in range(2):
        for t in range(2):
            i = 2 * u + t
            a = acc[u][t][0]
            tt = X[i]
            sq = round4(a) + unpack2(tt, res[u] + 2 * t)
            sq += ["v_fma_f32 v%d, v%d, v%d, v%d" % (tt + j, tt + j, st[0], st[0] + 1) for j in range(4)]
            sq += round4(tt) + add4(a, tt) + pack2(pk[u] + 2 * t, a)
            seqs.append(sq)
    for s_ in interleave(*seqs):
        k.e(s_)
    stats_store(k, g, [pk[u] + i for u in range(2) for i in range(4)], X[10])
    store_pairs(k, vsw, pk)
    finish(k)
    return k, 256, 2 * 16 * 2048


def k_w3(name):
    k = Kern(name)
    MT, NU, KS, CS = 2, 3, 16, 4
    g = prologue(k, 256, "wide")
    tok_base(k, MT)
    t16_base(k, S_XO, 512)
    vsw = swz_off(k, g)
    w = setup_w(k, g, 2752, 3, False, NU, KS)
    gelu_consts(k)
    k.e("s_mul_i32 s%d, s%d, 43" % (S_CB, S_CB))
    k.e("s_lshr_b32 s%d, s%d, 4" % (S_CB, S_CB))
    k.e("s_min_u32 s%d, s%d, 40" % (S_CB, S_CB))
    k.e("s_mul_i32 s%d, s%d, %d" % (S_OB, S_TOKB, 2752))
    k.e("s_lshl_b32 s%d, s%d, 10" % (S_T0, S_CB))
    k.e("s_add_u32 s%d, s%d, s%d" % (S_OB, S_OB, S_T0))
    st, st_issue = stats_load(k, g, MT)
    vcs = k.alloc()
    k.e("v_lshlrev_b32 v%d, 4, v%d" % (vcs, g.g))
    X = [[k.alloc(4, 4) for _ in range(KS)] for _ in range(MT)]
    cs = [[X[0][2 * u + tt] for tt in range(2)] for u in range(NU)]
    acc = [[[k.alloc(4, 4) for _ in range(MT)] for _ in range(2)] for _ in range(NU)]
    k.e("s_waitcnt lgkmcnt(0)")
    make_srd(k, SRD_X, ("ws", WS_X1), XBYTES)
    make_srd(k, SRD_W, ("in", IN_W3), 512 * 2752)
    make_srd(k, SRD_O, ("ws", WS_H3), S * 2752)
    make_srd(k, SRD_S, ("ws", ST_X1), S * 64)
    make_srd(k, SRD_C, ("ws", CS_W3), 1376 * 4)
    k.e("s_mul_i32 s%d, s%d, %d" % (S_WBASE, S_WAVE, 16 * 2752))
    k.e("s_lshl_b32 s%d, s%d, 6" % (S_T0, S_CB))
    k.e("s_add_u32 s%d, s%d, s%d" % (S_WBASE, S_WBASE, S_T0))
    k.e("s_lshl_b32 s%d, s%d, 10" % (S_WL, S_WAVE))
    for c in range(KS // CS):
        for mt in range(MT):
            for s in range(c * CS, (c + 1) * CS):
                xload(k, g, X[mt][s], 512, mt, s, "c%d" % c)
        for j in range(2 * c, 2 * c + 2):
            for u in range(NU):
                dma(k, w, u * 64 + j * 64 * 2752, u * w.ustride + j * 4096, "c%d" % c)
    st_issue()

    def cs_issue():
        k.e("s_lshl_b32 s%d, s%d, 7" % (S_T0, S_CB))
        for u in range(NU):
            for tt in range(2):
                k.vmem("buffer_load_dwordx4 %s, v%d, %s, s%d offen offset:%d" % (
                    vr(cs[u][tt], 4), vcs, srd(SRD_C), S_T0, u * 128 + tt * 64), "stat")
    gemm_loop(k, w, KS, CS, MT, lambda s, mt: X[mt][s], acc, mid={8: cs_issue})
    k.wait_vm("stat")
    for s_ in interleave(*[stats_finish(st[mt]) for mt in range(MT)]):
        k.e(s_)
    k.e("s_add_u32 s%d, s%d, %d" % (S_T1, S_OB, 16 * 2752))
    for mt in range(MT):
        seqs = []
        pk = [X[mt][8 + u] for u in range(NU)]
        for u in range(NU):
            for t in range(2):
                i = 2 * u + t
                a = acc[u][t][mt]
                seqs.append(ln_apply(a, cs[u][t], st[mt], X[1][i]) + gelu4(a, X[1][i], pk[u] + 2 * t))
        for s_ in interleave(*seqs):
            k.e(s_)
        for u in range(NU):
            for s_ in swap_pair(pk[u]):
                k.e(s_)
        for u in range(NU):
            k.vmem("buffer_store_dwordx4 %s, v%d, %s, s%d offen offset:%d" % (
                vr(pk[u], 4), vsw, srd(SRD_O), S_T1 if mt else S_OB, 1024 * u), "st")
    finish(k)
    return k, 256, 3 * 16 * 2048


def k_w4(name, xin, xout, stout):
    k = Kern(name)
    MT, NU, KS, CS = 1, 2, 43, 4
    KCAP = 40
    g = prologue(k, 256, "n512")
    tok_base(k, MT)
    t16_base(k, S_XO, F)
    out_base(k)
    vsw = swz_off(k, g)
    w = setup_w(k, g, 1024, 3, False, NU, KCAP)
    X = [k.alloc(4, 4) for _ in range(KS)]
    acc = [[[k.alloc(4, 4)] for _ in range(2)] for _ in range(NU)]
    res, res_issue = res_load(k, vsw, SRD_R, "res", [X[12], X[13]])
    res1, res1_issue = res_load(k, vsw, SRD_R2, "res", [X[14], X[15]])
    if stout is None:
        vro = k.alloc()
        t = k.alloc()
        k.e("v_add_u32 v%d, s%d, v%d" % (vro, S_TOKB, g.m))
        k.e("v_lshlrev_b32 v%d, 10, v%d" % (vro, vro))
        k.e("v_and_b32 v%d, 1, v%d" % (t, g.g))
        k.e("v_lshl_add_u32 v%d, v%d, 5, v%d" % (vro, t, vro))
        k.e("v_lshrrev_b32 v%d, 1, v%d" % (t, g.g))
        k.e("v_lshl_add_u32 v%d, v%d, 4, v%d" % (vro, t, vro))
        k.e("s_lshl_b32 s%d, s%d, 7" % (S_T0, S_CB))
        k.e("v_add_u32 v%d, s%d, v%d" % (vro, S_T0, vro))
    k.e("s_waitcnt lgkmcnt(0)")
    make_srd(k, SRD_X, ("ws", WS_H3), S * 2752)
    make_srd(k, SRD_W, ("in", IN_W4), F * 1024)
    make_srd(k, SRD_O, xout, XBYTES)
    make_srd(k, SRD_R, xin, XBYTES)
    make_srd(k, SRD_R2, ("ws", WS_X1), XBYTES)
    if stout is not None:
        make_srd(k, SRD_SO, ("ws", stout), S * 64)
    k.e("s_and_b32 s%d, s%d, 1" % (S_T0, S_WAVE))
    k.e("s_lshr_b32 s%d, s%d, 1" % (S_T1, S_WAVE))
    k.e("s_lshl_b32 s%d, s%d, 6" % (S_WBASE, S_T0))
    k.e("s_lshl_b32 s%d, s%d, 14" % (S_T2, S_T1))
    k.e("s_add_u32 s%d, s%d, s%d" % (S_WBASE, S_WBASE, S_T2))
    k.e("s_lshl_b32 s%d, s%d, 7" % (S_T2, S_CB))
    k.e("s_add_u32 s%d, s%d, s%d" % (S_WBASE, S_WBASE, S_T2))
    k.e("s_mul_i32 s%d, s%d, %d" % (S_WL, S_T0, w.ustride))
    k.e("s_lshl_b32 s%d, s%d, 10" % (S_T2, S_T1))
    k.e("s_add_u32 s%d, s%d, s%d" % (S_WL, S_WL, S_T2))

    def wd(j):
        dma(k, w, j * 32 * 1024, (j % KCAP) * 2048, "c%d" % (j // CS))

    for c in range(KCAP // CS):
        for s in range(c * CS, (c + 1) * CS):
            xload(k, g, X[s], F, 0, s, "c%d" % c)
        for s in range(c * CS, (c + 1) * CS):
            wd(s)
    for s in range(KCAP, KS):
        xload(k, g, X[s], F, 0, s, "c%d" % (KCAP // CS))

    def late():
        for s in range(KCAP, KS):
            wd(s)

    def resi():
        res_issue()
        res1_issue()

    gemm_loop(k, w, KS, CS, MT, lambda s, mt: X[s], acc, late_dma={1: late}, mid={20: resi})
    k.wait_vm("res")
    for u in range(2):
        for s_ in swap_pair(res[u]) + swap_pair(res1[u]):
            k.e(s_)
    seqs = []
    pk = [X[8], X[9]]
    for u in range(2):
        for t in range(2):
            i = 2 * u + t
            a = acc[u][t][0]
            tt = X[i]
            seqs.append(round4(a) + unpack2(tt, res1[u] + 2 * t) + add4(a, tt) + round4(a) +
                        unpack2(tt, res[u] + 2 * t) + add4(a, tt) + pack2(pk[u] + 2 * t, a))
    for s_ in interleave(*seqs):
        k.e(s_)
    if stout is not None:
        stats_store(k, g, [pk[u] + i for u in range(2) for i in range(4)], X[10])
        store_pairs(k, vsw, pk)
    else:
        for u in range(2):
            for s_ in swap_pair(pk[u]):
                k.e(s_)
        for u in range(2):
            k.vmem("buffer_store_dwordx4 %s, v%d, %s, 0 offen offset:%d" % (vr(pk[u], 4), vro, srd(SRD_O), 64 * u), "st")
    finish(k)
    return k, 256, 2 * KCAP * 2048


HEADER = """; Kernarg layout for this problem (96 bytes, ptrs only, base s[0:1]):
;   offset  88: d_ws      268435456 bytes workspace
"""


def build():
    kernels = []
    launches = []
    x0 = ("ws", WS_X0)
    xa = ("ws", WS_XA)
    xb = ("ws", WS_XB)
    xo = ("in", OUT)

    def add(kk):
        kernels.append(kk)
        launches.append(kk)

    add(k_prep("prep_kernel"))
    red = k_red("red_kernel")
    w1 = k_w1("w1_kernel", xa, ST_XA)
    w2 = k_w2("w2_kernel", xa, ST_XA)
    w3 = k_w3("w3_kernel")
    for layer, (xi, sti, x2, st2) in enumerate(((x0, ST_X0, xb, ST_XB), (xb, ST_XB, xo, None))):
        add(k_qkv("qkv%d_kernel" % layer, xi, sti))
        for kk in ((red,) if True else ()):
            (add if layer == 0 else launches.append)(kk)
        add(k_wo("wo%d_kernel" % layer, xi, xa, ST_XA))
        for kk in (w1, w2, w3):
            (add if layer == 0 else launches.append)(kk)
        add(k_w4("w4%d_kernel" % layer, xa, x2, st2))
    out = [HEADER.rstrip("\n")]
    for (k, nwg, lds) in launches:
        out.append("; @launch kernel=%s grid=(%d,1,1) block=(256,1,1) lds=%d" % (k.name, nwg, lds))
    out.append('.amdgcn_target "amdgcn-amd-amdhsa--gfx950"')
    out.append(".text")
    for (k, nwg, lds) in kernels:
        out.append(".globl %s" % k.name)
        out.append(".p2align 8")
        out.append(".type %s,@function" % k.name)
        out.append("%s:" % k.name)
        out += hazard_pass(k.lines)
    out.append('.section .rodata,"a"')
    for (k, nwg, lds) in kernels:
        nv = (k.maxv + 7) // 8 * 8
        out.append(".p2align 6")
        out.append(".amdhsa_kernel %s" % k.name)
        out.append("  .amdhsa_next_free_vgpr %d" % nv)
        out.append("  .amdhsa_next_free_sgpr 102")
        out.append("  .amdhsa_accum_offset %d" % nv)
        out.append("  .amdhsa_group_segment_fixed_size 0")
        out.append("  .amdhsa_kernarg_size 96")
        out.append("  .amdhsa_user_sgpr_count 2")
        out.append("  .amdhsa_user_sgpr_kernarg_segment_ptr 1")
        out.append("  .amdhsa_system_sgpr_workgroup_id_x 1")
        out.append(".end_amdhsa_kernel")
    return "\n".join(out) + "\n"


if __name__ == "__main__":
    path = sys.argv[1] if len(sys.argv) > 1 else "cdna_kernels/%s.s" % NAME
    open(path, "w").write(build())
    print("wrote", path)
```

```python
import sys
import os
import math
import struct

sys.path.insert(0, os.path.dirname(os.path.abspath(__file__)))
from asmlib import Kern, vr, interleave, hazard_pass

NAME = "interleave_layers__linear_kernel_hedgehog__mixer_s_mlp__prompt"
S, D, F = 2048, 512, 1376

IN_X, IN_WQKV, IN_WPHI, IN_WO, IN_BX, IN_W1, IN_W2, IN_W3, IN_W4, OUT, DBG, WS = range(12)


def PTR(i):
    return 64 + 2 * i


MB = 1 << 20
LSTRIDE = 32 * MB
R_XIN = 0 * MB
R_XA = 2 * MB
R_PHIQ = 4 * MB
R_H = 8 * MB
R_X1 = 10 * MB
R_H3 = 12 * MB
R_ST = 18 * MB
ST_XIN, ST_XA, ST_X1 = [R_ST + i * 0x20000 for i in range(3)]
R_KVA = 19 * MB
R_FL = 20 * MB
FL_KV = 0x8000
WS_CS = 64 * MB
CS_QKV, CS_W1, CS_W3 = WS_CS, WS_CS + 0x2000, WS_CS + 0x4000
E_X, E_PHIQ, E_XA, E_H, E_X1, E_H3 = range(6)
BIG = 0x10000

XBYTES = S * D * 2
STBYTES = 8 * S * 8
LOG2E = 1.4426950408889634
LDS_SCR = 0x20000
LDS_KV = 0x10000
LDS_Z = 0x18000
POLL_MAX = 40000
PRE_SLEEP = int(os.environ.get("PRE_SLEEP", "0"))
POLL_SLEEP = int(os.environ.get("POLL_SLEEP", "2"))


def f32bits(x):
    return struct.unpack("<I", struct.pack("<f", x))[0]


S_WAVE, S_RB, S_CB, S_RBW, S_CBW, S_T0, S_T1, S_T2 = 32, 33, 34, 35, 36, 37, 38, 39
S_ONES, S_L2E, S_EPS, S_C1, S_C2, S_XO = 40, 41, 42, 43, 44, 45
S_TOKB, S_OB = 46, 47
SRD_X, SRD_W, SRD_O, SRD_R, SRD_R2, SRD_F = 8, 12, 16, 20, 24, 28
SRD_S, SRD_SO = 48, 52
SRD_C = 56
S_WSL, S_WSH, S_LAYER, S_CNT = 60, 61, 62, 63
S_STI, S_TOKN, S_TOKW, S_CU3, S_WBASE, S_K16 = 90, 92, 93, 94, 95, 96

STAMP = int(os.environ.get("STAMP", "0"))


def make_srd(k, slot, buf, size):
    kind = buf[0]
    if kind == "ws":
        k.e("s_add_u32 s%d, s%d, 0x%x" % (slot, PTR(WS), buf[1]))
        k.e("s_addc_u32 s%d, s%d, 0" % (slot + 1, PTR(WS) + 1))
    elif kind == "l":
        k.e("s_add_u32 s%d, s%d, 0x%x" % (slot, S_WSL, buf[1]))
        k.e("s_addc_u32 s%d, s%d, 0" % (slot + 1, S_WSH))
    elif kind == "n":
        k.e("s_add_u32 s%d, s%d, 0x%x" % (slot, S_WSL, buf[1] + LSTRIDE))
        k.e("s_addc_u32 s%d, s%d, 0" % (slot + 1, S_WSH))
    else:
        idx = buf[1]
        k.e("s_mov_b32 s%d, s%d" % (slot, PTR(idx)))
        k.e("s_mov_b32 s%d, s%d" % (slot + 1, PTR(idx) + 1))
    k.e("s_mov_b32 s%d, 0x%x" % (slot + 2, size))
    k.e("s_mov_b32 s%d, 0x00020000" % (slot + 3))


def srd(slot):
    return "s[%d:%d]" % (slot, slot + 3)


class G:
    pass


def stamp(k, g):
    if not STAMP:
        return
    k.e("s_memtime s[88:89]")
    k.e("s_waitcnt lgkmcnt(0)")
    k.e("v_writelane_b32 v%d, s88, s%d" % (g.vst, S_STI))
    k.e("s_add_u32 s%d, s%d, 1" % (S_STI, S_STI))


def allreduce(x, t, op):
    return [
        "v_mov_b32 v%d, v%d" % (t, x),
        "v_permlane32_swap_b32 v%d, v%d" % (x, t),
        "%s v%d, v%d, v%d" % (op, x, x, t),
        "v_mov_b32 v%d, v%d" % (t, x),
        "v_permlane16_swap_b32 v%d, v%d" % (x, t),
        "%s v%d, v%d, v%d" % (op, x, x, t),
    ]


def stats_finish(st, double=False):
    o = []
    s_, q_, t0, t1 = st, st + 1, st + 2, st + 3
    o.append("v_add_f32 v%d, v%d, v%d" % (s_, st, st + 2))
    o.append("v_add_f32 v%d, v%d, v%d" % (q_, st + 1, st + 3))
    o += interleave(allreduce(s_, t0, "v_add_f32"), allreduce(q_, t1, "v_add_f32"))
    o.append("v_mul_f32 v%d, 0x%08x, v%d" % (s_, f32bits(1.0 / 512), s_))
    o.append("v_mul_f32 v%d, 0x%08x, v%d" % (q_, f32bits(1.0 / 512), q_))
    o.append("v_fma_f32 v%d, -v%d, v%d, v%d" % (q_, s_, s_, q_))
    o.append("v_max_f32 v%d, 0, v%d" % (q_, q_))
    o.append("v_add_f32 v%d, 0x%08x, v%d" % (t0, f32bits(1e-5), q_))
    o.append("v_rsq_f32 v%d, v%d" % (t0, t0))
    if double:
        o.append("v_mul_f32 v%d, v%d, v%d" % (t1, t0, t0))
        o.append("v_mul_f32 v%d, v%d, v%d" % (t1, t1, q_))
        o.append("v_add_f32 v%d, 0x%08x, v%d" % (t1, f32bits(1e-5), t1))
        o.append("v_rsq_f32 v%d, v%d" % (t1, t1))
        o.append("s_nop 0")
        o.append("v_mul_f32 v%d, v%d, v%d" % (t0, t0, t1))
    o.append("v_mul_f32 v%d, v%d, v%d" % (st + 1, s_, t0))
    o.append("v_sub_f32 v%d, 0, v%d" % (st + 1, st + 1))
    o.append("v_mov_b32 v%d, v%d" % (st, t0))
    return o


def gelu4(a, t, dst):
    o = []
    o.append("v_cvt_pk_bf16_f32 v%d, v%d, v%d" % (t, a, a + 1))
    o.append("v_cvt_pk_bf16_f32 v%d, v%d, v%d" % (t + 1, a + 2, a + 3))
    o.append("v_lshlrev_b32 v%d, 16, v%d" % (a, t))
    o.append("v_and_b32 v%d, 0xffff0000, v%d" % (a + 1, t))
    o.append("v_lshlrev_b32 v%d, 16, v%d" % (a + 2, t + 1))
    o.append("v_and_b32 v%d, 0xffff0000, v%d" % (a + 3, t + 1))
    for i in range(4):
        o.append("v_mul_f32 v%d, v%d, v%d" % (t + i, a + i, a + i))
    for i in range(4):
        o.append("v_fma_f32 v%d, v%d, s%d, 1.0" % (t + i, t + i, S_C1))
    for i in range(4):
        o.append("v_mul_f32 v%d, v%d, v%d" % (t + i, t + i, a + i))
    for i in range(4):
        o.append("v_mul_f32 v%d, s%d, v%d" % (t + i, S_C2, t + i))
    for i in range(4):
        o.append("v_exp_f32 v%d, v%d" % (t + i, t + i))
    for i in range(4):
        o.append("v_add_f32 v%d, 1.0, v%d" % (t + i, t + i))
    for i in range(4):
        o.append("v_rcp_f32 v%d, v%d" % (t + i, t + i))
    for i in range(4):
        o.append("v_mul_f32 v%d, v%d, v%d" % (t + i, a + i, t + i))
    o.append("v_cvt_pk_bf16_f32 v%d, v%d, v%d" % (dst, t, t + 1))
    o.append("v_cvt_pk_bf16_f32 v%d, v%d, v%d" % (dst + 1, t + 2, t + 3))
    return o


def ln_apply(a, cs, st, t):
    o = []
    for i in range(4):
        o.append("v_mul_f32 v%d, v%d, v%d" % (t + i, cs + i, st + 1))
    for i in range(4):
        o.append("v_fma_f32 v%d, v%d, v%d, v%d" % (a + i, a + i, st, t + i))
    return o


class W:
    pass


def w_tb(k, g, k2map, NU, KCAP_STEPS):
    w = W()
    w.NU = NU
    w.kcap = KCAP_STEPS
    w.ustride = KCAP_STEPS * 32 * 64
    w.k2map = k2map
    w.tb = {}
    b0 = k.alloc()
    b1 = k.alloc()
    t = k.alloc()
    t2 = k.alloc()
    k.e("v_and_b32 v%d, 3, v%d" % (t2, g.l))
    k.e("v_lshrrev_b32 v%d, 2, v%d" % (t, g.l))
    k.e("v_and_b32 v%d, 3, v%d" % (t, t))
    k.e("v_lshlrev_b32 v%d, 6, v%d" % (t, t))
    k.e("v_lshl_add_u32 v%d, v%d, 3, v%d" % (t, t2, t))
    k.e("v_lshl_add_u32 v%d, v%d, %d, v%d" % (t, g.g, 8 if k2map else 9, t))
    k.e("v_and_b32 v%d, 1, v%d" % (t2, g.g))
    k.e("v_lshl_add_u32 v%d, v%d, 5, v%d" % (b0, t2, t))
    k.e("v_xor_b32 v%d, 1, v%d" % (t2, t2))
    k.e("v_lshl_add_u32 v%d, v%d, 5, v%d" % (b1, t2, t))
    w.tb[(0, 0)] = b0
    w.tb[(1, 0)] = b1
    nhi = (NU * w.ustride + 65535) // 65536
    pool = [t, t2]
    for h in range(1, nhi):
        for tt in (0, 1):
            r = pool.pop() if pool else k.alloc()
            k.e("v_add_u32 v%d, 0x%x, v%d" % (r, 65536 * h, w.tb[(tt, 0)]))
            w.tb[(tt, h)] = r
    return w


def tr_reads(k, w, dst, u, t, s):
    sp = s % w.kcap
    for hs in (0, 1):
        off = u * w.ustride + 2048 * sp + (1024 if w.k2map else 256) * hs
        h, o = off >> 16, off & 0xffff
        k.e("ds_read_b64_tr_b16 %s, v%d offset:%d" % (vr(dst + 2 * hs, 2), w.tb[(t, h)], o))


def gemm_loop(k, g, w, KS, CS, MT, xfrag, acc, mid=None, pre=None, waits=True):
    NU = w.NU
    frags = [(u, t) for u in range(NU) for t in (0, 1)]
    n = len(frags)
    wb = [[k.alloc(4, 4) for _ in frags] for _ in range(2)]
    for i, (u, t) in enumerate(frags):
        tr_reads(k, w, wb[0][i], u, t, 0)
    first = set()
    for s in range(KS):
        if waits and s % CS == 0:
            k.wait_vm("c%d" % (s // CS))
        if pre and (s + 1) in pre:
            pre[s + 1]()
        for i, (u, t) in enumerate(frags):
            if s + 1 < KS:
                tr_reads(k, w, wb[(s + 1) % 2][i], u, t, s + 1)
                k.e("s_waitcnt lgkmcnt(%d)" % (2 * n))
            else:
                k.e("s_waitcnt lgkmcnt(%d)" % (2 * (n - 1 - i)))
            for mt in range(MT):
                a = acc[u][t][mt]
                cin = vr(a, 4) if (u, t, mt) in first else "0"
                first.add((u, t, mt))
                k.e("v_mfma_f32_16x16x32_bf16 %s, %s, %s, %s" % (vr(a, 4), vr(wb[s % 2][i], 4), vr(xfrag(s, mt), 4), cin))
        if mid and s in mid:
            mid[s]()
    return [r for l in wb for r in l]


def t16_base(k, sreg, K):
    k.e("s_mul_i32 s%d, s%d, %d" % (sreg, S_TOKB, K * 2))


def xload(k, g, dst, K, mt, s, tag):
    off = mt * K * 32 + s * 1024
    hi, lo = off // 4096 * 4096, off % 4096
    if getattr(k, "_xhi", None) != hi:
        k.e("s_add_u32 s%d, s%d, 0x%x" % (S_T1, S_XO, hi))
        k._xhi = hi
    k.vmem("buffer_load_dwordx4 %s, v%d, %s, s%d offen offset:%d" % (vr(dst, 4), g.lin, srd(SRD_X), S_T1, lo), tag)


def stats_load(k, g, MT):
    v = k.alloc()
    k.e("v_add_u32 v%d, s%d, v%d" % (v, S_TOKB, g.m))
    k.e("v_lshlrev_b32 v%d, 3, v%d" % (v, v))
    k.e("v_lshl_add_u32 v%d, v%d, 15, v%d" % (v, g.g, v))
    st = [k.alloc(4, 4) for _ in range(MT)]

    def issue():
        for mt in range(MT):
            k.vmem("buffer_load_dwordx2 %s, v%d, %s, 0 offen offset:%d" % (vr(st[mt], 2), v, srd(SRD_S), 128 * mt), "stat")
            k.vmem("buffer_load_dwordx2 %s, v%d, %s, s%d offen offset:%d" % (vr(st[mt] + 2, 2), v, srd(SRD_S), S_K16, 128 * mt), "stat")
    return st, issue


def swap_pair(p):
    return ["v_permlane16_swap_b32 v%d, v%d" % (p, p + 2), "v_permlane16_swap_b32 v%d, v%d" % (p + 1, p + 3)]


def unpack2(dst, src):
    return [
        "v_lshlrev_b32 v%d, 16, v%d" % (dst, src),
        "v_and_b32 v%d, 0xffff0000, v%d" % (dst + 1, src),
        "v_lshlrev_b32 v%d, 16, v%d" % (dst + 2, src + 1),
        "v_and_b32 v%d, 0xffff0000, v%d" % (dst + 3, src + 1),
    ]


def pack2(dst, src):
    return [
        "v_cvt_pk_bf16_f32 v%d, v%d, v%d" % (dst, src, src + 1),
        "v_cvt_pk_bf16_f32 v%d, v%d, v%d" % (dst + 1, src + 2, src + 3),
    ]


def round4(a):
    return ["v_cvt_pk_bf16_f32 v%d, v%d, v%d" % (a, a, a + 1),
            "v_cvt_pk_bf16_f32 v%d, v%d, v%d" % (a + 2, a + 2, a + 3),
            "v_and_b32 v%d, 0xffff0000, v%d" % (a + 1, a),
            "v_and_b32 v%d, 0xffff0000, v%d" % (a + 3, a + 2),
            "v_lshlrev_b32 v%d, 16, v%d" % (a, a),
            "v_lshlrev_b32 v%d, 16, v%d" % (a + 2, a + 2)]


def add4(a, b):
    return ["v_add_f32 v%d, v%d, v%d" % (a + i, a + i, b + i) for i in range(4)]


def stats_store(k, g, packed, t):
    s_, q_, t0, t1 = t, t + 1, t + 2, t + 3
    for i, r in enumerate(packed):
        k.e("v_dot2_f32_bf16 v%d, v%d, s%d, %s" % (s_, r, S_ONES, "0" if i == 0 else "v%d" % s_))
        k.e("v_dot2_f32_bf16 v%d, v%d, v%d, %s" % (q_, r, r, "0" if i == 0 else "v%d" % q_))
    for s in interleave(allreduce(s_, t0, "v_add_f32"), allreduce(q_, t1, "v_add_f32")):
        k.e(s)
    k.e("v_add_u32 v%d, s%d, v%d" % (t0, S_TOKB, g.m))
    k.e("v_lshlrev_b32 v%d, 3, v%d" % (t0, t0))
    k.e("s_lshl_b32 s%d, s%d, 14" % (S_T0, S_CB))
    k.e("s_mov_b64 exec, 0xffff")
    k.vmem("buffer_store_dwordx2 %s, v%d, %s, s%d offen sc1" % (vr(s_, 2), t0, srd(SRD_SO), S_T0), "st")
    k.e("s_mov_b64 exec, -1")


def signal(k, g, edge, nblk, nxt=False):
    make_srd(k, SRD_F, ("n" if nxt else "l", R_FL), 0x10000)
    k.e("s_lshl_b32 s%d, s%d, 3" % (S_T0, S_TOKB))
    k.e("s_add_u32 s%d, s%d, %d" % (S_T0, S_T0, 128 + 4 * edge))
    k.e("s_mov_b64 exec, %d" % ((1 << nblk) - 1))
    k.e("s_waitcnt vmcnt(0)")
    k.e("buffer_atomic_add v%d, v%d, %s, s%d offen sc1" % (g.one, g.l128, srd(SRD_F), S_T0))
    k.e("s_mov_b64 exec, -1")
    k.vm = []
    k._xhi = None


def k_prep(name):
    k = Kern(name)
    NCS = 24 + 8 + 22
    k.e("s_cmp_ge_u32 s2, %d" % (128 + NCS))
    k.e("s_cbranch_scc1 L_end_%s" % k.name)
    k.e("s_load_dwordx16 s[64:79], s[0:1], 0")
    k.e("s_load_dwordx8 s[80:87], s[0:1], 64")
    w_, l_ = k.alloc(), k.alloc()
    k.e("v_lshrrev_b32 v%d, 6, v0" % w_)
    k.e("v_and_b32 v%d, 63, v0" % l_)
    k.e("v_readfirstlane_b32 s%d, v%d" % (S_WAVE, w_))
    k.e("s_mov_b32 s%d, 0x3f803f80" % S_ONES)
    k.e("s_cmp_ge_u32 s2, 128")
    k.e("s_cbranch_scc1 L_cs_%s" % k.name)
    vl, vd = k.alloc(), k.alloc()
    k.e("v_lshlrev_b32 v%d, 4, v%d" % (vl, l_))
    k.e("v_lshlrev_b32 v%d, 8, v%d" % (vd, l_))
    k.e("s_lshl_b32 s%d, s2, 14" % S_T0)
    k.e("s_lshl_b32 s%d, s%d, 12" % (S_T1, S_WAVE))
    k.e("s_add_u32 s%d, s%d, s%d" % (S_T1, S_T1, S_T0))
    k.e("s_lshl_b32 s%d, s%d, 6" % (S_T2, S_WAVE))
    k.e("s_add_u32 s%d, s%d, s%d" % (S_T2, S_T2, S_T0))
    k.e("s_waitcnt lgkmcnt(0)")
    make_srd(k, SRD_X, ("in", IN_X), XBYTES)
    make_srd(k, SRD_O, ("ws", R_XIN), XBYTES)
    make_srd(k, SRD_SO, ("ws", ST_XIN), STBYTES)
    make_srd(k, SRD_R, ("ws", 0), 2 * LSTRIDE)
    R = [k.alloc(4, 4) for _ in range(4)]
    for i in range(4):
        k.vmem("buffer_load_dwordx4 %s, v%d, %s, s%d offen offset:%d" % (vr(R[i], 4), vl, srd(SRD_X), S_T1, 1024 * i), "x%d" % i)
    z = k.alloc(4, 4)
    vo, vt, vb = k.alloc(), k.alloc(), k.alloc()
    k.e("v_lshlrev_b32 v%d, 4, v0" % vo)
    for i in range(4):
        k.e("v_mov_b32 v%d, 0" % (z + i))
    k.e("s_cmp_ge_u32 s2, 96")
    k.e("s_cbranch_scc1 L_ni_%s" % k.name)
    k.e("s_cmp_ge_u32 s2, 64")
    k.e("s_cbranch_scc1 L_fl_%s" % k.name)
    k.e("s_lshr_b32 s%d, s2, 5" % S_T0)
    k.e("s_mul_i32 s%d, s%d, 0x%x" % (S_T0, S_T0, LSTRIDE))
    k.e("s_and_b32 s%d, s2, 31" % S_OB)
    k.e("s_lshl_b32 s%d, s%d, 12" % (S_OB, S_OB))
    k.e("s_add_u32 s%d, s%d, s%d" % (S_T0, S_T0, S_OB))
    k.e("s_add_u32 s%d, s%d, 0x%x" % (S_T0, S_T0, R_KVA))
    k.e("s_branch L_in_%s" % k.name)
    k.label("L_fl_%s" % k.name)
    k.e("s_bfe_u32 s%d, s2, 0x10004" % S_XO)
    k.e("s_mul_i32 s%d, s%d, 0x%x" % (S_T0, S_XO, LSTRIDE))
    k.e("s_and_b32 s%d, s2, 15" % S_OB)
    k.e("s_lshl_b32 s%d, s%d, 12" % (S_OB, S_OB))
    k.e("s_add_u32 s%d, s%d, s%d" % (S_T0, S_T0, S_OB))
    k.e("s_add_u32 s%d, s%d, 0x%x" % (S_T0, S_T0, R_FL))
    k.e("v_add_u32 v%d, s%d, v%d" % (vt, S_OB, vo))
    k.e("v_mov_b32 v%d, 0x%x" % (vb, BIG))
    k.e("v_and_b32 v%d, 127, v%d" % (z + 1, vt))
    k.e("v_cmp_eq_u32 vcc, 0, v%d" % (z + 1))
    k.e("v_cndmask_b32 v%d, 0, v%d, vcc" % (z, vb))
    k.e("v_cmp_gt_u32 vcc, %d, v%d" % (130 * 128, vt))
    k.e("v_cndmask_b32 v%d, 0, v%d, vcc" % (z, z))
    k.e("s_cmp_eq_u32 s%d, 0" % S_XO)
    k.e("s_cselect_b32 s%d, -1, 0" % S_XO)
    k.e("v_and_b32 v%d, s%d, v%d" % (z, S_XO, z))
    k.e("v_mov_b32 v%d, 0" % (z + 1))
    k.e("v_lshrrev_b32 v%d, 7, v%d" % (vt, vt))
    k.e("v_cmp_eq_u32 vcc, 0, v%d" % vt)
    for i in range(4):
        k.e("v_cndmask_b32 v%d, v%d, v%d, vcc" % (z + i, z + i, vb))
    k.e("v_cmp_eq_u32 vcc, 0x81, v%d" % vt)
    for i in range(4):
        k.e("v_cndmask_b32 v%d, v%d, v%d, vcc" % (z + i, z + i, vb))
    k.label("L_in_%s" % k.name)
    k.e("s_nop 4")
    k.vmem("buffer_store_dwordx4 %s, v%d, %s, s%d offen" % (vr(z, 4), vo, srd(SRD_R), S_T0), "st")
    k.label("L_ni_%s" % k.name)
    k.e("s_nop 4")
    sq = [k.alloc(4, 4) for _ in range(4)]
    k.e("s_waitcnt vmcnt(0)")
    for i in range(4):
        k.vmem("buffer_store_dwordx4 %s, v%d, %s, s%d offen offset:%d" % (vr(R[i], 4), vd, srd(SRD_O), S_T2, 16 * i), "st")
        s_, q_ = sq[i], sq[i] + 1
        for j in range(4):
            k.e("v_dot2_f32_bf16 v%d, v%d, s%d, %s" % (s_, R[i] + j, S_ONES, "0" if j == 0 else "v%d" % s_))
            k.e("v_dot2_f32_bf16 v%d, v%d, v%d, %s" % (q_, R[i] + j, R[i] + j, "0" if j == 0 else "v%d" % q_))
    for rot in (8, 4, 2, 1):
        for i in range(4):
            for r in (sq[i], sq[i] + 1):
                k.e("v_add_f32_dpp v%d, v%d, v%d row_ror:%d row_mask:0xf bank_mask:0xf" % (r, r, r, rot))
    for i in range(4):
        for s in interleave(allreduce(sq[i], sq[i] + 2, "v_add_f32"), allreduce(sq[i] + 1, sq[i] + 3, "v_add_f32")):
            k.e(s)
    vz = k.alloc()
    k.e("v_cmp_eq_u32 vcc, 0, v%d" % l_)
    for i in range(4):
        k.e("v_cndmask_b32 v%d, 0, v%d, vcc" % (sq[i], sq[i]))
        k.e("v_cndmask_b32 v%d, 0, v%d, vcc" % (sq[i] + 1, sq[i] + 1))
    k.e("v_lshlrev_b32 v%d, 14, v%d" % (vz, l_))
    k.e("s_lshl_b32 s%d, s2, 7" % S_T0)
    k.e("s_lshl_b32 s%d, s%d, 5" % (S_T1, S_WAVE))
    k.e("s_add_u32 s%d, s%d, s%d" % (S_T0, S_T0, S_T1))
    k.e("s_mov_b64 exec, 0xff")
    for i in range(4):
        k.vmem("buffer_store_dwordx2 %s, v%d, %s, s%d offen offset:%d" % (vr(sq[i], 2), vz, srd(SRD_SO), S_T0, 8 * i), "st")
    k.e("s_mov_b64 exec, -1")
    k.e("s_branch L_end_%s" % k.name)
    k.label("L_cs_%s" % k.name)
    k.e("s_sub_u32 s%d, s2, 128" % S_T0)
    k.e("s_waitcnt lgkmcnt(0)")
    k.e("s_mov_b32 s%d, s%d" % (SRD_W, PTR(IN_WQKV)))
    k.e("s_mov_b32 s%d, s%d" % (SRD_W + 1, PTR(IN_WQKV) + 1))
    k.e("s_mov_b32 s%d, %d" % (SRD_W + 2, 512 * 3072))
    k.e("s_mov_b32 s%d, 0x00020000" % (SRD_W + 3))
    k.e("s_mov_b32 s%d, 3072" % S_T1)
    k.e("s_mov_b32 s%d, 0" % S_T2)
    k.e("s_cmp_lt_u32 s%d, 24" % S_T0)
    k.e("s_cbranch_scc1 L_sel_%s" % k.name)
    k.e("s_mov_b32 s%d, s%d" % (SRD_W, PTR(IN_W1)))
    k.e("s_mov_b32 s%d, s%d" % (SRD_W + 1, PTR(IN_W1) + 1))
    k.e("s_mov_b32 s%d, %d" % (SRD_W + 2, 512 * 1024))
    k.e("s_mov_b32 s%d, 1024" % S_T1)
    k.e("s_mov_b32 s%d, 0x2000" % S_T2)
    k.e("s_sub_u32 s%d, s%d, 24" % (S_T0, S_T0))
    k.e("s_cmp_lt_u32 s%d, 8" % S_T0)
    k.e("s_cbranch_scc1 L_sel_%s" % k.name)
    k.e("s_mov_b32 s%d, s%d" % (SRD_W, PTR(IN_W3)))
    k.e("s_mov_b32 s%d, s%d" % (SRD_W + 1, PTR(IN_W3) + 1))
    k.e("s_mov_b32 s%d, %d" % (SRD_W + 2, 512 * 2752))
    k.e("s_mov_b32 s%d, 2752" % S_T1)
    k.e("s_mov_b32 s%d, 0x4000" % S_T2)
    k.e("s_sub_u32 s%d, s%d, 8" % (S_T0, S_T0))
    k.label("L_sel_%s" % k.name)
    make_srd(k, SRD_O, ("ws", WS_CS), 0x6000)
    k.release(3)
    va, vt, vc = k.alloc(), k.alloc(), k.alloc()
    k.e("v_lshrrev_b32 v%d, 5, v0" % vt)
    k.e("v_lshlrev_b32 v%d, 6, v%d" % (vt, vt))
    k.e("v_mul_lo_u32 v%d, s%d, v%d" % (va, S_T1, vt))
    k.e("v_and_b32 v%d, 31, v0" % vc)
    k.e("v_lshl_add_u32 v%d, v%d, 2, v%d" % (va, vc, va))
    k.e("s_lshl_b32 s%d, s%d, 7" % (S_WBASE, S_T0))
    k.e("v_lshl_add_u32 v%d, v%d, 2, s%d" % (vt, vc, S_WBASE))
    k.e("v_cmp_le_u32 vcc, s%d, v%d" % (S_T1, vt))
    k.e("v_mov_b32 v%d, 0x7ffffff0" % vt)
    k.e("v_cndmask_b32 v%d, v%d, v%d, vcc" % (va, va, vt))
    k.vm = []
    L = [k.alloc() for _ in range(64)]
    for i in range(64):
        k.vmem("buffer_load_dword v%d, v%d, %s, s%d offen" % (L[i], va, srd(SRD_W), S_WBASE), "l%d" % (i // 8))
        if i < 63:
            k.e("s_add_u32 s%d, s%d, s%d" % (S_WBASE, S_WBASE, S_T1))
    lo, hi, t0, t1 = k.alloc(2, 2), None, k.alloc(), k.alloc()
    hi = lo + 1
    k.e("v_mov_b32 v%d, 0" % lo)
    k.e("v_mov_b32 v%d, 0" % hi)
    for i in range(64):
        if i % 8 == 0:
            k.wait_vm("l%d" % (i // 8))
        k.e("v_lshlrev_b32 v%d, 16, v%d" % (t0, L[i]))
        k.e("v_and_b32 v%d, 0xffff0000, v%d" % (t1, L[i]))
        k.e("v_add_f32 v%d, v%d, v%d" % (lo, lo, t0))
        k.e("v_add_f32 v%d, v%d, v%d" % (hi, hi, t1))
    k.e("v_lshlrev_b32 v%d, 3, v0" % t0)
    k.e("ds_write_b64 v%d, %s" % (t0, vr(lo, 2)))
    k.e("s_waitcnt lgkmcnt(0)")
    k.e("s_barrier")
    k.e("v_lshlrev_b32 v%d, 3, v%d" % (t0, vc))
    rr = [k.alloc(2, 2) for _ in range(8)]
    for i in range(8):
        k.e("ds_read_b64 %s, v%d offset:%d" % (vr(rr[i], 2), t0, 256 * i))
    k.e("s_waitcnt lgkmcnt(0)")
    for i in range(1, 8):
        k.e("v_add_f32 v%d, v%d, v%d" % (rr[0], rr[0], rr[i]))
        k.e("v_add_f32 v%d, v%d, v%d" % (rr[0] + 1, rr[0] + 1, rr[i] + 1))
    k.e("s_lshl_b32 s%d, s%d, 8" % (S_T0, S_T0))
    k.e("s_add_u32 s%d, s%d, s%d" % (S_T0, S_T0, S_T2))
    k.e("v_cmp_gt_u32 vcc, 32, v0")
    k.e("s_and_b64 exec, exec, vcc")
    k.vmem("buffer_store_dwordx2 %s, v%d, %s, s%d offen" % (vr(rr[0], 2), t0, srd(SRD_O), S_T0), "st")
    k.label("L_end_%s" % k.name)
    k.e("s_endpgm")
    return k, 128 + NCS, 256, 2048


def softmax_pair(p, t, outp):
    mx, mn, t0, t1 = t, t + 1, t + 2, t + 3
    ep = [t + 4 + i for i in range(4)]
    em = [t + 8 + i for i in range(4)]
    o = []
    o.append("v_max3_f32 v%d, v%d, v%d, v%d" % (mx, p, p + 1, p + 2))
    o.append("v_min3_f32 v%d, v%d, v%d, v%d" % (mn, p, p + 1, p + 2))
    o.append("v_max_f32 v%d, v%d, v%d" % (mx, mx, p + 3))
    o.append("v_min_f32 v%d, v%d, v%d" % (mn, mn, p + 3))
    o += interleave(allreduce(mx, t0, "v_max_f32"), allreduce(mn, t1, "v_min_f32"))
    o.append("v_mul_f32 v%d, s%d, v%d" % (mx, S_L2E, mx))
    o.append("v_mul_f32 v%d, s%d, v%d" % (mn, S_L2E, mn))
    for i in range(4):
        o.append("v_fma_f32 v%d, v%d, s%d, -v%d" % (ep[i], p + i, S_L2E, mx))
        o.append("v_fma_f32 v%d, -v%d, s%d, v%d" % (em[i], p + i, S_L2E, mn))
    for i in range(4):
        o.append("v_exp_f32 v%d, v%d" % (ep[i], ep[i]))
        o.append("v_exp_f32 v%d, v%d" % (em[i], em[i]))
    sp, sm = mx, mn
    o.append("v_add_f32 v%d, v%d, v%d" % (sp, ep[0], ep[1]))
    o.append("v_add_f32 v%d, v%d, v%d" % (sm, em[0], em[1]))
    o.append("v_add_f32 v%d, v%d, v%d" % (t0, ep[2], ep[3]))
    o.append("v_add_f32 v%d, v%d, v%d" % (t1, em[2], em[3]))
    o.append("v_add_f32 v%d, v%d, v%d" % (sp, sp, t0))
    o.append("v_add_f32 v%d, v%d, v%d" % (sm, sm, t1))
    o += interleave(allreduce(sp, t0, "v_add_f32"), allreduce(sm, t1, "v_add_f32"))
    o.append("v_rcp_f32 v%d, v%d" % (sp, sp))
    o.append("v_rcp_f32 v%d, v%d" % (sm, sm))
    o.append("s_nop 0")
    for i in range(4):
        o.append("v_mul_f32 v%d, v%d, v%d" % (ep[i], ep[i], sp))
        o.append("v_mul_f32 v%d, v%d, v%d" % (em[i], em[i], sm))
    o.append("v_cvt_pk_bf16_f32 v%d, v%d, v%d" % (outp, ep[0], ep[1]))
    o.append("v_cvt_pk_bf16_f32 v%d, v%d, v%d" % (outp + 1, ep[2], ep[3]))
    o.append("v_cvt_pk_bf16_f32 v%d, v%d, v%d" % (outp + 2, em[0], em[1]))
    o.append("v_cvt_pk_bf16_f32 v%d, v%d, v%d" % (outp + 3, em[2], em[3]))
    return o


def p_qkv(k, g):
    MT, NU, KS, CS = 2, 3, 16, 4
    mk = k.mark()
    k.e("s_mov_b32 s%d, s%d" % (S_TOKB, S_TOKW))
    t16_base(k, S_XO, 512)
    w = w_tb(k, g, False, NU, KS)
    vph = k.alloc()
    k.e("v_lshlrev_b32 v%d, 7, v%d" % (vph, g.g))
    k.e("v_lshl_add_u32 v%d, v%d, 1, v%d" % (vph, g.m, vph))
    k.e("s_lshl_b32 s%d, s%d, 10" % (S_T0, S_CBW))
    k.e("v_add_u32 v%d, s%d, v%d" % (vph, S_T0, vph))
    st, st_issue = stats_load(k, g, MT)
    vcs = k.alloc()
    k.e("v_lshlrev_b32 v%d, 4, v%d" % (vcs, g.g))
    X = [[k.alloc(4, 4) for _ in range(KS)] for _ in range(MT)]
    cs = [[X[0][2 * u + tt] for tt in range(2)] for u in range(NU)]
    wphi = [X[0][6], X[0][6] + 2]
    wphi_hi = [X[0][7], X[0][7] + 2]
    acc = [[[k.alloc(4, 4) for _ in range(MT)] for _ in range(2)] for _ in range(NU)]
    make_srd(k, SRD_X, ("l", R_XIN), XBYTES)
    make_srd(k, SRD_R, ("in", IN_WPHI), 32 * 512)
    make_srd(k, SRD_O, ("l", R_PHIQ), S * 2048)
    make_srd(k, SRD_R2, ("l", R_KVA), 0x20000)
    make_srd(k, SRD_S, ("l", ST_XIN), STBYTES)
    make_srd(k, SRD_C, ("ws", CS_QKV), 1536 * 4)
    stamp(k, g)
    k.e("s_barrier")
    stamp(k, g)
    for c in range(KS // CS):
        for mt in range(MT):
            for s in range(c * CS, (c + 1) * CS):
                xload(k, g, X[mt][s], 512, mt, s, "c%d" % c)
    st_issue()

    def cs_issue():
        k.e("s_lshl_b32 s%d, s%d, 7" % (S_T0, S_CBW))
        for u in range(NU):
            if u:
                k.e("s_add_u32 s%d, s%d, 2048" % (S_T0, S_T0))
            for tt in range(2):
                k.vmem("buffer_load_dwordx4 %s, v%d, %s, s%d offen offset:%d" % (
                    vr(cs[u][tt], 4), vcs, srd(SRD_C), S_T0, tt * 64), "stat")
        for hh in range(2):
            for j in range(4):
                k.vmem("buffer_load_ushort v%d, v%d, %s, 0 offen offset:%d" % (
                    (wphi[hh] if j & 1 == 0 else wphi_hi[hh]) + (j >> 1), vph, srd(SRD_R), 512 * hh + 32 * j), "stat")
    wbr = gemm_loop(k, g, w, KS, CS, MT, lambda s, mt: X[mt][s], acc, mid={8: cs_issue})
    k.e("s_barrier")
    stamp(k, g)
    xb = X[0][0]
    pool = [xb + 32]

    def ta(n, al=2):
        b = (pool[0] + al - 1) // al * al
        pool[0] = b + n
        assert pool[0] <= xb + 128
        return b

    ident = ta(2)
    ones = ta(2)
    t = ta(1)
    t2 = ta(1)
    k.e("v_mov_b32 v%d, 0x3f803f80" % ones)
    k.e("v_mov_b32 v%d, 0x3f803f80" % (ones + 1))
    k.e("v_and_b32 v%d, 1, v%d" % (t, g.m))
    k.e("v_lshlrev_b32 v%d, 4, v%d" % (t, t))
    k.e("v_mov_b32 v%d, 0x3f80" % t2)
    k.e("v_lshlrev_b32 v%d, v%d, v%d" % (t2, t, t2))
    k.e("v_lshrrev_b32 v%d, 2, v%d" % (t, g.m))
    k.e("v_cmp_eq_u32 vcc, v%d, v%d" % (t, g.g))
    k.e("v_cndmask_b32 v%d, 0, v%d, vcc" % (t2, t2))
    k.e("v_and_b32 v%d, 2, v%d" % (t, g.m))
    k.e("v_cmp_eq_u32 vcc, 0, v%d" % t)
    k.e("v_cndmask_b32 v%d, 0, v%d, vcc" % (ident, t2))
    k.e("v_cndmask_b32 v%d, v%d, 0, vcc" % (ident + 1, t2))
    k.wait_vm("stat")
    for s_ in interleave(*[stats_finish(st[mt]) for mt in range(MT)]):
        k.e(s_)
    for hh in range(2):
        for j in range(2):
            k.e("v_lshl_or_b32 v%d, v%d, 16, v%d" % (wphi[hh] + j, wphi_hi[hh] + j, wphi[hh] + j))
    kvacc = [[wbr[4 * hh + b] for b in range(4)] for hh in range(2)]
    k.e("s_lshl_b32 s%d, s%d, 11" % (S_OB, S_TOKB))
    k.e("s_lshl_b32 s%d, s%d, 11" % (S_T0, S_CBW))
    k.e("s_add_u32 s%d, s%d, s%d" % (S_OB, S_OB, S_T0))
    k.e("s_add_u32 s%d, s%d, 0x8000" % (S_T1, S_OB))
    pmark = pool[0]
    qb, kb, vb = ta(2), ta(2), ta(2)
    pq, pk = ta(4, 4), ta(4, 4)
    tq, tk = ta(12), ta(12)
    lt = [tq, tq + 4, tq + 8]
    oq, ok = ta(4, 4), ta(4, 4)
    tp, tm, tv = ta(4, 4), ta(4, 4), ta(4, 4)
    tpp, tmp_, tvp = ta(2), ta(2), ta(2)
    for mt in range(MT):
        for hh in range(2):
            seqs = []
            for u, dst in enumerate((qb, kb, vb)):
                a = acc[u][hh][mt]
                seqs.append(ln_apply(a, cs[u][hh], st[mt], lt[u]) + pack2(dst, a))
            for s_ in interleave(*seqs):
                k.e(s_)
            k.e("v_mfma_f32_16x16x16_bf16 %s, %s, %s, 0" % (vr(pq, 4), vr(wphi[hh], 2), vr(qb, 2)))
            k.e("v_mfma_f32_16x16x16_bf16 %s, %s, %s, 0" % (vr(pk, 4), vr(wphi[hh], 2), vr(kb, 2)))
            k.e("v_mfma_f32_16x16x16_bf16 %s, %s, %s, 0" % (vr(tv, 4), vr(vb, 2), vr(ident, 2)))
            for s_ in interleave(softmax_pair(pq, tq, oq), softmax_pair(pk, tk, ok)):
                k.e(s_)
            k.vmem("buffer_store_dwordx4 %s, v%d, %s, s%d offen offset:%d sc1" % (
                vr(oq, 4), g.lin, srd(SRD_O), S_T1 if mt else S_OB, 1024 * hh), "st")
            k.e("v_mfma_f32_16x16x16_bf16 %s, %s, %s, 0" % (vr(tp, 4), vr(ok, 2), vr(ident, 2)))
            k.e("v_mfma_f32_16x16x16_bf16 %s, %s, %s, 0" % (vr(tm, 4), vr(ok + 2, 2), vr(ident, 2)))
            for s_ in pack2(tvp, tv) + pack2(tpp, tp) + pack2(tmp_, tm):
                k.e(s_)
            kk = kvacc[hh]
            for (dst, a_, b_) in ((kk[0], tpp, tvp), (kk[1], tmp_, tvp), (kk[2], tpp, ones), (kk[3], tmp_, ones)):
                k.e("v_mfma_f32_16x16x16_bf16 %s, %s, %s, %s" % (
                    vr(dst, 4), vr(a_, 2), vr(b_, 2), "0" if mt == 0 else vr(dst, 4)))
    pool[0] = pmark
    vl = ta(1)
    k.e("s_lshl_b32 s%d, s%d, 13" % (S_T0, S_WAVE))
    k.e("s_add_u32 s%d, s%d, 0x%x" % (S_T0, S_T0, LDS_SCR))
    k.e("v_lshlrev_b32 v%d, 5, v%d" % (vl, g.l))
    vl2 = ta(1)
    k.e("v_add_u32 v%d, s%d, v%d" % (vl2, S_T0, vl))
    for hh in range(2):
        for b in range(4):
            k.e("ds_write_b128 v%d, %s offset:%d" % (vl2, vr(kvacc[hh][b], 4), hh * 4096 + (b >> 1) * 2048 + (b & 1) * 16))
    signal(k, g, E_PHIQ, 2)
    k.e("s_waitcnt lgkmcnt(0)")
    k.e("s_barrier")
    k.e("s_lshl_b32 s%d, s%d, 11" % (S_T0, S_WAVE))
    k.e("s_add_u32 s%d, s%d, 0x%x" % (S_T0, S_T0, LDS_SCR))
    k.e("v_add_u32 v%d, s%d, v%d" % (vl2, S_T0, vl))
    rd = [ta(8, 4) for _ in range(4)]
    for ww in range(4):
        k.e("ds_read_b128 %s, v%d offset:%d" % (vr(rd[ww], 4), vl2, ww * 8192))
        k.e("ds_read_b128 %s, v%d offset:%d" % (vr(rd[ww] + 4, 4), vl2, ww * 8192 + 16))
    k.e("s_lshl_b32 s%d, s%d, 2" % (S_T0, S_CBW))
    k.e("s_add_u32 s%d, s%d, s%d" % (S_T0, S_T0, S_WAVE))
    k.e("s_lshl_b32 s%d, s%d, 11" % (S_T0, S_T0))
    k.e("s_bitcmp1_b32 s%d, 0" % S_WAVE)
    k.e("s_cselect_b32 s%d, 0x00010001, -1" % S_T1)
    k.e("s_waitcnt lgkmcnt(0)")
    for i in range(8):
        k.e("v_add_f32 v%d, v%d, v%d" % (rd[0] + i, rd[0] + i, rd[1] + i))
        k.e("v_add_f32 v%d, v%d, v%d" % (rd[2] + i, rd[2] + i, rd[3] + i))
    for i in range(8):
        k.e("v_add_f32 v%d, v%d, v%d" % (rd[0] + i, rd[0] + i, rd[2] + i))
    k.e("s_mov_b32 exec_lo, s%d" % S_T1)
    k.e("s_mov_b32 exec_hi, s%d" % S_T1)
    for i in range(8):
        k.e("buffer_atomic_add_f32 v%d, v%d, %s, s%d offen offset:%d sc1" % (rd[0] + i, vl, srd(SRD_R2), S_T0, 4 * i))
    k.e("s_lshl_b32 s%d, s%d, 7" % (S_T0, S_CBW))
    k.e("s_add_u32 s%d, s%d, 0x%x" % (S_T0, S_T0, FL_KV))
    k.e("s_mov_b64 exec, 1")
    k.e("s_waitcnt vmcnt(0)")
    k.e("buffer_atomic_add v%d, v%d, %s, s%d offen sc1" % (g.one, g.l128, srd(SRD_F), S_T0))
    k.e("s_mov_b64 exec, -1")
    stamp(k, g)
    k.release(mk)


def out_base(k):
    k.e("s_lshl_b32 s%d, s%d, 10" % (S_OB, S_TOKB))
    k.e("s_lshl_b32 s%d, s%d, 11" % (S_T0, S_CB))
    k.e("s_add_u32 s%d, s%d, s%d" % (S_OB, S_OB, S_T0))


def res_load(k, vsw, slot, tag, regs=None):
    r = regs if regs is not None else [k.alloc(4, 4) for _ in range(2)]

    def issue():
        for u in range(2):
            k.vmem("buffer_load_dwordx4 %s, v%d, %s, s%d offen offset:%d" % (vr(r[u], 4), vsw, srd(slot), S_OB, 1024 * u), tag)
    return r, issue


def store_pairs(k, vsw, pk):
    for u in range(2):
        for s_ in swap_pair(pk[u]):
            k.e(s_)
    for u in range(2):
        k.vmem("buffer_store_dwordx4 %s, v%d, %s, s%d offen offset:%d sc1" % (vr(pk[u], 4), vsw, srd(SRD_O), S_OB, 1024 * u), "st")


def p_wo(k, g):
    MT, NU, KS, CS = 1, 2, 16, 4
    mk0 = k.mark()
    vsw = g.vsw
    k.e("s_mov_b32 s%d, s%d" % (S_TOKB, S_TOKN))
    t16_base(k, S_XO, 1024)
    out_base(k)
    w = w_tb(k, g, True, NU, KS)
    PQ = [k.alloc(4, 4) for _ in range(32)]
    O = [PQ[2 * s] for s in range(KS)]
    res, res_issue = res_load(k, vsw, SRD_R, "res")
    vkv = k.alloc()
    vz = k.alloc()
    k.e("v_add_u32 v%d, 0x%x, v%d" % (vkv, LDS_KV, g.lin))
    k.e("v_lshlrev_b32 v%d, 4, v%d" % (vz, g.g))
    k.e("v_add_u32 v%d, 0x%x, v%d" % (vz, LDS_Z, vz))
    make_srd(k, SRD_X, ("l", R_PHIQ), S * 2048)
    make_srd(k, SRD_R, ("l", R_XIN), XBYTES)
    make_srd(k, SRD_O, ("l", R_XA), XBYTES)
    make_srd(k, SRD_SO, ("l", ST_XA), STBYTES)
    stamp(k, g)
    k.e("s_barrier")
    stamp(k, g)
    for h in range(32):
        xload(k, g, PQ[h], 1024, 0, h, "pq%d" % (h // 4))
    res_issue()
    k.e("s_barrier")
    stamp(k, g)
    mk = k.mark()
    GH = 4
    kvf = [[k.alloc(4, 4) for _ in range(GH)] for _ in range(2)]
    zf = [[k.alloc(4, 4) for _ in range(GH)] for _ in range(2)]
    num = [k.alloc(4, 4) for _ in range(GH)]
    den = [k.alloc(4, 4) for _ in range(GH)]

    def rd(grp):
        for i in range(GH):
            h = grp * GH + i
            k.e("ds_read_b128 %s, v%d offset:%d" % (vr(kvf[grp % 2][i], 4), vkv, h * 1024))
            k.e("ds_read_b128 %s, v%d offset:%d" % (vr(zf[grp % 2][i], 4), vz, h * 64))

    rd(0)
    for grp in range(32 // GH):
        if grp + 1 < 32 // GH:
            rd(grp + 1)
            k.e("s_waitcnt lgkmcnt(%d)" % (2 * GH))
        else:
            k.e("s_waitcnt lgkmcnt(0)")
        k.wait_vm("pq%d" % grp)
        for i in range(GH):
            h = grp * GH + i
            k.e("v_mfma_f32_16x16x32_bf16 %s, %s, %s, 0" % (vr(num[i], 4), vr(kvf[grp % 2][i], 4), vr(PQ[h], 4)))
            k.e("v_mfma_f32_16x16x32_bf16 %s, %s, %s, 0" % (vr(den[i], 4), vr(zf[grp % 2][i], 4), vr(PQ[h], 4)))
        for i in range(GH):
            k.e("v_add_f32 v%d, s%d, v%d" % (den[i], S_EPS, den[i]))
        for i in range(GH):
            k.e("v_rcp_f32 v%d, v%d" % (den[i], den[i]))
        for i in range(GH):
            for j in range(4):
                k.e("v_mul_f32 v%d, v%d, v%d" % (num[i] + j, num[i] + j, den[i]))
        for i in range(GH):
            h = grp * GH + i
            for s_ in pack2(O[h // 2] + 2 * (h & 1), num[i]):
                k.e(s_)
    k.release(mk)
    acc = [[[k.alloc(4, 4)] for _ in range(2)] for _ in range(NU)]
    gemm_loop(k, g, w, KS, CS, MT, lambda s, mt: O[s], acc, waits=False)
    k.e("s_barrier")
    stamp(k, g)
    k.wait_vm("res")
    seqs = []
    pk = [PQ[9], PQ[11]]
    for u in range(2):
        for s_ in swap_pair(res[u]):
            k.e(s_)
    for u in range(2):
        for t in range(2):
            i = 2 * u + t
            a = acc[u][t][0]
            tt = PQ[2 * i + 1]
            seqs.append(round4(a) + unpack2(tt, res[u] + 2 * t) + add4(a, tt) + pack2(pk[u] + 2 * t, a))
    for s_ in interleave(*seqs):
        k.e(s_)
    stats_store(k, g, [pk[u] + i for u in range(2) for i in range(4)], PQ[13])
    store_pairs(k, vsw, pk)
    signal(k, g, E_XA, 1)
    k.release(mk0)


def cs_load(k, g, tag):
    vcs = k.alloc()
    k.e("v_lshlrev_b32 v%d, 4, v%d" % (vcs, g.g))
    cs = [[k.alloc(4, 4) for _ in range(2)] for _ in range(2)]

    def issue():
        k.e("s_lshl_b32 s%d, s%d, 8" % (S_T0, S_CB))
        for u in range(2):
            for t in range(2):
                k.vmem("buffer_load_dwordx4 %s, v%d, %s, s%d offen offset:%d" % (
                    vr(cs[u][t], 4), vcs, srd(SRD_C), S_T0, 128 * u + 64 * t), tag)
    return cs, issue


def p_w1(k, g):
    MT, NU, KS, CS = 1, 2, 16, 4
    mk0 = k.mark()
    vsw = g.vsw
    t16_base(k, S_XO, 512)
    w = w_tb(k, g, False, NU, KS)
    X = [k.alloc(4, 4) for _ in range(KS)]
    acc = [[[k.alloc(4, 4)] for _ in range(2)] for _ in range(NU)]
    st, st_issue = stats_load(k, g, MT)
    cs, cs_issue = cs_load(k, g, "cs")
    make_srd(k, SRD_X, ("l", R_XA), XBYTES)
    make_srd(k, SRD_O, ("l", R_H), XBYTES)
    make_srd(k, SRD_S, ("l", ST_XA), STBYTES)
    make_srd(k, SRD_C, ("ws", CS_W1), 512 * 4)
    cs_issue()
    stamp(k, g)
    k.e("s_barrier")
    stamp(k, g)
    for s in range(KS):
        xload(k, g, X[s], 512, 0, s, "c%d" % (s // CS))
    st_issue()
    gemm_loop(k, g, w, KS, CS, MT, lambda s, mt: X[s], acc)
    k.e("s_barrier")
    stamp(k, g)
    k.wait_vm("stat")
    for s_ in stats_finish(st[0], double=True):
        k.e(s_)
    seqs = []
    pk = [X[8], X[9]]
    for u in range(2):
        for t in range(2):
            i = 2 * u + t
            a = acc[u][t][0]
            seqs.append(ln_apply(a, cs[u][t], st[0], X[i]) + gelu4(a, X[i], pk[u] + 2 * t))
    for s_ in interleave(*seqs):
        k.e(s_)
    store_pairs(k, vsw, pk)
    signal(k, g, E_H, 1)
    k.release(mk0)


def p_w2(k, g):
    MT, NU, KS, CS = 1, 2, 16, 4
    mk0 = k.mark()
    vsw = g.vsw
    w = w_tb(k, g, False, NU, KS)
    X = [k.alloc(4, 4) for _ in range(KS)]
    acc = [[[k.alloc(4, 4)] for _ in range(2)] for _ in range(NU)]
    res, res_issue = res_load(k, vsw, SRD_R, "stat")
    st, st_issue = stats_load(k, g, MT)
    vsh = []
    t = k.alloc()
    for c, d in enumerate((-1, 1, -2, 2)):
        r = k.alloc()
        k.e("s_add_i32 s%d, s%d, %d" % (S_T0, S_TOKB, d))
        k.e("v_add_u32 v%d, s%d, v%d" % (t, S_T0, g.m))
        k.e("v_ashrrev_i32 v%d, 4, v%d" % (r, t))
        k.e("v_lshlrev_b32 v%d, 14, v%d" % (r, r))
        k.e("v_and_b32 v%d, 15, v%d" % (t, t))
        k.e("v_lshl_add_u32 v%d, v%d, 4, v%d" % (r, t, r))
        k.e("v_lshl_add_u32 v%d, v%d, 8, v%d" % (r, g.g, r))
        if c:
            k.e("v_add_u32 v%d, 0x%x, v%d" % (r, 4096 * c, r))
        vsh.append(r)
    make_srd(k, SRD_X, ("l", R_H), XBYTES)
    make_srd(k, SRD_O, ("l", R_X1), XBYTES)
    make_srd(k, SRD_R, ("l", R_XA), XBYTES)
    make_srd(k, SRD_S, ("l", ST_XA), STBYTES)
    make_srd(k, SRD_SO, ("l", ST_X1), STBYTES)
    res_issue()
    st_issue()
    stamp(k, g)
    k.e("s_barrier")
    stamp(k, g)
    for c in range(4):
        for s in range(4 * c, 4 * c + 4):
            k.vmem("buffer_load_dwordx4 %s, v%d, %s, 0 offen offset:%d" % (vr(X[s], 4), vsh[c], srd(SRD_X), 1024 * (s % 4)), "c%d" % c)
    gemm_loop(k, g, w, KS, CS, MT, lambda s, mt: X[s], acc)
    k.e("s_barrier")
    stamp(k, g)
    for s_ in interleave(stats_finish(st[0]), swap_pair(res[0]) + swap_pair(res[1])):
        k.e(s_)
    seqs = []
    pk = [X[8], X[9]]
    for u in range(2):
        for t in range(2):
            i = 2 * u + t
            a = acc[u][t][0]
            tt = X[i]
            sq = round4(a) + unpack2(tt, res[u] + 2 * t)
            sq += ["v_fma_f32 v%d, v%d, v%d, v%d" % (tt + j, tt + j, st[0], st[0] + 1) for j in range(4)]
            sq += round4(tt) + add4(a, tt) + pack2(pk[u] + 2 * t, a)
            seqs.append(sq)
    for s_ in interleave(*seqs):
        k.e(s_)
    stats_store(k, g, [pk[u] + i for u in range(2) for i in range(4)], X[10])
    store_pairs(k, vsw, pk)
    signal(k, g, E_X1, 1)
    k.release(mk0)


def p_w3(k, g):
    MT, NU, KS, CS = 2, 3, 16, 4
    mk0 = k.mark()
    vsw = g.vsw
    k.e("s_mov_b32 s%d, s%d" % (S_TOKB, S_TOKW))
    t16_base(k, S_XO, 512)
    w = w_tb(k, g, False, NU, KS)
    k.e("s_mul_i32 s%d, s%d, %d" % (S_OB, S_TOKB, 2752))
    k.e("s_lshl_b32 s%d, s%d, 10" % (S_T0, S_CU3))
    k.e("s_add_u32 s%d, s%d, s%d" % (S_OB, S_OB, S_T0))
    st, st_issue = stats_load(k, g, MT)
    vcs = k.alloc()
    k.e("v_lshlrev_b32 v%d, 4, v%d" % (vcs, g.g))
    X = [[k.alloc(4, 4) for _ in range(KS)] for _ in range(MT)]
    cs = [[X[0][2 * u + tt] for tt in range(2)] for u in range(NU)]
    acc = [[[k.alloc(4, 4) for _ in range(MT)] for _ in range(2)] for _ in range(NU)]
    make_srd(k, SRD_X, ("l", R_X1), XBYTES)
    make_srd(k, SRD_O, ("l", R_H3), S * 2752)
    make_srd(k, SRD_S, ("l", ST_X1), STBYTES)
    make_srd(k, SRD_C, ("ws", CS_W3), 1376 * 4)
    stamp(k, g)
    k.e("s_barrier")
    stamp(k, g)
    for c in range(KS // CS):
        for mt in range(MT):
            for s in range(c * CS, (c + 1) * CS):
                xload(k, g, X[mt][s], 512, mt, s, "c%d" % c)
    st_issue()

    def cs_issue():
        k.e("s_lshl_b32 s%d, s%d, 7" % (S_T0, S_CU3))
        for u in range(NU):
            for tt in range(2):
                k.vmem("buffer_load_dwordx4 %s, v%d, %s, s%d offen offset:%d" % (
                    vr(cs[u][tt], 4), vcs, srd(SRD_C), S_T0, u * 128 + tt * 64), "stat")
    gemm_loop(k, g, w, KS, CS, MT, lambda s, mt: X[mt][s], acc, mid={8: cs_issue})
    k.e("s_barrier")
    stamp(k, g)
    k.wait_vm("stat")
    for s_ in interleave(*[stats_finish(st[mt]) for mt in range(MT)]):
        k.e(s_)
    k.e("s_add_u32 s%d, s%d, %d" % (S_T1, S_OB, 16 * 2752))
    for mt in range(MT):
        seqs = []
        pk = [X[mt][8 + u] for u in range(NU)]
        for u in range(NU):
            for t in range(2):
                i = 2 * u + t
                a = acc[u][t][mt]
                seqs.append(ln_apply(a, cs[u][t], st[mt], X[1][i]) + gelu4(a, X[1][i], pk[u] + 2 * t))
        for s_ in interleave(*seqs):
            k.e(s_)
        for u in range(NU):
            for s_ in swap_pair(pk[u]):
                k.e(s_)
        for u in range(NU):
            k.vmem("buffer_store_dwordx4 %s, v%d, %s, s%d offen offset:%d sc1" % (
                vr(pk[u], 4), vsw, srd(SRD_O), S_T1 if mt else S_OB, 1024 * u), "st")
    signal(k, g, E_H3, 2)
    k.release(mk0)


KCAP4 = 40


def p_w4(k, g):
    MT, NU, KS, CS = 1, 2, 43, 4
    mk0 = k.mark()
    vsw = g.vsw
    k.e("s_mov_b32 s%d, s%d" % (S_TOKB, S_TOKN))
    t16_base(k, S_XO, F)
    out_base(k)
    w = w_tb(k, g, False, NU, KCAP4)
    X = [k.alloc(4, 4) for _ in range(KS)]
    acc = [[[k.alloc(4, 4)] for _ in range(2)] for _ in range(NU)]
    res, res_issue = res_load(k, vsw, SRD_R, "res", [X[12], X[13]])
    res1, res1_issue = res_load(k, vsw, SRD_R2, "res", [X[14], X[15]])
    vro = k.alloc()
    t = k.alloc()
    k.e("v_add_u32 v%d, s%d, v%d" % (vro, S_TOKB, g.m))
    k.e("v_lshlrev_b32 v%d, 10, v%d" % (vro, vro))
    k.e("v_and_b32 v%d, 1, v%d" % (t, g.g))
    k.e("v_lshl_add_u32 v%d, v%d, 5, v%d" % (vro, t, vro))
    k.e("v_lshrrev_b32 v%d, 1, v%d" % (t, g.g))
    k.e("v_lshl_add_u32 v%d, v%d, 4, v%d" % (vro, t, vro))
    k.e("s_lshl_b32 s%d, s%d, 7" % (S_T0, S_CB))
    k.e("v_add_u32 v%d, s%d, v%d" % (vro, S_T0, vro))
    make_srd(k, SRD_X, ("l", R_H3), S * 2752)
    make_srd(k, SRD_O, ("n", R_XIN), XBYTES)
    make_srd(k, SRD_R, ("l", R_XA), XBYTES)
    make_srd(k, SRD_R2, ("l", R_X1), XBYTES)
    make_srd(k, SRD_SO, ("n", ST_XIN), STBYTES)
    make_srd(k, SRD_C, ("in", OUT), XBYTES)
    stamp(k, g)
    k.e("s_barrier")
    stamp(k, g)
    for s in range(KS):
        xload(k, g, X[s], F, 0, s, "c%d" % (s // CS))

    def resi():
        res_issue()
        res1_issue()

    def b3():
        k.e("s_barrier")

    def b4():
        k.e("s_barrier")

    gemm_loop(k, g, w, KS, CS, MT, lambda s, mt: X[s], acc, mid={3: b3, 20: resi}, pre={KCAP4: b4})
    k.e("s_barrier")
    stamp(k, g)
    k.wait_vm("res")
    for u in range(2):
        for s_ in swap_pair(res[u]) + swap_pair(res1[u]):
            k.e(s_)
    seqs = []
    pk = [X[8], X[9]]
    for u in range(2):
        for t in range(2):
            i = 2 * u + t
            a = acc[u][t][0]
            tt = X[i]
            seqs.append(round4(a) + unpack2(tt, res1[u] + 2 * t) + add4(a, tt) + round4(a) +
                        unpack2(tt, res[u] + 2 * t) + add4(a, tt) + pack2(pk[u] + 2 * t, a))
    for s_ in interleave(*seqs):
        k.e(s_)
    k.e("s_cmp_lg_u32 s%d, 0" % S_LAYER)
    k.e("s_cbranch_scc1 L_last_%s" % k.name)
    stats_store(k, g, [pk[u] + i for u in range(2) for i in range(4)], X[10])
    store_pairs(k, vsw, pk)
    signal(k, g, E_X, 1, nxt=True)
    k.e("s_add_u32 s%d, s%d, 0x%x" % (S_WSL, S_WSL, LSTRIDE))
    k.e("s_addc_u32 s%d, s%d, 0" % (S_WSH, S_WSH))
    k.e("s_mov_b32 s%d, 1" % S_LAYER)
    k.e("s_branch L_layer_%s" % k.name)
    k.label("L_last_%s" % k.name)
    k.e("s_nop 4")
    for u in range(2):
        for s_ in swap_pair(pk[u]):
            k.e(s_)
    for u in range(2):
        k.e("buffer_store_dwordx4 %s, v%d, %s, 0 offen offset:%d" % (vr(pk[u], 4), vro, srd(SRD_C), 64 * u))
    k.release(mk0)


def w_lane(k, g, r, wrow, swz_bit, t, t2):
    k.e("v_lshrrev_b32 v%d, 2, v%d" % (t, g.l))
    k.e("s_mov_b32 s%d, %d" % (S_T0, wrow))
    k.e("v_mul_lo_u32 v%d, s%d, v%d" % (r, S_T0, t))
    k.e("v_lshrrev_b32 v%d, %d, v%d" % (t, 2 + swz_bit - 1, g.l))
    k.e("v_and_b32 v%d, 2, v%d" % (t, t))
    k.e("v_and_b32 v%d, 3, v%d" % (t2, g.l))
    k.e("v_xor_b32 v%d, v%d, v%d" % (t, t, t2))
    k.e("v_lshl_add_u32 v%d, v%d, 4, v%d" % (r, t, r))


def dma(k, vwo, soff, m0off):
    k.e("s_add_u32 s%d, s%d, 0x%x" % (S_T0, S_WBASE, soff))
    k.e("s_mov_b32 m0, 0x%x" % m0off)
    k.e("buffer_load_dwordx4 v%d, %s, s%d offen lds" % (vwo, srd(SRD_W), S_T0))


_pollid = [0]


def poll(k, g, soff_code, nl, expect):
    i = _pollid[0]
    _pollid[0] += 1
    for s_ in soff_code:
        k.e(s_)
    k.e("s_mov_b32 s%d, 0" % S_CNT)
    k.e("s_mov_b64 exec, 0x%x" % ((1 << nl) - 1))
    if PRE_SLEEP:
        k.e("s_sleep %d" % PRE_SLEEP)
    k.label("L_poll%d_%s" % (i, k.name))
    k.e("buffer_load_dword v%d, v%d, %s, s%d offen sc1" % (g.pv, g.l128, srd(SRD_F), S_T2))
    k.e("s_waitcnt vmcnt(0)")
    k.e("v_cmp_gt_u32 vcc, %d, v%d" % (expect, g.pv))
    k.e("s_cbranch_vccz L_go%d_%s" % (i, k.name))
    if POLL_SLEEP:
        k.e("s_sleep %d" % POLL_SLEEP)
    k.e("s_add_u32 s%d, s%d, 1" % (S_CNT, S_CNT))
    k.e("s_cmp_lt_u32 s%d, %d" % (S_CNT, POLL_MAX))
    k.e("s_cbranch_scc1 L_poll%d_%s" % (i, k.name))
    k.label("L_go%d_%s" % (i, k.name))
    k.e("s_mov_b64 exec, -1")


def loader(k, g):
    v3072, v1024, v1024k, v2752 = k.alloc(), k.alloc(), k.alloc(), k.alloc()
    t, t2 = k.alloc(), k.alloc()
    g.pv = k.alloc()
    w_lane(k, g, v3072, 3072, 3, t, t2)
    w_lane(k, g, v1024, 1024, 3, t, t2)
    w_lane(k, g, v1024k, 1024, 2, t, t2)
    w_lane(k, g, v2752, 2752, 3, t, t2)
    vl32, vkw, vzw = k.alloc(), k.alloc(), k.alloc()
    k.e("v_lshlrev_b32 v%d, 5, v%d" % (vl32, g.l))
    k.e("v_add_u32 v%d, 0x%x, v%d" % (vkw, LDS_KV, g.lin))
    k.e("v_lshlrev_b32 v%d, 4, v%d" % (vzw, g.g))
    k.e("v_add_u32 v%d, 0x%x, v%d" % (vzw, LDS_Z, vzw))
    pn = ["s_lshl_b32 s%d, s%d, 9" % (S_T2, S_RB)]
    pw = ["s_lshl_b32 s%d, s%d, 10" % (S_T2, S_RBW)]

    def wide_dma(vwo, wrow, ucol):
        us = 16 * 32 * 64
        for j in range(8):
            for wv in range(4):
                for u in range(3):
                    dma(k, vwo, u * ucol + j * 64 * wrow + wv * 16 * wrow, u * us + j * 4096 + wv * 1024)

    def n512_dma(vwo):
        us = 16 * 32 * 64
        for j in range(8):
            for wv in range(4):
                for u in range(2):
                    dma(k, vwo, u * 64 + j * 64 * 1024 + wv * 16 * 1024, u * us + j * 4096 + wv * 1024)

    def w4_dma(j):
        us = KCAP4 * 32 * 64
        for wv in range(4):
            dma(k, v1024, j * 32 * 1024 + (wv & 1) * 64 + (wv >> 1) * 16384, (j % KCAP4) * 2048 + (wv & 1) * us + (wv >> 1) * 1024)

    k.label("L_llayer_%s" % k.name)
    make_srd(k, SRD_F, ("l", R_FL), 0x10000)
    make_srd(k, SRD_W, ("in", IN_WQKV), 512 * 3072)
    k.e("s_lshl_b32 s%d, s%d, 6" % (S_WBASE, S_CBW))
    wide_dma(v3072, 3072, 1024)
    k.e("s_waitcnt vmcnt(0)")
    poll(k, g, pw + ["s_add_u32 s%d, s%d, %d" % (S_T2, S_T2, 128 + 4 * E_X)], 8, 8)
    k.e("s_barrier")
    k.e("s_barrier")
    make_srd(k, SRD_W, ("in", IN_WO), 512 * 1024)
    k.e("s_lshl_b32 s%d, s%d, 7" % (S_WBASE, S_CB))
    n512_dma(v1024k)
    k.e("s_barrier")
    make_srd(k, SRD_R2, ("l", R_KVA), 0x20000)
    k.e("s_waitcnt vmcnt(0)")
    poll(k, g, pn + ["s_add_u32 s%d, s%d, %d" % (S_T2, S_T2, 128 + 4 * E_PHIQ)], 4, 16)
    k.e("s_barrier")
    poll(k, g, ["s_mov_b32 s%d, 0x%x" % (S_T2, FL_KV)], 16, 64)
    mk = k.mark()
    NB = 16
    R = [k.alloc(8, 4) for _ in range(NB)]
    for b0 in range(0, 64, NB):
        k.vm = []
        for i in range(NB):
            sl = b0 + i
            k.e("s_mov_b32 s%d, 0x%x" % (S_T0, sl * 2048))
            k.vmem("buffer_load_dwordx4 %s, v%d, %s, s%d offen" % (vr(R[i], 4), vl32, srd(SRD_R2), S_T0), "k%d" % i)
            k.vmem("buffer_load_dwordx4 %s, v%d, %s, s%d offen offset:16" % (vr(R[i] + 4, 4), vl32, srd(SRD_R2), S_T0), "k%d" % i)
        for i in range(NB):
            sl = b0 + i
            h = sl >> 1
            k.wait_vm("k%d" % i)
            for j in range(4):
                k.e("v_cvt_pk_bf16_f32 v%d, v%d, v%d" % (R[i] + j, R[i] + 2 * j, R[i] + 2 * j + 1))
            if sl & 1:
                k.e("s_mov_b32 exec_lo, 0x00010001")
                k.e("s_mov_b32 exec_hi, 0x00010001")
                k.e("ds_write_b128 v%d, %s offset:%d" % (vzw, vr(R[i], 4), h * 64))
                k.e("s_mov_b64 exec, -1")
            else:
                k.e("ds_write_b128 v%d, %s offset:%d" % (vkw, vr(R[i], 4), h * 1024))
    k.release(mk)
    k.e("s_waitcnt lgkmcnt(0)")
    k.e("s_barrier")
    k.e("s_barrier")
    make_srd(k, SRD_W, ("in", IN_W1), 512 * 1024)
    n512_dma(v1024)
    k.e("s_waitcnt vmcnt(0)")
    poll(k, g, pn + ["s_add_u32 s%d, s%d, %d" % (S_T2, S_T2, 128 + 4 * E_XA)], 4, 8)
    k.e("s_barrier")
    k.e("s_barrier")
    make_srd(k, SRD_W, ("in", IN_W2), 512 * 1024)
    n512_dma(v1024)
    k.e("s_waitcnt vmcnt(0)")
    poll(k, g, pn + ["s_add_u32 s%d, s%d, %d" % (S_T2, S_T2, 4 * E_H)], 6, 8)
    k.e("s_barrier")
    k.e("s_barrier")
    make_srd(k, SRD_W, ("in", IN_W3), 512 * 2752)
    k.e("s_lshl_b32 s%d, s%d, 6" % (S_WBASE, S_CU3))
    wide_dma(v2752, 2752, 64)
    k.e("s_waitcnt vmcnt(0)")
    poll(k, g, pw + ["s_add_u32 s%d, s%d, %d" % (S_T2, S_T2, 128 + 4 * E_X1)], 8, 8)
    k.e("s_barrier")
    k.e("s_barrier")
    make_srd(k, SRD_W, ("in", IN_W4), F * 1024)
    k.e("s_lshl_b32 s%d, s%d, 7" % (S_WBASE, S_CB))
    for j in range(KCAP4):
        w4_dma(j)
    k.e("s_waitcnt vmcnt(0)")
    poll(k, g, pn + ["s_add_u32 s%d, s%d, %d" % (S_T2, S_T2, 128 + 4 * E_H3)], 4, 16)
    k.e("s_barrier")
    k.e("s_barrier")
    for j in range(KCAP4, 43):
        w4_dma(j)
    k.e("s_waitcnt vmcnt(0)")
    k.e("s_barrier")
    k.e("s_barrier")
    k.e("s_cmp_lg_u32 s%d, 0" % S_LAYER)
    k.e("s_cbranch_scc1 L_end_%s" % k.name)
    k.e("s_add_u32 s%d, s%d, 0x%x" % (S_WSL, S_WSL, LSTRIDE))
    k.e("s_addc_u32 s%d, s%d, 0" % (S_WSH, S_WSH))
    k.e("s_mov_b32 s%d, 1" % S_LAYER)
    k.e("s_branch L_llayer_%s" % k.name)


def k_main(name):
    k = Kern(name)
    g = G()
    k.e("s_cmp_ge_u32 s2, 256")
    k.e("s_cbranch_scc1 L_end_%s" % k.name)
    k.e("s_load_dwordx16 s[64:79], s[0:1], 0")
    k.e("s_load_dwordx8 s[80:87], s[0:1], 64")
    g.w = k.alloc()
    g.l = k.alloc()
    g.g = k.alloc()
    g.m = k.alloc()
    g.lin = k.alloc()
    g.one = k.alloc()
    g.l128 = k.alloc()
    g.vsw = k.alloc()
    g.vst = k.alloc()
    k.e("v_lshrrev_b32 v%d, 6, v0" % g.w)
    k.e("v_and_b32 v%d, 63, v0" % g.l)
    k.e("v_readfirstlane_b32 s%d, v%d" % (S_WAVE, g.w))
    k.e("v_lshrrev_b32 v%d, 4, v%d" % (g.g, g.l))
    k.e("v_and_b32 v%d, 15, v%d" % (g.m, g.l))
    k.e("v_lshlrev_b32 v%d, 4, v%d" % (g.lin, g.l))
    k.e("v_mov_b32 v%d, 1" % g.one)
    k.e("v_lshlrev_b32 v%d, 7, v%d" % (g.l128, g.l))
    k.e("v_mov_b32 v%d, 0" % g.vst)
    t = g.w
    k.e("v_and_b32 v%d, 1, v%d" % (t, g.g))
    k.e("v_lshlrev_b32 v%d, 9, v%d" % (g.vsw, t))
    k.e("v_lshrrev_b32 v%d, 1, v%d" % (t, g.g))
    k.e("v_lshl_add_u32 v%d, v%d, 8, v%d" % (g.vsw, t, g.vsw))
    k.e("v_lshl_add_u32 v%d, v%d, 4, v%d" % (g.vsw, g.m, g.vsw))
    k.e("s_and_b32 s%d, s2, 7" % S_T0)
    k.e("s_lshr_b32 s%d, s2, 3" % S_T1)
    k.e("s_lshr_b32 s%d, s%d, 3" % (S_RB, S_T1))
    k.e("s_lshl_b32 s%d, s%d, 2" % (S_T2, S_T0))
    k.e("s_add_u32 s%d, s%d, s%d" % (S_RB, S_RB, S_T2))
    k.e("s_and_b32 s%d, s%d, 7" % (S_CB, S_T1))
    k.e("s_lshr_b32 s%d, s%d, 4" % (S_RBW, S_T1))
    k.e("s_lshl_b32 s%d, s%d, 1" % (S_T2, S_T0))
    k.e("s_add_u32 s%d, s%d, s%d" % (S_RBW, S_RBW, S_T2))
    k.e("s_and_b32 s%d, s%d, 15" % (S_CBW, S_T1))
    k.e("s_lshl_b32 s%d, s%d, 6" % (S_TOKN, S_RB))
    k.e("s_lshl_b32 s%d, s%d, 4" % (S_T0, S_WAVE))
    k.e("s_add_u32 s%d, s%d, s%d" % (S_TOKN, S_TOKN, S_T0))
    k.e("s_lshl_b32 s%d, s%d, 7" % (S_TOKW, S_RBW))
    k.e("s_lshl_b32 s%d, s%d, 5" % (S_T0, S_WAVE))
    k.e("s_add_u32 s%d, s%d, s%d" % (S_TOKW, S_TOKW, S_T0))
    k.e("s_mul_i32 s%d, s%d, 43" % (S_CU3, S_CBW))
    k.e("s_lshr_b32 s%d, s%d, 4" % (S_CU3, S_CU3))
    k.e("s_min_u32 s%d, s%d, 40" % (S_CU3, S_CU3))
    k.e("s_mov_b32 s%d, 0x3f803f80" % S_ONES)
    k.e("s_mov_b32 s%d, 0x%08x" % (S_L2E, f32bits(LOG2E)))
    k.e("s_mov_b32 s%d, 0x%08x" % (S_EPS, f32bits(1e-6)))
    k.e("s_mov_b32 s%d, 0x%08x" % (S_C1, f32bits(0.044715)))
    k.e("s_mov_b32 s%d, 0x%08x" % (S_C2, f32bits(-2.0 * LOG2E * math.sqrt(2.0 / math.pi))))
    k.e("s_mov_b32 s%d, 0x4000" % S_K16)
    k.e("s_mov_b32 s%d, 0" % S_LAYER)
    k.e("s_mov_b32 s%d, 0" % S_STI)
    k.e("s_waitcnt lgkmcnt(0)")
    k.e("s_mov_b32 s%d, s%d" % (S_WSL, PTR(WS)))
    k.e("s_mov_b32 s%d, s%d" % (S_WSH, PTR(WS) + 1))
    k.e("s_cmp_eq_u32 s%d, 4" % S_WAVE)
    k.e("s_cbranch_scc1 L_loader_%s" % k.name)
    mk = k.mark()
    k.label("L_layer_%s" % k.name)
    k.e("s_nop 4")
    p_qkv(k, g)
    p_wo(k, g)
    p_w1(k, g)
    p_w2(k, g)
    p_w3(k, g)
    p_w4(k, g)
    if STAMP:
        stamp(k, g)
        k.e("s_waitcnt vmcnt(0)")
        stamp(k, g)
        k.e("s_cmp_lg_u32 s2, %d" % (STAMP - 1))
        k.e("s_cbranch_scc1 L_end_%s" % k.name)
        k.e("s_cmp_lg_u32 s%d, 0" % S_WAVE)
        k.e("s_cbranch_scc1 L_end_%s" % k.name)
        make_srd(k, 8, ("in", DBG), 256)
        k.e("v_lshlrev_b32 v%d, 2, v%d" % (g.w, g.l))
        k.e("buffer_store_dword v%d, v%d, s[8:11], 0 offen" % (g.vst, g.w))
    k.e("s_branch L_end_%s" % k.name)
    k.release(mk)
    k.label("L_loader_%s" % k.name)
    k.e("s_nop 4")
    loader(k, g)
    k.label("L_end_%s" % k.name)
    k.e("s_endpgm")
    return k, 256, 320, 163840


HEADER = """; Kernarg layout for this problem (96 bytes, ptrs only, base s[0:1]):
;   offset  88: d_ws      268435456 bytes workspace
"""


def build():
    kernels = [k_prep("prep_kernel"), k_main("main_kernel")]
    out = [HEADER.rstrip("\n")]
    for (k, nwg, blk, lds) in kernels:
        out.append("; @launch kernel=%s grid=(%d,1,1) block=(%d,1,1) lds=%d" % (k.name, nwg, blk, lds))
    out.append('.amdgcn_target "amdgcn-amd-amdhsa--gfx950"')
    out.append(".text")
    for (k, nwg, blk, lds) in kernels:
        out.append(".globl %s" % k.name)
        out.append(".p2align 8")
        out.append(".type %s,@function" % k.name)
        out.append("%s:" % k.name)
        out += hazard_pass(k.lines)
    out.append('.section .rodata,"a"')
    for (k, nwg, blk, lds) in kernels:
        nv = (k.maxv + 7) // 8 * 8
        out.append(".p2align 6")
        out.append(".amdhsa_kernel %s" % k.name)
        out.append("  .amdhsa_next_free_vgpr %d" % nv)
        out.append("  .amdhsa_next_free_sgpr 102")
        out.append("  .amdhsa_accum_offset %d" % nv)
        out.append("  .amdhsa_group_segment_fixed_size 0")
        out.append("  .amdhsa_kernarg_size 96")
        out.append("  .amdhsa_user_sgpr_count 2")
        out.append("  .amdhsa_user_sgpr_kernarg_segment_ptr 1")
        out.append("  .amdhsa_system_sgpr_workgroup_id_x 1")
        out.append(".end_amdhsa_kernel")
    return "\n".join(out) + "\n"


if __name__ == "__main__":
    path = sys.argv[1] if len(sys.argv) > 1 else "cdna_kernels/%s.s" % NAME
    open(path, "w").write(build())
    print("wrote", path)
```

```python
import sys
import os
import math
import struct

sys.path.insert(0, os.path.dirname(os.path.abspath(__file__)))
from asmlib import Kern, vr, interleave, hazard_pass

NAME = "interleave_layers__linear_kernel_hedgehog__mixer_s_mlp__prompt"
S, D, F = 2048, 512, 1376

IN_X, IN_WQKV, IN_WPHI, IN_WO, IN_BX, IN_W1, IN_W2, IN_W3, IN_W4, OUT, DBG, WS = range(12)


def PTR(i):
    return 64 + 2 * i


MB = 1 << 20
LSTRIDE = 32 * MB
R_XIN = 0 * MB
R_XA = 2 * MB
R_O = 4 * MB
R_KVP = 6 * MB
R_H = 8 * MB
R_X1 = 10 * MB
R_H3 = 12 * MB
R_ST = 18 * MB
ST_XIN, ST_XA, ST_X1 = [R_ST + i * 0x20000 for i in range(3)]
R_KVA = 19 * MB
R_FL = 20 * MB
FL_KV = 0x8000
WS_CS = 64 * MB
CS_QKV, CS_W1, CS_W3 = WS_CS, WS_CS + 0x2000, WS_CS + 0x4000
E_X, E_O, E_XA, E_H, E_X1, E_H3 = range(6)
R512 = int(os.environ.get("R512", "6"))
BIG = 0x10000

XBYTES = S * D * 2
STBYTES = 8 * S * 8
LOG2E = 1.4426950408889634
LDS_SCR = 0x20000
LDS_KV = 0x10000
LDS_Z = 0x18000
POLL_MAX = 40000
PRE_SLEEP = int(os.environ.get("PRE_SLEEP", "0"))
POLL_SLEEP = int(os.environ.get("POLL_SLEEP", "2"))


def f32bits(x):
    return struct.unpack("<I", struct.pack("<f", x))[0]


S_WAVE, S_RB, S_CB, S_RBW, S_CBW, S_T0, S_T1, S_T2 = 32, 33, 34, 35, 36, 37, 38, 39
S_ONES, S_L2E, S_EPS, S_C1, S_C2, S_XO = 40, 41, 42, 43, 44, 45
S_TOKB, S_OB = 46, 47
SRD_X, SRD_W, SRD_O, SRD_R, SRD_R2, SRD_F = 8, 12, 16, 20, 24, 28
SRD_S, SRD_SO = 48, 52
SRD_C = 56
S_WSL, S_WSH, S_LAYER, S_CNT = 60, 61, 62, 63
S_STI, S_TOKN, S_TOKW, S_CU3, S_WBASE, S_K16 = 90, 92, 93, 94, 95, 96

STAMP = int(os.environ.get("STAMP", "0"))


def make_srd(k, slot, buf, size):
    kind = buf[0]
    if kind == "ws":
        k.e("s_add_u32 s%d, s%d, 0x%x" % (slot, PTR(WS), buf[1]))
        k.e("s_addc_u32 s%d, s%d, 0" % (slot + 1, PTR(WS) + 1))
    elif kind == "l":
        k.e("s_add_u32 s%d, s%d, 0x%x" % (slot, S_WSL, buf[1]))
        k.e("s_addc_u32 s%d, s%d, 0" % (slot + 1, S_WSH))
    elif kind == "n":
        k.e("s_add_u32 s%d, s%d, 0x%x" % (slot, S_WSL, buf[1] + LSTRIDE))
        k.e("s_addc_u32 s%d, s%d, 0" % (slot + 1, S_WSH))
    else:
        idx = buf[1]
        k.e("s_mov_b32 s%d, s%d" % (slot, PTR(idx)))
        k.e("s_mov_b32 s%d, s%d" % (slot + 1, PTR(idx) + 1))
    k.e("s_mov_b32 s%d, 0x%x" % (slot + 2, size))
    k.e("s_mov_b32 s%d, 0x00020000" % (slot + 3))


def srd(slot):
    return "s[%d:%d]" % (slot, slot + 3)


class G:
    pass


def stamp(k, g):
    if not STAMP:
        return
    k.e("s_memtime s[88:89]")
    k.e("s_waitcnt lgkmcnt(0)")
    k.e("s_mov_b32 m0, s%d" % S_STI)
    k.e("s_nop 0")
    k.e("v_writelane_b32 v%d, s88, m0" % g.vst)
    k.e("s_add_u32 s%d, s%d, 1" % (S_STI, S_STI))


def allreduce(x, t, op):
    return [
        "v_mov_b32 v%d, v%d" % (t, x),
        "v_permlane32_swap_b32 v%d, v%d" % (x, t),
        "%s v%d, v%d, v%d" % (op, x, x, t),
        "v_mov_b32 v%d, v%d" % (t, x),
        "v_permlane16_swap_b32 v%d, v%d" % (x, t),
        "%s v%d, v%d, v%d" % (op, x, x, t),
    ]


def stats_finish(st, double=False):
    o = []
    s_, q_, t0, t1 = st, st + 1, st + 2, st + 3
    o.append("v_add_f32 v%d, v%d, v%d" % (s_, st, st + 2))
    o.append("v_add_f32 v%d, v%d, v%d" % (q_, st + 1, st + 3))
    o += interleave(allreduce(s_, t0, "v_add_f32"), allreduce(q_, t1, "v_add_f32"))
    o.append("v_mul_f32 v%d, 0x%08x, v%d" % (s_, f32bits(1.0 / 512), s_))
    o.append("v_mul_f32 v%d, 0x%08x, v%d" % (q_, f32bits(1.0 / 512), q_))
    o.append("v_fma_f32 v%d, -v%d, v%d, v%d" % (q_, s_, s_, q_))
    o.append("v_max_f32 v%d, 0, v%d" % (q_, q_))
    o.append("v_add_f32 v%d, 0x%08x, v%d" % (t0, f32bits(1e-5), q_))
    o.append("v_rsq_f32 v%d, v%d" % (t0, t0))
    if double:
        o.append("v_mul_f32 v%d, v%d, v%d" % (t1, t0, t0))
        o.append("v_mul_f32 v%d, v%d, v%d" % (t1, t1, q_))
        o.append("v_add_f32 v%d, 0x%08x, v%d" % (t1, f32bits(1e-5), t1))
        o.append("v_rsq_f32 v%d, v%d" % (t1, t1))
        o.append("s_nop 0")
        o.append("v_mul_f32 v%d, v%d, v%d" % (t0, t0, t1))
    o.append("v_mul_f32 v%d, v%d, v%d" % (st + 1, s_, t0))
    o.append("v_sub_f32 v%d, 0, v%d" % (st + 1, st + 1))
    o.append("v_mov_b32 v%d, v%d" % (st, t0))
    return o


def gelu4(a, t, dst):
    o = []
    o.append("v_cvt_pk_bf16_f32 v%d, v%d, v%d" % (t, a, a + 1))
    o.append("v_cvt_pk_bf16_f32 v%d, v%d, v%d" % (t + 1, a + 2, a + 3))
    o.append("v_lshlrev_b32 v%d, 16, v%d" % (a, t))
    o.append("v_and_b32 v%d, 0xffff0000, v%d" % (a + 1, t))
    o.append("v_lshlrev_b32 v%d, 16, v%d" % (a + 2, t + 1))
    o.append("v_and_b32 v%d, 0xffff0000, v%d" % (a + 3, t + 1))
    for i in range(4):
        o.append("v_mul_f32 v%d, v%d, v%d" % (t + i, a + i, a + i))
    for i in range(4):
        o.append("v_fma_f32 v%d, v%d, s%d, 1.0" % (t + i, t + i, S_C1))
    for i in range(4):
        o.append("v_mul_f32 v%d, v%d, v%d" % (t + i, t + i, a + i))
    for i in range(4):
        o.append("v_mul_f32 v%d, s%d, v%d" % (t + i, S_C2, t + i))
    for i in range(4):
        o.append("v_exp_f32 v%d, v%d" % (t + i, t + i))
    for i in range(4):
        o.append("v_add_f32 v%d, 1.0, v%d" % (t + i, t + i))
    for i in range(4):
        o.append("v_rcp_f32 v%d, v%d" % (t + i, t + i))
    for i in range(4):
        o.append("v_mul_f32 v%d, v%d, v%d" % (t + i, a + i, t + i))
    o.append("v_cvt_pk_bf16_f32 v%d, v%d, v%d" % (dst, t, t + 1))
    o.append("v_cvt_pk_bf16_f32 v%d, v%d, v%d" % (dst + 1, t + 2, t + 3))
    return o


def ln_apply(a, cs, st, t):
    o = []
    for i in range(4):
        o.append("v_mul_f32 v%d, v%d, v%d" % (t + i, cs + i, st + 1))
    for i in range(4):
        o.append("v_fma_f32 v%d, v%d, v%d, v%d" % (a + i, a + i, st, t + i))
    return o


class W:
    pass


def w_tb(k, g, k2map, NU, KCAP_STEPS):
    w = W()
    w.NU = NU
    w.kcap = KCAP_STEPS
    w.ustride = KCAP_STEPS * 32 * 64
    w.k2map = k2map
    w.tb = {}
    b0 = k.alloc()
    b1 = k.alloc()
    t = k.alloc()
    t2 = k.alloc()
    k.e("v_and_b32 v%d, 3, v%d" % (t2, g.l))
    k.e("v_lshrrev_b32 v%d, 2, v%d" % (t, g.l))
    k.e("v_and_b32 v%d, 3, v%d" % (t, t))
    k.e("v_lshlrev_b32 v%d, 6, v%d" % (t, t))
    k.e("v_lshl_add_u32 v%d, v%d, 3, v%d" % (t, t2, t))
    k.e("v_lshl_add_u32 v%d, v%d, %d, v%d" % (t, g.g, 8 if k2map else 9, t))
    k.e("v_and_b32 v%d, 1, v%d" % (t2, g.g))
    k.e("v_lshl_add_u32 v%d, v%d, 5, v%d" % (b0, t2, t))
    k.e("v_xor_b32 v%d, 1, v%d" % (t2, t2))
    k.e("v_lshl_add_u32 v%d, v%d, 5, v%d" % (b1, t2, t))
    w.tb[(0, 0)] = b0
    w.tb[(1, 0)] = b1
    nhi = (NU * w.ustride + 65535) // 65536
    pool = [t, t2]
    for h in range(1, nhi):
        for tt in (0, 1):
            r = pool.pop() if pool else k.alloc()
            k.e("v_add_u32 v%d, 0x%x, v%d" % (r, 65536 * h, w.tb[(tt, 0)]))
            w.tb[(tt, h)] = r
    return w


def tr_reads(k, w, dst, u, t, s):
    sp = s % w.kcap
    for hs in (0, 1):
        off = u * w.ustride + 2048 * sp + (1024 if w.k2map else 256) * hs
        h, o = off >> 16, off & 0xffff
        k.e("ds_read_b64_tr_b16 %s, v%d offset:%d" % (vr(dst + 2 * hs, 2), w.tb[(t, h)], o))


def gemm_pre(k, w, KS, R):
    frags = [(u, t) for u in range(w.NU) for t in (0, 1)]
    w.R = R
    w.wb = [[k.alloc(4, 4) for _ in frags] for _ in range(R)]
    for s in range(min(R, KS)):
        for i, (u, t) in enumerate(frags):
            tr_reads(k, w, w.wb[s][i], u, t, s)


def gemm_loop(k, g, w, KS, CS, MT, xfrag, acc, mid=None, pre=None, waits=True):
    NU = w.NU
    frags = [(u, t) for u in range(NU) for t in (0, 1)]
    n = len(frags)
    R = w.R
    wb = w.wb
    first = set()
    for s in range(KS):
        if waits and s % CS == 0:
            k.wait_vm("c%d" % (s // CS))
        later = min(R - 1, KS - 1 - s)
        k.e("s_waitcnt lgkmcnt(%d)" % min(15, later * 2 * n))
        if pre and (s + R) in pre:
            pre[s + R]()
        for i, (u, t) in enumerate(frags):
            for mt in range(MT):
                a = acc[u][t][mt]
                cin = vr(a, 4) if (u, t, mt) in first else "0"
                first.add((u, t, mt))
                k.e("v_mfma_f32_16x16x32_bf16 %s, %s, %s, %s" % (vr(a, 4), vr(wb[s % R][i], 4), vr(xfrag(s, mt), 4), cin))
            if s + R < KS:
                tr_reads(k, w, wb[s % R][i], u, t, s + R)
        if mid and s in mid:
            mid[s]()
    return [r for l in wb for r in l]


def t16_base(k, sreg, K):
    k.e("s_mul_i32 s%d, s%d, %d" % (sreg, S_TOKB, K * 2))


def xload(k, g, dst, K, mt, s, tag):
    off = mt * K * 32 + s * 1024
    hi, lo = off // 4096 * 4096, off % 4096
    if getattr(k, "_xhi", None) != hi:
        k.e("s_add_u32 s%d, s%d, 0x%x" % (S_T1, S_XO, hi))
        k._xhi = hi
    k.vmem("buffer_load_dwordx4 %s, v%d, %s, s%d offen offset:%d" % (vr(dst, 4), g.lin, srd(SRD_X), S_T1, lo), tag)


def stats_load(k, g, MT):
    v = k.alloc()
    k.e("v_add_u32 v%d, s%d, v%d" % (v, S_TOKB, g.m))
    k.e("v_lshlrev_b32 v%d, 3, v%d" % (v, v))
    k.e("v_lshl_add_u32 v%d, v%d, 15, v%d" % (v, g.g, v))
    st = [k.alloc(4, 4) for _ in range(MT)]

    def issue():
        for mt in range(MT):
            k.vmem("buffer_load_dwordx2 %s, v%d, %s, 0 offen offset:%d" % (vr(st[mt], 2), v, srd(SRD_S), 128 * mt), "stat")
            k.vmem("buffer_load_dwordx2 %s, v%d, %s, s%d offen offset:%d" % (vr(st[mt] + 2, 2), v, srd(SRD_S), S_K16, 128 * mt), "stat")
    return st, issue


def swap_pair(p):
    return ["v_permlane16_swap_b32 v%d, v%d" % (p, p + 2), "v_permlane16_swap_b32 v%d, v%d" % (p + 1, p + 3)]


def unpack2(dst, src):
    return [
        "v_lshlrev_b32 v%d, 16, v%d" % (dst, src),
        "v_and_b32 v%d, 0xffff0000, v%d" % (dst + 1, src),
        "v_lshlrev_b32 v%d, 16, v%d" % (dst + 2, src + 1),
        "v_and_b32 v%d, 0xffff0000, v%d" % (dst + 3, src + 1),
    ]


def pack2(dst, src):
    return [
        "v_cvt_pk_bf16_f32 v%d, v%d, v%d" % (dst, src, src + 1),
        "v_cvt_pk_bf16_f32 v%d, v%d, v%d" % (dst + 1, src + 2, src + 3),
    ]


def round4(a):
    return ["v_cvt_pk_bf16_f32 v%d, v%d, v%d" % (a, a, a + 1),
            "v_cvt_pk_bf16_f32 v%d, v%d, v%d" % (a + 2, a + 2, a + 3),
            "v_and_b32 v%d, 0xffff0000, v%d" % (a + 1, a),
            "v_and_b32 v%d, 0xffff0000, v%d" % (a + 3, a + 2),
            "v_lshlrev_b32 v%d, 16, v%d" % (a, a),
            "v_lshlrev_b32 v%d, 16, v%d" % (a + 2, a + 2)]


def add4(a, b):
    return ["v_add_f32 v%d, v%d, v%d" % (a + i, a + i, b + i) for i in range(4)]


def stats_store(k, g, packed, t):
    s_, q_, t0, t1 = t, t + 1, t + 2, t + 3
    for i, r in enumerate(packed):
        k.e("v_dot2_f32_bf16 v%d, v%d, s%d, %s" % (s_, r, S_ONES, "0" if i == 0 else "v%d" % s_))
        k.e("v_dot2_f32_bf16 v%d, v%d, v%d, %s" % (q_, r, r, "0" if i == 0 else "v%d" % q_))
    for s in interleave(allreduce(s_, t0, "v_add_f32"), allreduce(q_, t1, "v_add_f32")):
        k.e(s)
    k.e("v_add_u32 v%d, s%d, v%d" % (t0, S_TOKB, g.m))
    k.e("v_lshlrev_b32 v%d, 3, v%d" % (t0, t0))
    k.e("s_lshl_b32 s%d, s%d, 14" % (S_T0, S_CB))
    k.e("s_mov_b64 exec, 0xffff")
    k.vmem("buffer_store_dwordx2 %s, v%d, %s, s%d offen sc1" % (vr(s_, 2), t0, srd(SRD_SO), S_T0), "st")
    k.e("s_mov_b64 exec, -1")


def signal(k, g, edge, nblk, nxt=False):
    make_srd(k, SRD_F, ("n" if nxt else "l", R_FL), 0x10000)
    k.e("s_lshl_b32 s%d, s%d, 3" % (S_T0, S_TOKB))
    k.e("s_add_u32 s%d, s%d, %d" % (S_T0, S_T0, 128 + 4 * edge))
    k.e("s_mov_b64 exec, %d" % ((1 << nblk) - 1))
    k.e("s_waitcnt vmcnt(0)")
    k.e("buffer_atomic_add v%d, v%d, %s, s%d offen sc1" % (g.one, g.l128, srd(SRD_F), S_T0))
    k.e("s_mov_b64 exec, -1")
    k.vm = []
    k._xhi = None


def k_prep(name):
    k = Kern(name)
    NCS = 24 + 8 + 22
    k.e("s_cmp_ge_u32 s2, %d" % (128 + NCS))
    k.e("s_cbranch_scc1 L_end_%s" % k.name)
    k.e("s_load_dwordx16 s[64:79], s[0:1], 0")
    k.e("s_load_dwordx8 s[80:87], s[0:1], 64")
    w_, l_ = k.alloc(), k.alloc()
    k.e("v_lshrrev_b32 v%d, 6, v0" % w_)
    k.e("v_and_b32 v%d, 63, v0" % l_)
    k.e("v_readfirstlane_b32 s%d, v%d" % (S_WAVE, w_))
    k.e("s_mov_b32 s%d, 0x3f803f80" % S_ONES)
    k.e("s_cmp_ge_u32 s2, 128")
    k.e("s_cbranch_scc1 L_cs_%s" % k.name)
    vl, vd = k.alloc(), k.alloc()
    k.e("v_lshlrev_b32 v%d, 4, v%d" % (vl, l_))
    k.e("v_lshlrev_b32 v%d, 8, v%d" % (vd, l_))
    k.e("s_lshl_b32 s%d, s2, 14" % S_T0)
    k.e("s_lshl_b32 s%d, s%d, 12" % (S_T1, S_WAVE))
    k.e("s_add_u32 s%d, s%d, s%d" % (S_T1, S_T1, S_T0))
    k.e("s_lshl_b32 s%d, s%d, 6" % (S_T2, S_WAVE))
    k.e("s_add_u32 s%d, s%d, s%d" % (S_T2, S_T2, S_T0))
    k.e("s_waitcnt lgkmcnt(0)")
    make_srd(k, SRD_X, ("in", IN_X), XBYTES)
    make_srd(k, SRD_O, ("ws", R_XIN), XBYTES)
    make_srd(k, SRD_SO, ("ws", ST_XIN), STBYTES)
    make_srd(k, SRD_R, ("ws", 0), 2 * LSTRIDE)
    R = [k.alloc(4, 4) for _ in range(4)]
    for i in range(4):
        k.vmem("buffer_load_dwordx4 %s, v%d, %s, s%d offen offset:%d" % (vr(R[i], 4), vl, srd(SRD_X), S_T1, 1024 * i), "x%d" % i)
    z = k.alloc(4, 4)
    vo, vt, vb = k.alloc(), k.alloc(), k.alloc()
    k.e("v_lshlrev_b32 v%d, 4, v0" % vo)
    for i in range(4):
        k.e("v_mov_b32 v%d, 0" % (z + i))
    k.e("s_cmp_ge_u32 s2, 96")
    k.e("s_cbranch_scc1 L_ni_%s" % k.name)
    k.e("s_cmp_lt_u32 s2, 64")
    k.e("s_cbranch_scc1 L_ni_%s" % k.name)
    k.e("s_bfe_u32 s%d, s2, 0x10004" % S_XO)
    k.e("s_mul_i32 s%d, s%d, 0x%x" % (S_T0, S_XO, LSTRIDE))
    k.e("s_and_b32 s%d, s2, 15" % S_OB)
    k.e("s_lshl_b32 s%d, s%d, 12" % (S_OB, S_OB))
    k.e("s_add_u32 s%d, s%d, s%d" % (S_T0, S_T0, S_OB))
    k.e("s_add_u32 s%d, s%d, 0x%x" % (S_T0, S_T0, R_FL))
    k.e("v_add_u32 v%d, s%d, v%d" % (vt, S_OB, vo))
    k.e("v_mov_b32 v%d, 0x%x" % (vb, BIG))
    k.e("v_and_b32 v%d, 127, v%d" % (z + 1, vt))
    k.e("v_cmp_eq_u32 vcc, 0, v%d" % (z + 1))
    k.e("v_cndmask_b32 v%d, 0, v%d, vcc" % (z, vb))
    k.e("v_cmp_gt_u32 vcc, %d, v%d" % (130 * 128, vt))
    k.e("v_cndmask_b32 v%d, 0, v%d, vcc" % (z, z))
    k.e("s_cmp_eq_u32 s%d, 0" % S_XO)
    k.e("s_cselect_b32 s%d, -1, 0" % S_XO)
    k.e("v_and_b32 v%d, s%d, v%d" % (z, S_XO, z))
    k.e("v_mov_b32 v%d, 0" % (z + 1))
    k.e("v_lshrrev_b32 v%d, 7, v%d" % (vt, vt))
    k.e("v_cmp_eq_u32 vcc, 0, v%d" % vt)
    for i in range(4):
        k.e("v_cndmask_b32 v%d, v%d, v%d, vcc" % (z + i, z + i, vb))
    k.e("v_cmp_eq_u32 vcc, 0x81, v%d" % vt)
    for i in range(4):
        k.e("v_cndmask_b32 v%d, v%d, v%d, vcc" % (z + i, z + i, vb))
    k.label("L_in_%s" % k.name)
    k.e("s_nop 4")
    k.vmem("buffer_store_dwordx4 %s, v%d, %s, s%d offen" % (vr(z, 4), vo, srd(SRD_R), S_T0), "st")
    k.label("L_ni_%s" % k.name)
    k.e("s_nop 4")
    sq = [k.alloc(4, 4) for _ in range(4)]
    k.e("s_waitcnt vmcnt(0)")
    for i in range(4):
        k.vmem("buffer_store_dwordx4 %s, v%d, %s, s%d offen offset:%d" % (vr(R[i], 4), vd, srd(SRD_O), S_T2, 16 * i), "st")
        s_, q_ = sq[i], sq[i] + 1
        for j in range(4):
            k.e("v_dot2_f32_bf16 v%d, v%d, s%d, %s" % (s_, R[i] + j, S_ONES, "0" if j == 0 else "v%d" % s_))
            k.e("v_dot2_f32_bf16 v%d, v%d, v%d, %s" % (q_, R[i] + j, R[i] + j, "0" if j == 0 else "v%d" % q_))
    for rot in (8, 4, 2, 1):
        for i in range(4):
            for r in (sq[i], sq[i] + 1):
                k.e("v_add_f32_dpp v%d, v%d, v%d row_ror:%d row_mask:0xf bank_mask:0xf" % (r, r, r, rot))
    for i in range(4):
        for s in interleave(allreduce(sq[i], sq[i] + 2, "v_add_f32"), allreduce(sq[i] + 1, sq[i] + 3, "v_add_f32")):
            k.e(s)
    vz = k.alloc()
    k.e("v_cmp_eq_u32 vcc, 0, v%d" % l_)
    for i in range(4):
        k.e("v_cndmask_b32 v%d, 0, v%d, vcc" % (sq[i], sq[i]))
        k.e("v_cndmask_b32 v%d, 0, v%d, vcc" % (sq[i] + 1, sq[i] + 1))
    k.e("v_lshlrev_b32 v%d, 14, v%d" % (vz, l_))
    k.e("s_lshl_b32 s%d, s2, 7" % S_T0)
    k.e("s_lshl_b32 s%d, s%d, 5" % (S_T1, S_WAVE))
    k.e("s_add_u32 s%d, s%d, s%d" % (S_T0, S_T0, S_T1))
    k.e("s_mov_b64 exec, 0xff")
    for i in range(4):
        k.vmem("buffer_store_dwordx2 %s, v%d, %s, s%d offen offset:%d" % (vr(sq[i], 2), vz, srd(SRD_SO), S_T0, 8 * i), "st")
    k.e("s_mov_b64 exec, -1")
    k.e("s_branch L_end_%s" % k.name)
    k.label("L_cs_%s" % k.name)
    k.e("s_sub_u32 s%d, s2, 128" % S_T0)
    k.e("s_waitcnt lgkmcnt(0)")
    k.e("s_mov_b32 s%d, s%d" % (SRD_W, PTR(IN_WQKV)))
    k.e("s_mov_b32 s%d, s%d" % (SRD_W + 1, PTR(IN_WQKV) + 1))
    k.e("s_mov_b32 s%d, %d" % (SRD_W + 2, 512 * 3072))
    k.e("s_mov_b32 s%d, 0x00020000" % (SRD_W + 3))
    k.e("s_mov_b32 s%d, 3072" % S_T1)
    k.e("s_mov_b32 s%d, 0" % S_T2)
    k.e("s_cmp_lt_u32 s%d, 24" % S_T0)
    k.e("s_cbranch_scc1 L_sel_%s" % k.name)
    k.e("s_mov_b32 s%d, s%d" % (SRD_W, PTR(IN_W1)))
    k.e("s_mov_b32 s%d, s%d" % (SRD_W + 1, PTR(IN_W1) + 1))
    k.e("s_mov_b32 s%d, %d" % (SRD_W + 2, 512 * 1024))
    k.e("s_mov_b32 s%d, 1024" % S_T1)
    k.e("s_mov_b32 s%d, 0x2000" % S_T2)
    k.e("s_sub_u32 s%d, s%d, 24" % (S_T0, S_T0))
    k.e("s_cmp_lt_u32 s%d, 8" % S_T0)
    k.e("s_cbranch_scc1 L_sel_%s" % k.name)
    k.e("s_mov_b32 s%d, s%d" % (SRD_W, PTR(IN_W3)))
    k.e("s_mov_b32 s%d, s%d" % (SRD_W + 1, PTR(IN_W3) + 1))
    k.e("s_mov_b32 s%d, %d" % (SRD_W + 2, 512 * 2752))
    k.e("s_mov_b32 s%d, 2752" % S_T1)
    k.e("s_mov_b32 s%d, 0x4000" % S_T2)
    k.e("s_sub_u32 s%d, s%d, 8" % (S_T0, S_T0))
    k.label("L_sel_%s" % k.name)
    make_srd(k, SRD_O, ("ws", WS_CS), 0x6000)
    k.release(3)
    va, vt, vc = k.alloc(), k.alloc(), k.alloc()
    k.e("v_lshrrev_b32 v%d, 5, v0" % vt)
    k.e("v_lshlrev_b32 v%d, 6, v%d" % (vt, vt))
    k.e("v_mul_lo_u32 v%d, s%d, v%d" % (va, S_T1, vt))
    k.e("v_and_b32 v%d, 31, v0" % vc)
    k.e("v_lshl_add_u32 v%d, v%d, 2, v%d" % (va, vc, va))
    k.e("s_lshl_b32 s%d, s%d, 7" % (S_WBASE, S_T0))
    k.e("v_lshl_add_u32 v%d, v%d, 2, s%d" % (vt, vc, S_WBASE))
    k.e("v_cmp_le_u32 vcc, s%d, v%d" % (S_T1, vt))
    k.e("v_mov_b32 v%d, 0x7ffffff0" % vt)
    k.e("v_cndmask_b32 v%d, v%d, v%d, vcc" % (va, va, vt))
    k.vm = []
    L = [k.alloc() for _ in range(64)]
    for i in range(64):
        k.vmem("buffer_load_dword v%d, v%d, %s, s%d offen" % (L[i], va, srd(SRD_W), S_WBASE), "l%d" % (i // 8))
        if i < 63:
            k.e("s_add_u32 s%d, s%d, s%d" % (S_WBASE, S_WBASE, S_T1))
    lo, hi, t0, t1 = k.alloc(2, 2), None, k.alloc(), k.alloc()
    hi = lo + 1
    k.e("v_mov_b32 v%d, 0" % lo)
    k.e("v_mov_b32 v%d, 0" % hi)
    for i in range(64):
        if i % 8 == 0:
            k.wait_vm("l%d" % (i // 8))
        k.e("v_lshlrev_b32 v%d, 16, v%d" % (t0, L[i]))
        k.e("v_and_b32 v%d, 0xffff0000, v%d" % (t1, L[i]))
        k.e("v_add_f32 v%d, v%d, v%d" % (lo, lo, t0))
        k.e("v_add_f32 v%d, v%d, v%d" % (hi, hi, t1))
    k.e("v_lshlrev_b32 v%d, 3, v0" % t0)
    k.e("ds_write_b64 v%d, %s" % (t0, vr(lo, 2)))
    k.e("s_waitcnt lgkmcnt(0)")
    k.e("s_barrier")
    k.e("v_lshlrev_b32 v%d, 3, v%d" % (t0, vc))
    rr = [k.alloc(2, 2) for _ in range(8)]
    for i in range(8):
        k.e("ds_read_b64 %s, v%d offset:%d" % (vr(rr[i], 2), t0, 256 * i))
    k.e("s_waitcnt lgkmcnt(0)")
    for i in range(1, 8):
        k.e("v_add_f32 v%d, v%d, v%d" % (rr[0], rr[0], rr[i]))
        k.e("v_add_f32 v%d, v%d, v%d" % (rr[0] + 1, rr[0] + 1, rr[i] + 1))
    k.e("s_lshl_b32 s%d, s%d, 8" % (S_T0, S_T0))
    k.e("s_add_u32 s%d, s%d, s%d" % (S_T0, S_T0, S_T2))
    k.e("v_cmp_gt_u32 vcc, 32, v0")
    k.e("s_and_b64 exec, exec, vcc")
    k.vmem("buffer_store_dwordx2 %s, v%d, %s, s%d offen" % (vr(rr[0], 2), t0, srd(SRD_O), S_T0), "st")
    k.label("L_end_%s" % k.name)
    k.e("s_endpgm")
    return k, 128 + NCS, 256, 2048


def softmax_pair(p, t, outp):
    mx, mn, t0, t1 = t, t + 1, t + 2, t + 3
    ep = [t + 4 + i for i in range(4)]
    em = [t + 8 + i for i in range(4)]
    o = []
    o.append("v_max3_f32 v%d, v%d, v%d, v%d" % (mx, p, p + 1, p + 2))
    o.append("v_min3_f32 v%d, v%d, v%d, v%d" % (mn, p, p + 1, p + 2))
    o.append("v_max_f32 v%d, v%d, v%d" % (mx, mx, p + 3))
    o.append("v_min_f32 v%d, v%d, v%d" % (mn, mn, p + 3))
    o += interleave(allreduce(mx, t0, "v_max_f32"), allreduce(mn, t1, "v_min_f32"))
    o.append("v_mul_f32 v%d, s%d, v%d" % (mx, S_L2E, mx))
    o.append("v_mul_f32 v%d, s%d, v%d" % (mn, S_L2E, mn))
    for i in range(4):
        o.append("v_fma_f32 v%d, v%d, s%d, -v%d" % (ep[i], p + i, S_L2E, mx))
        o.append("v_fma_f32 v%d, -v%d, s%d, v%d" % (em[i], p + i, S_L2E, mn))
    for i in range(4):
        o.append("v_exp_f32 v%d, v%d" % (ep[i], ep[i]))
        o.append("v_exp_f32 v%d, v%d" % (em[i], em[i]))
    sp, sm = mx, mn
    o.append("v_add_f32 v%d, v%d, v%d" % (sp, ep[0], ep[1]))
    o.append("v_add_f32 v%d, v%d, v%d" % (sm, em[0], em[1]))
    o.append("v_add_f32 v%d, v%d, v%d" % (t0, ep[2], ep[3]))
    o.append("v_add_f32 v%d, v%d, v%d" % (t1, em[2], em[3]))
    o.append("v_add_f32 v%d, v%d, v%d" % (sp, sp, t0))
    o.append("v_add_f32 v%d, v%d, v%d" % (sm, sm, t1))
    o += interleave(allreduce(sp, t0, "v_add_f32"), allreduce(sm, t1, "v_add_f32"))
    o.append("v_rcp_f32 v%d, v%d" % (sp, sp))
    o.append("v_rcp_f32 v%d, v%d" % (sm, sm))
    o.append("s_nop 0")
    for i in range(4):
        o.append("v_mul_f32 v%d, v%d, v%d" % (ep[i], ep[i], sp))
        o.append("v_mul_f32 v%d, v%d, v%d" % (em[i], em[i], sm))
    o.append("v_cvt_pk_bf16_f32 v%d, v%d, v%d" % (outp, ep[0], ep[1]))
    o.append("v_cvt_pk_bf16_f32 v%d, v%d, v%d" % (outp + 1, ep[2], ep[3]))
    o.append("v_cvt_pk_bf16_f32 v%d, v%d, v%d" % (outp + 2, em[0], em[1]))
    o.append("v_cvt_pk_bf16_f32 v%d, v%d, v%d" % (outp + 3, em[2], em[3]))
    return o


def p_qkv(k, g):
    MT, NU, KS, CS = 2, 3, 16, 4
    mk = k.mark()
    k.e("s_mov_b32 s%d, s%d" % (S_TOKB, S_TOKW))
    t16_base(k, S_XO, 512)
    w = w_tb(k, g, False, NU, KS)
    vph = k.alloc()
    k.e("v_lshlrev_b32 v%d, 7, v%d" % (vph, g.g))
    k.e("v_lshl_add_u32 v%d, v%d, 1, v%d" % (vph, g.m, vph))
    k.e("s_lshl_b32 s%d, s%d, 10" % (S_T0, S_CBW))
    k.e("v_add_u32 v%d, s%d, v%d" % (vph, S_T0, vph))
    st, st_issue = stats_load(k, g, MT)
    vcs = k.alloc()
    k.e("v_lshlrev_b32 v%d, 4, v%d" % (vcs, g.g))
    X = [[k.alloc(4, 4) for _ in range(KS)] for _ in range(MT)]
    cs = [[X[0][2 * u + tt] for tt in range(2)] for u in range(NU)]
    wphi = [X[0][6], X[0][6] + 2]
    wphi_hi = [X[0][7], X[0][7] + 2]
    acc = [[[k.alloc(4, 4) for _ in range(MT)] for _ in range(2)] for _ in range(NU)]
    make_srd(k, SRD_X, ("l", R_XIN), XBYTES)
    make_srd(k, SRD_R, ("in", IN_WPHI), 32 * 512)
    make_srd(k, SRD_O, ("l", R_O), XBYTES)
    make_srd(k, SRD_R2, ("l", R_KVP), 2 * MB)
    make_srd(k, SRD_S, ("l", ST_XIN), STBYTES)
    make_srd(k, SRD_C, ("ws", CS_QKV), 1536 * 4)
    make_srd(k, SRD_F, ("l", R_FL), 0x10000)
    stamp(k, g)
    k.e("s_barrier")
    gemm_pre(k, w, KS, 2)
    k.e("s_barrier")
    stamp(k, g)
    for c in range(KS // CS):
        for mt in range(MT):
            for s in range(c * CS, (c + 1) * CS):
                xload(k, g, X[mt][s], 512, mt, s, "c%d" % c)
    st_issue()

    def cs_issue():
        k.e("s_lshl_b32 s%d, s%d, 7" % (S_T0, S_CBW))
        for u in range(NU):
            if u:
                k.e("s_add_u32 s%d, s%d, 2048" % (S_T0, S_T0))
            for tt in range(2):
                k.vmem("buffer_load_dwordx4 %s, v%d, %s, s%d offen offset:%d" % (
                    vr(cs[u][tt], 4), vcs, srd(SRD_C), S_T0, tt * 64), "stat")
        for hh in range(2):
            for j in range(4):
                k.vmem("buffer_load_ushort v%d, v%d, %s, 0 offen offset:%d" % (
                    (wphi[hh] if j & 1 == 0 else wphi_hi[hh]) + (j >> 1), vph, srd(SRD_R), 512 * hh + 32 * j), "stat")
    wbr = gemm_loop(k, g, w, KS, CS, MT, lambda s, mt: X[mt][s], acc, mid={8: cs_issue})
    k.e("s_barrier")
    stamp(k, g)
    xb = X[0][0]
    pool = [xb + 32]

    def ta(n, al=2):
        b = (pool[0] + al - 1) // al * al
        pool[0] = b + n
        assert pool[0] <= xb + 128
        return b

    ident = ta(2)
    ones = ta(2)
    t = ta(1)
    t2 = ta(1)
    k.e("v_mov_b32 v%d, 0x3f803f80" % ones)
    k.e("v_mov_b32 v%d, 0x3f803f80" % (ones + 1))
    k.e("v_and_b32 v%d, 1, v%d" % (t, g.m))
    k.e("v_lshlrev_b32 v%d, 4, v%d" % (t, t))
    k.e("v_mov_b32 v%d, 0x3f80" % t2)
    k.e("v_lshlrev_b32 v%d, v%d, v%d" % (t2, t, t2))
    k.e("v_lshrrev_b32 v%d, 2, v%d" % (t, g.m))
    k.e("v_cmp_eq_u32 vcc, v%d, v%d" % (t, g.g))
    k.e("v_cndmask_b32 v%d, 0, v%d, vcc" % (t2, t2))
    k.e("v_and_b32 v%d, 2, v%d" % (t, g.m))
    k.e("v_cmp_eq_u32 vcc, 0, v%d" % t)
    k.e("v_cndmask_b32 v%d, 0, v%d, vcc" % (ident, t2))
    k.e("v_cndmask_b32 v%d, v%d, 0, vcc" % (ident + 1, t2))
    k.e("s_lshl_b32 s%d, s%d, 13" % (S_T0, S_WAVE))
    k.e("s_add_u32 s%d, s%d, 0x%x" % (S_T0, S_T0, LDS_SCR))
    k.e("v_add_u32 v%d, s%d, v%d" % (t, S_T0, g.lin))
    k.e("s_lshr_b32 s%d, s%d, 1" % (S_T0, S_WAVE))
    k.e("s_lshl_b32 s%d, s%d, 12" % (S_T0, S_T0))
    k.e("s_and_b32 s%d, s%d, 1" % (S_T1, S_WAVE))
    k.e("s_lshl_b32 s%d, s%d, 10" % (S_T1, S_T1))
    k.e("s_add_u32 s%d, s%d, s%d" % (S_T0, S_T0, S_T1))
    k.e("s_add_u32 s%d, s%d, 0x%x" % (S_T0, S_T0, LDS_SCR))
    k.e("v_add_u32 v%d, s%d, v%d" % (t2, S_T0, g.lin))
    k.wait_vm("stat")
    for s_ in interleave(*[stats_finish(st[mt]) for mt in range(MT)]):
        k.e(s_)
    for hh in range(2):
        for j in range(2):
            k.e("v_lshl_or_b32 v%d, v%d, 16, v%d" % (wphi[hh] + j, wphi_hi[hh] + j, wphi[hh] + j))
    kvacc = [[wbr[4 * hh + b] for b in range(4)] for hh in range(2)]
    C4 = [(mt, hh) for mt in range(MT) for hh in range(2)]
    oq = [wbr[8 + c] for c in range(4)]
    kb = [ta(2) for _ in C4]
    vb = [ta(2) for _ in C4]
    T = [ta(12, 4) for _ in C4]
    ok = [ta(4, 4) for _ in C4]
    seqs = []
    for c, (mt, hh) in enumerate(C4):
        a = acc[1][hh][mt]
        seqs.append(ln_apply(a, cs[1][hh], st[mt], T[c]) + pack2(kb[c], a))
        a = acc[2][hh][mt]
        seqs.append(ln_apply(a, cs[2][hh], st[mt], T[c] + 4) + pack2(vb[c], a))
    for s_ in interleave(*seqs):
        k.e(s_)
    pk = [acc[1][hh][mt] for (mt, hh) in C4]
    tv = [acc[2][hh][mt] for (mt, hh) in C4]
    for c, (mt, hh) in enumerate(C4):
        k.e("v_mfma_f32_16x16x16_bf16 %s, %s, %s, 0" % (vr(pk[c], 4), vr(wphi[hh], 2), vr(kb[c], 2)))
    for c in range(4):
        k.e("v_mfma_f32_16x16x16_bf16 %s, %s, %s, 0" % (vr(tv[c], 4), vr(vb[c], 2), vr(ident, 2)))
    for s_ in interleave(*[softmax_pair(pk[c], T[c], ok[c]) for c in range(4)]):
        k.e(s_)
    for c in range(4):
        k.e("v_mfma_f32_16x16x16_bf16 %s, %s, %s, 0" % (vr(T[c], 4), vr(ok[c], 2), vr(ident, 2)))
        k.e("v_mfma_f32_16x16x16_bf16 %s, %s, %s, 0" % (vr(T[c] + 4, 4), vr(ok[c] + 2, 2), vr(ident, 2)))
    for c in range(4):
        for s_ in pack2(vb[c], tv[c]):
            k.e(s_)
    for c in range(4):
        for s_ in pack2(T[c] + 8, T[c]) + pack2(T[c] + 10, T[c] + 4):
            k.e(s_)
    for c, (mt, hh) in enumerate(C4):
        kk = kvacc[hh]
        for (dst, a_, b_) in ((kk[0], T[c] + 8, vb[c]), (kk[1], T[c] + 10, vb[c]), (kk[2], T[c] + 8, ones), (kk[3], T[c] + 10, ones)):
            k.e("v_mfma_f32_16x16x16_bf16 %s, %s, %s, %s" % (
                vr(dst, 4), vr(a_, 2), vr(b_, 2), "0" if mt == 0 else vr(dst, 4)))
    for hh in range(2):
        for b in range(4):
            k.e("ds_write_b128 v%d, %s offset:%d" % (t, vr(kvacc[hh][b], 4), (hh * 4 + b) * 1024))
    seqs = []
    for c, (mt, hh) in enumerate(C4):
        a = acc[0][hh][mt]
        seqs.append(ln_apply(a, cs[0][hh], st[mt], T[c]) + pack2(kb[c], a))
    qa = interleave(*seqs)
    for c, (mt, hh) in enumerate(C4):
        qa.append("v_mfma_f32_16x16x16_bf16 %s, %s, %s, 0" % (vr(acc[0][hh][mt], 4), vr(wphi[hh], 2), vr(kb[c], 2)))
    qb = interleave(*[softmax_pair(acc[0][hh][mt], T[c], oq[c]) for c, (mt, hh) in enumerate(C4)])
    k.e("s_waitcnt lgkmcnt(0)")
    k.e("s_barrier")
    rk = [acc[1][hh][mt] for (mt, hh) in C4]
    rz = [acc[2][hh][mt] for (mt, hh) in C4]
    for ww in range(4):
        k.e("ds_read_b128 %s, v%d offset:%d" % (vr(rk[ww], 4), t2, ww * 8192))
        k.e("ds_read_b128 %s, v%d offset:%d" % (vr(rz[ww], 4), t2, ww * 8192 + 2048))
    k.e("s_lshl_b32 s%d, s%d, 2" % (S_T2, S_CBW))
    k.e("s_add_u32 s%d, s%d, s%d" % (S_T2, S_T2, S_WAVE))
    k.e("s_lshl_b32 s%d, s%d, 4" % (S_T2, S_T2))
    k.e("s_add_u32 s%d, s%d, s%d" % (S_T0, S_T2, S_RBW))
    k.e("s_lshl_b32 s%d, s%d, 7" % (S_T1, S_T0))
    k.e("s_add_u32 s%d, s%d, 0x%x" % (S_T1, S_T1, MB))
    k.e("s_lshl_b32 s%d, s%d, 10" % (S_T0, S_T0))
    for s_ in qa[:40]:
        k.e(s_)
    k.e("s_waitcnt lgkmcnt(0)")
    for R_ in (rk, rz):
        for i in (0, 2):
            k.e("v_pk_add_f32 %s, %s, %s" % (vr(R_[0] + i, 2), vr(R_[0] + i, 2), vr(R_[1] + i, 2)))
            k.e("v_pk_add_f32 %s, %s, %s" % (vr(R_[2] + i, 2), vr(R_[2] + i, 2), vr(R_[3] + i, 2)))
    for R_ in (rk, rz):
        for i in (0, 2):
            k.e("v_pk_add_f32 %s, %s, %s" % (vr(R_[0] + i, 2), vr(R_[0] + i, 2), vr(R_[2] + i, 2)))
    k.e("buffer_store_dwordx4 %s, v%d, %s, s%d offen sc1" % (vr(rk[0], 4), g.lin, srd(SRD_R2), S_T0))
    k.e("s_mov_b32 exec_lo, 0x00010001")
    k.e("s_mov_b32 exec_hi, 0x00010001")
    k.e("buffer_store_dwordx4 %s, v%d, %s, s%d offen sc1" % (vr(rz[0], 4), vcs, srd(SRD_R2), S_T1))
    k.e("s_mov_b64 exec, -1")
    k.e("s_lshl_b32 s%d, s%d, 7" % (S_T0, S_CBW))
    k.e("s_add_u32 s%d, s%d, 0x%x" % (S_T0, S_T0, FL_KV))
    rest = qa[40:] + qb
    QS = int(os.environ.get("QSPLIT", "110"))
    for s_ in rest[:QS]:
        k.e(s_)
    k.e("s_mov_b64 exec, 1")
    k.e("s_waitcnt vmcnt(0)")
    k.e("buffer_atomic_add v%d, v%d, %s, s%d offen sc1" % (g.one, g.l128, srd(SRD_F), S_T0))
    k.e("s_mov_b64 exec, -1")
    for s_ in rest[QS:]:
        k.e(s_)
    vw_, vr_ = acc[1][0][0], acc[1][0][0] + 1
    k.e("s_lshr_b32 s%d, s%d, 1" % (S_T0, S_WAVE))
    k.e("s_lshl_b32 s%d, s%d, 11" % (S_T0, S_T0))
    k.e("s_and_b32 s%d, s%d, 1" % (S_T1, S_WAVE))
    k.e("s_lshl_b32 s%d, s%d, 3" % (S_T1, S_T1))
    k.e("s_add_u32 s%d, s%d, s%d" % (S_T0, S_T0, S_T1))
    k.e("s_add_u32 s%d, s%d, 0x%x" % (S_T0, S_T0, LDS_SCR))
    k.e("v_add_u32 v%d, s%d, v%d" % (vw_, S_T0, g.lin))
    k.e("v_add_u32 v%d, 0x%x, v%d" % (vr_, LDS_SCR, g.lin))
    k.e("s_lshl_b32 s%d, s%d, 10" % (S_T0, S_T2))
    k.e("s_lshl_b32 s%d, s%d, 7" % (S_T1, S_T2))
    k.e("s_add_u32 s%d, s%d, 0x%x" % (S_T1, S_T1, MB))
    k.e("s_lshl_b32 s%d, s%d, 10" % (S_OB, S_TOKB))
    k.e("s_lshl_b32 s%d, s%d, 10" % (S_T2, S_CBW))
    k.e("s_add_u32 s%d, s%d, s%d" % (S_OB, S_OB, S_T2))
    stamp(k, g)
    k.e("s_barrier")
    stamp(k, g)
    k.vm = []
    P = [xb + 4 * r for r in range(16)]
    Z = [xb + 64 + 4 * r for r in range(16)]
    for r in range(16):
        if r and r % 4 == 0:
            k.e("s_add_u32 s%d, s%d, 4096" % (S_T0, S_T0))
        k.vmem("buffer_load_dwordx4 %s, v%d, %s, s%d offen offset:%d" % (vr(P[r], 4), g.lin, srd(SRD_R2), S_T0, (r % 4) * 1024), "p%d" % (r // 4))
        k.vmem("buffer_load_dwordx4 %s, v%d, %s, s%d offen offset:%d" % (vr(Z[r], 4), vcs, srd(SRD_R2), S_T1, r * 128), "p%d" % (r // 4))
    for q in range(4):
        k.wait_vm("p%d" % q)
        for R_ in (P, Z):
            for i in (0, 2):
                k.e("v_pk_add_f32 %s, %s, %s" % (vr(R_[4 * q] + i, 2), vr(R_[4 * q] + i, 2), vr(R_[4 * q + 1] + i, 2)))
                k.e("v_pk_add_f32 %s, %s, %s" % (vr(R_[4 * q + 2] + i, 2), vr(R_[4 * q + 2] + i, 2), vr(R_[4 * q + 3] + i, 2)))
        for R_ in (P, Z):
            for i in (0, 2):
                k.e("v_pk_add_f32 %s, %s, %s" % (vr(R_[4 * q] + i, 2), vr(R_[4 * q] + i, 2), vr(R_[4 * q + 2] + i, 2)))
        if q:
            for R_ in (P, Z):
                for i in (0, 2):
                    k.e("v_pk_add_f32 %s, %s, %s" % (vr(R_[0] + i, 2), vr(R_[0] + i, 2), vr(R_[4 * q] + i, 2)))
    for s_ in pack2(P[1], P[0]) + pack2(Z[1], Z[0]):
        k.e(s_)
    k.e("ds_write_b64 v%d, %s" % (vw_, vr(P[1], 2)))
    k.e("ds_write_b64 v%d, %s offset:1024" % (vw_, vr(Z[1], 2)))
    k.e("s_waitcnt lgkmcnt(0)")
    k.e("s_barrier")
    kvf = [P[2], P[3]]
    zf = [P[4], P[5]]
    for hh in range(2):
        k.e("ds_read_b128 %s, v%d offset:%d" % (vr(kvf[hh], 4), vr_, hh * 2048))
        k.e("ds_read_b128 %s, v%d offset:%d" % (vr(zf[hh], 4), vr_, hh * 2048 + 1024))
    num = [Z[c] for c in range(4)]
    den = [Z[4 + c] for c in range(4)]
    O = [Z[8], Z[9]]
    k.e("s_waitcnt lgkmcnt(0)")
    for c, (mt, hh) in enumerate(C4):
        k.e("v_mfma_f32_16x16x32_bf16 %s, %s, %s, 0" % (vr(den[c], 4), vr(zf[hh], 4), vr(oq[c], 4)))
    for c, (mt, hh) in enumerate(C4):
        k.e("v_mfma_f32_16x16x32_bf16 %s, %s, %s, 0" % (vr(num[c], 4), vr(kvf[hh], 4), vr(oq[c], 4)))
    for c in range(4):
        k.e("v_add_f32 v%d, s%d, v%d" % (den[c], S_EPS, den[c]))
    for c in range(4):
        k.e("v_rcp_f32 v%d, v%d" % (den[c], den[c]))
    for c in range(4):
        for j in range(4):
            k.e("v_mul_f32 v%d, v%d, v%d" % (num[c] + j, num[c] + j, den[c]))
    for c, (mt, hh) in enumerate(C4):
        for s_ in pack2(O[mt] + 2 * hh, num[c]):
            k.e(s_)
    k.e("s_add_u32 s%d, s%d, 0x4000" % (S_T1, S_OB))
    for mt in range(MT):
        k.vmem("buffer_store_dwordx4 %s, v%d, %s, s%d offen sc1" % (vr(O[mt], 4), g.lin, srd(SRD_O), S_T1 if mt else S_OB), "st")
    signal(k, g, E_O, 2)
    k.release(mk)


def out_base(k):
    k.e("s_lshl_b32 s%d, s%d, 10" % (S_OB, S_TOKB))
    k.e("s_lshl_b32 s%d, s%d, 11" % (S_T0, S_CB))
    k.e("s_add_u32 s%d, s%d, s%d" % (S_OB, S_OB, S_T0))


def res_load(k, vsw, slot, tag, regs=None):
    r = regs if regs is not None else [k.alloc(4, 4) for _ in range(2)]

    def issue():
        for u in range(2):
            k.vmem("buffer_load_dwordx4 %s, v%d, %s, s%d offen offset:%d" % (vr(r[u], 4), vsw, srd(slot), S_OB, 1024 * u), tag)
    return r, issue


def store_pairs(k, vsw, pk):
    for u in range(2):
        for s_ in swap_pair(pk[u]):
            k.e(s_)
    for u in range(2):
        k.vmem("buffer_store_dwordx4 %s, v%d, %s, s%d offen offset:%d sc1" % (vr(pk[u], 4), vsw, srd(SRD_O), S_OB, 1024 * u), "st")


def p_wo(k, g):
    MT, NU, KS, CS = 1, 2, 16, 4
    mk0 = k.mark()
    vsw = g.vsw
    k.e("s_mov_b32 s%d, s%d" % (S_TOKB, S_TOKN))
    t16_base(k, S_XO, 512)
    out_base(k)
    w = w_tb(k, g, True, NU, KS)
    X = [k.alloc(4, 4) for _ in range(KS)]
    acc = [[[k.alloc(4, 4)] for _ in range(2)] for _ in range(NU)]
    res, res_issue = res_load(k, vsw, SRD_R, "res")
    make_srd(k, SRD_X, ("l", R_O), XBYTES)
    make_srd(k, SRD_R, ("l", R_XIN), XBYTES)
    make_srd(k, SRD_O, ("l", R_XA), XBYTES)
    make_srd(k, SRD_SO, ("l", ST_XA), STBYTES)
    res_issue()
    stamp(k, g)
    k.e("s_barrier")
    gemm_pre(k, w, KS, R512)
    k.e("s_barrier")
    stamp(k, g)
    for s in range(KS):
        xload(k, g, X[s], 512, 0, s, "c%d" % (s // CS))
    gemm_loop(k, g, w, KS, CS, MT, lambda s, mt: X[s], acc)
    k.e("s_barrier")
    stamp(k, g)
    seqs = []
    pk = [X[8], X[9]]
    for u in range(2):
        for s_ in swap_pair(res[u]):
            k.e(s_)
    for u in range(2):
        for t in range(2):
            i = 2 * u + t
            a = acc[u][t][0]
            tt = X[i]
            seqs.append(round4(a) + unpack2(tt, res[u] + 2 * t) + add4(a, tt) + pack2(pk[u] + 2 * t, a))
    for s_ in interleave(*seqs):
        k.e(s_)
    stats_store(k, g, [pk[u] + i for u in range(2) for i in range(4)], X[10])
    store_pairs(k, vsw, pk)
    signal(k, g, E_XA, 1)
    k.release(mk0)


def cs_load(k, g, tag):
    vcs = k.alloc()
    k.e("v_lshlrev_b32 v%d, 4, v%d" % (vcs, g.g))
    cs = [[k.alloc(4, 4) for _ in range(2)] for _ in range(2)]

    def issue():
        k.e("s_lshl_b32 s%d, s%d, 8" % (S_T0, S_CB))
        for u in range(2):
            for t in range(2):
                k.vmem("buffer_load_dwordx4 %s, v%d, %s, s%d offen offset:%d" % (
                    vr(cs[u][t], 4), vcs, srd(SRD_C), S_T0, 128 * u + 64 * t), tag)
    return cs, issue


def p_w1(k, g):
    MT, NU, KS, CS = 1, 2, 16, 4
    mk0 = k.mark()
    vsw = g.vsw
    t16_base(k, S_XO, 512)
    w = w_tb(k, g, False, NU, KS)
    X = [k.alloc(4, 4) for _ in range(KS)]
    acc = [[[k.alloc(4, 4)] for _ in range(2)] for _ in range(NU)]
    st, st_issue = stats_load(k, g, MT)
    cs, cs_issue = cs_load(k, g, "cs")
    make_srd(k, SRD_X, ("l", R_XA), XBYTES)
    make_srd(k, SRD_O, ("l", R_H), XBYTES)
    make_srd(k, SRD_S, ("l", ST_XA), STBYTES)
    make_srd(k, SRD_C, ("ws", CS_W1), 512 * 4)
    cs_issue()
    stamp(k, g)
    k.e("s_barrier")
    gemm_pre(k, w, KS, R512)
    k.e("s_barrier")
    stamp(k, g)
    for s in range(KS):
        xload(k, g, X[s], 512, 0, s, "c%d" % (s // CS))
    st_issue()
    gemm_loop(k, g, w, KS, CS, MT, lambda s, mt: X[s], acc)
    k.e("s_barrier")
    stamp(k, g)
    k.wait_vm("stat")
    for s_ in stats_finish(st[0], double=True):
        k.e(s_)
    seqs = []
    pk = [X[8], X[9]]
    for u in range(2):
        for t in range(2):
            i = 2 * u + t
            a = acc[u][t][0]
            seqs.append(ln_apply(a, cs[u][t], st[0], X[i]) + gelu4(a, X[i], pk[u] + 2 * t))
    for s_ in interleave(*seqs):
        k.e(s_)
    store_pairs(k, vsw, pk)
    signal(k, g, E_H, 1)
    k.release(mk0)


def p_w2(k, g):
    MT, NU, KS, CS = 1, 2, 16, 4
    mk0 = k.mark()
    vsw = g.vsw
    w = w_tb(k, g, False, NU, KS)
    X = [k.alloc(4, 4) for _ in range(KS)]
    acc = [[[k.alloc(4, 4)] for _ in range(2)] for _ in range(NU)]
    res, res_issue = res_load(k, vsw, SRD_R, "stat")
    st, st_issue = stats_load(k, g, MT)
    vsh = []
    t = k.alloc()
    for c, d in enumerate((-1, 1, -2, 2)):
        r = k.alloc()
        k.e("s_add_i32 s%d, s%d, %d" % (S_T0, S_TOKB, d))
        k.e("v_add_u32 v%d, s%d, v%d" % (t, S_T0, g.m))
        k.e("v_ashrrev_i32 v%d, 4, v%d" % (r, t))
        k.e("v_lshlrev_b32 v%d, 14, v%d" % (r, r))
        k.e("v_and_b32 v%d, 15, v%d" % (t, t))
        k.e("v_lshl_add_u32 v%d, v%d, 4, v%d" % (r, t, r))
        k.e("v_lshl_add_u32 v%d, v%d, 8, v%d" % (r, g.g, r))
        if c:
            k.e("v_add_u32 v%d, 0x%x, v%d" % (r, 4096 * c, r))
        vsh.append(r)
    make_srd(k, SRD_X, ("l", R_H), XBYTES)
    make_srd(k, SRD_O, ("l", R_X1), XBYTES)
    make_srd(k, SRD_R, ("l", R_XA), XBYTES)
    make_srd(k, SRD_S, ("l", ST_XA), STBYTES)
    make_srd(k, SRD_SO, ("l", ST_X1), STBYTES)
    res_issue()
    st_issue()
    stamp(k, g)
    k.e("s_barrier")
    gemm_pre(k, w, KS, R512)
    k.e("s_barrier")
    stamp(k, g)
    for c in range(4):
        for s in range(4 * c, 4 * c + 4):
            k.vmem("buffer_load_dwordx4 %s, v%d, %s, 0 offen offset:%d" % (vr(X[s], 4), vsh[c], srd(SRD_X), 1024 * (s % 4)), "c%d" % c)
    gemm_loop(k, g, w, KS, CS, MT, lambda s, mt: X[s], acc)
    k.e("s_barrier")
    stamp(k, g)
    for s_ in interleave(stats_finish(st[0]), swap_pair(res[0]) + swap_pair(res[1])):
        k.e(s_)
    seqs = []
    pk = [X[8], X[9]]
    for u in range(2):
        for t in range(2):
            i = 2 * u + t
            a = acc[u][t][0]
            tt = X[i]
            sq = round4(a) + unpack2(tt, res[u] + 2 * t)
            sq += ["v_fma_f32 v%d, v%d, v%d, v%d" % (tt + j, tt + j, st[0], st[0] + 1) for j in range(4)]
            sq += round4(tt) + add4(a, tt) + pack2(pk[u] + 2 * t, a)
            seqs.append(sq)
    for s_ in interleave(*seqs):
        k.e(s_)
    stats_store(k, g, [pk[u] + i for u in range(2) for i in range(4)], X[10])
    store_pairs(k, vsw, pk)
    signal(k, g, E_X1, 1)
    k.release(mk0)


def p_w3(k, g):
    MT, NU, KS, CS = 2, 3, 16, 4
    mk0 = k.mark()
    vsw = g.vsw
    k.e("s_mov_b32 s%d, s%d" % (S_TOKB, S_TOKW))
    t16_base(k, S_XO, 512)
    w = w_tb(k, g, False, NU, KS)
    k.e("s_mul_i32 s%d, s%d, %d" % (S_OB, S_TOKB, 2752))
    k.e("s_lshl_b32 s%d, s%d, 10" % (S_T0, S_CU3))
    k.e("s_add_u32 s%d, s%d, s%d" % (S_OB, S_OB, S_T0))
    st, st_issue = stats_load(k, g, MT)
    vcs = k.alloc()
    k.e("v_lshlrev_b32 v%d, 4, v%d" % (vcs, g.g))
    X = [[k.alloc(4, 4) for _ in range(KS)] for _ in range(MT)]
    cs = [[X[0][2 * u + tt] for tt in range(2)] for u in range(NU)]
    acc = [[[k.alloc(4, 4) for _ in range(MT)] for _ in range(2)] for _ in range(NU)]
    make_srd(k, SRD_X, ("l", R_X1), XBYTES)
    make_srd(k, SRD_O, ("l", R_H3), S * 2752)
    make_srd(k, SRD_S, ("l", ST_X1), STBYTES)
    make_srd(k, SRD_C, ("ws", CS_W3), 1376 * 4)
    stamp(k, g)
    k.e("s_barrier")
    gemm_pre(k, w, KS, 2)
    k.e("s_barrier")
    stamp(k, g)
    for c in range(KS // CS):
        for mt in range(MT):
            for s in range(c * CS, (c + 1) * CS):
                xload(k, g, X[mt][s], 512, mt, s, "c%d" % c)
    st_issue()

    def cs_issue():
        k.e("s_lshl_b32 s%d, s%d, 7" % (S_T0, S_CU3))
        for u in range(NU):
            for tt in range(2):
                k.vmem("buffer_load_dwordx4 %s, v%d, %s, s%d offen offset:%d" % (
                    vr(cs[u][tt], 4), vcs, srd(SRD_C), S_T0, u * 128 + tt * 64), "stat")
    gemm_loop(k, g, w, KS, CS, MT, lambda s, mt: X[mt][s], acc, mid={8: cs_issue})
    k.e("s_barrier")
    stamp(k, g)
    k.wait_vm("stat")
    for s_ in interleave(*[stats_finish(st[mt]) for mt in range(MT)]):
        k.e(s_)
    k.e("s_add_u32 s%d, s%d, %d" % (S_T1, S_OB, 16 * 2752))
    for mt in range(MT):
        seqs = []
        pk = [X[mt][8 + u] for u in range(NU)]
        for u in range(NU):
            for t in range(2):
                i = 2 * u + t
                a = acc[u][t][mt]
                seqs.append(ln_apply(a, cs[u][t], st[mt], X[1][i]) + gelu4(a, X[1][i], pk[u] + 2 * t))
        for s_ in interleave(*seqs):
            k.e(s_)
        for u in range(NU):
            for s_ in swap_pair(pk[u]):
                k.e(s_)
        for u in range(NU):
            k.vmem("buffer_store_dwordx4 %s, v%d, %s, s%d offen offset:%d sc1" % (
                vr(pk[u], 4), vsw, srd(SRD_O), S_T1 if mt else S_OB, 1024 * u), "st")
    signal(k, g, E_H3, 2)
    k.release(mk0)


KCAP4 = 40


def p_w4(k, g):
    MT, NU, KS, CS = 1, 2, 43, 4
    mk0 = k.mark()
    vsw = g.vsw
    k.e("s_mov_b32 s%d, s%d" % (S_TOKB, S_TOKN))
    t16_base(k, S_XO, F)
    out_base(k)
    w = w_tb(k, g, False, NU, KCAP4)
    X = [k.alloc(4, 4) for _ in range(KS)]
    acc = [[[k.alloc(4, 4)] for _ in range(2)] for _ in range(NU)]
    res, res_issue = res_load(k, vsw, SRD_R, "res", [X[12], X[13]])
    res1, res1_issue = res_load(k, vsw, SRD_R2, "res", [X[14], X[15]])
    vro = k.alloc()
    t = k.alloc()
    k.e("v_add_u32 v%d, s%d, v%d" % (vro, S_TOKB, g.m))
    k.e("v_lshlrev_b32 v%d, 10, v%d" % (vro, vro))
    k.e("v_and_b32 v%d, 1, v%d" % (t, g.g))
    k.e("v_lshl_add_u32 v%d, v%d, 5, v%d" % (vro, t, vro))
    k.e("v_lshrrev_b32 v%d, 1, v%d" % (t, g.g))
    k.e("v_lshl_add_u32 v%d, v%d, 4, v%d" % (vro, t, vro))
    k.e("s_lshl_b32 s%d, s%d, 7" % (S_T0, S_CB))
    k.e("v_add_u32 v%d, s%d, v%d" % (vro, S_T0, vro))
    make_srd(k, SRD_X, ("l", R_H3), S * 2752)
    make_srd(k, SRD_O, ("n", R_XIN), XBYTES)
    make_srd(k, SRD_R, ("l", R_XA), XBYTES)
    make_srd(k, SRD_R2, ("l", R_X1), XBYTES)
    make_srd(k, SRD_SO, ("n", ST_XIN), STBYTES)
    make_srd(k, SRD_C, ("in", OUT), XBYTES)
    stamp(k, g)
    k.e("s_barrier")
    gemm_pre(k, w, KS, 2)
    k.e("s_barrier")
    stamp(k, g)
    for s in range(KS):
        xload(k, g, X[s], F, 0, s, "c%d" % (s // CS))

    def resi():
        res_issue()
        res1_issue()

    def b3():
        k.e("s_barrier")

    def b4():
        k.e("s_barrier")

    gemm_loop(k, g, w, KS, CS, MT, lambda s, mt: X[s], acc, mid={3: b3, 20: resi}, pre={KCAP4: b4})
    k.e("s_barrier")
    stamp(k, g)
    k.wait_vm("res")
    for u in range(2):
        for s_ in swap_pair(res[u]) + swap_pair(res1[u]):
            k.e(s_)
    seqs = []
    pk = [X[8], X[9]]
    for u in range(2):
        for t in range(2):
            i = 2 * u + t
            a = acc[u][t][0]
            tt = X[i]
            seqs.append(round4(a) + unpack2(tt, res1[u] + 2 * t) + add4(a, tt) + round4(a) +
                        unpack2(tt, res[u] + 2 * t) + add4(a, tt) + pack2(pk[u] + 2 * t, a))
    for s_ in interleave(*seqs):
        k.e(s_)
    k.e("s_cmp_lg_u32 s%d, 0" % S_LAYER)
    k.e("s_cbranch_scc1 L_last_%s" % k.name)
    stats_store(k, g, [pk[u] + i for u in range(2) for i in range(4)], X[10])
    store_pairs(k, vsw, pk)
    signal(k, g, E_X, 1, nxt=True)
    k.e("s_add_u32 s%d, s%d, 0x%x" % (S_WSL, S_WSL, LSTRIDE))
    k.e("s_addc_u32 s%d, s%d, 0" % (S_WSH, S_WSH))
    k.e("s_mov_b32 s%d, 1" % S_LAYER)
    k.e("s_branch L_layer_%s" % k.name)
    k.label("L_last_%s" % k.name)
    k.e("s_nop 4")
    for u in range(2):
        for s_ in swap_pair(pk[u]):
            k.e(s_)
    for u in range(2):
        k.e("buffer_store_dwordx4 %s, v%d, %s, 0 offen offset:%d" % (vr(pk[u], 4), vro, srd(SRD_C), 64 * u))
    k.release(mk0)


def w_lane(k, g, r, wrow, swz_bit, t, t2):
    k.e("v_lshrrev_b32 v%d, 2, v%d" % (t, g.l))
    k.e("s_mov_b32 s%d, %d" % (S_T0, wrow))
    k.e("v_mul_lo_u32 v%d, s%d, v%d" % (r, S_T0, t))
    k.e("v_lshrrev_b32 v%d, %d, v%d" % (t, 2 + swz_bit - 1, g.l))
    k.e("v_and_b32 v%d, 2, v%d" % (t, t))
    k.e("v_and_b32 v%d, 3, v%d" % (t2, g.l))
    k.e("v_xor_b32 v%d, v%d, v%d" % (t, t, t2))
    k.e("v_lshl_add_u32 v%d, v%d, 4, v%d" % (r, t, r))


def dma(k, vwo, soff, m0off):
    k.e("s_add_u32 s%d, s%d, 0x%x" % (S_T0, S_WBASE, soff))
    k.e("s_mov_b32 m0, 0x%x" % m0off)
    k.e("buffer_load_dwordx4 v%d, %s, s%d offen lds" % (vwo, srd(SRD_W), S_T0))


_pollid = [0]


def poll(k, g, soff_code, nl, expect):
    i = _pollid[0]
    _pollid[0] += 1
    for s_ in soff_code:
        k.e(s_)
    k.e("s_mov_b32 s%d, 0" % S_CNT)
    k.e("s_mov_b64 exec, 0x%x" % ((1 << nl) - 1))
    if PRE_SLEEP:
        k.e("s_sleep %d" % PRE_SLEEP)
    k.label("L_poll%d_%s" % (i, k.name))
    k.e("buffer_load_dword v%d, v%d, %s, s%d offen sc1" % (g.pv, g.l128, srd(SRD_F), S_T2))
    k.e("s_waitcnt vmcnt(0)")
    k.e("v_cmp_gt_u32 vcc, %d, v%d" % (expect, g.pv))
    k.e("s_cbranch_vccz L_go%d_%s" % (i, k.name))
    if POLL_SLEEP:
        k.e("s_sleep %d" % POLL_SLEEP)
    k.e("s_add_u32 s%d, s%d, 1" % (S_CNT, S_CNT))
    k.e("s_cmp_lt_u32 s%d, %d" % (S_CNT, POLL_MAX))
    k.e("s_cbranch_scc1 L_poll%d_%s" % (i, k.name))
    k.label("L_go%d_%s" % (i, k.name))
    k.e("s_mov_b64 exec, -1")


def loader(k, g):
    v3072, v1024, v1024k, v2752 = k.alloc(), k.alloc(), k.alloc(), k.alloc()
    t, t2 = k.alloc(), k.alloc()
    g.pv = k.alloc()
    w_lane(k, g, v3072, 3072, 3, t, t2)
    w_lane(k, g, v1024, 1024, 3, t, t2)
    w_lane(k, g, v1024k, 1024, 2, t, t2)
    w_lane(k, g, v2752, 2752, 3, t, t2)
    vl32, vkw, vzw = k.alloc(), k.alloc(), k.alloc()
    k.e("v_lshlrev_b32 v%d, 5, v%d" % (vl32, g.l))
    k.e("v_add_u32 v%d, 0x%x, v%d" % (vkw, LDS_KV, g.lin))
    k.e("v_lshlrev_b32 v%d, 4, v%d" % (vzw, g.g))
    k.e("v_add_u32 v%d, 0x%x, v%d" % (vzw, LDS_Z, vzw))
    pn = ["s_lshl_b32 s%d, s%d, 9" % (S_T2, S_RB)]
    pw = ["s_lshl_b32 s%d, s%d, 10" % (S_T2, S_RBW)]

    def wide_dma(vwo, wrow, ucol):
        us = 16 * 32 * 64
        for j in range(8):
            for wv in range(4):
                for u in range(3):
                    dma(k, vwo, u * ucol + j * 64 * wrow + wv * 16 * wrow, u * us + j * 4096 + wv * 1024)

    def n512_dma(vwo):
        us = 16 * 32 * 64
        for j in range(8):
            for wv in range(4):
                for u in range(2):
                    dma(k, vwo, u * 64 + j * 64 * 1024 + wv * 16 * 1024, u * us + j * 4096 + wv * 1024)

    def w4_dma(j):
        us = KCAP4 * 32 * 64
        for wv in range(4):
            dma(k, v1024, j * 32 * 1024 + (wv & 1) * 64 + (wv >> 1) * 16384, (j % KCAP4) * 2048 + (wv & 1) * us + (wv >> 1) * 1024)

    k.label("L_llayer_%s" % k.name)
    make_srd(k, SRD_F, ("l", R_FL), 0x10000)

    def phase(soff, nl, expect):
        k.e("s_waitcnt vmcnt(0)")
        k.e("s_barrier")
        poll(k, g, soff, nl, expect)
        k.e("s_barrier")
    make_srd(k, SRD_W, ("in", IN_WQKV), 512 * 3072)
    k.e("s_lshl_b32 s%d, s%d, 6" % (S_WBASE, S_CBW))
    wide_dma(v3072, 3072, 1024)
    phase(pw + ["s_add_u32 s%d, s%d, %d" % (S_T2, S_T2, 128 + 4 * E_X)], 8, 8)
    k.e("s_barrier")
    make_srd(k, SRD_W, ("in", IN_WO), 512 * 1024)
    k.e("s_lshl_b32 s%d, s%d, 7" % (S_WBASE, S_CB))
    n512_dma(v1024k)
    k.e("s_barrier")
    poll(k, g, ["s_lshl_b32 s%d, s%d, 7" % (S_T2, S_CBW), "s_add_u32 s%d, s%d, 0x%x" % (S_T2, S_T2, FL_KV)], 1, 64)
    k.e("s_barrier")
    k.e("s_barrier")
    phase(pn + ["s_add_u32 s%d, s%d, %d" % (S_T2, S_T2, 128 + 4 * E_O)], 4, 16)
    k.e("s_barrier")
    make_srd(k, SRD_W, ("in", IN_W1), 512 * 1024)
    n512_dma(v1024)
    phase(pn + ["s_add_u32 s%d, s%d, %d" % (S_T2, S_T2, 128 + 4 * E_XA)], 4, 8)
    k.e("s_barrier")
    make_srd(k, SRD_W, ("in", IN_W2), 512 * 1024)
    n512_dma(v1024)
    phase(pn + ["s_add_u32 s%d, s%d, %d" % (S_T2, S_T2, 4 * E_H)], 6, 8)
    k.e("s_barrier")
    make_srd(k, SRD_W, ("in", IN_W3), 512 * 2752)
    k.e("s_lshl_b32 s%d, s%d, 6" % (S_WBASE, S_CU3))
    wide_dma(v2752, 2752, 64)
    phase(pw + ["s_add_u32 s%d, s%d, %d" % (S_T2, S_T2, 128 + 4 * E_X1)], 8, 8)
    k.e("s_barrier")
    make_srd(k, SRD_W, ("in", IN_W4), F * 1024)
    k.e("s_lshl_b32 s%d, s%d, 7" % (S_WBASE, S_CB))
    for j in range(KCAP4):
        w4_dma(j)
    phase(pn + ["s_add_u32 s%d, s%d, %d" % (S_T2, S_T2, 128 + 4 * E_H3)], 4, 16)
    k.e("s_barrier")
    for j in range(KCAP4, 43):
        w4_dma(j)
    k.e("s_waitcnt vmcnt(0)")
    k.e("s_barrier")
    k.e("s_barrier")
    k.e("s_cmp_lg_u32 s%d, 0" % S_LAYER)
    k.e("s_cbranch_scc1 L_end_%s" % k.name)
    k.e("s_add_u32 s%d, s%d, 0x%x" % (S_WSL, S_WSL, LSTRIDE))
    k.e("s_addc_u32 s%d, s%d, 0" % (S_WSH, S_WSH))
    k.e("s_mov_b32 s%d, 1" % S_LAYER)
    k.e("s_branch L_llayer_%s" % k.name)


def k_main(name):
    k = Kern(name)
    g = G()
    k.e("s_cmp_ge_u32 s2, 256")
    k.e("s_cbranch_scc1 L_end_%s" % k.name)
    k.e("s_load_dwordx16 s[64:79], s[0:1], 0")
    k.e("s_load_dwordx8 s[80:87], s[0:1], 64")
    g.w = k.alloc()
    g.l = k.alloc()
    g.g = k.alloc()
    g.m = k.alloc()
    g.lin = k.alloc()
    g.one = k.alloc()
    g.l128 = k.alloc()
    g.vsw = k.alloc()
    g.vst = k.alloc()
    k.e("v_lshrrev_b32 v%d, 6, v0" % g.w)
    k.e("v_and_b32 v%d, 63, v0" % g.l)
    k.e("v_readfirstlane_b32 s%d, v%d" % (S_WAVE, g.w))
    k.e("v_lshrrev_b32 v%d, 4, v%d" % (g.g, g.l))
    k.e("v_and_b32 v%d, 15, v%d" % (g.m, g.l))
    k.e("v_lshlrev_b32 v%d, 4, v%d" % (g.lin, g.l))
    k.e("v_mov_b32 v%d, 1" % g.one)
    k.e("v_lshlrev_b32 v%d, 7, v%d" % (g.l128, g.l))
    k.e("v_mov_b32 v%d, 0" % g.vst)
    t = g.w
    k.e("v_and_b32 v%d, 1, v%d" % (t, g.g))
    k.e("v_lshlrev_b32 v%d, 9, v%d" % (g.vsw, t))
    k.e("v_lshrrev_b32 v%d, 1, v%d" % (t, g.g))
    k.e("v_lshl_add_u32 v%d, v%d, 8, v%d" % (g.vsw, t, g.vsw))
    k.e("v_lshl_add_u32 v%d, v%d, 4, v%d" % (g.vsw, g.m, g.vsw))
    k.e("s_and_b32 s%d, s2, 7" % S_T0)
    k.e("s_lshr_b32 s%d, s2, 3" % S_T1)
    k.e("s_lshr_b32 s%d, s%d, 3" % (S_RB, S_T1))
    k.e("s_lshl_b32 s%d, s%d, 2" % (S_T2, S_T0))
    k.e("s_add_u32 s%d, s%d, s%d" % (S_RB, S_RB, S_T2))
    k.e("s_and_b32 s%d, s%d, 7" % (S_CB, S_T1))
    k.e("s_lshr_b32 s%d, s%d, 4" % (S_RBW, S_T1))
    k.e("s_lshl_b32 s%d, s%d, 1" % (S_T2, S_T0))
    k.e("s_add_u32 s%d, s%d, s%d" % (S_RBW, S_RBW, S_T2))
    k.e("s_and_b32 s%d, s%d, 15" % (S_CBW, S_T1))
    k.e("s_lshl_b32 s%d, s%d, 6" % (S_TOKN, S_RB))
    k.e("s_lshl_b32 s%d, s%d, 4" % (S_T0, S_WAVE))
    k.e("s_add_u32 s%d, s%d, s%d" % (S_TOKN, S_TOKN, S_T0))
    k.e("s_lshl_b32 s%d, s%d, 7" % (S_TOKW, S_RBW))
    k.e("s_lshl_b32 s%d, s%d, 5" % (S_T0, S_WAVE))
    k.e("s_add_u32 s%d, s%d, s%d" % (S_TOKW, S_TOKW, S_T0))
    k.e("s_mul_i32 s%d, s%d, 43" % (S_CU3, S_CBW))
    k.e("s_lshr_b32 s%d, s%d, 4" % (S_CU3, S_CU3))
    k.e("s_min_u32 s%d, s%d, 40" % (S_CU3, S_CU3))
    k.e("s_mov_b32 s%d, 0x3f803f80" % S_ONES)
    k.e("s_mov_b32 s%d, 0x%08x" % (S_L2E, f32bits(LOG2E)))
    k.e("s_mov_b32 s%d, 0x%08x" % (S_EPS, f32bits(1e-6)))
    k.e("s_mov_b32 s%d, 0x%08x" % (S_C1, f32bits(0.044715)))
    k.e("s_mov_b32 s%d, 0x%08x" % (S_C2, f32bits(-2.0 * LOG2E * math.sqrt(2.0 / math.pi))))
    k.e("s_mov_b32 s%d, 0x4000" % S_K16)
    k.e("s_mov_b32 s%d, 0" % S_LAYER)
    k.e("s_mov_b32 s%d, 0" % S_STI)
    k.e("s_waitcnt lgkmcnt(0)")
    k.e("s_mov_b32 s%d, s%d" % (S_WSL, PTR(WS)))
    k.e("s_mov_b32 s%d, s%d" % (S_WSH, PTR(WS) + 1))
    k.e("s_cmp_eq_u32 s%d, 4" % S_WAVE)
    k.e("s_cbranch_scc1 L_loader_%s" % k.name)
    mk = k.mark()
    k.label("L_layer_%s" % k.name)
    k.e("s_nop 4")
    p_qkv(k, g)
    p_wo(k, g)
    p_w1(k, g)
    p_w2(k, g)
    p_w3(k, g)
    p_w4(k, g)
    if STAMP:
        stamp(k, g)
        k.e("s_waitcnt vmcnt(0)")
        stamp(k, g)
        k.e("s_cmp_lg_u32 s2, %d" % (STAMP - 1))
        k.e("s_cbranch_scc1 L_end_%s" % k.name)
        k.e("s_cmp_lg_u32 s%d, 0" % S_WAVE)
        k.e("s_cbranch_scc1 L_end_%s" % k.name)
        make_srd(k, 8, ("in", DBG), 256)
        k.e("v_lshlrev_b32 v%d, 2, v%d" % (g.w, g.l))
        k.e("buffer_store_dword v%d, v%d, s[8:11], 0 offen" % (g.vst, g.w))
    k.e("s_branch L_end_%s" % k.name)
    k.release(mk)
    k.label("L_loader_%s" % k.name)
    k.e("s_nop 4")
    loader(k, g)
    k.label("L_end_%s" % k.name)
    k.e("s_endpgm")
    return k, 256, 320, 163840


HEADER = """; Kernarg layout for this problem (96 bytes, ptrs only, base s[0:1]):
;   offset  88: d_ws      268435456 bytes workspace
"""


def build():
    kernels = [k_prep("prep_kernel"), k_main("main_kernel")]
    out = [HEADER.rstrip("\n")]
    for (k, nwg, blk, lds) in kernels:
        out.append("; @launch kernel=%s grid=(%d,1,1) block=(%d,1,1) lds=%d" % (k.name, nwg, blk, lds))
    out.append('.amdgcn_target "amdgcn-amd-amdhsa--gfx950"')
    out.append(".text")
    for (k, nwg, blk, lds) in kernels:
        out.append(".globl %s" % k.name)
        out.append(".p2align 8")
        out.append(".type %s,@function" % k.name)
        out.append("%s:" % k.name)
        out += hazard_pass(k.lines)
    out.append('.section .rodata,"a"')
    for (k, nwg, blk, lds) in kernels:
        nv = (k.maxv + 7) // 8 * 8
        out.append(".p2align 6")
        out.append(".amdhsa_kernel %s" % k.name)
        out.append("  .amdhsa_next_free_vgpr %d" % nv)
        out.append("  .amdhsa_next_free_sgpr 102")
        out.append("  .amdhsa_accum_offset %d" % nv)
        out.append("  .amdhsa_group_segment_fixed_size 0")
        out.append("  .amdhsa_kernarg_size 96")
        out.append("  .amdhsa_user_sgpr_count 2")
        out.append("  .amdhsa_user_sgpr_kernarg_segment_ptr 1")
        out.append("  .amdhsa_system_sgpr_workgroup_id_x 1")
        out.append(".end_amdhsa_kernel")
    return "\n".join(out) + "\n"


if __name__ == "__main__":
    path = sys.argv[1] if len(sys.argv) > 1 else "cdna_kernels/%s.s" % NAME
    open(path, "w").write(build())
    print("wrote", path)
```

```python
import sys
import os
import math
import struct

sys.path.insert(0, os.path.dirname(os.path.abspath(__file__)))
from asmlib import Kern, vr, interleave, hazard_pass

NAME = "interleave_layers__linear_kernel_hedgehog__mixer_s_mlp__prompt"
S, D, F = 2048, 512, 1376

IN_X, IN_WQKV, IN_WPHI, IN_WO, IN_BX, IN_W1, IN_W2, IN_W3, IN_W4, OUT, DBG, WS = range(12)


def PTR(i):
    return 64 + 2 * i


MB = 1 << 20
LSTRIDE = 32 * MB
R_XIN = 0 * MB
R_XA = 2 * MB
R_O = 4 * MB
R_KVP = 6 * MB
R_H = 8 * MB
R_X1 = 10 * MB
R_H3 = 12 * MB
R_ST = 18 * MB
ST_XIN, ST_XA, ST_X1 = [R_ST + i * 0x20000 for i in range(3)]
R_KVA = 19 * MB
R_FL = 20 * MB
FL_HX = 0xC000
FL_KV = 0xD000
FL_TK = 0xE000
WS_CS = 64 * MB
CS_QKV, CS_W1, CS_W3 = WS_CS, WS_CS + 0x2000, WS_CS + 0x4000
E_X, E_O, E_XA, E_H, E_X1, E_H3 = range(6)
R512 = int(os.environ.get("R512", "6"))
BIG = 0x10000

XBYTES = S * D * 2
STBYTES = 8 * S * 8
LOG2E = 1.4426950408889634
LDS_SCR = 0x20000
LDS_KV = 0x10000
LDS_Z = 0x18000
POLL_MAX = 40000
PRE_SLEEP = int(os.environ.get("PRE_SLEEP", "0"))
POLL_SLEEP = int(os.environ.get("POLL_SLEEP", "2"))


def f32bits(x):
    return struct.unpack("<I", struct.pack("<f", x))[0]


S_WAVE, S_RB, S_CB, S_RBW, S_CBW, S_T0, S_T1, S_T2 = 32, 33, 34, 35, 36, 37, 38, 39
S_ONES, S_L2E, S_EPS, S_C1, S_C2, S_XO = 40, 41, 42, 43, 44, 45
S_TOKB, S_OB = 46, 47
SRD_X, SRD_W, SRD_O, SRD_R, SRD_R2, SRD_F = 8, 12, 16, 20, 24, 28
SRD_S, SRD_SO = 48, 52
SRD_C = 56
S_WSL, S_WSH, S_LAYER, S_CNT = 60, 61, 62, 63
S_STI, S_TOKN, S_TOKW, S_CU3, S_WBASE, S_K16 = 90, 92, 93, 94, 95, 96
S_GC = 98

STAMP = int(os.environ.get("STAMP", "0"))
DSC = os.environ.get("DSC", " sc1")
LSC = os.environ.get("LSC", "")


def make_srd(k, slot, buf, size):
    kind = buf[0]
    if kind == "ws":
        k.e("s_add_u32 s%d, s%d, 0x%x" % (slot, PTR(WS), buf[1]))
        k.e("s_addc_u32 s%d, s%d, 0" % (slot + 1, PTR(WS) + 1))
    elif kind == "l":
        k.e("s_add_u32 s%d, s%d, 0x%x" % (slot, S_WSL, buf[1]))
        k.e("s_addc_u32 s%d, s%d, 0" % (slot + 1, S_WSH))
    elif kind == "n":
        k.e("s_add_u32 s%d, s%d, 0x%x" % (slot, S_WSL, buf[1] + LSTRIDE))
        k.e("s_addc_u32 s%d, s%d, 0" % (slot + 1, S_WSH))
    else:
        idx = buf[1]
        k.e("s_mov_b32 s%d, s%d" % (slot, PTR(idx)))
        k.e("s_mov_b32 s%d, s%d" % (slot + 1, PTR(idx) + 1))
    k.e("s_mov_b32 s%d, 0x%x" % (slot + 2, size))
    k.e("s_mov_b32 s%d, 0x00020000" % (slot + 3))


def srd(slot):
    return "s[%d:%d]" % (slot, slot + 3)


class G:
    pass


STAMPG = os.environ.get("STAMPG", "")


def stamp(k, g, fine=False):
    if not STAMP:
        return
    if STAMPG and getattr(k, "phase", "") != STAMPG:
        return
    if fine and not STAMPG:
        return
    k.e("s_memtime s[88:89]")
    k.e("s_waitcnt lgkmcnt(0)")
    k.e("s_mov_b32 m0, s%d" % S_STI)
    k.e("s_nop 0")
    k.e("v_writelane_b32 v%d, s88, m0" % g.vst)
    k.e("s_add_u32 s%d, s%d, 1" % (S_STI, S_STI))


def allreduce(x, t, op):
    return [
        "v_mov_b32 v%d, v%d" % (t, x),
        "v_permlane32_swap_b32 v%d, v%d" % (x, t),
        "%s v%d, v%d, v%d" % (op, x, x, t),
        "v_mov_b32 v%d, v%d" % (t, x),
        "v_permlane16_swap_b32 v%d, v%d" % (x, t),
        "%s v%d, v%d, v%d" % (op, x, x, t),
    ]


def stats_finish(st, double=False):
    o = []
    s_, q_, t0, t1 = st, st + 1, st + 2, st + 3
    o.append("v_add_f32 v%d, v%d, v%d" % (s_, st, st + 2))
    o.append("v_add_f32 v%d, v%d, v%d" % (q_, st + 1, st + 3))
    o += interleave(allreduce(s_, t0, "v_add_f32"), allreduce(q_, t1, "v_add_f32"))
    o.append("v_mul_f32 v%d, 0x%08x, v%d" % (s_, f32bits(1.0 / 512), s_))
    o.append("v_mul_f32 v%d, 0x%08x, v%d" % (q_, f32bits(1.0 / 512), q_))
    o.append("v_fma_f32 v%d, -v%d, v%d, v%d" % (q_, s_, s_, q_))
    o.append("v_max_f32 v%d, 0, v%d" % (q_, q_))
    o.append("v_add_f32 v%d, 0x%08x, v%d" % (t0, f32bits(1e-5), q_))
    o.append("v_rsq_f32 v%d, v%d" % (t0, t0))
    if double:
        o.append("v_mul_f32 v%d, v%d, v%d" % (t1, t0, t0))
        o.append("v_mul_f32 v%d, v%d, v%d" % (t1, t1, q_))
        o.append("v_add_f32 v%d, 0x%08x, v%d" % (t1, f32bits(1e-5), t1))
        o.append("v_rsq_f32 v%d, v%d" % (t1, t1))
        o.append("s_nop 0")
        o.append("v_mul_f32 v%d, v%d, v%d" % (t0, t0, t1))
    o.append("v_mul_f32 v%d, v%d, v%d" % (st + 1, s_, t0))
    o.append("v_sub_f32 v%d, 0, v%d" % (st + 1, st + 1))
    o.append("v_mov_b32 v%d, v%d" % (st, t0))
    return o


def gelu4(a, t, dst):
    o = []
    P = lambda r: vr(r, 2)
    gc = "s[%d:%d]" % (S_GC, S_GC + 1)
    for i in (0, 2):
        o.append("v_pk_mul_f32 %s, %s, %s" % (P(t + i), P(a + i), P(a + i)))
    for i in (0, 2):
        o.append("v_pk_fma_f32 %s, %s, %s, %s op_sel:[0,0,1] op_sel_hi:[1,0,1]" % (P(t + i), P(t + i), gc, gc))
    for i in (0, 2):
        o.append("v_pk_mul_f32 %s, %s, %s" % (P(t + i), P(t + i), P(a + i)))
    for i in range(4):
        o.append("v_exp_f32 v%d, v%d" % (t + i, t + i))
    for i in (0, 2):
        o.append("v_pk_add_f32 %s, %s, 1.0 op_sel_hi:[1,0]" % (P(t + i), P(t + i)))
    for i in range(4):
        o.append("v_rcp_f32 v%d, v%d" % (t + i, t + i))
    for i in (0, 2):
        o.append("v_pk_mul_f32 %s, %s, %s" % (P(t + i), P(t + i), P(a + i)))
    o.append("v_cvt_pk_bf16_f32 v%d, v%d, v%d" % (dst, t, t + 1))
    o.append("v_cvt_pk_bf16_f32 v%d, v%d, v%d" % (dst + 1, t + 2, t + 3))
    return o


def ln_apply(a, cs, st, t):
    o = []
    P = lambda r: vr(r, 2)
    assert a % 2 == 0 and cs % 2 == 0 and st % 2 == 0 and t % 2 == 0
    for i in (0, 2):
        o.append("v_pk_mul_f32 %s, %s, %s op_sel:[0,1] op_sel_hi:[1,1]" % (P(t + i), P(cs + i), P(st)))
    for i in (0, 2):
        o.append("v_pk_fma_f32 %s, %s, %s, %s op_sel_hi:[1,0,1]" % (P(a + i), P(a + i), P(st), P(t + i)))
    return o


class W:
    pass


def w_tb(k, g, k2map, NU, KCAP_STEPS):
    w = W()
    w.NU = NU
    w.kcap = KCAP_STEPS
    w.ustride = KCAP_STEPS * 32 * 64
    w.k2map = k2map
    w.tb = {}
    b0 = k.alloc()
    b1 = k.alloc()
    t = k.alloc()
    t2 = k.alloc()
    k.e("v_and_b32 v%d, 3, v%d" % (t2, g.l))
    k.e("v_lshrrev_b32 v%d, 2, v%d" % (t, g.l))
    k.e("v_and_b32 v%d, 3, v%d" % (t, t))
    k.e("v_lshlrev_b32 v%d, 6, v%d" % (t, t))
    k.e("v_lshl_add_u32 v%d, v%d, 3, v%d" % (t, t2, t))
    k.e("v_lshl_add_u32 v%d, v%d, %d, v%d" % (t, g.g, 8 if k2map else 9, t))
    k.e("v_and_b32 v%d, 1, v%d" % (t2, g.g))
    k.e("v_lshl_add_u32 v%d, v%d, 5, v%d" % (b0, t2, t))
    k.e("v_xor_b32 v%d, 1, v%d" % (t2, t2))
    k.e("v_lshl_add_u32 v%d, v%d, 5, v%d" % (b1, t2, t))
    w.tb[(0, 0)] = b0
    w.tb[(1, 0)] = b1
    nhi = (NU * w.ustride + 65535) // 65536
    pool = [t, t2]
    for h in range(1, nhi):
        for tt in (0, 1):
            r = pool.pop() if pool else k.alloc()
            k.e("v_add_u32 v%d, 0x%x, v%d" % (r, 65536 * h, w.tb[(tt, 0)]))
            w.tb[(tt, h)] = r
    return w


def tr_reads(k, w, dst, u, t, s):
    sp = s % w.kcap
    for hs in (0, 1):
        off = u * w.ustride + 2048 * sp + (1024 if w.k2map else 256) * hs
        h, o = off >> 16, off & 0xffff
        k.e("ds_read_b64_tr_b16 %s, v%d offset:%d" % (vr(dst + 2 * hs, 2), w.tb[(t, h)], o))


def gemm_pre(k, w, KS, R):
    frags = [(u, t) for u in range(w.NU) for t in (0, 1)]
    w.R = R
    w.wb = [[k.alloc(4, 4) for _ in frags] for _ in range(R)]
    for s in range(min(R, KS)):
        for i, (u, t) in enumerate(frags):
            tr_reads(k, w, w.wb[s][i], u, t, s)


XD = int(os.environ.get("XD", "12"))


def gemm_loop(k, g, w, KS, MT, xfrag, acc, xl, mid=None, pre=None):
    NU = w.NU
    frags = [(u, t) for u in range(NU) for t in (0, 1)]
    n = len(frags)
    R = w.R
    wb = w.wb
    first = set()
    D = XD // MT
    for s in range(min(D, KS)):
        xl(s)
    for s in range(KS):
        later = min(R - 1, KS - 1 - s)
        k.wait_vm("x%d" % s, " lgkmcnt(%d)" % min(15, later * 2 * n))
        if s % 4 == 0:
            stamp(k, g, True)
        if pre and (s + R) in pre:
            pre[s + R]()
        for i, (u, t) in enumerate(frags):
            for mt in range(MT):
                a = acc[u][t][mt]
                cin = vr(a, 4) if (u, t, mt) in first else "0"
                first.add((u, t, mt))
                k.e("v_mfma_f32_16x16x32_bf16 %s, %s, %s, %s" % (vr(a, 4), vr(wb[s % R][i], 4), vr(xfrag(s, mt), 4), cin))
            if i == 0 and s + D < KS:
                xl(s + D)
            if s + R < KS:
                tr_reads(k, w, wb[s % R][i], u, t, s + R)
        if mid and s in mid:
            mid[s]()
    return [r for l in wb for r in l]


def t16_base(k, sreg, K):
    k.e("s_mul_i32 s%d, s%d, %d" % (sreg, S_TOKB, K * 2))


def xload(k, g, dst, K, mt, s, tag):
    off = mt * K * 32 + s * 1024
    hi, lo = off // 4096 * 4096, off % 4096
    sr = (S_T1, S_T2)[mt]
    if getattr(k, "_xhi", None) is None:
        k._xhi = {}
    if k._xhi.get(mt) != hi:
        k.e("s_add_u32 s%d, s%d, 0x%x" % (sr, S_XO, hi))
        k._xhi[mt] = hi
    k.vmem("buffer_load_dwordx4 %s, v%d, %s, s%d offen offset:%d%s" % (vr(dst, 4), g.lin, srd(SRD_X), sr, lo, LSC), tag)


def stats_load(k, g, MT):
    v = k.alloc()
    k.e("v_add_u32 v%d, s%d, v%d" % (v, S_TOKB, g.m))
    k.e("v_lshlrev_b32 v%d, 3, v%d" % (v, v))
    k.e("v_lshl_add_u32 v%d, v%d, 15, v%d" % (v, g.g, v))
    st = [k.alloc(4, 4) for _ in range(MT)]

    def issue():
        for mt in range(MT):
            k.vmem("buffer_load_dwordx2 %s, v%d, %s, 0 offen offset:%d" % (vr(st[mt], 2), v, srd(SRD_S), 128 * mt), "stat")
            k.vmem("buffer_load_dwordx2 %s, v%d, %s, s%d offen offset:%d" % (vr(st[mt] + 2, 2), v, srd(SRD_S), S_K16, 128 * mt), "stat")
    return st, issue


def swap_pair(p):
    return ["v_permlane16_swap_b32 v%d, v%d" % (p, p + 2), "v_permlane16_swap_b32 v%d, v%d" % (p + 1, p + 3)]


def unpack2(dst, src):
    return [
        "v_lshlrev_b32 v%d, 16, v%d" % (dst, src),
        "v_and_b32 v%d, 0xffff0000, v%d" % (dst + 1, src),
        "v_lshlrev_b32 v%d, 16, v%d" % (dst + 2, src + 1),
        "v_and_b32 v%d, 0xffff0000, v%d" % (dst + 3, src + 1),
    ]


def pack2(dst, src):
    return [
        "v_cvt_pk_bf16_f32 v%d, v%d, v%d" % (dst, src, src + 1),
        "v_cvt_pk_bf16_f32 v%d, v%d, v%d" % (dst + 1, src + 2, src + 3),
    ]


def round4(a):
    return ["v_cvt_pk_bf16_f32 v%d, v%d, v%d" % (a, a, a + 1),
            "v_cvt_pk_bf16_f32 v%d, v%d, v%d" % (a + 2, a + 2, a + 3),
            "v_and_b32 v%d, 0xffff0000, v%d" % (a + 1, a),
            "v_and_b32 v%d, 0xffff0000, v%d" % (a + 3, a + 2),
            "v_lshlrev_b32 v%d, 16, v%d" % (a, a),
            "v_lshlrev_b32 v%d, 16, v%d" % (a + 2, a + 2)]


def add4(a, b):
    return ["v_pk_add_f32 %s, %s, %s" % (vr(a + i, 2), vr(a + i, 2), vr(b + i, 2)) for i in (0, 2)]


def stats_store(k, g, packed, t):
    s_, q_, t0, t1 = t, t + 1, t + 2, t + 3
    for i, r in enumerate(packed):
        k.e("v_dot2_f32_bf16 v%d, v%d, s%d, %s" % (s_, r, S_ONES, "0" if i == 0 else "v%d" % s_))
        k.e("v_dot2_f32_bf16 v%d, v%d, v%d, %s" % (q_, r, r, "0" if i == 0 else "v%d" % q_))
    for s in interleave(allreduce(s_, t0, "v_add_f32"), allreduce(q_, t1, "v_add_f32")):
        k.e(s)
    k.e("v_add_u32 v%d, s%d, v%d" % (t0, S_TOKB, g.m))
    k.e("v_lshlrev_b32 v%d, 3, v%d" % (t0, t0))
    k.e("s_lshl_b32 s%d, s%d, 14" % (S_T0, S_CB))
    k.e("s_mov_b64 exec, 0xffff")
    k.vmem("buffer_store_dwordx2 %s, v%d, %s, s%d offen%s" % (vr(s_, 2), t0, srd(SRD_SO), S_T0, DSC), "st")
    k.e("s_mov_b64 exec, -1")


def signal(k, g, edge, nblk, nxt=False):
    make_srd(k, SRD_F, ("n" if nxt else "l", R_FL), 0x10000)
    if nblk == 1:
        k.e("s_lshl_b32 s%d, s%d, 1" % (S_T0, S_TOKB))
        k.e("s_lshl_b32 s%d, s%d, 2" % (S_T1, S_CB))
    else:
        k.e("s_lshl_b32 s%d, s%d, 2" % (S_T0, S_TOKB))
        k.e("s_lshl_b32 s%d, s%d, 2" % (S_T1, S_CBW))
    k.e("s_add_u32 s%d, s%d, s%d" % (S_T0, S_T0, S_T1))
    k.e("s_add_u32 s%d, s%d, 0x%x" % (S_T0, S_T0, 0x2000 * edge))
    k.e("s_mov_b64 exec, %d" % ((1 << nblk) - 1))
    k.e("s_waitcnt vmcnt(0)")
    k.e("buffer_store_dword v%d, v%d, %s, s%d offen" % (g.one, g.l64, srd(SRD_F), S_T0))
    k.e("s_mov_b64 exec, -1")
    k.vm = []
    k._xhi = None


def k_prep(name):
    k = Kern(name)
    NCS = 24 + 8 + 22
    k.e("s_cmp_ge_u32 s2, %d" % (128 + NCS))
    k.e("s_cbranch_scc1 L_end_%s" % k.name)
    k.e("s_load_dwordx16 s[64:79], s[0:1], 0")
    k.e("s_load_dwordx8 s[80:87], s[0:1], 64")
    w_, l_ = k.alloc(), k.alloc()
    k.e("v_lshrrev_b32 v%d, 6, v0" % w_)
    k.e("v_and_b32 v%d, 63, v0" % l_)
    k.e("v_readfirstlane_b32 s%d, v%d" % (S_WAVE, w_))
    k.e("s_mov_b32 s%d, 0x3f803f80" % S_ONES)
    k.e("s_cmp_ge_u32 s2, 128")
    k.e("s_cbranch_scc1 L_cs_%s" % k.name)
    vl, vd = k.alloc(), k.alloc()
    k.e("v_lshlrev_b32 v%d, 4, v%d" % (vl, l_))
    k.e("v_lshlrev_b32 v%d, 8, v%d" % (vd, l_))
    k.e("s_lshl_b32 s%d, s2, 14" % S_T0)
    k.e("s_lshl_b32 s%d, s%d, 12" % (S_T1, S_WAVE))
    k.e("s_add_u32 s%d, s%d, s%d" % (S_T1, S_T1, S_T0))
    k.e("s_lshl_b32 s%d, s%d, 6" % (S_T2, S_WAVE))
    k.e("s_add_u32 s%d, s%d, s%d" % (S_T2, S_T2, S_T0))
    k.e("s_waitcnt lgkmcnt(0)")
    make_srd(k, SRD_X, ("in", IN_X), XBYTES)
    make_srd(k, SRD_O, ("ws", R_XIN), XBYTES)
    make_srd(k, SRD_SO, ("ws", ST_XIN), STBYTES)
    make_srd(k, SRD_R, ("ws", 0), 2 * LSTRIDE)
    R = [k.alloc(4, 4) for _ in range(4)]
    for i in range(4):
        k.vmem("buffer_load_dwordx4 %s, v%d, %s, s%d offen offset:%d" % (vr(R[i], 4), vl, srd(SRD_X), S_T1, 1024 * i), "x%d" % i)
    z = k.alloc(4, 4)
    vo, vt, vb = k.alloc(), k.alloc(), k.alloc()
    k.e("v_lshlrev_b32 v%d, 4, v0" % vo)
    for i in range(4):
        k.e("v_mov_b32 v%d, 0" % (z + i))
    k.e("s_cmp_ge_u32 s2, 96")
    k.e("s_cbranch_scc1 L_ni_%s" % k.name)
    k.e("s_cmp_lt_u32 s2, 64")
    k.e("s_cbranch_scc1 L_ni_%s" % k.name)
    k.e("s_bfe_u32 s%d, s2, 0x10004" % S_XO)
    k.e("s_mul_i32 s%d, s%d, 0x%x" % (S_T0, S_XO, LSTRIDE))
    k.e("s_and_b32 s%d, s2, 15" % S_OB)
    k.e("s_lshl_b32 s%d, s%d, 12" % (S_OB, S_OB))
    k.e("s_add_u32 s%d, s%d, s%d" % (S_T0, S_T0, S_OB))
    k.e("s_add_u32 s%d, s%d, 0x%x" % (S_T0, S_T0, R_FL))
    k.label("L_in_%s" % k.name)
    k.e("s_nop 4")
    k.vmem("buffer_store_dwordx4 %s, v%d, %s, s%d offen" % (vr(z, 4), vo, srd(SRD_R), S_T0), "st")
    k.label("L_ni_%s" % k.name)
    k.e("s_nop 4")
    sq = [k.alloc(4, 4) for _ in range(4)]
    k.e("s_waitcnt vmcnt(0)")
    for i in range(4):
        k.vmem("buffer_store_dwordx4 %s, v%d, %s, s%d offen offset:%d" % (vr(R[i], 4), vd, srd(SRD_O), S_T2, 16 * i), "st")
        s_, q_ = sq[i], sq[i] + 1
        for j in range(4):
            k.e("v_dot2_f32_bf16 v%d, v%d, s%d, %s" % (s_, R[i] + j, S_ONES, "0" if j == 0 else "v%d" % s_))
            k.e("v_dot2_f32_bf16 v%d, v%d, v%d, %s" % (q_, R[i] + j, R[i] + j, "0" if j == 0 else "v%d" % q_))
    for rot in (8, 4, 2, 1):
        for i in range(4):
            for r in (sq[i], sq[i] + 1):
                k.e("v_add_f32_dpp v%d, v%d, v%d row_ror:%d row_mask:0xf bank_mask:0xf" % (r, r, r, rot))
    for i in range(4):
        for s in interleave(allreduce(sq[i], sq[i] + 2, "v_add_f32"), allreduce(sq[i] + 1, sq[i] + 3, "v_add_f32")):
            k.e(s)
    vz = k.alloc()
    k.e("v_cmp_eq_u32 vcc, 0, v%d" % l_)
    for i in range(4):
        k.e("v_cndmask_b32 v%d, 0, v%d, vcc" % (sq[i], sq[i]))
        k.e("v_cndmask_b32 v%d, 0, v%d, vcc" % (sq[i] + 1, sq[i] + 1))
    k.e("v_lshlrev_b32 v%d, 14, v%d" % (vz, l_))
    k.e("s_lshl_b32 s%d, s2, 7" % S_T0)
    k.e("s_lshl_b32 s%d, s%d, 5" % (S_T1, S_WAVE))
    k.e("s_add_u32 s%d, s%d, s%d" % (S_T0, S_T0, S_T1))
    k.e("s_mov_b64 exec, 0xff")
    for i in range(4):
        k.vmem("buffer_store_dwordx2 %s, v%d, %s, s%d offen offset:%d" % (vr(sq[i], 2), vz, srd(SRD_SO), S_T0, 8 * i), "st")
    k.e("s_mov_b64 exec, -1")
    k.e("s_branch L_end_%s" % k.name)
    k.label("L_cs_%s" % k.name)
    k.e("s_sub_u32 s%d, s2, 128" % S_T0)
    k.e("s_waitcnt lgkmcnt(0)")
    k.e("s_mov_b32 s%d, s%d" % (SRD_W, PTR(IN_WQKV)))
    k.e("s_mov_b32 s%d, s%d" % (SRD_W + 1, PTR(IN_WQKV) + 1))
    k.e("s_mov_b32 s%d, %d" % (SRD_W + 2, 512 * 3072))
    k.e("s_mov_b32 s%d, 0x00020000" % (SRD_W + 3))
    k.e("s_mov_b32 s%d, 3072" % S_T1)
    k.e("s_mov_b32 s%d, 0" % S_T2)
    k.e("s_cmp_lt_u32 s%d, 24" % S_T0)
    k.e("s_cbranch_scc1 L_sel_%s" % k.name)
    k.e("s_mov_b32 s%d, s%d" % (SRD_W, PTR(IN_W1)))
    k.e("s_mov_b32 s%d, s%d" % (SRD_W + 1, PTR(IN_W1) + 1))
    k.e("s_mov_b32 s%d, %d" % (SRD_W + 2, 512 * 1024))
    k.e("s_mov_b32 s%d, 1024" % S_T1)
    k.e("s_mov_b32 s%d, 0x2000" % S_T2)
    k.e("s_sub_u32 s%d, s%d, 24" % (S_T0, S_T0))
    k.e("s_cmp_lt_u32 s%d, 8" % S_T0)
    k.e("s_cbranch_scc1 L_sel_%s" % k.name)
    k.e("s_mov_b32 s%d, s%d" % (SRD_W, PTR(IN_W3)))
    k.e("s_mov_b32 s%d, s%d" % (SRD_W + 1, PTR(IN_W3) + 1))
    k.e("s_mov_b32 s%d, %d" % (SRD_W + 2, 512 * 2752))
    k.e("s_mov_b32 s%d, 2752" % S_T1)
    k.e("s_mov_b32 s%d, 0x4000" % S_T2)
    k.e("s_sub_u32 s%d, s%d, 8" % (S_T0, S_T0))
    k.label("L_sel_%s" % k.name)
    make_srd(k, SRD_O, ("ws", WS_CS), 0x6000)
    k.release(3)
    va, vt, vc = k.alloc(), k.alloc(), k.alloc()
    k.e("v_lshrrev_b32 v%d, 5, v0" % vt)
    k.e("v_lshlrev_b32 v%d, 6, v%d" % (vt, vt))
    k.e("v_mul_lo_u32 v%d, s%d, v%d" % (va, S_T1, vt))
    k.e("v_and_b32 v%d, 31, v0" % vc)
    k.e("v_lshl_add_u32 v%d, v%d, 2, v%d" % (va, vc, va))
    k.e("s_lshl_b32 s%d, s%d, 7" % (S_WBASE, S_T0))
    k.e("v_lshl_add_u32 v%d, v%d, 2, s%d" % (vt, vc, S_WBASE))
    k.e("v_cmp_le_u32 vcc, s%d, v%d" % (S_T1, vt))
    k.e("v_mov_b32 v%d, 0x7ffffff0" % vt)
    k.e("v_cndmask_b32 v%d, v%d, v%d, vcc" % (va, va, vt))
    k.vm = []
    L = [k.alloc() for _ in range(64)]
    for i in range(64):
        k.vmem("buffer_load_dword v%d, v%d, %s, s%d offen" % (L[i], va, srd(SRD_W), S_WBASE), "l%d" % (i // 8))
        if i < 63:
            k.e("s_add_u32 s%d, s%d, s%d" % (S_WBASE, S_WBASE, S_T1))
    lo, hi, t0, t1 = k.alloc(2, 2), None, k.alloc(), k.alloc()
    hi = lo + 1
    k.e("v_mov_b32 v%d, 0" % lo)
    k.e("v_mov_b32 v%d, 0" % hi)
    for i in range(64):
        if i % 8 == 0:
            k.wait_vm("l%d" % (i // 8))
        k.e("v_lshlrev_b32 v%d, 16, v%d" % (t0, L[i]))
        k.e("v_and_b32 v%d, 0xffff0000, v%d" % (t1, L[i]))
        k.e("v_add_f32 v%d, v%d, v%d" % (lo, lo, t0))
        k.e("v_add_f32 v%d, v%d, v%d" % (hi, hi, t1))
    k.e("v_lshlrev_b32 v%d, 3, v0" % t0)
    k.e("ds_write_b64 v%d, %s" % (t0, vr(lo, 2)))
    k.e("s_waitcnt lgkmcnt(0)")
    k.e("s_barrier")
    k.e("v_lshlrev_b32 v%d, 3, v%d" % (t0, vc))
    rr = [k.alloc(2, 2) for _ in range(8)]
    for i in range(8):
        k.e("ds_read_b64 %s, v%d offset:%d" % (vr(rr[i], 2), t0, 256 * i))
    k.e("s_waitcnt lgkmcnt(0)")
    for i in range(1, 8):
        k.e("v_add_f32 v%d, v%d, v%d" % (rr[0], rr[0], rr[i]))
        k.e("v_add_f32 v%d, v%d, v%d" % (rr[0] + 1, rr[0] + 1, rr[i] + 1))
    k.e("s_lshl_b32 s%d, s%d, 8" % (S_T0, S_T0))
    k.e("s_add_u32 s%d, s%d, s%d" % (S_T0, S_T0, S_T2))
    k.e("v_cmp_gt_u32 vcc, 32, v0")
    k.e("s_and_b64 exec, exec, vcc")
    k.vmem("buffer_store_dwordx2 %s, v%d, %s, s%d offen" % (vr(rr[0], 2), t0, srd(SRD_O), S_T0), "st")
    k.label("L_end_%s" % k.name)
    k.e("s_endpgm")
    return k, 128 + NCS, 256, 2048


def softmax_pair(p, t, outp):
    mx, mn, t0, t1 = t, t + 1, t + 2, t + 3
    ep = [t + 4 + i for i in range(4)]
    em = [t + 8 + i for i in range(4)]
    o = []
    o.append("v_max3_f32 v%d, v%d, v%d, v%d" % (mx, p, p + 1, p + 2))
    o.append("v_min3_f32 v%d, v%d, v%d, v%d" % (mn, p, p + 1, p + 2))
    o.append("v_max_f32 v%d, v%d, v%d" % (mx, mx, p + 3))
    o.append("v_min_f32 v%d, v%d, v%d" % (mn, mn, p + 3))
    o += interleave(allreduce(mx, t0, "v_max_f32"), allreduce(mn, t1, "v_min_f32"))
    o.append("v_mul_f32 v%d, s%d, v%d" % (mx, S_L2E, mx))
    o.append("v_mul_f32 v%d, s%d, v%d" % (mn, S_L2E, mn))
    for i in range(4):
        o.append("v_fma_f32 v%d, v%d, s%d, -v%d" % (ep[i], p + i, S_L2E, mx))
        o.append("v_fma_f32 v%d, -v%d, s%d, v%d" % (em[i], p + i, S_L2E, mn))
    for i in range(4):
        o.append("v_exp_f32 v%d, v%d" % (ep[i], ep[i]))
        o.append("v_exp_f32 v%d, v%d" % (em[i], em[i]))
    sp, sm = mx, mn
    o.append("v_add_f32 v%d, v%d, v%d" % (sp, ep[0], ep[1]))
    o.append("v_add_f32 v%d, v%d, v%d" % (sm, em[0], em[1]))
    o.append("v_add_f32 v%d, v%d, v%d" % (t0, ep[2], ep[3]))
    o.append("v_add_f32 v%d, v%d, v%d" % (t1, em[2], em[3]))
    o.append("v_add_f32 v%d, v%d, v%d" % (sp, sp, t0))
    o.append("v_add_f32 v%d, v%d, v%d" % (sm, sm, t1))
    o += interleave(allreduce(sp, t0, "v_add_f32"), allreduce(sm, t1, "v_add_f32"))
    o.append("v_rcp_f32 v%d, v%d" % (sp, sp))
    o.append("v_rcp_f32 v%d, v%d" % (sm, sm))
    o.append("s_nop 0")
    for i in range(4):
        o.append("v_mul_f32 v%d, v%d, v%d" % (ep[i], ep[i], sp))
        o.append("v_mul_f32 v%d, v%d, v%d" % (em[i], em[i], sm))
    o.append("v_cvt_pk_bf16_f32 v%d, v%d, v%d" % (outp, ep[0], ep[1]))
    o.append("v_cvt_pk_bf16_f32 v%d, v%d, v%d" % (outp + 1, ep[2], ep[3]))
    o.append("v_cvt_pk_bf16_f32 v%d, v%d, v%d" % (outp + 2, em[0], em[1]))
    o.append("v_cvt_pk_bf16_f32 v%d, v%d, v%d" % (outp + 3, em[2], em[3]))
    return o


def p_qkv(k, g):
    MT, NU, KS, CS = 2, 3, 16, 4
    mk = k.mark()
    k.e("s_mov_b32 s%d, s%d" % (S_TOKB, S_TOKW))
    t16_base(k, S_XO, 512)
    w = w_tb(k, g, False, NU, KS)
    vph = k.alloc()
    k.e("v_lshlrev_b32 v%d, 7, v%d" % (vph, g.g))
    k.e("v_lshl_add_u32 v%d, v%d, 1, v%d" % (vph, g.m, vph))
    k.e("s_lshl_b32 s%d, s%d, 10" % (S_T0, S_CBW))
    k.e("v_add_u32 v%d, s%d, v%d" % (vph, S_T0, vph))
    st, st_issue = stats_load(k, g, MT)
    vcs = k.alloc()
    k.e("v_lshlrev_b32 v%d, 4, v%d" % (vcs, g.g))
    X = [[k.alloc(4, 4) for _ in range(KS)] for _ in range(MT)]
    cs = [[X[0][2 * u + tt] for tt in range(2)] for u in range(NU)]
    wphi = [X[0][6], X[0][6] + 2]
    wphi_hi = [X[0][7], X[0][7] + 2]
    acc = [[[k.alloc(4, 4) for _ in range(MT)] for _ in range(2)] for _ in range(NU)]
    make_srd(k, SRD_X, ("l", R_XIN), XBYTES)
    make_srd(k, SRD_R, ("in", IN_WPHI), 32 * 512)
    make_srd(k, SRD_O, ("l", R_O), XBYTES)
    make_srd(k, SRD_R2, ("l", R_KVP), 2 * MB)
    make_srd(k, SRD_S, ("l", ST_XIN), STBYTES)
    make_srd(k, SRD_C, ("ws", CS_QKV), 1536 * 4)
    make_srd(k, SRD_F, ("l", R_FL), 0x10000)
    stamp(k, g)
    k.e("s_barrier")
    gemm_pre(k, w, KS, 2)
    k.e("s_barrier")
    stamp(k, g)

    def xl(s):
        for mt in range(MT):
            xload(k, g, X[mt][s], 512, mt, s, "x%d" % s)

    def cs_issue():
        st_issue()
        k.e("s_lshl_b32 s%d, s%d, 7" % (S_T0, S_CBW))
        for u in range(NU):
            if u:
                k.e("s_add_u32 s%d, s%d, 2048" % (S_T0, S_T0))
            for tt in range(2):
                k.vmem("buffer_load_dwordx4 %s, v%d, %s, s%d offen offset:%d" % (
                    vr(cs[u][tt], 4), vcs, srd(SRD_C), S_T0, tt * 64), "stat")
        for hh in range(2):
            for j in range(4):
                k.vmem("buffer_load_ushort v%d, v%d, %s, 0 offen offset:%d" % (
                    (wphi[hh] if j & 1 == 0 else wphi_hi[hh]) + (j >> 1), vph, srd(SRD_R), 512 * hh + 32 * j), "stat")
    wbr = gemm_loop(k, g, w, KS, MT, lambda s, mt: X[mt][s], acc, xl, mid={10: cs_issue})
    k.e("s_barrier")
    stamp(k, g)
    xb = X[0][0]
    pool = [xb + 32]

    def ta(n, al=2):
        b = (pool[0] + al - 1) // al * al
        pool[0] = b + n
        assert pool[0] <= xb + 128
        return b

    ident = ta(2)
    ones = ta(2)
    t = ta(1)
    t2 = ta(1)
    k.e("v_mov_b32 v%d, 0x3f803f80" % ones)
    k.e("v_mov_b32 v%d, 0x3f803f80" % (ones + 1))
    k.e("v_and_b32 v%d, 1, v%d" % (t, g.m))
    k.e("v_lshlrev_b32 v%d, 4, v%d" % (t, t))
    k.e("v_mov_b32 v%d, 0x3f80" % t2)
    k.e("v_lshlrev_b32 v%d, v%d, v%d" % (t2, t, t2))
    k.e("v_lshrrev_b32 v%d, 2, v%d" % (t, g.m))
    k.e("v_cmp_eq_u32 vcc, v%d, v%d" % (t, g.g))
    k.e("v_cndmask_b32 v%d, 0, v%d, vcc" % (t2, t2))
    k.e("v_and_b32 v%d, 2, v%d" % (t, g.m))
    k.e("v_cmp_eq_u32 vcc, 0, v%d" % t)
    k.e("v_cndmask_b32 v%d, 0, v%d, vcc" % (ident, t2))
    k.e("v_cndmask_b32 v%d, v%d, 0, vcc" % (ident + 1, t2))
    k.e("s_lshl_b32 s%d, s%d, 13" % (S_T0, S_WAVE))
    k.e("s_add_u32 s%d, s%d, 0x%x" % (S_T0, S_T0, LDS_SCR))
    k.e("v_add_u32 v%d, s%d, v%d" % (t, S_T0, g.lin))
    k.e("s_lshr_b32 s%d, s%d, 1" % (S_T0, S_WAVE))
    k.e("s_lshl_b32 s%d, s%d, 12" % (S_T0, S_T0))
    k.e("s_and_b32 s%d, s%d, 1" % (S_T1, S_WAVE))
    k.e("s_lshl_b32 s%d, s%d, 10" % (S_T1, S_T1))
    k.e("s_add_u32 s%d, s%d, s%d" % (S_T0, S_T0, S_T1))
    k.e("s_add_u32 s%d, s%d, 0x%x" % (S_T0, S_T0, LDS_SCR))
    k.e("v_add_u32 v%d, s%d, v%d" % (t2, S_T0, g.lin))
    k.wait_vm("stat")
    for s_ in interleave(*[stats_finish(st[mt]) for mt in range(MT)]):
        k.e(s_)
    for hh in range(2):
        for j in range(2):
            k.e("v_lshl_or_b32 v%d, v%d, 16, v%d" % (wphi[hh] + j, wphi_hi[hh] + j, wphi[hh] + j))
    kvacc = [[wbr[4 * hh + b] for b in range(4)] for hh in range(2)]
    C4 = [(mt, hh) for mt in range(MT) for hh in range(2)]
    oq = [wbr[8 + c] for c in range(4)]
    kb = [ta(2) for _ in C4]
    vb = [ta(2) for _ in C4]
    T = [ta(12, 4) for _ in C4]
    ok = [ta(4, 4) for _ in C4]
    seqs = []
    for c, (mt, hh) in enumerate(C4):
        a = acc[1][hh][mt]
        seqs.append(ln_apply(a, cs[1][hh], st[mt], T[c]) + pack2(kb[c], a))
        a = acc[2][hh][mt]
        seqs.append(ln_apply(a, cs[2][hh], st[mt], T[c] + 4) + pack2(vb[c], a))
    for s_ in interleave(*seqs):
        k.e(s_)
    pk = [acc[1][hh][mt] for (mt, hh) in C4]
    tv = [acc[2][hh][mt] for (mt, hh) in C4]
    for c, (mt, hh) in enumerate(C4):
        k.e("v_mfma_f32_16x16x16_bf16 %s, %s, %s, 0" % (vr(pk[c], 4), vr(wphi[hh], 2), vr(kb[c], 2)))
    for c in range(4):
        k.e("v_mfma_f32_16x16x16_bf16 %s, %s, %s, 0" % (vr(tv[c], 4), vr(vb[c], 2), vr(ident, 2)))
    for s_ in interleave(*[softmax_pair(pk[c], T[c], ok[c]) for c in range(4)]):
        k.e(s_)
    for c in range(4):
        k.e("v_mfma_f32_16x16x16_bf16 %s, %s, %s, 0" % (vr(T[c], 4), vr(ok[c], 2), vr(ident, 2)))
        k.e("v_mfma_f32_16x16x16_bf16 %s, %s, %s, 0" % (vr(T[c] + 4, 4), vr(ok[c] + 2, 2), vr(ident, 2)))
    for c in range(4):
        for s_ in pack2(vb[c], tv[c]):
            k.e(s_)
    for c in range(4):
        for s_ in pack2(T[c] + 8, T[c]) + pack2(T[c] + 10, T[c] + 4):
            k.e(s_)
    for c, (mt, hh) in enumerate(C4):
        kk = kvacc[hh]
        for (dst, a_, b_) in ((kk[0], T[c] + 8, vb[c]), (kk[1], T[c] + 10, vb[c]), (kk[2], T[c] + 8, ones), (kk[3], T[c] + 10, ones)):
            k.e("v_mfma_f32_16x16x16_bf16 %s, %s, %s, %s" % (
                vr(dst, 4), vr(a_, 2), vr(b_, 2), "0" if mt == 0 else vr(dst, 4)))
    for hh in range(2):
        for b in range(4):
            k.e("ds_write_b128 v%d, %s offset:%d" % (t, vr(kvacc[hh][b], 4), (hh * 4 + b) * 1024))
    seqs = []
    for c, (mt, hh) in enumerate(C4):
        a = acc[0][hh][mt]
        seqs.append(ln_apply(a, cs[0][hh], st[mt], T[c]) + pack2(kb[c], a))
    qa = interleave(*seqs)
    for c, (mt, hh) in enumerate(C4):
        qa.append("v_mfma_f32_16x16x16_bf16 %s, %s, %s, 0" % (vr(acc[0][hh][mt], 4), vr(wphi[hh], 2), vr(kb[c], 2)))
    qb = interleave(*[softmax_pair(acc[0][hh][mt], T[c], oq[c]) for c, (mt, hh) in enumerate(C4)])
    k.e("s_waitcnt lgkmcnt(0)")
    k.e("s_barrier")
    rk = [acc[1][hh][mt] for (mt, hh) in C4]
    rz = [acc[2][hh][mt] for (mt, hh) in C4]
    for ww in range(4):
        k.e("ds_read_b128 %s, v%d offset:%d" % (vr(rk[ww], 4), t2, ww * 8192))
        k.e("ds_read_b128 %s, v%d offset:%d" % (vr(rz[ww], 4), t2, ww * 8192 + 2048))
    k.e("s_lshl_b32 s%d, s%d, 2" % (S_T2, S_CBW))
    k.e("s_add_u32 s%d, s%d, s%d" % (S_T2, S_T2, S_WAVE))
    k.e("s_lshl_b32 s%d, s%d, 4" % (S_T2, S_T2))
    k.e("s_add_u32 s%d, s%d, s%d" % (S_T0, S_T2, S_RBW))
    k.e("s_lshl_b32 s%d, s%d, 7" % (S_T1, S_T0))
    k.e("s_add_u32 s%d, s%d, 0x%x" % (S_T1, S_T1, MB))
    k.e("s_lshl_b32 s%d, s%d, 10" % (S_T0, S_T0))
    for s_ in qa[:40]:
        k.e(s_)
    k.e("s_waitcnt lgkmcnt(0)")
    for R_ in (rk, rz):
        for i in (0, 2):
            k.e("v_pk_add_f32 %s, %s, %s" % (vr(R_[0] + i, 2), vr(R_[0] + i, 2), vr(R_[1] + i, 2)))
            k.e("v_pk_add_f32 %s, %s, %s" % (vr(R_[2] + i, 2), vr(R_[2] + i, 2), vr(R_[3] + i, 2)))
    for R_ in (rk, rz):
        for i in (0, 2):
            k.e("v_pk_add_f32 %s, %s, %s" % (vr(R_[0] + i, 2), vr(R_[0] + i, 2), vr(R_[2] + i, 2)))
    k.e("buffer_store_dwordx4 %s, v%d, %s, s%d offen sc1" % (vr(rk[0], 4), g.lin, srd(SRD_R2), S_T0))
    k.e("s_mov_b32 exec_lo, 0x00010001")
    k.e("s_mov_b32 exec_hi, 0x00010001")
    k.e("buffer_store_dwordx4 %s, v%d, %s, s%d offen sc1" % (vr(rz[0], 4), vcs, srd(SRD_R2), S_T1))
    k.e("s_mov_b64 exec, -1")
    k.e("s_lshl_b32 s%d, s%d, 7" % (S_T0, S_CBW))
    k.e("s_add_u32 s%d, s%d, 0x%x" % (S_T0, S_T0, FL_KV))
    rest = qa[40:] + qb
    QS = int(os.environ.get("QSPLIT", "110"))
    for s_ in rest[:QS]:
        k.e(s_)
    k.e("s_mov_b64 exec, 1")
    k.e("s_waitcnt vmcnt(0)")
    k.e("buffer_atomic_add v%d, v%d, %s, s%d offen sc1" % (g.one, g.l128, srd(SRD_F), S_T0))
    k.e("s_mov_b64 exec, -1")
    for s_ in rest[QS:]:
        k.e(s_)
    vw_, vr_ = acc[1][0][0], acc[1][0][0] + 1
    k.e("s_lshr_b32 s%d, s%d, 1" % (S_T0, S_WAVE))
    k.e("s_lshl_b32 s%d, s%d, 11" % (S_T0, S_T0))
    k.e("s_and_b32 s%d, s%d, 1" % (S_T1, S_WAVE))
    k.e("s_lshl_b32 s%d, s%d, 3" % (S_T1, S_T1))
    k.e("s_add_u32 s%d, s%d, s%d" % (S_T0, S_T0, S_T1))
    k.e("s_add_u32 s%d, s%d, 0x%x" % (S_T0, S_T0, LDS_SCR))
    k.e("v_add_u32 v%d, s%d, v%d" % (vw_, S_T0, g.lin))
    k.e("v_add_u32 v%d, 0x%x, v%d" % (vr_, LDS_SCR, g.lin))
    k.e("s_lshl_b32 s%d, s%d, 10" % (S_T0, S_T2))
    k.e("s_lshl_b32 s%d, s%d, 7" % (S_T1, S_T2))
    k.e("s_add_u32 s%d, s%d, 0x%x" % (S_T1, S_T1, MB))
    k.e("s_lshl_b32 s%d, s%d, 10" % (S_OB, S_TOKB))
    k.e("s_lshl_b32 s%d, s%d, 10" % (S_T2, S_CBW))
    k.e("s_add_u32 s%d, s%d, s%d" % (S_OB, S_OB, S_T2))
    stamp(k, g)
    k.e("s_barrier")
    stamp(k, g)
    k.vm = []
    P = [xb + 4 * r for r in range(16)]
    Z = [xb + 64 + 4 * r for r in range(16)]
    for r in range(16):
        if r and r % 4 == 0:
            k.e("s_add_u32 s%d, s%d, 4096" % (S_T0, S_T0))
        k.vmem("buffer_load_dwordx4 %s, v%d, %s, s%d offen offset:%d" % (vr(P[r], 4), g.lin, srd(SRD_R2), S_T0, (r % 4) * 1024), "p%d" % (r // 4))
        k.vmem("buffer_load_dwordx4 %s, v%d, %s, s%d offen offset:%d" % (vr(Z[r], 4), vcs, srd(SRD_R2), S_T1, r * 128), "p%d" % (r // 4))
    for q in range(4):
        k.wait_vm("p%d" % q)
        for R_ in (P, Z):
            for i in (0, 2):
                k.e("v_pk_add_f32 %s, %s, %s" % (vr(R_[4 * q] + i, 2), vr(R_[4 * q] + i, 2), vr(R_[4 * q + 1] + i, 2)))
                k.e("v_pk_add_f32 %s, %s, %s" % (vr(R_[4 * q + 2] + i, 2), vr(R_[4 * q + 2] + i, 2), vr(R_[4 * q + 3] + i, 2)))
        for R_ in (P, Z):
            for i in (0, 2):
                k.e("v_pk_add_f32 %s, %s, %s" % (vr(R_[4 * q] + i, 2), vr(R_[4 * q] + i, 2), vr(R_[4 * q + 2] + i, 2)))
        if q:
            for R_ in (P, Z):
                for i in (0, 2):
                    k.e("v_pk_add_f32 %s, %s, %s" % (vr(R_[0] + i, 2), vr(R_[0] + i, 2), vr(R_[4 * q] + i, 2)))
    for s_ in pack2(P[1], P[0]) + pack2(Z[1], Z[0]):
        k.e(s_)
    k.e("ds_write_b64 v%d, %s" % (vw_, vr(P[1], 2)))
    k.e("ds_write_b64 v%d, %s offset:1024" % (vw_, vr(Z[1], 2)))
    k.e("s_waitcnt lgkmcnt(0)")
    k.e("s_barrier")
    kvf = [P[2], P[3]]
    zf = [P[4], P[5]]
    for hh in range(2):
        k.e("ds_read_b128 %s, v%d offset:%d" % (vr(kvf[hh], 4), vr_, hh * 2048))
        k.e("ds_read_b128 %s, v%d offset:%d" % (vr(zf[hh], 4), vr_, hh * 2048 + 1024))
    num = [Z[c] for c in range(4)]
    den = [Z[4 + c] for c in range(4)]
    O = [Z[8], Z[9]]
    k.e("s_waitcnt lgkmcnt(0)")
    for c, (mt, hh) in enumerate(C4):
        k.e("v_mfma_f32_16x16x32_bf16 %s, %s, %s, 0" % (vr(den[c], 4), vr(zf[hh], 4), vr(oq[c], 4)))
    for c, (mt, hh) in enumerate(C4):
        k.e("v_mfma_f32_16x16x32_bf16 %s, %s, %s, 0" % (vr(num[c], 4), vr(kvf[hh], 4), vr(oq[c], 4)))
    for c in range(4):
        k.e("v_add_f32 v%d, s%d, v%d" % (den[c], S_EPS, den[c]))
    for c in range(4):
        k.e("v_rcp_f32 v%d, v%d" % (den[c], den[c]))
    for c in range(4):
        for j in range(4):
            k.e("v_mul_f32 v%d, v%d, v%d" % (num[c] + j, num[c] + j, den[c]))
    for c, (mt, hh) in enumerate(C4):
        for s_ in pack2(O[mt] + 2 * hh, num[c]):
            k.e(s_)
    k.e("s_add_u32 s%d, s%d, 0x4000" % (S_T1, S_OB))
    for mt in range(MT):
        k.vmem("buffer_store_dwordx4 %s, v%d, %s, s%d offen%s" % (vr(O[mt], 4), g.lin, srd(SRD_O), S_T1 if mt else S_OB, DSC), "st")
    signal(k, g, E_O, 2)
    k.release(mk)


def out_base(k):
    k.e("s_lshl_b32 s%d, s%d, 10" % (S_OB, S_TOKB))
    k.e("s_lshl_b32 s%d, s%d, 11" % (S_T0, S_CB))
    k.e("s_add_u32 s%d, s%d, s%d" % (S_OB, S_OB, S_T0))


def res_load(k, vsw, slot, tag, regs=None):
    r = regs if regs is not None else [k.alloc(4, 4) for _ in range(2)]

    def issue():
        for u in range(2):
            k.vmem("buffer_load_dwordx4 %s, v%d, %s, s%d offen offset:%d" % (vr(r[u], 4), vsw, srd(slot), S_OB, 1024 * u), tag)
    return r, issue


def store_pairs(k, vsw, pk, swap=True, mod=DSC):
    for u in range(2):
        for s_ in swap_pair(pk[u]) if swap else []:
            k.e(s_)
    for u in range(2):
        k.vmem("buffer_store_dwordx4 %s, v%d, %s, s%d offen offset:%d%s" % (vr(pk[u], 4), vsw, srd(SRD_O), S_OB, 1024 * u, mod), "st")


def p_wo(k, g):
    MT, NU, KS, CS = 1, 2, 16, 4
    mk0 = k.mark()
    vsw = g.vsw
    k.e("s_mov_b32 s%d, s%d" % (S_TOKB, S_TOKN))
    t16_base(k, S_XO, 512)
    out_base(k)
    w = w_tb(k, g, True, NU, KS)
    X = [k.alloc(4, 4) for _ in range(KS)]
    acc = [[[k.alloc(4, 4)] for _ in range(2)] for _ in range(NU)]
    res, res_issue = res_load(k, vsw, SRD_R, "res")
    make_srd(k, SRD_X, ("l", R_O), XBYTES)
    make_srd(k, SRD_R, ("l", R_XIN), XBYTES)
    make_srd(k, SRD_O, ("l", R_XA), XBYTES)
    make_srd(k, SRD_SO, ("l", ST_XA), STBYTES)
    res_issue()
    stamp(k, g)
    k.e("s_barrier")
    gemm_pre(k, w, KS, R512)
    k.e("s_barrier")
    stamp(k, g)
    gemm_loop(k, g, w, KS, MT, lambda s, mt: X[s], acc, lambda s: xload(k, g, X[s], 512, 0, s, "x%d" % s))
    k.e("s_barrier")
    stamp(k, g)
    seqs = []
    pk = [X[8], X[9]]
    for u in range(2):
        for s_ in swap_pair(res[u]):
            k.e(s_)
    for u in range(2):
        for t in range(2):
            i = 2 * u + t
            a = acc[u][t][0]
            tt = X[i]
            seqs.append(unpack2(tt, res[u] + 2 * t) + add4(a, tt) + pack2(pk[u] + 2 * t, a))
    for s_ in interleave(*seqs):
        k.e(s_)
    stats_store(k, g, [pk[u] + i for u in range(2) for i in range(4)], X[10])
    store_pairs(k, vsw, pk)
    signal(k, g, E_XA, 1)
    k.release(mk0)


def cs_load(k, g, tag):
    vcs = k.alloc()
    k.e("v_lshlrev_b32 v%d, 4, v%d" % (vcs, g.g))
    cs = [[k.alloc(4, 4) for _ in range(2)] for _ in range(2)]

    def issue():
        k.e("s_lshl_b32 s%d, s%d, 8" % (S_T0, S_CB))
        for u in range(2):
            for t in range(2):
                k.vmem("buffer_load_dwordx4 %s, v%d, %s, s%d offen offset:%d" % (
                    vr(cs[u][t], 4), vcs, srd(SRD_C), S_T0, 128 * u + 64 * t), tag)
    return cs, issue


def p_w1(k, g):
    MT, NU, KS, CS = 1, 2, 16, 4
    mk0 = k.mark()
    vsw = g.vsw
    t16_base(k, S_XO, 512)
    w = w_tb(k, g, False, NU, KS)
    X = [k.alloc(4, 4) for _ in range(KS)]
    acc = [[[k.alloc(4, 4)] for _ in range(2)] for _ in range(NU)]
    st, st_issue = stats_load(k, g, MT)
    cs, cs_issue = cs_load(k, g, "cs")
    make_srd(k, SRD_X, ("l", R_XA), XBYTES)
    make_srd(k, SRD_O, ("l", R_H), XBYTES)
    make_srd(k, SRD_S, ("l", ST_XA), STBYTES)
    make_srd(k, SRD_C, ("ws", CS_W1), 512 * 4)
    cs_issue()
    stamp(k, g)
    k.e("s_barrier")
    gemm_pre(k, w, KS, R512)
    k.e("s_barrier")
    stamp(k, g)
    gemm_loop(k, g, w, KS, MT, lambda s, mt: X[s], acc, lambda s: xload(k, g, X[s], 512, 0, s, "x%d" % s), mid={4: st_issue})
    k.e("s_barrier")
    stamp(k, g)
    k.wait_vm("stat")
    for s_ in stats_finish(st[0], double=True):
        k.e(s_)
    seqs = []
    pk = [X[8], X[9]]
    for u in range(2):
        for t in range(2):
            i = 2 * u + t
            a = acc[u][t][0]
            seqs.append(ln_apply(a, cs[u][t], st[0], X[i]) + gelu4(a, X[i], pk[u] + 2 * t))
    for s_ in interleave(*seqs):
        k.e(s_)
    for u in range(2):
        for s_ in swap_pair(pk[u]):
            k.e(s_)
    k.e("s_add_u32 s%d, s%d, 16" % (S_T0, S_TOKB))
    k.e("s_and_b32 s%d, s%d, 0xe0" % (S_T0, S_T0))
    k.e("s_cmp_eq_u32 s%d, 0" % S_T0)
    k.e("s_cbranch_scc1 L_hb_%s" % k.name)
    store_pairs(k, vsw, pk, swap=False)
    k.e("s_branch L_hc_%s" % k.name)
    k.label("L_hb_%s" % k.name)
    store_pairs(k, vsw, pk, swap=False, mod=" sc1")
    make_srd(k, SRD_F, ("l", R_FL), 0x10000)
    k.e("s_lshr_b32 s%d, s%d, 8" % (S_T0, S_TOKB))
    k.e("s_lshl_b32 s%d, s%d, 8" % (S_T0, S_T0))
    k.e("s_bfe_u32 s%d, s%d, 0x10004" % (S_T1, S_TOKB))
    k.e("s_lshl_b32 s%d, s%d, 7" % (S_T1, S_T1))
    k.e("s_add_u32 s%d, s%d, s%d" % (S_T0, S_T0, S_T1))
    k.e("s_lshl_b32 s%d, s%d, 2" % (S_T1, S_CB))
    k.e("s_add_u32 s%d, s%d, s%d" % (S_T0, S_T0, S_T1))
    k.e("s_add_u32 s%d, s%d, 0x%x" % (S_T0, S_T0, FL_HX))
    k.e("s_mov_b64 exec, 1")
    k.e("s_waitcnt vmcnt(0)")
    k.e("buffer_store_dword v%d, v%d, %s, s%d offen sc1" % (g.one, g.l64, srd(SRD_F), S_T0))
    k.e("s_mov_b64 exec, -1")
    k.label("L_hc_%s" % k.name)
    signal(k, g, E_H, 1)
    k.release(mk0)


def p_w2(k, g):
    MT, NU, KS, CS = 1, 2, 16, 4
    mk0 = k.mark()
    vsw = g.vsw
    w = w_tb(k, g, False, NU, KS)
    X = [k.alloc(4, 4) for _ in range(KS)]
    acc = [[[k.alloc(4, 4)] for _ in range(2)] for _ in range(NU)]
    res, res_issue = res_load(k, vsw, SRD_R, "stat")
    st, st_issue = stats_load(k, g, MT)
    vsh = []
    t = k.alloc()
    for c, d in enumerate((-1, 1, -2, 2)):
        r = k.alloc()
        k.e("s_add_i32 s%d, s%d, %d" % (S_T0, S_TOKB, d))
        k.e("v_add_u32 v%d, s%d, v%d" % (t, S_T0, g.m))
        k.e("v_ashrrev_i32 v%d, 4, v%d" % (r, t))
        k.e("v_lshlrev_b32 v%d, 14, v%d" % (r, r))
        k.e("v_and_b32 v%d, 15, v%d" % (t, t))
        k.e("v_lshl_add_u32 v%d, v%d, 4, v%d" % (r, t, r))
        k.e("v_lshl_add_u32 v%d, v%d, 8, v%d" % (r, g.g, r))
        if c:
            k.e("v_add_u32 v%d, 0x%x, v%d" % (r, 4096 * c, r))
        vsh.append(r)
    make_srd(k, SRD_X, ("l", R_H), XBYTES)
    make_srd(k, SRD_O, ("l", R_X1), XBYTES)
    make_srd(k, SRD_R, ("l", R_XA), XBYTES)
    make_srd(k, SRD_S, ("l", ST_XA), STBYTES)
    make_srd(k, SRD_SO, ("l", ST_X1), STBYTES)
    res_issue()
    st_issue()
    stamp(k, g)
    k.e("s_barrier")
    gemm_pre(k, w, KS, R512)
    k.e("s_barrier")
    stamp(k, g)

    def xl(s):
        k.vmem("buffer_load_dwordx4 %s, v%d, %s, 0 offen offset:%d%s" % (vr(X[s], 4), vsh[s // 4], srd(SRD_X), 1024 * (s % 4), LSC), "x%d" % s)
    gemm_loop(k, g, w, KS, MT, lambda s, mt: X[s], acc, xl)
    k.e("s_barrier")
    stamp(k, g)
    for s_ in interleave(stats_finish(st[0]), swap_pair(res[0]) + swap_pair(res[1])):
        k.e(s_)
    seqs = []
    pk = [X[8], X[9]]
    for u in range(2):
        for t in range(2):
            i = 2 * u + t
            a = acc[u][t][0]
            tt = X[i]
            sq = unpack2(tt, res[u] + 2 * t)
            sq += ["v_pk_fma_f32 %s, %s, %s, %s op_sel:[0,0,1] op_sel_hi:[1,0,1]" % (vr(tt + j, 2), vr(tt + j, 2), vr(st[0], 2), vr(st[0], 2)) for j in (0, 2)]
            sq += add4(a, tt) + pack2(pk[u] + 2 * t, a)
            seqs.append(sq)
    for s_ in interleave(*seqs):
        k.e(s_)
    stats_store(k, g, [pk[u] + i for u in range(2) for i in range(4)], X[10])
    store_pairs(k, vsw, pk)
    signal(k, g, E_X1, 1)
    k.release(mk0)


def p_w3(k, g):
    MT, NU, KS, CS = 2, 3, 16, 4
    mk0 = k.mark()
    vsw = g.vsw
    k.e("s_mov_b32 s%d, s%d" % (S_TOKB, S_TOKW))
    t16_base(k, S_XO, 512)
    w = w_tb(k, g, False, NU, KS)
    k.e("s_mul_i32 s%d, s%d, %d" % (S_OB, S_TOKB, 2752))
    k.e("s_lshl_b32 s%d, s%d, 10" % (S_T0, S_CU3))
    k.e("s_add_u32 s%d, s%d, s%d" % (S_OB, S_OB, S_T0))
    st, st_issue = stats_load(k, g, MT)
    vcs = k.alloc()
    k.e("v_lshlrev_b32 v%d, 4, v%d" % (vcs, g.g))
    X = [[k.alloc(4, 4) for _ in range(KS)] for _ in range(MT)]
    cs = [[X[0][2 * u + tt] for tt in range(2)] for u in range(NU)]
    acc = [[[k.alloc(4, 4) for _ in range(MT)] for _ in range(2)] for _ in range(NU)]
    make_srd(k, SRD_X, ("l", R_X1), XBYTES)
    make_srd(k, SRD_O, ("l", R_H3), S * 2752)
    make_srd(k, SRD_S, ("l", ST_X1), STBYTES)
    make_srd(k, SRD_C, ("ws", CS_W3), 1376 * 4)
    stamp(k, g)
    k.e("s_barrier")
    gemm_pre(k, w, KS, 2)
    k.e("s_barrier")
    stamp(k, g)

    def xl(s):
        for mt in range(MT):
            xload(k, g, X[mt][s], 512, mt, s, "x%d" % s)

    def cs_issue():
        st_issue()
        k.e("s_lshl_b32 s%d, s%d, 7" % (S_T0, S_CU3))
        for u in range(NU):
            for tt in range(2):
                k.vmem("buffer_load_dwordx4 %s, v%d, %s, s%d offen offset:%d" % (
                    vr(cs[u][tt], 4), vcs, srd(SRD_C), S_T0, u * 128 + tt * 64), "stat")
    gemm_loop(k, g, w, KS, MT, lambda s, mt: X[mt][s], acc, xl, mid={10: cs_issue})
    k.e("s_barrier")
    stamp(k, g)
    k.wait_vm("stat")
    for s_ in interleave(*[stats_finish(st[mt]) for mt in range(MT)]):
        k.e(s_)
    k.e("s_add_u32 s%d, s%d, %d" % (S_T1, S_OB, 16 * 2752))
    for mt in range(MT):
        seqs = []
        pk = [X[mt][8 + u] for u in range(NU)]
        for u in range(NU):
            for t in range(2):
                i = 2 * u + t
                a = acc[u][t][mt]
                seqs.append(ln_apply(a, cs[u][t], st[mt], X[1][i]) + gelu4(a, X[1][i], pk[u] + 2 * t))
        for s_ in interleave(*seqs):
            k.e(s_)
        for u in range(NU):
            for s_ in swap_pair(pk[u]):
                k.e(s_)
        for u in range(NU):
            k.vmem("buffer_store_dwordx4 %s, v%d, %s, s%d offen offset:%d%s" % (
                vr(pk[u], 4), vsw, srd(SRD_O), S_T1 if mt else S_OB, 1024 * u, DSC), "st")
    signal(k, g, E_H3, 2)
    k.release(mk0)


KCAP4 = 40


def p_w4(k, g):
    MT, NU, KS, CS = 1, 2, 43, 4
    mk0 = k.mark()
    vsw = g.vsw
    k.e("s_mov_b32 s%d, s%d" % (S_TOKB, S_TOKN))
    t16_base(k, S_XO, F)
    out_base(k)
    w = w_tb(k, g, False, NU, KCAP4)
    X = [k.alloc(4, 4) for _ in range(KS)]
    acc = [[[k.alloc(4, 4)] for _ in range(2)] for _ in range(NU)]
    res, res_issue = res_load(k, vsw, SRD_R, "res", [X[12], X[13]])
    res1, res1_issue = res_load(k, vsw, SRD_R2, "res", [X[14], X[15]])
    vro = k.alloc()
    t = k.alloc()
    k.e("v_add_u32 v%d, s%d, v%d" % (vro, S_TOKB, g.m))
    k.e("v_lshlrev_b32 v%d, 10, v%d" % (vro, vro))
    k.e("v_and_b32 v%d, 1, v%d" % (t, g.g))
    k.e("v_lshl_add_u32 v%d, v%d, 5, v%d" % (vro, t, vro))
    k.e("v_lshrrev_b32 v%d, 1, v%d" % (t, g.g))
    k.e("v_lshl_add_u32 v%d, v%d, 4, v%d" % (vro, t, vro))
    k.e("s_lshl_b32 s%d, s%d, 7" % (S_T0, S_CB))
    k.e("v_add_u32 v%d, s%d, v%d" % (vro, S_T0, vro))
    make_srd(k, SRD_X, ("l", R_H3), S * 2752)
    make_srd(k, SRD_O, ("n", R_XIN), XBYTES)
    make_srd(k, SRD_R, ("l", R_XA), XBYTES)
    make_srd(k, SRD_R2, ("l", R_X1), XBYTES)
    make_srd(k, SRD_SO, ("n", ST_XIN), STBYTES)
    make_srd(k, SRD_C, ("in", OUT), XBYTES)
    stamp(k, g)
    k.e("s_barrier")
    gemm_pre(k, w, KS, 2)
    k.e("s_barrier")
    stamp(k, g)

    def resi():
        res_issue()
        res1_issue()

    def b3():
        k.e("s_barrier")

    def b4():
        k.e("s_barrier")

    gemm_loop(k, g, w, KS, MT, lambda s, mt: X[s], acc, lambda s: xload(k, g, X[s], F, 0, s, "x%d" % s), mid={3: b3, 32: resi}, pre={KCAP4: b4})
    k.e("s_barrier")
    stamp(k, g)
    k.wait_vm("res")
    for u in range(2):
        for s_ in swap_pair(res[u]) + swap_pair(res1[u]):
            k.e(s_)
    seqs = []
    pk = [X[8], X[9]]
    for u in range(2):
        for t in range(2):
            i = 2 * u + t
            a = acc[u][t][0]
            tt = X[i]
            seqs.append(unpack2(tt, res1[u] + 2 * t) + add4(a, tt) +
                        unpack2(tt, res[u] + 2 * t) + add4(a, tt) + pack2(pk[u] + 2 * t, a))
    for s_ in interleave(*seqs):
        k.e(s_)
    k.e("s_cmp_lg_u32 s%d, 0" % S_LAYER)
    k.e("s_cbranch_scc1 L_last_%s" % k.name)
    stats_store(k, g, [pk[u] + i for u in range(2) for i in range(4)], X[10])
    store_pairs(k, vsw, pk)
    signal(k, g, E_X, 1, nxt=True)
    k.e("s_add_u32 s%d, s%d, 0x%x" % (S_WSL, S_WSL, LSTRIDE))
    k.e("s_addc_u32 s%d, s%d, 0" % (S_WSH, S_WSH))
    k.e("s_mov_b32 s%d, 1" % S_LAYER)
    k.e("s_branch L_layer_%s" % k.name)
    k.label("L_last_%s" % k.name)
    k.e("s_nop 4")
    for u in range(2):
        for s_ in swap_pair(pk[u]):
            k.e(s_)
    for u in range(2):
        k.e("buffer_store_dwordx4 %s, v%d, %s, 0 offen offset:%d" % (vr(pk[u], 4), vro, srd(SRD_C), 64 * u))
    k.release(mk0)


def w_lane(k, g, r, wrow, swz_bit, t, t2):
    k.e("v_lshrrev_b32 v%d, 2, v%d" % (t, g.l))
    k.e("s_mov_b32 s%d, %d" % (S_T0, wrow))
    k.e("v_mul_lo_u32 v%d, s%d, v%d" % (r, S_T0, t))
    k.e("v_lshrrev_b32 v%d, %d, v%d" % (t, 2 + swz_bit - 1, g.l))
    k.e("v_and_b32 v%d, 2, v%d" % (t, t))
    k.e("v_and_b32 v%d, 3, v%d" % (t2, g.l))
    k.e("v_xor_b32 v%d, v%d, v%d" % (t, t, t2))
    k.e("v_lshl_add_u32 v%d, v%d, 4, v%d" % (r, t, r))


def dma(k, vwo, soff, m0off):
    k.e("s_add_u32 s%d, s%d, 0x%x" % (S_T0, S_WBASE, soff))
    k.e("s_mov_b32 m0, 0x%x" % m0off)
    k.e("buffer_load_dwordx4 v%d, %s, s%d offen lds" % (vwo, srd(SRD_W), S_T0))


_pollid = [0]


def poll(k, g, soff_code, nl, expect, va=None):
    i = _pollid[0]
    _pollid[0] += 1
    for s_ in soff_code:
        k.e(s_)
    k.e("s_mov_b32 s%d, 0" % S_CNT)
    if nl < 64:
        k.e("s_mov_b32 exec_lo, 0x%x" % (((1 << nl) - 1) & 0xffffffff))
        k.e("s_mov_b32 exec_hi, 0x%x" % (((1 << nl) - 1) >> 32))
    if PRE_SLEEP:
        k.e("s_sleep %d" % PRE_SLEEP)
    k.label("L_poll%d_%s" % (i, k.name))
    k.e("buffer_load_dword v%d, v%d, %s, s%d offen sc1" % (g.pv, g.l4 if va is None else va, srd(SRD_F), S_T2))
    k.e("s_waitcnt vmcnt(0)")
    k.e("v_cmp_gt_u32 vcc, %d, v%d" % (expect, g.pv))
    k.e("s_cbranch_vccz L_go%d_%s" % (i, k.name))
    if POLL_SLEEP:
        k.e("s_sleep %d" % POLL_SLEEP)
    k.e("s_add_u32 s%d, s%d, 1" % (S_CNT, S_CNT))
    k.e("s_cmp_lt_u32 s%d, %d" % (S_CNT, POLL_MAX))
    k.e("s_cbranch_scc1 L_poll%d_%s" % (i, k.name))
    k.label("L_go%d_%s" % (i, k.name))
    k.e("s_mov_b64 exec, -1")


def loader(k, g):
    v3072, v1024, v1024k, v2752 = k.alloc(), k.alloc(), k.alloc(), k.alloc()
    t, t2 = k.alloc(), k.alloc()
    g.pv = k.alloc()
    w_lane(k, g, v3072, 3072, 3, t, t2)
    w_lane(k, g, v1024, 1024, 3, t, t2)
    w_lane(k, g, v1024k, 1024, 2, t, t2)
    w_lane(k, g, v2752, 2752, 3, t, t2)
    g.l4 = k.alloc()
    vh = k.alloc()
    k.e("v_lshlrev_b32 v%d, 2, v%d" % (g.l4, g.l))
    k.e("s_lshl_b32 s%d, s%d, 7" % (S_T0, S_RB))
    k.e("s_add_u32 s%d, s%d, 0x%x" % (S_T0, S_T0, 0x2000 * E_H))
    k.e("s_sub_u32 s%d, s%d, %d" % (S_T1, S_T0, 32 + 128))
    k.e("s_lshr_b32 s%d, s%d, 2" % (S_T2, S_RB))
    k.e("s_lshl_b32 s%d, s%d, 8" % (S_T2, S_T2))
    k.e("s_add_u32 s%d, s%d, 0x%x" % (S_T2, S_T2, FL_HX - 128 - 128))
    k.e("s_and_b32 s%d, s%d, 3" % (S_CNT, S_RB))
    k.e("s_cmp_eq_u32 s%d, 0" % S_CNT)
    k.e("s_cselect_b32 s%d, s%d, s%d" % (S_T1, S_T2, S_T1))
    k.e("s_sub_u32 s%d, s%d, 128" % (S_WBASE, S_T0))
    k.e("s_cmp_eq_u32 s%d, 0" % S_RB)
    k.e("s_cselect_b32 s%d, s%d, s%d" % (S_T1, S_WBASE, S_T1))
    k.e("v_mov_b32 v%d, s%d" % (vh, S_T0))
    k.e("v_mov_b32 v%d, s%d" % (t, S_T1))
    k.e("v_cmp_lt_u32 vcc, 31, v%d" % g.l)
    k.e("v_cndmask_b32 v%d, v%d, v%d, vcc" % (vh, vh, t))
    k.e("s_sub_u32 s%d, s%d, 32" % (S_T1, S_T0))
    k.e("s_add_u32 s%d, s%d, %d" % (S_T2, S_T2, 128 + 128 + 256 - 160))
    k.e("s_cmp_eq_u32 s%d, 3" % S_CNT)
    k.e("s_cselect_b32 s%d, s%d, s%d" % (S_T1, S_T2, S_T1))
    k.e("s_sub_u32 s%d, s%d, 160" % (S_WBASE, S_T0))
    k.e("s_cmp_eq_u32 s%d, 31" % S_RB)
    k.e("s_cselect_b32 s%d, s%d, s%d" % (S_T1, S_WBASE, S_T1))
    k.e("v_mov_b32 v%d, s%d" % (t, S_T1))
    k.e("v_cmp_lt_u32 vcc, 39, v%d" % g.l)
    k.e("v_cndmask_b32 v%d, v%d, v%d, vcc" % (vh, vh, t))
    k.e("v_add_u32 v%d, v%d, v%d" % (vh, vh, g.l4))

    def pn(edge, sh):
        return ["s_lshl_b32 s%d, s%d, %d" % (S_T2, S_RB, sh), "s_add_u32 s%d, s%d, 0x%x" % (S_T2, S_T2, 0x2000 * edge)]

    def pw(edge):
        return ["s_lshl_b32 s%d, s%d, 8" % (S_T2, S_RBW), "s_add_u32 s%d, s%d, 0x%x" % (S_T2, S_T2, 0x2000 * edge)]

    def wide_dma(vwo, wrow, ucol):
        us = 16 * 32 * 64
        for j in range(8):
            for wv in range(4):
                for u in range(3):
                    dma(k, vwo, u * ucol + j * 64 * wrow + wv * 16 * wrow, u * us + j * 4096 + wv * 1024)

    def n512_dma(vwo):
        us = 16 * 32 * 64
        for j in range(8):
            for wv in range(4):
                for u in range(2):
                    dma(k, vwo, u * 64 + j * 64 * 1024 + wv * 16 * 1024, u * us + j * 4096 + wv * 1024)

    def w4_dma(j):
        us = KCAP4 * 32 * 64
        for wv in range(4):
            dma(k, v1024, j * 32 * 1024 + (wv & 1) * 64 + (wv >> 1) * 16384, (j % KCAP4) * 2048 + (wv & 1) * us + (wv >> 1) * 1024)

    k.label("L_llayer_%s" % k.name)
    make_srd(k, SRD_F, ("l", R_FL), 0x10000)

    def phase(soff, nl, va=None, skip0=False):
        k.e("s_waitcnt vmcnt(0)")
        k.e("s_barrier")
        if skip0:
            k.e("s_cmp_eq_u32 s%d, 0" % S_LAYER)
            k.e("s_cbranch_scc1 L_sk0_%s" % k.name)
        poll(k, g, soff, nl, 1, va)
        if skip0:
            k.label("L_sk0_%s" % k.name)
        k.e("s_barrier")
    make_srd(k, SRD_W, ("in", IN_WQKV), 512 * 3072)
    k.e("s_lshl_b32 s%d, s%d, 6" % (S_WBASE, S_CBW))
    wide_dma(v3072, 3072, 1024)
    phase(pw(E_X), 64, skip0=True)
    k.e("s_barrier")
    make_srd(k, SRD_W, ("in", IN_WO), 512 * 1024)
    k.e("s_lshl_b32 s%d, s%d, 7" % (S_WBASE, S_CB))
    n512_dma(v1024k)
    k.e("s_barrier")
    poll(k, g, ["s_lshl_b32 s%d, s%d, 7" % (S_T2, S_CBW), "s_add_u32 s%d, s%d, 0x%x" % (S_T2, S_T2, FL_KV)], 1, 64)
    k.e("s_barrier")
    k.e("s_barrier")
    phase(pn(E_O, 8), 64)
    k.e("s_barrier")
    make_srd(k, SRD_W, ("in", IN_W1), 512 * 1024)
    n512_dma(v1024)
    phase(pn(E_XA, 7), 32)
    k.e("s_barrier")
    make_srd(k, SRD_W, ("in", IN_W2), 512 * 1024)
    n512_dma(v1024)
    phase(["s_mov_b32 s%d, 0" % S_T2], 48, vh)
    k.e("s_barrier")
    make_srd(k, SRD_W, ("in", IN_W3), 512 * 2752)
    k.e("s_lshl_b32 s%d, s%d, 6" % (S_WBASE, S_CU3))
    wide_dma(v2752, 2752, 64)
    phase(pw(E_X1), 64)
    k.e("s_barrier")
    make_srd(k, SRD_W, ("in", IN_W4), F * 1024)
    k.e("s_lshl_b32 s%d, s%d, 7" % (S_WBASE, S_CB))
    for j in range(KCAP4):
        w4_dma(j)
    phase(pn(E_H3, 8), 64)
    k.e("s_barrier")
    for j in range(KCAP4, 43):
        w4_dma(j)
    k.e("s_waitcnt vmcnt(0)")
    k.e("s_barrier")
    k.e("s_barrier")
    k.e("s_cmp_lg_u32 s%d, 0" % S_LAYER)
    k.e("s_cbranch_scc1 L_end_%s" % k.name)
    k.e("s_add_u32 s%d, s%d, 0x%x" % (S_WSL, S_WSL, LSTRIDE))
    k.e("s_addc_u32 s%d, s%d, 0" % (S_WSH, S_WSH))
    k.e("s_mov_b32 s%d, 1" % S_LAYER)
    k.e("s_branch L_llayer_%s" % k.name)


def k_main(name):
    k = Kern(name)
    g = G()
    k.e("s_cmp_ge_u32 s2, 256")
    k.e("s_cbranch_scc1 L_end_%s" % k.name)
    k.e("s_load_dwordx16 s[64:79], s[0:1], 0")
    k.e("s_load_dwordx8 s[80:87], s[0:1], 64")
    g.w = k.alloc()
    g.l = k.alloc()
    g.g = k.alloc()
    g.m = k.alloc()
    g.lin = k.alloc()
    g.one = k.alloc()
    g.l128 = k.alloc()
    g.vsw = k.alloc()
    g.vst = k.alloc()
    g.l64 = k.alloc()
    k.e("v_lshrrev_b32 v%d, 6, v0" % g.w)
    k.e("v_and_b32 v%d, 63, v0" % g.l)
    k.e("v_readfirstlane_b32 s%d, v%d" % (S_WAVE, g.w))
    k.e("v_lshrrev_b32 v%d, 4, v%d" % (g.g, g.l))
    k.e("v_and_b32 v%d, 15, v%d" % (g.m, g.l))
    k.e("v_lshlrev_b32 v%d, 4, v%d" % (g.lin, g.l))
    k.e("v_mov_b32 v%d, 1" % g.one)
    k.e("v_lshlrev_b32 v%d, 7, v%d" % (g.l128, g.l))
    k.e("v_lshlrev_b32 v%d, 6, v%d" % (g.l64, g.l))
    k.e("v_mov_b32 v%d, 0" % g.vst)
    t = g.w
    k.e("v_and_b32 v%d, 1, v%d" % (t, g.g))
    k.e("v_lshlrev_b32 v%d, 9, v%d" % (g.vsw, t))
    k.e("v_lshrrev_b32 v%d, 1, v%d" % (t, g.g))
    k.e("v_lshl_add_u32 v%d, v%d, 8, v%d" % (g.vsw, t, g.vsw))
    k.e("v_lshl_add_u32 v%d, v%d, 4, v%d" % (g.vsw, g.m, g.vsw))
    k.e("s_getreg_b32 s%d, hwreg(HW_REG_XCC_ID)" % S_T0)
    k.e("s_and_b32 s%d, s%d, 7" % (S_T0, S_T0))
    k.e("v_mov_b32 v%d, 0x%x" % (t, LDS_SCR))
    k.e("s_cmp_lg_u32 s%d, 4" % S_WAVE)
    k.e("s_cbranch_scc1 L_nt_%s" % k.name)
    k.e("s_lshl_b32 s%d, s%d, 7" % (S_T1, S_T0))
    k.e("s_add_u32 s%d, s%d, 0x%x" % (S_T1, S_T1, FL_TK))
    k.e("s_waitcnt lgkmcnt(0)")
    make_srd(k, SRD_F, ("ws", R_FL), 0x10000)
    k.e("s_mov_b64 exec, 1")
    k.e("buffer_atomic_add v%d, v%d, %s, s%d offen sc0 sc1" % (g.one, g.l64, srd(SRD_F), S_T1))
    k.e("s_waitcnt vmcnt(0)")
    k.e("ds_write_b32 v%d, v%d" % (t, g.one))
    k.e("s_mov_b64 exec, -1")
    k.e("s_waitcnt lgkmcnt(0)")
    k.e("v_mov_b32 v%d, 1" % g.one)
    k.label("L_nt_%s" % k.name)
    k.e("s_barrier")
    k.e("ds_read_b32 v%d, v%d" % (t, t))
    k.e("s_waitcnt lgkmcnt(0)")
    k.e("v_readfirstlane_b32 s%d, v%d" % (S_T1, t))
    k.e("s_and_b32 s%d, s%d, 31" % (S_T1, S_T1))
    k.e("s_lshr_b32 s%d, s%d, 3" % (S_RB, S_T1))
    k.e("s_lshl_b32 s%d, s%d, 2" % (S_T2, S_T0))
    k.e("s_add_u32 s%d, s%d, s%d" % (S_RB, S_RB, S_T2))
    k.e("s_and_b32 s%d, s%d, 7" % (S_CB, S_T1))
    k.e("s_lshr_b32 s%d, s%d, 4" % (S_RBW, S_T1))
    k.e("s_lshl_b32 s%d, s%d, 1" % (S_T2, S_T0))
    k.e("s_add_u32 s%d, s%d, s%d" % (S_RBW, S_RBW, S_T2))
    k.e("s_and_b32 s%d, s%d, 15" % (S_CBW, S_T1))
    k.e("s_lshl_b32 s%d, s%d, 6" % (S_TOKN, S_RB))
    k.e("s_lshl_b32 s%d, s%d, 4" % (S_T0, S_WAVE))
    k.e("s_add_u32 s%d, s%d, s%d" % (S_TOKN, S_TOKN, S_T0))
    k.e("s_lshl_b32 s%d, s%d, 7" % (S_TOKW, S_RBW))
    k.e("s_lshl_b32 s%d, s%d, 5" % (S_T0, S_WAVE))
    k.e("s_add_u32 s%d, s%d, s%d" % (S_TOKW, S_TOKW, S_T0))
    k.e("s_mul_i32 s%d, s%d, 43" % (S_CU3, S_CBW))
    k.e("s_lshr_b32 s%d, s%d, 4" % (S_CU3, S_CU3))
    k.e("s_min_u32 s%d, s%d, 40" % (S_CU3, S_CU3))
    k.e("s_mov_b32 s%d, 0x3f803f80" % S_ONES)
    k.e("s_mov_b32 s%d, 0x%08x" % (S_L2E, f32bits(LOG2E)))
    k.e("s_mov_b32 s%d, 0x%08x" % (S_EPS, f32bits(1e-6)))
    k.e("s_mov_b32 s%d, 0x%08x" % (S_GC, f32bits(-2.0 * LOG2E * math.sqrt(2.0 / math.pi) * 0.044715)))
    k.e("s_mov_b32 s%d, 0x%08x" % (S_GC + 1, f32bits(-2.0 * LOG2E * math.sqrt(2.0 / math.pi))))
    k.e("s_mov_b32 s%d, 0x4000" % S_K16)
    k.e("s_mov_b32 s%d, 0" % S_LAYER)
    k.e("s_mov_b32 s%d, 0" % S_STI)
    k.e("s_waitcnt lgkmcnt(0)")
    k.e("s_mov_b32 s%d, s%d" % (S_WSL, PTR(WS)))
    k.e("s_mov_b32 s%d, s%d" % (S_WSH, PTR(WS) + 1))
    k.e("s_cmp_eq_u32 s%d, 4" % S_WAVE)
    k.e("s_cbranch_scc1 L_loader_%s" % k.name)
    mk = k.mark()
    k.label("L_layer_%s" % k.name)
    k.e("s_nop 4")
    k.phase = "qkv"
    p_qkv(k, g)
    k.phase = "wo"
    p_wo(k, g)
    k.phase = "w1"
    p_w1(k, g)
    k.phase = "w2"
    p_w2(k, g)
    k.phase = "w3"
    p_w3(k, g)
    k.phase = "w4"
    p_w4(k, g)
    k.phase = STAMPG
    if STAMP:
        stamp(k, g)
        k.e("s_waitcnt vmcnt(0)")
        stamp(k, g)
        k.e("s_cmp_lg_u32 s2, %d" % (STAMP - 1))
        k.e("s_cbranch_scc1 L_end_%s" % k.name)
        k.e("s_cmp_lg_u32 s%d, 0" % S_WAVE)
        k.e("s_cbranch_scc1 L_end_%s" % k.name)
        make_srd(k, 8, ("in", DBG), 256)
        k.e("v_lshlrev_b32 v%d, 2, v%d" % (g.w, g.l))
        k.e("buffer_store_dword v%d, v%d, s[8:11], 0 offen" % (g.vst, g.w))
    k.e("s_branch L_end_%s" % k.name)
    k.release(mk)
    k.label("L_loader_%s" % k.name)
    k.e("s_nop 4")
    loader(k, g)
    k.label("L_end_%s" % k.name)
    k.e("s_endpgm")
    return k, 256, 320, 163840


HEADER = """; Kernarg layout for this problem (96 bytes, ptrs only, base s[0:1]):
;   offset  88: d_ws      268435456 bytes workspace
"""


def build():
    kernels = [k_prep("prep_kernel"), k_main("main_kernel")]
    out = [HEADER.rstrip("\n")]
    for (k, nwg, blk, lds) in kernels:
        out.append("; @launch kernel=%s grid=(%d,1,1) block=(%d,1,1) lds=%d" % (k.name, nwg, blk, lds))
    out.append('.amdgcn_target "amdgcn-amd-amdhsa--gfx950"')
    out.append(".text")
    for (k, nwg, blk, lds) in kernels:
        out.append(".globl %s" % k.name)
        out.append(".p2align 8")
        out.append(".type %s,@function" % k.name)
        out.append("%s:" % k.name)
        out += hazard_pass(k.lines)
    out.append('.section .rodata,"a"')
    for (k, nwg, blk, lds) in kernels:
        nv = (k.maxv + 7) // 8 * 8
        out.append(".p2align 6")
        out.append(".amdhsa_kernel %s" % k.name)
        out.append("  .amdhsa_next_free_vgpr %d" % nv)
        out.append("  .amdhsa_next_free_sgpr 102")
        out.append("  .amdhsa_accum_offset %d" % nv)
        out.append("  .amdhsa_group_segment_fixed_size 0")
        out.append("  .amdhsa_kernarg_size 96")
        out.append("  .amdhsa_user_sgpr_count 2")
        out.append("  .amdhsa_user_sgpr_kernarg_segment_ptr 1")
        out.append("  .amdhsa_system_sgpr_workgroup_id_x 1")
        out.append(".end_amdhsa_kernel")
    return "\n".join(out) + "\n"


if __name__ == "__main__":
    path = sys.argv[1] if len(sys.argv) > 1 else "cdna_kernels/%s.s" % NAME
    open(path, "w").write(build())
    print("wrote", path)
```

```python
import sys
import os
import math
import struct

sys.path.insert(0, os.path.dirname(os.path.abspath(__file__)))
from asmlib import Kern, vr, interleave, hazard_pass

NAME = "interleave_layers__linear_kernel_hedgehog__mixer_s_mlp__prompt"
S, D, F = 2048, 512, 1376

IN_X, IN_WQKV, IN_WPHI, IN_WO, IN_BX, IN_W1, IN_W2, IN_W3, IN_W4, OUT, DBG, WS = range(12)


def PTR(i):
    return 64 + 2 * i


MB = 1 << 20
LSTRIDE = 32 * MB
R_XIN = 0 * MB
R_XA = 2 * MB
R_O = 4 * MB
R_KVP = 6 * MB
R_H = 8 * MB
R_X1 = 10 * MB
R_H3 = 12 * MB
R_ST = 18 * MB
ST_XIN, ST_XA, ST_X1 = [R_ST + i * 0x20000 for i in range(3)]
R_KVA = 19 * MB
R_FL = 20 * MB
FL_HX = 0xC000
FL_KV = 0x10000
FL_TK = 0xE000
FL_GT = 0xE400
FLSZ = 0x20000
NONCE_K = 0x5bd1e900
LDS_CS = 0x1F000
WS_CS = 64 * MB
CS_QKV, CS_W1, CS_W3 = WS_CS, WS_CS + 0x2000, WS_CS + 0x4000
E_X, E_O, E_XA, E_H, E_X1, E_H3 = range(6)
R512 = int(os.environ.get("R512", "6"))
BIG = 0x10000

XBYTES = S * D * 2
STBYTES = 8 * S * 8
LOG2E = 1.4426950408889634
UN = [i * 32768 for i in range(5)]
LDS_SCR = UN[2]
LDS_TK = 0x27F00
U_QKV, U_WO, U_W1, U_W2, U_W3 = [UN[0], UN[1], UN[2]], [UN[3], UN[4]], [UN[0], UN[1]], [UN[2], UN[3]], [UN[4], UN[0], UN[1]]
B_W4 = [UN[2], UN[3], UN[0], UN[1], UN[4], UN[3]]


def woff512(ub):
    return lambda u, s: ub[u] + 2048 * s


def woff4(u, s):
    return B_W4[s // 8] + u * 16384 + (s % 8) * 2048

LDS_KV = 0x10000
LDS_Z = 0x18000
POLL_MAX = 40000
PRE_SLEEP = int(os.environ.get("PRE_SLEEP", "0"))
POLL_SLEEP = int(os.environ.get("POLL_SLEEP", "2"))


def f32bits(x):
    return struct.unpack("<I", struct.pack("<f", x))[0]


S_WAVE, S_RB, S_CB, S_RBW, S_CBW, S_T0, S_T1, S_T2 = 32, 33, 34, 35, 36, 37, 38, 39
S_ONES, S_L2E, S_EPS, S_C1, S_C2, S_XO = 40, 41, 42, 43, 44, 45
S_TOKB, S_OB = 46, 47
SRD_X, SRD_W, SRD_O, SRD_R, SRD_R2, SRD_F = 8, 12, 16, 20, 24, 28
SRD_S, SRD_SO = 48, 52
SRD_C = 56
S_WSL, S_WSH, S_LAYER, S_CNT = 60, 61, 62, 63
S_STI, S_TOKN, S_TOKW, S_CU3, S_WBASE, S_K16 = 90, 92, 93, 94, 95, 96
S_GC = 98
S_FP, S_XST, S_WGS = 91, 97, 7

STAMP = int(os.environ.get("STAMP", "0"))
DSC = os.environ.get("DSC", " sc1")
LSC = os.environ.get("LSC", "")


def make_srd(k, slot, buf, size):
    kind = buf[0]
    if kind == "ws":
        k.e("s_add_u32 s%d, s%d, 0x%x" % (slot, PTR(WS), buf[1]))
        k.e("s_addc_u32 s%d, s%d, 0" % (slot + 1, PTR(WS) + 1))
    elif kind == "l":
        k.e("s_add_u32 s%d, s%d, 0x%x" % (slot, S_WSL, buf[1]))
        k.e("s_addc_u32 s%d, s%d, 0" % (slot + 1, S_WSH))
    elif kind == "n":
        k.e("s_add_u32 s%d, s%d, 0x%x" % (slot, S_WSL, buf[1] + LSTRIDE))
        k.e("s_addc_u32 s%d, s%d, 0" % (slot + 1, S_WSH))
    else:
        idx = buf[1]
        k.e("s_mov_b32 s%d, s%d" % (slot, PTR(idx)))
        k.e("s_mov_b32 s%d, s%d" % (slot + 1, PTR(idx) + 1))
    k.e("s_mov_b32 s%d, 0x%x" % (slot + 2, size))
    k.e("s_mov_b32 s%d, 0x00020000" % (slot + 3))


def srd(slot):
    return "s[%d:%d]" % (slot, slot + 3)


class G:
    pass


STAMPG = os.environ.get("STAMPG", "")


STAMPW = int(os.environ.get("STAMPW", "0"))


def stamp(k, g, fine=False, ld=False):
    if not STAMP:
        return
    if ld != (STAMPW == 4) and getattr(k, "started", False):
        return
    if STAMPG and getattr(k, "phase", "") != STAMPG:
        return
    if fine and not STAMPG:
        return
    k.e("s_memtime s[88:89]")
    k.e("s_waitcnt lgkmcnt(0)")
    k.e("s_mov_b32 m0, s%d" % S_STI)
    k.e("s_nop 0")
    k.e("v_writelane_b32 v%d, s88, m0" % g.vst)
    k.e("s_add_u32 s%d, s%d, 1" % (S_STI, S_STI))


def allreduce(x, t, op):
    return [
        "v_mov_b32 v%d, v%d" % (t, x),
        "v_permlane32_swap_b32 v%d, v%d" % (x, t),
        "%s v%d, v%d, v%d" % (op, x, x, t),
        "v_mov_b32 v%d, v%d" % (t, x),
        "v_permlane16_swap_b32 v%d, v%d" % (x, t),
        "%s v%d, v%d, v%d" % (op, x, x, t),
    ]


def stats_finish(st, double=False, part=True):
    o = []
    s_, q_, t0, t1 = st, st + 1, st + 2, st + 3
    if part:
        o.append("v_add_f32 v%d, v%d, v%d" % (s_, st, st + 2))
        o.append("v_add_f32 v%d, v%d, v%d" % (q_, st + 1, st + 3))
    o += interleave(allreduce(s_, t0, "v_add_f32"), allreduce(q_, t1, "v_add_f32"))
    o.append("v_mul_f32 v%d, 0x%08x, v%d" % (s_, f32bits(1.0 / 512), s_))
    o.append("v_mul_f32 v%d, 0x%08x, v%d" % (q_, f32bits(1.0 / 512), q_))
    o.append("v_fma_f32 v%d, -v%d, v%d, v%d" % (q_, s_, s_, q_))
    o.append("v_max_f32 v%d, 0, v%d" % (q_, q_))
    o.append("v_add_f32 v%d, 0x%08x, v%d" % (t0, f32bits(1e-5), q_))
    o.append("v_rsq_f32 v%d, v%d" % (t0, t0))
    if double:
        o.append("v_mul_f32 v%d, v%d, v%d" % (t1, t0, t0))
        o.append("v_mul_f32 v%d, v%d, v%d" % (t1, t1, q_))
        o.append("v_add_f32 v%d, 0x%08x, v%d" % (t1, f32bits(1e-5), t1))
        o.append("v_rsq_f32 v%d, v%d" % (t1, t1))
        o.append("s_nop 0")
        o.append("v_mul_f32 v%d, v%d, v%d" % (t0, t0, t1))
    o.append("v_mul_f32 v%d, v%d, v%d" % (st + 1, s_, t0))
    o.append("v_sub_f32 v%d, 0, v%d" % (st + 1, st + 1))
    o.append("v_mov_b32 v%d, v%d" % (st, t0))
    return o


def gelu4(a, t, dst):
    o = []
    P = lambda r: vr(r, 2)
    gc = "s[%d:%d]" % (S_GC, S_GC + 1)
    for i in (0, 2):
        o.append("v_pk_mul_f32 %s, %s, %s" % (P(t + i), P(a + i), P(a + i)))
    for i in (0, 2):
        o.append("v_pk_fma_f32 %s, %s, %s, %s op_sel:[0,0,1] op_sel_hi:[1,0,1]" % (P(t + i), P(t + i), gc, gc))
    for i in (0, 2):
        o.append("v_pk_mul_f32 %s, %s, %s" % (P(t + i), P(t + i), P(a + i)))
    for i in range(4):
        o.append("v_exp_f32 v%d, v%d" % (t + i, t + i))
    for i in (0, 2):
        o.append("v_pk_add_f32 %s, %s, 1.0 op_sel_hi:[1,0]" % (P(t + i), P(t + i)))
    for i in range(4):
        o.append("v_rcp_f32 v%d, v%d" % (t + i, t + i))
    for i in (0, 2):
        o.append("v_pk_mul_f32 %s, %s, %s" % (P(t + i), P(t + i), P(a + i)))
    o.append("v_cvt_pk_bf16_f32 v%d, v%d, v%d" % (dst, t, t + 1))
    o.append("v_cvt_pk_bf16_f32 v%d, v%d, v%d" % (dst + 1, t + 2, t + 3))
    return o


def ln_apply(a, cs, st, t):
    o = []
    P = lambda r: vr(r, 2)
    assert a % 2 == 0 and cs % 2 == 0 and st % 2 == 0 and t % 2 == 0
    for i in (0, 2):
        o.append("v_pk_mul_f32 %s, %s, %s op_sel:[0,1] op_sel_hi:[1,1]" % (P(t + i), P(cs + i), P(st)))
    for i in (0, 2):
        o.append("v_pk_fma_f32 %s, %s, %s, %s op_sel_hi:[1,0,1]" % (P(a + i), P(a + i), P(st), P(t + i)))
    return o


class W:
    pass


def w_tb(k, g, k2map, NU, woff, KS):
    w = W()
    w.NU = NU
    w.woff = woff
    w.k2map = k2map
    w.tb = {}
    w.his = sorted({woff(u, s) >> 16 for u in range(NU) for s in range(KS)})
    b0 = k.alloc()
    b1 = k.alloc()
    t = k.alloc()
    t2 = k.alloc()
    k.e("v_and_b32 v%d, 3, v%d" % (t2, g.l))
    k.e("v_lshrrev_b32 v%d, 2, v%d" % (t, g.l))
    k.e("v_and_b32 v%d, 3, v%d" % (t, t))
    k.e("v_lshlrev_b32 v%d, 6, v%d" % (t, t))
    k.e("v_lshl_add_u32 v%d, v%d, 3, v%d" % (t, t2, t))
    k.e("v_lshl_add_u32 v%d, v%d, %d, v%d" % (t, g.g, 8 if k2map else 9, t))
    h0 = w.his[0]
    if h0:
        k.e("v_add_u32 v%d, 0x%x, v%d" % (t, 65536 * h0, t))
    k.e("v_and_b32 v%d, 1, v%d" % (t2, g.g))
    k.e("v_lshl_add_u32 v%d, v%d, 5, v%d" % (b0, t2, t))
    k.e("v_xor_b32 v%d, 1, v%d" % (t2, t2))
    k.e("v_lshl_add_u32 v%d, v%d, 5, v%d" % (b1, t2, t))
    w.tb[(0, h0)] = b0
    w.tb[(1, h0)] = b1
    pool = [t, t2]
    for h in w.his[1:]:
        for tt in (0, 1):
            r = pool.pop() if pool else k.alloc()
            k.e("v_add_u32 v%d, 0x%x, v%d" % (r, 65536 * (h - h0), w.tb[(tt, h0)]))
            w.tb[(tt, h)] = r
    return w


def tr_reads(k, w, dst, u, t, s):
    for hs in (0, 1):
        off = w.woff(u, s) + (1024 if w.k2map else 256) * hs
        h, o = off >> 16, off & 0xffff
        k.e("ds_read_b64_tr_b16 %s, v%d offset:%d" % (vr(dst + 2 * hs, 2), w.tb[(t, h)], o))


def gemm_pre(k, w, KS, R):
    frags = [(u, t) for u in range(w.NU) for t in (0, 1)]
    w.R = R
    w.wb = [[k.alloc(4, 4) for _ in frags] for _ in range(R)]
    for s in range(min(R, KS)):
        for i, (u, t) in enumerate(frags):
            tr_reads(k, w, w.wb[s][i], u, t, s)


XD = int(os.environ.get("XD", "12"))
BD512 = int(os.environ.get("BD512", "4"))


def gemm_loop(k, g, w, KS, MT, xfrag, acc, xl, mid=None, pre=None, extra=None):
    NU = w.NU
    frags = [(u, t) for u in range(NU) for t in (0, 1)]
    n = len(frags)
    R = w.R
    wb = w.wb
    first = set()
    D = XD // MT
    for s in range(min(D, KS)):
        xl(s)
    for s in range(KS):
        later = min(R - 1, KS - 1 - s)
        k.wait_vm("x%d" % s, " lgkmcnt(%d)" % min(15, later * 2 * n))
        if s % 4 == 0:
            stamp(k, g, True)
        if pre and (s + R) in pre:
            pre[s + R]()
        ex = list(extra(s)) if extra else []
        nm = n * MT
        done = 0
        for i, (u, t) in enumerate(frags):
            for mt in range(MT):
                a = acc[u][t][mt]
                cin = vr(a, 4) if (u, t, mt) in first else "0"
                first.add((u, t, mt))
                k.e("v_mfma_f32_16x16x32_bf16 %s, %s, %s, %s" % (vr(a, 4), vr(wb[s % R][i], 4), vr(xfrag(s, mt), 4), cin))
                j = i * MT + mt + 1
                upto = (len(ex) * j + nm - 1) // nm
                for e_ in ex[done:upto]:
                    k.e(e_)
                done = max(done, upto)
            if i == 0 and s + D < KS:
                xl(s + D)
            if s + R < KS:
                tr_reads(k, w, wb[s % R][i], u, t, s + R)
        if mid and s in mid:
            mid[s]()
    return [r for l in wb for r in l]


def t16_base(k, sreg, K):
    k.e("s_mul_i32 s%d, s%d, %d" % (sreg, S_TOKB, K * 2))


def xload(k, g, dst, K, mt, s, tag):
    off = mt * K * 32 + s * 1024
    hi, lo = off // 4096 * 4096, off % 4096
    sr = (S_T1, S_T2)[mt]
    if getattr(k, "_xhi", None) is None:
        k._xhi = {}
    if k._xhi.get(mt) != hi:
        k.e("s_add_u32 s%d, s%d, 0x%x" % (sr, S_XO, hi))
        k._xhi[mt] = hi
    k.vmem("buffer_load_dwordx4 %s, v%d, %s, s%d offen offset:%d%s" % (vr(dst, 4), g.lin, srd(SRD_X), sr, lo, LSC), tag)


def stats_load(k, g, MT):
    v = k.alloc()
    k.e("v_add_u32 v%d, s%d, v%d" % (v, S_TOKB, g.m))
    k.e("v_lshlrev_b32 v%d, 3, v%d" % (v, v))
    k.e("v_lshl_add_u32 v%d, v%d, 15, v%d" % (v, g.g, v))
    st = [k.alloc(4, 4) for _ in range(MT)]

    def issue(dst=None):
        f = k.vmem if dst is None else (lambda a, b: k.e(a))
        dst = st if dst is None else dst
        for mt in range(MT):
            f("buffer_load_dwordx2 %s, v%d, %s, 0 offen offset:%d" % (vr(dst[mt], 2), v, srd(SRD_S), 128 * mt), "stat")
            f("buffer_load_dwordx2 %s, v%d, %s, s%d offen offset:%d" % (vr(dst[mt] + 2, 2), v, srd(SRD_S), S_K16, 128 * mt), "stat")
    return st, issue


def swap_pair(p):
    return ["v_permlane16_swap_b32 v%d, v%d" % (p, p + 2), "v_permlane16_swap_b32 v%d, v%d" % (p + 1, p + 3)]


def unpack2(dst, src):
    return [
        "v_lshlrev_b32 v%d, 16, v%d" % (dst, src),
        "v_and_b32 v%d, 0xffff0000, v%d" % (dst + 1, src),
        "v_lshlrev_b32 v%d, 16, v%d" % (dst + 2, src + 1),
        "v_and_b32 v%d, 0xffff0000, v%d" % (dst + 3, src + 1),
    ]


def pack2(dst, src):
    return [
        "v_cvt_pk_bf16_f32 v%d, v%d, v%d" % (dst, src, src + 1),
        "v_cvt_pk_bf16_f32 v%d, v%d, v%d" % (dst + 1, src + 2, src + 3),
    ]


def round4(a):
    return ["v_cvt_pk_bf16_f32 v%d, v%d, v%d" % (a, a, a + 1),
            "v_cvt_pk_bf16_f32 v%d, v%d, v%d" % (a + 2, a + 2, a + 3),
            "v_and_b32 v%d, 0xffff0000, v%d" % (a + 1, a),
            "v_and_b32 v%d, 0xffff0000, v%d" % (a + 3, a + 2),
            "v_lshlrev_b32 v%d, 16, v%d" % (a, a),
            "v_lshlrev_b32 v%d, 16, v%d" % (a + 2, a + 2)]


def add4(a, b):
    return ["v_pk_add_f32 %s, %s, %s" % (vr(a + i, 2), vr(a + i, 2), vr(b + i, 2)) for i in (0, 2)]


def stats_store(k, g, packed, t):
    s_, q_, t0, t1 = t, t + 1, t + 2, t + 3
    for i, r in enumerate(packed):
        k.e("v_dot2_f32_bf16 v%d, v%d, s%d, %s" % (s_, r, S_ONES, "0" if i == 0 else "v%d" % s_))
        k.e("v_dot2_f32_bf16 v%d, v%d, v%d, %s" % (q_, r, r, "0" if i == 0 else "v%d" % q_))
    for s in interleave(allreduce(s_, t0, "v_add_f32"), allreduce(q_, t1, "v_add_f32")):
        k.e(s)
    k.e("v_add_u32 v%d, s%d, v%d" % (t0, S_TOKB, g.m))
    k.e("v_lshlrev_b32 v%d, 3, v%d" % (t0, t0))
    k.e("s_lshl_b32 s%d, s%d, 14" % (S_T0, S_CB))
    k.e("s_mov_b64 exec, 0xffff")
    k.vmem("buffer_store_dwordx2 %s, v%d, %s, s%d offen%s" % (vr(s_, 2), t0, srd(SRD_SO), S_T0, DSC), "st")
    k.e("s_mov_b64 exec, -1")


def signal(k, g, edge, nblk, nxt=False):
    make_srd(k, SRD_F, ("n" if nxt else "l", R_FL), FLSZ)
    if nblk == 1:
        k.e("s_lshl_b32 s%d, s%d, 1" % (S_T0, S_TOKB))
        k.e("s_lshl_b32 s%d, s%d, 2" % (S_T1, S_CB))
    else:
        k.e("s_lshl_b32 s%d, s%d, 2" % (S_T0, S_TOKB))
        k.e("s_lshl_b32 s%d, s%d, 2" % (S_T1, S_CBW))
    k.e("s_add_u32 s%d, s%d, s%d" % (S_T0, S_T0, S_T1))
    k.e("s_add_u32 s%d, s%d, 0x%x" % (S_T0, S_T0, 0x2000 * edge))
    k.e("s_mov_b64 exec, %d" % ((1 << nblk) - 1))
    k.e("s_waitcnt vmcnt(0)")
    k.e("buffer_store_dword v%d, v%d, %s, s%d offen" % (g.one, g.l64, srd(SRD_F), S_T0))
    k.e("s_mov_b64 exec, -1")
    k.vm = []
    k._xhi = None


def softmax_pair(p, t, outp):
    mx, mn, t0, t1 = t, t + 1, t + 2, t + 3
    ep = [t + 4 + i for i in range(4)]
    em = [t + 8 + i for i in range(4)]
    o = []
    o.append("v_max3_f32 v%d, v%d, v%d, v%d" % (mx, p, p + 1, p + 2))
    o.append("v_min3_f32 v%d, v%d, v%d, v%d" % (mn, p, p + 1, p + 2))
    o.append("v_max_f32 v%d, v%d, v%d" % (mx, mx, p + 3))
    o.append("v_min_f32 v%d, v%d, v%d" % (mn, mn, p + 3))
    o += interleave(allreduce(mx, t0, "v_max_f32"), allreduce(mn, t1, "v_min_f32"))
    o.append("v_mul_f32 v%d, s%d, v%d" % (mx, S_L2E, mx))
    o.append("v_mul_f32 v%d, s%d, v%d" % (mn, S_L2E, mn))
    for i in range(4):
        o.append("v_fma_f32 v%d, v%d, s%d, -v%d" % (ep[i], p + i, S_L2E, mx))
        o.append("v_fma_f32 v%d, -v%d, s%d, v%d" % (em[i], p + i, S_L2E, mn))
    for i in range(4):
        o.append("v_exp_f32 v%d, v%d" % (ep[i], ep[i]))
        o.append("v_exp_f32 v%d, v%d" % (em[i], em[i]))
    sp, sm = mx, mn
    o.append("v_add_f32 v%d, v%d, v%d" % (sp, ep[0], ep[1]))
    o.append("v_add_f32 v%d, v%d, v%d" % (sm, em[0], em[1]))
    o.append("v_add_f32 v%d, v%d, v%d" % (t0, ep[2], ep[3]))
    o.append("v_add_f32 v%d, v%d, v%d" % (t1, em[2], em[3]))
    o.append("v_add_f32 v%d, v%d, v%d" % (sp, sp, t0))
    o.append("v_add_f32 v%d, v%d, v%d" % (sm, sm, t1))
    o += interleave(allreduce(sp, t0, "v_add_f32"), allreduce(sm, t1, "v_add_f32"))
    o.append("v_rcp_f32 v%d, v%d" % (sp, sp))
    o.append("v_rcp_f32 v%d, v%d" % (sm, sm))
    o.append("s_nop 0")
    for i in range(4):
        o.append("v_mul_f32 v%d, v%d, v%d" % (ep[i], ep[i], sp))
        o.append("v_mul_f32 v%d, v%d, v%d" % (em[i], em[i], sm))
    o.append("v_cvt_pk_bf16_f32 v%d, v%d, v%d" % (outp, ep[0], ep[1]))
    o.append("v_cvt_pk_bf16_f32 v%d, v%d, v%d" % (outp + 1, ep[2], ep[3]))
    o.append("v_cvt_pk_bf16_f32 v%d, v%d, v%d" % (outp + 2, em[0], em[1]))
    o.append("v_cvt_pk_bf16_f32 v%d, v%d, v%d" % (outp + 3, em[2], em[3]))
    return o


def xin_srd(k, slot):
    k.e("s_add_u32 s%d, s%d, 0x%x" % (slot, S_WSL, R_XIN))
    k.e("s_addc_u32 s%d, s%d, 0" % (slot + 1, S_WSH))
    k.e("s_cmp_eq_u32 s%d, 0" % S_LAYER)
    k.e("s_cselect_b32 s%d, s%d, s%d" % (slot, PTR(IN_X), slot))
    k.e("s_cselect_b32 s%d, s%d, s%d" % (slot + 1, PTR(IN_X) + 1, slot + 1))
    k.e("s_mov_b32 s%d, 0x%x" % (slot + 2, XBYTES))
    k.e("s_mov_b32 s%d, 0x00020000" % (slot + 3))


def cs_load(k, vcs, cs, poff, tag):
    for u in range(len(cs)):
        for tt in range(2):
            k.vmem("buffer_load_dwordx4 %s, v%d, %s, s%d offen offset:%d" % (
                vr(cs[u][tt], 4), vcs, srd(SRD_C), S_WGS, poff + (2 * u + tt) * 64), tag)


def colsum(k, g, w, xb, tag, ub, poff):
    R = 4
    ones, ca, vb, vo = xb, xb + 4, xb + 8, xb + 9
    ring = [xb + 12 + 4 * i for i in range(R)]
    h0 = w.his[0]
    k.e("s_cmp_lg_u32 s%d, 0" % S_LAYER)
    k.e("s_cbranch_scc1 L_csf%s_%s" % (tag, k.name))
    for i in range(4):
        k.e("v_mov_b32 v%d, 0x3f803f80" % (ones + i))
    k.e("s_and_b32 s%d, s%d, 1" % (S_T0, S_WAVE))
    k.e("s_lshl_b32 s%d, s%d, 5" % (S_T0, S_T0))
    k.e("v_xor_b32 v%d, s%d, v%d" % (vb, S_T0, w.tb[(0, h0)]))
    k.e("s_cmp_ge_u32 s%d, 2" % S_WAVE)
    k.e("s_cselect_b32 s%d, 0x%x, 0x%x" % (S_T0, (ub[1] - 65536 * h0) & 0xffffffff, (ub[0] - 65536 * h0) & 0xffffffff))
    k.e("v_add_u32 v%d, s%d, v%d" % (vb, S_T0, vb))
    k.e("s_lshl_b32 s%d, s%d, 6" % (S_T0, S_WAVE))
    k.e("v_lshl_add_u32 v%d, v%d, 4, s%d" % (vo, g.g, S_T0))
    for rnd in range(2 if w.NU == 3 else 1):
        if rnd:
            k.e("s_cmp_ge_u32 s%d, 2" % S_WAVE)
            k.e("s_cbranch_scc1 L_cse%s_%s" % (tag, k.name))
            k.e("v_add_u32 v%d, 0x%x, v%d" % (vb, (ub[2] - ub[0]) & 0xffffffff, vb))

        def rd(s_):
            for hs in (0, 1):
                k.e("ds_read_b64_tr_b16 %s, v%d offset:%d" % (vr(ring[s_ % R] + 2 * hs, 2), vb, 2048 * s_ + 256 * hs))
        for s_ in range(R - 1):
            rd(s_)
        for s_ in range(16):
            if s_ + R - 1 < 16:
                rd(s_ + R - 1)
            k.e("s_waitcnt lgkmcnt(%d)" % (2 * min(R - 1, 15 - s_)))
            k.e("v_mfma_f32_16x16x32_bf16 %s, %s, %s, %s" % (vr(ca, 4), vr(ring[s_ % R], 4), vr(ones, 4), vr(ca, 4) if s_ else "0"))
        k.e("s_mov_b32 exec_lo, 0x00010001")
        k.e("s_mov_b32 exec_hi, 0x00010001")
        k.e("buffer_store_dwordx4 %s, v%d, %s, s%d offen offset:%d" % (vr(ca, 4), vo, srd(SRD_C), S_WGS, poff + 256 * rnd))
        k.e("s_mov_b64 exec, -1")
    if w.NU == 3:
        k.label("L_cse%s_%s" % (tag, k.name))
    k.e("s_waitcnt vmcnt(0)")
    k.label("L_csf%s_%s" % (tag, k.name))
    k.e("s_nop 4")


def bar(k):
    return lambda: k.e("s_barrier")


def p_qkv(k, g):
    MT, NU, KS, CS = 2, 3, 16, 4
    mk = k.mark()
    k.e("s_mov_b32 s%d, s%d" % (S_TOKB, S_TOKW))
    t16_base(k, S_XO, 512)
    w = w_tb(k, g, False, NU, woff512(U_QKV), KS)
    vph = k.alloc()
    k.e("v_lshlrev_b32 v%d, 7, v%d" % (vph, g.g))
    k.e("v_lshl_add_u32 v%d, v%d, 1, v%d" % (vph, g.m, vph))
    k.e("s_lshl_b32 s%d, s%d, 10" % (S_T0, S_CBW))
    k.e("v_add_u32 v%d, s%d, v%d" % (vph, S_T0, vph))
    st, st_issue = stats_load(k, g, MT)
    vcs = k.alloc()
    k.e("v_lshlrev_b32 v%d, 4, v%d" % (vcs, g.g))
    k.e("s_cmp_eq_u32 s%d, 0" % S_LAYER)
    k.e("s_cselect_b32 s%d, 64, 1024" % S_XST)
    k.e("s_cselect_b64 s[100:101], 0, -1")
    X = [[k.alloc(4, 4) for _ in range(KS)] for _ in range(MT)]
    cs = [[X[0][2 * u + tt] for tt in range(2)] for u in range(NU)]
    wphi = [X[0][6], X[0][6] + 2]
    wphi_hi = [X[0][7], X[0][7] + 2]
    acc = [[[k.alloc(4, 4) for _ in range(MT)] for _ in range(2)] for _ in range(NU)]
    xin_srd(k, SRD_X)
    make_srd(k, SRD_R, ("in", IN_WPHI), 32 * 512)
    make_srd(k, SRD_O, ("l", R_O), XBYTES)
    make_srd(k, SRD_R2, ("l", R_KVP), 2 * MB)
    make_srd(k, SRD_S, ("l", ST_XIN), STBYTES)
    make_srd(k, SRD_C, ("ws", WS_CS), 256 * 2048)
    make_srd(k, SRD_F, ("l", R_FL), FLSZ)

    def xl(s):
        k.e("s_mov_b64 exec, s[100:101]")
        for mt in range(MT):
            xload(k, g, X[mt][s], 512, mt, s, "x%d" % s)
        k.e("s_mov_b64 exec, -1")

    k.e("s_cmp_lg_u32 s%d, 0" % S_LAYER)
    k.e("s_cbranch_scc1 L_np_%s" % k.name)
    for mt in range(MT):
        for r in range(16):
            xload(k, g, X[mt][r], 512, mt, r, "r%d_%d" % (mt, r // 4))
    k._xhi = None
    ab = acc[0][0][0]
    ones4, mS, mQ = ab, [ab + 4, ab + 8], [ab + 12, ab + 16]
    vwb, vrd, tw = ab + 20, [ab + 21 + i for i in range(4)], [ab + 25 + i for i in range(4)]
    k.e("s_lshl_b32 s%d, s%d, 14" % (S_T0, S_WAVE))
    k.e("s_add_u32 s%d, s%d, 0x%x" % (S_T0, S_T0, UN[3]))
    k.e("v_add_u32 v%d, s%d, v%d" % (vwb, S_T0, g.lin))
    for b_ in range(4):
        k.e("v_add_u32 v%d, %d, v%d" % (vrd[b_], 4 * b_, g.g))
        k.e("v_xor_b32 v%d, v%d, v%d" % (vrd[b_], vrd[b_], g.m))
        k.e("v_lshlrev_b32 v%d, 4, v%d" % (vrd[b_], vrd[b_]))
        k.e("v_lshl_add_u32 v%d, v%d, 10, v%d" % (vrd[b_], g.m, vrd[b_]))
        k.e("v_add_u32 v%d, s%d, v%d" % (vrd[b_], S_T0, vrd[b_]))
    for i in range(4):
        k.e("v_mov_b32 v%d, 0x3f803f80" % (ones4 + i))
    for mt in range(MT):
        for r in range(16):
            if r % 4 == 0:
                k.wait_vm("r%d_%d" % (mt, r // 4))
            k.e("v_xor_b32 v%d, %d, v%d" % (tw[r % 4], 16 * r, vwb))
            k.e("ds_write_b128 v%d, %s offset:%d" % (tw[r % 4], vr(X[mt][r], 4), 1024 * r))
        k.e("s_waitcnt lgkmcnt(0)")
        for s in range(KS):
            k.e("ds_read_b128 %s, v%d offset:%d" % (vr(X[mt][s], 4), vrd[s % 4], 256 * (s // 4)))
        for s in range(KS):
            k.e("s_waitcnt lgkmcnt(%d)" % (KS - 1 - s))
            k.e("v_mfma_f32_16x16x32_bf16 %s, %s, %s, %s" % (vr(mS[mt], 4), vr(ones4, 4), vr(X[mt][s], 4), vr(mS[mt], 4) if s else "0"))
            k.e("v_mfma_f32_16x16x32_bf16 %s, %s, %s, %s" % (vr(mQ[mt], 4), vr(X[mt][s], 4), vr(X[mt][s], 4), vr(mQ[mt], 4) if s else "0"))
    k.e("v_and_b32 v%d, 3, v%d" % (tw[0], g.m))
    k.e("v_lshrrev_b32 v%d, 2, v%d" % (tw[1], g.m))
    for mt in range(MT):
        k.e("v_mul_f32 v%d, 0.25, v%d" % (st[mt], mS[mt]))
        k.e("v_mov_b32 v%d, 0" % (st[mt] + 2))
        k.e("v_mov_b32 v%d, 0" % (st[mt] + 3))
    for j in range(1, 4):
        k.e("v_cmp_eq_u32 vcc, %d, v%d" % (j, tw[0]))
        for mt in range(MT):
            k.e("v_cndmask_b32 v%d, v%d, v%d, vcc" % (mQ[mt], mQ[mt], mQ[mt] + j))
    k.e("v_cmp_eq_u32 vcc, v%d, v%d" % (tw[1], g.g))
    for mt in range(MT):
        k.e("v_cndmask_b32 v%d, 0, v%d, vcc" % (st[mt] + 1, mQ[mt]))
    k.vm = []
    k.label("L_np_%s" % k.name)
    k.e("s_nop 4")
    stamp(k, g)
    k.e("s_barrier")
    gemm_pre(k, w, KS, 2)
    colsum(k, g, w, ab, "q", U_QKV, 0)
    k.e("s_barrier")
    stamp(k, g)

    def ph_issue():
        k.e("s_mov_b64 exec, s[100:101]")
        st_issue()
        k.e("s_mov_b64 exec, -1")
        cs_load(k, vcs, cs, 0, "stat")
        for hh in range(2):
            for j in range(4):
                k.vmem("buffer_load_ushort v%d, v%d, %s, 0 offen offset:%d" % (
                    (wphi[hh] if j & 1 == 0 else wphi_hi[hh]) + (j >> 1), vph, srd(SRD_R), 512 * hh + 32 * j), "stat")
        k.e("s_barrier")
    wbr = gemm_loop(k, g, w, KS, MT, lambda s, mt: X[mt][s], acc, xl, mid={10: ph_issue})
    k.e("s_barrier")
    stamp(k, g)
    xb = X[0][0]
    pool = [xb + 32]

    def ta(n, al=2):
        b = (pool[0] + al - 1) // al * al
        pool[0] = b + n
        assert pool[0] <= xb + 128
        return b

    ident = ta(2)
    ones = ta(2)
    t = ta(1)
    t2 = ta(1)
    k.e("v_mov_b32 v%d, 0x3f803f80" % ones)
    k.e("v_mov_b32 v%d, 0x3f803f80" % (ones + 1))
    k.e("v_and_b32 v%d, 1, v%d" % (t, g.m))
    k.e("v_lshlrev_b32 v%d, 4, v%d" % (t, t))
    k.e("v_mov_b32 v%d, 0x3f80" % t2)
    k.e("v_lshlrev_b32 v%d, v%d, v%d" % (t2, t, t2))
    k.e("v_lshrrev_b32 v%d, 2, v%d" % (t, g.m))
    k.e("v_cmp_eq_u32 vcc, v%d, v%d" % (t, g.g))
    k.e("v_cndmask_b32 v%d, 0, v%d, vcc" % (t2, t2))
    k.e("v_and_b32 v%d, 2, v%d" % (t, g.m))
    k.e("v_cmp_eq_u32 vcc, 0, v%d" % t)
    k.e("v_cndmask_b32 v%d, 0, v%d, vcc" % (ident, t2))
    k.e("v_cndmask_b32 v%d, v%d, 0, vcc" % (ident + 1, t2))
    k.e("s_lshl_b32 s%d, s%d, 13" % (S_T0, S_WAVE))
    k.e("s_add_u32 s%d, s%d, 0x%x" % (S_T0, S_T0, LDS_SCR))
    k.e("v_add_u32 v%d, s%d, v%d" % (t, S_T0, g.lin))
    k.e("s_lshr_b32 s%d, s%d, 1" % (S_T0, S_WAVE))
    k.e("s_lshl_b32 s%d, s%d, 12" % (S_T0, S_T0))
    k.e("s_and_b32 s%d, s%d, 1" % (S_T1, S_WAVE))
    k.e("s_lshl_b32 s%d, s%d, 10" % (S_T1, S_T1))
    k.e("s_add_u32 s%d, s%d, s%d" % (S_T0, S_T0, S_T1))
    k.e("s_add_u32 s%d, s%d, 0x%x" % (S_T0, S_T0, LDS_SCR))
    k.e("v_add_u32 v%d, s%d, v%d" % (t2, S_T0, g.lin))
    k.wait_vm("stat")
    for s_ in interleave(*[stats_finish(st[mt]) for mt in range(MT)]):
        k.e(s_)
    for hh in range(2):
        for j in range(2):
            k.e("v_lshl_or_b32 v%d, v%d, 16, v%d" % (wphi[hh] + j, wphi_hi[hh] + j, wphi[hh] + j))
    kvacc = [[wbr[4 * hh + b] for b in range(4)] for hh in range(2)]
    C4 = [(mt, hh) for mt in range(MT) for hh in range(2)]
    oq = [wbr[8 + c] for c in range(4)]
    kb = [ta(2) for _ in C4]
    vb = [ta(2) for _ in C4]
    T = [ta(12, 4) for _ in C4]
    ok = [ta(4, 4) for _ in C4]
    seqs = []
    for c, (mt, hh) in enumerate(C4):
        a = acc[1][hh][mt]
        seqs.append(ln_apply(a, cs[1][hh], st[mt], T[c]) + pack2(kb[c], a))
        a = acc[2][hh][mt]
        seqs.append(ln_apply(a, cs[2][hh], st[mt], T[c] + 4) + pack2(vb[c], a))
    for s_ in interleave(*seqs):
        k.e(s_)
    pk = [acc[1][hh][mt] for (mt, hh) in C4]
    tv = [acc[2][hh][mt] for (mt, hh) in C4]
    for c, (mt, hh) in enumerate(C4):
        k.e("v_mfma_f32_16x16x16_bf16 %s, %s, %s, 0" % (vr(pk[c], 4), vr(wphi[hh], 2), vr(kb[c], 2)))
    for c in range(4):
        k.e("v_mfma_f32_16x16x16_bf16 %s, %s, %s, 0" % (vr(tv[c], 4), vr(vb[c], 2), vr(ident, 2)))
    for s_ in interleave(*[softmax_pair(pk[c], T[c], ok[c]) for c in range(4)]):
        k.e(s_)
    for c in range(4):
        k.e("v_mfma_f32_16x16x16_bf16 %s, %s, %s, 0" % (vr(T[c], 4), vr(ok[c], 2), vr(ident, 2)))
        k.e("v_mfma_f32_16x16x16_bf16 %s, %s, %s, 0" % (vr(T[c] + 4, 4), vr(ok[c] + 2, 2), vr(ident, 2)))
    for c in range(4):
        for s_ in pack2(vb[c], tv[c]):
            k.e(s_)
    for c in range(4):
        for s_ in pack2(T[c] + 8, T[c]) + pack2(T[c] + 10, T[c] + 4):
            k.e(s_)
    for c, (mt, hh) in enumerate(C4):
        kk = kvacc[hh]
        for (dst, a_, b_) in ((kk[0], T[c] + 8, vb[c]), (kk[1], T[c] + 10, vb[c]), (kk[2], T[c] + 8, ones), (kk[3], T[c] + 10, ones)):
            k.e("v_mfma_f32_16x16x16_bf16 %s, %s, %s, %s" % (
                vr(dst, 4), vr(a_, 2), vr(b_, 2), "0" if mt == 0 else vr(dst, 4)))
    for hh in range(2):
        for b in range(4):
            k.e("ds_write_b128 v%d, %s offset:%d" % (t, vr(kvacc[hh][b], 4), (hh * 4 + b) * 1024))
    seqs = []
    for c, (mt, hh) in enumerate(C4):
        a = acc[0][hh][mt]
        seqs.append(ln_apply(a, cs[0][hh], st[mt], T[c]) + pack2(kb[c], a))
    qa = interleave(*seqs)
    for c, (mt, hh) in enumerate(C4):
        qa.append("v_mfma_f32_16x16x16_bf16 %s, %s, %s, 0" % (vr(acc[0][hh][mt], 4), vr(wphi[hh], 2), vr(kb[c], 2)))
    qb = interleave(*[softmax_pair(acc[0][hh][mt], T[c], oq[c]) for c, (mt, hh) in enumerate(C4)])
    k.e("s_waitcnt lgkmcnt(0)")
    k.e("s_barrier")
    rk = [acc[1][hh][mt] for (mt, hh) in C4]
    rz = [acc[2][hh][mt] for (mt, hh) in C4]
    for ww in range(4):
        k.e("ds_read_b128 %s, v%d offset:%d" % (vr(rk[ww], 4), t2, ww * 8192))
        k.e("ds_read_b128 %s, v%d offset:%d" % (vr(rz[ww], 4), t2, ww * 8192 + 2048))
    k.e("s_lshl_b32 s%d, s%d, 2" % (S_T2, S_CBW))
    k.e("s_add_u32 s%d, s%d, s%d" % (S_T2, S_T2, S_WAVE))
    k.e("s_lshl_b32 s%d, s%d, 4" % (S_T2, S_T2))
    k.e("s_add_u32 s%d, s%d, s%d" % (S_T0, S_T2, S_RBW))
    k.e("s_lshl_b32 s%d, s%d, 7" % (S_T1, S_T0))
    k.e("s_add_u32 s%d, s%d, 0x%x" % (S_T1, S_T1, MB))
    k.e("s_lshl_b32 s%d, s%d, 10" % (S_T0, S_T0))
    for s_ in qa[:40]:
        k.e(s_)
    k.e("s_waitcnt lgkmcnt(0)")
    for R_ in (rk, rz):
        for i in (0, 2):
            k.e("v_pk_add_f32 %s, %s, %s" % (vr(R_[0] + i, 2), vr(R_[0] + i, 2), vr(R_[1] + i, 2)))
            k.e("v_pk_add_f32 %s, %s, %s" % (vr(R_[2] + i, 2), vr(R_[2] + i, 2), vr(R_[3] + i, 2)))
    for R_ in (rk, rz):
        for i in (0, 2):
            k.e("v_pk_add_f32 %s, %s, %s" % (vr(R_[0] + i, 2), vr(R_[0] + i, 2), vr(R_[2] + i, 2)))
    k.e("buffer_store_dwordx4 %s, v%d, %s, s%d offen sc1" % (vr(rk[0], 4), g.lin, srd(SRD_R2), S_T0))
    k.e("s_mov_b32 exec_lo, 0x00010001")
    k.e("s_mov_b32 exec_hi, 0x00010001")
    k.e("buffer_store_dwordx4 %s, v%d, %s, s%d offen sc1" % (vr(rz[0], 4), vcs, srd(SRD_R2), S_T1))
    k.e("s_mov_b64 exec, -1")
    k.e("s_lshl_b32 s%d, s%d, 10" % (S_T0, S_CBW))
    k.e("s_lshr_b32 s%d, s%d, 1" % (S_T1, S_RBW))
    k.e("s_lshl_b32 s%d, s%d, 7" % (S_T1, S_T1))
    k.e("s_add_u32 s%d, s%d, s%d" % (S_T0, S_T0, S_T1))
    k.e("s_and_b32 s%d, s%d, 1" % (S_T1, S_RBW))
    k.e("s_lshl_b32 s%d, s%d, 2" % (S_T1, S_T1))
    k.e("s_add_u32 s%d, s%d, s%d" % (S_T1, S_T1, S_WAVE))
    k.e("s_lshl_b32 s%d, s%d, 2" % (S_T1, S_T1))
    k.e("s_add_u32 s%d, s%d, s%d" % (S_T0, S_T0, S_T1))
    k.e("s_add_u32 s%d, s%d, 0x%x" % (S_T0, S_T0, FL_KV))
    rest = qa[40:] + qb
    QS = int(os.environ.get("QSPLIT", "110"))
    for s_ in rest[:QS]:
        k.e(s_)
    k.e("s_mov_b64 exec, 1")
    k.e("s_waitcnt vmcnt(0)")
    k.e("buffer_store_dword v%d, v%d, %s, s%d offen sc1" % (g.one, g.l128, srd(SRD_F), S_T0))
    k.e("s_mov_b64 exec, -1")
    for s_ in rest[QS:]:
        k.e(s_)
    vw_, vr_ = acc[1][0][0], acc[1][0][0] + 1
    k.e("s_lshr_b32 s%d, s%d, 1" % (S_T0, S_WAVE))
    k.e("s_lshl_b32 s%d, s%d, 11" % (S_T0, S_T0))
    k.e("s_and_b32 s%d, s%d, 1" % (S_T1, S_WAVE))
    k.e("s_lshl_b32 s%d, s%d, 3" % (S_T1, S_T1))
    k.e("s_add_u32 s%d, s%d, s%d" % (S_T0, S_T0, S_T1))
    k.e("s_add_u32 s%d, s%d, 0x%x" % (S_T0, S_T0, LDS_SCR))
    k.e("v_add_u32 v%d, s%d, v%d" % (vw_, S_T0, g.lin))
    k.e("v_add_u32 v%d, 0x%x, v%d" % (vr_, LDS_SCR, g.lin))
    k.e("s_lshl_b32 s%d, s%d, 10" % (S_T0, S_T2))
    k.e("s_lshl_b32 s%d, s%d, 7" % (S_T1, S_T2))
    k.e("s_add_u32 s%d, s%d, 0x%x" % (S_T1, S_T1, MB))
    k.e("s_lshl_b32 s%d, s%d, 10" % (S_OB, S_TOKB))
    k.e("s_lshl_b32 s%d, s%d, 10" % (S_T2, S_CBW))
    k.e("s_add_u32 s%d, s%d, s%d" % (S_OB, S_OB, S_T2))
    stamp(k, g)
    k.e("s_barrier")
    stamp(k, g)
    k.vm = []
    P = [xb + 4 * r for r in range(16)]
    Z = [xb + 64 + 4 * r for r in range(16)]
    for r in range(16):
        if r and r % 4 == 0:
            k.e("s_add_u32 s%d, s%d, 4096" % (S_T0, S_T0))
        k.vmem("buffer_load_dwordx4 %s, v%d, %s, s%d offen offset:%d" % (vr(P[r], 4), g.lin, srd(SRD_R2), S_T0, (r % 4) * 1024), "p%d" % (r // 4))
        k.vmem("buffer_load_dwordx4 %s, v%d, %s, s%d offen offset:%d" % (vr(Z[r], 4), vcs, srd(SRD_R2), S_T1, r * 128), "p%d" % (r // 4))
    for q in range(4):
        k.wait_vm("p%d" % q)
        for R_ in (P, Z):
            for i in (0, 2):
                k.e("v_pk_add_f32 %s, %s, %s" % (vr(R_[4 * q] + i, 2), vr(R_[4 * q] + i, 2), vr(R_[4 * q + 1] + i, 2)))
                k.e("v_pk_add_f32 %s, %s, %s" % (vr(R_[4 * q + 2] + i, 2), vr(R_[4 * q + 2] + i, 2), vr(R_[4 * q + 3] + i, 2)))
        for R_ in (P, Z):
            for i in (0, 2):
                k.e("v_pk_add_f32 %s, %s, %s" % (vr(R_[4 * q] + i, 2), vr(R_[4 * q] + i, 2), vr(R_[4 * q + 2] + i, 2)))
        if q:
            for R_ in (P, Z):
                for i in (0, 2):
                    k.e("v_pk_add_f32 %s, %s, %s" % (vr(R_[0] + i, 2), vr(R_[0] + i, 2), vr(R_[4 * q] + i, 2)))
    for s_ in pack2(P[1], P[0]) + pack2(Z[1], Z[0]):
        k.e(s_)
    k.e("ds_write_b64 v%d, %s" % (vw_, vr(P[1], 2)))
    k.e("ds_write_b64 v%d, %s offset:1024" % (vw_, vr(Z[1], 2)))
    k.e("s_waitcnt lgkmcnt(0)")
    k.e("s_barrier")
    kvf = [P[2], P[3]]
    zf = [P[4], P[5]]
    for hh in range(2):
        k.e("ds_read_b128 %s, v%d offset:%d" % (vr(kvf[hh], 4), vr_, hh * 2048))
        k.e("ds_read_b128 %s, v%d offset:%d" % (vr(zf[hh], 4), vr_, hh * 2048 + 1024))
    num = [Z[c] for c in range(4)]
    den = [Z[4 + c] for c in range(4)]
    O = [Z[8], Z[9]]
    k.e("s_waitcnt lgkmcnt(0)")
    for c, (mt, hh) in enumerate(C4):
        k.e("v_mfma_f32_16x16x32_bf16 %s, %s, %s, 0" % (vr(den[c], 4), vr(zf[hh], 4), vr(oq[c], 4)))
    for c, (mt, hh) in enumerate(C4):
        k.e("v_mfma_f32_16x16x32_bf16 %s, %s, %s, 0" % (vr(num[c], 4), vr(kvf[hh], 4), vr(oq[c], 4)))
    for c in range(4):
        k.e("v_add_f32 v%d, s%d, v%d" % (den[c], S_EPS, den[c]))
    for c in range(4):
        k.e("v_rcp_f32 v%d, v%d" % (den[c], den[c]))
    for c in range(4):
        for j in range(4):
            k.e("v_mul_f32 v%d, v%d, v%d" % (num[c] + j, num[c] + j, den[c]))
    for c, (mt, hh) in enumerate(C4):
        for s_ in pack2(O[mt] + 2 * hh, num[c]):
            k.e(s_)
    k.e("s_add_u32 s%d, s%d, 0x4000" % (S_T1, S_OB))
    for mt in range(MT):
        k.vmem("buffer_store_dwordx4 %s, v%d, %s, s%d offen%s" % (vr(O[mt], 4), g.lin, srd(SRD_O), S_T1 if mt else S_OB, DSC), "st")
    signal(k, g, E_O, 2)
    k.release(mk)


def out_base(k):
    k.e("s_lshl_b32 s%d, s%d, 10" % (S_OB, S_TOKB))
    k.e("s_lshl_b32 s%d, s%d, 11" % (S_T0, S_CB))
    k.e("s_add_u32 s%d, s%d, s%d" % (S_OB, S_OB, S_T0))


def res_load(k, vsw, slot, tag, regs=None):
    r = regs if regs is not None else [k.alloc(4, 4) for _ in range(2)]

    def issue():
        for u in range(2):
            k.vmem("buffer_load_dwordx4 %s, v%d, %s, s%d offen offset:%d" % (vr(r[u], 4), vsw, srd(slot), S_OB, 1024 * u), tag)
    return r, issue


def store_pairs(k, vsw, pk, swap=True, mod=DSC):
    for u in range(2):
        for s_ in swap_pair(pk[u]) if swap else []:
            k.e(s_)
    for u in range(2):
        k.vmem("buffer_store_dwordx4 %s, v%d, %s, s%d offen offset:%d%s" % (vr(pk[u], 4), vsw, srd(SRD_O), S_OB, 1024 * u, mod), "st")


def p_wo(k, g):
    MT, NU, KS, CS = 1, 2, 16, 4
    mk0 = k.mark()
    vsw = g.vsw
    k.e("s_mov_b32 s%d, s%d" % (S_TOKB, S_TOKN))
    t16_base(k, S_XO, 512)
    out_base(k)
    w = w_tb(k, g, True, NU, woff512(U_WO), KS)
    X = [k.alloc(4, 4) for _ in range(KS)]
    acc = [[[k.alloc(4, 4)] for _ in range(2)] for _ in range(NU)]
    res = [k.alloc(4, 4) for _ in range(2)]
    vres, t = k.alloc(), k.alloc()
    k.e("v_and_b32 v%d, 1, v%d" % (t, g.g))
    k.e("v_lshlrev_b32 v%d, 10, v%d" % (vres, g.m))
    k.e("v_lshl_add_u32 v%d, v%d, 5, v%d" % (vres, t, vres))
    k.e("v_lshrrev_b32 v%d, 1, v%d" % (t, g.g))
    k.e("v_lshl_add_u32 v%d, v%d, 4, v%d" % (vres, t, vres))
    k.e("s_lshl_b32 s%d, s%d, 10" % (S_T1, S_TOKB))
    k.e("s_lshl_b32 s%d, s%d, 7" % (S_T0, S_CB))
    k.e("s_add_u32 s%d, s%d, s%d" % (S_T1, S_T1, S_T0))
    make_srd(k, SRD_X, ("l", R_O), XBYTES)
    xin_srd(k, SRD_R)
    k.e("s_cselect_b64 vcc, -1, 0")
    k.e("s_cselect_b32 s%d, s%d, s%d" % (S_T1, S_T1, S_OB))
    k.e("s_add_u32 s%d, s%d, s%d" % (S_T2, S_T1, S_XST))
    k.e("v_cndmask_b32 v%d, v%d, v%d, vcc" % (vres, vsw, vres))
    make_srd(k, SRD_O, ("l", R_XA), XBYTES)
    make_srd(k, SRD_SO, ("l", ST_XA), STBYTES)
    for u in range(2):
        k.vmem("buffer_load_dwordx4 %s, v%d, %s, s%d offen" % (vr(res[u], 4), vres, srd(SRD_R), (S_T1, S_T2)[u]), "res")
    stamp(k, g)
    k.e("s_barrier")
    gemm_pre(k, w, KS, R512)
    k.e("s_barrier")
    stamp(k, g)
    gemm_loop(k, g, w, KS, MT, lambda s, mt: X[s], acc, lambda s: xload(k, g, X[s], 512, 0, s, "x%d" % s), mid={BD512: bar(k)})
    k.e("s_barrier")
    stamp(k, g)
    seqs = []
    pk = [X[8], X[9]]
    for u in range(2):
        for s_ in swap_pair(res[u]):
            k.e(s_)
    for u in range(2):
        for t in range(2):
            i = 2 * u + t
            a = acc[u][t][0]
            tt = X[i]
            seqs.append(unpack2(tt, res[u] + 2 * t) + add4(a, tt) + pack2(pk[u] + 2 * t, a))
    for s_ in interleave(*seqs):
        k.e(s_)
    stats_store(k, g, [pk[u] + i for u in range(2) for i in range(4)], X[10])
    store_pairs(k, vsw, pk)
    signal(k, g, E_XA, 1)
    k.release(mk0)


def p_w1(k, g):
    MT, NU, KS, CS = 1, 2, 16, 4
    mk0 = k.mark()
    vsw = g.vsw
    t16_base(k, S_XO, 512)
    w = w_tb(k, g, False, NU, woff512(U_W1), KS)
    X = [k.alloc(4, 4) for _ in range(KS)]
    acc = [[[k.alloc(4, 4)] for _ in range(2)] for _ in range(NU)]
    st, st_issue = stats_load(k, g, MT)
    vcs = k.alloc()
    k.e("v_lshlrev_b32 v%d, 4, v%d" % (vcs, g.g))
    cs = [[k.alloc(4, 4) for _ in range(2)] for _ in range(2)]
    make_srd(k, SRD_X, ("l", R_XA), XBYTES)
    make_srd(k, SRD_O, ("l", R_H), XBYTES)
    make_srd(k, SRD_S, ("l", ST_XA), STBYTES)
    stamp(k, g)
    k.e("s_barrier")
    gemm_pre(k, w, KS, R512)
    colsum(k, g, w, X[0], "a", U_W1, 512)
    k.e("s_barrier")
    stamp(k, g)

    def m4():
        st_issue()
        cs_load(k, vcs, cs, 512, "stat")
        k.e("s_barrier")
    gemm_loop(k, g, w, KS, MT, lambda s, mt: X[s], acc, lambda s: xload(k, g, X[s], 512, 0, s, "x%d" % s), mid={BD512: m4})
    k.e("s_barrier")
    stamp(k, g)
    k.wait_vm("stat")
    for s_ in stats_finish(st[0], double=True):
        k.e(s_)
    seqs = []
    pk = [X[8], X[9]]
    for u in range(2):
        for t in range(2):
            i = 2 * u + t
            a = acc[u][t][0]
            seqs.append(ln_apply(a, cs[u][t], st[0], X[i]) + gelu4(a, X[i], pk[u] + 2 * t))
    for s_ in interleave(*seqs):
        k.e(s_)
    for u in range(2):
        for s_ in swap_pair(pk[u]):
            k.e(s_)
    k.e("s_add_u32 s%d, s%d, 16" % (S_T0, S_TOKB))
    k.e("s_and_b32 s%d, s%d, 0xe0" % (S_T0, S_T0))
    k.e("s_cmp_eq_u32 s%d, 0" % S_T0)
    k.e("s_cbranch_scc1 L_hb_%s" % k.name)
    store_pairs(k, vsw, pk, swap=False)
    k.e("s_branch L_hc_%s" % k.name)
    k.label("L_hb_%s" % k.name)
    store_pairs(k, vsw, pk, swap=False, mod=" sc1")
    make_srd(k, SRD_F, ("l", R_FL), FLSZ)
    k.e("s_lshr_b32 s%d, s%d, 8" % (S_T0, S_TOKB))
    k.e("s_lshl_b32 s%d, s%d, 8" % (S_T0, S_T0))
    k.e("s_bfe_u32 s%d, s%d, 0x10004" % (S_T1, S_TOKB))
    k.e("s_lshl_b32 s%d, s%d, 7" % (S_T1, S_T1))
    k.e("s_add_u32 s%d, s%d, s%d" % (S_T0, S_T0, S_T1))
    k.e("s_lshl_b32 s%d, s%d, 2" % (S_T1, S_CB))
    k.e("s_add_u32 s%d, s%d, s%d" % (S_T0, S_T0, S_T1))
    k.e("s_add_u32 s%d, s%d, 0x%x" % (S_T0, S_T0, FL_HX))
    k.e("s_mov_b64 exec, 1")
    k.e("s_waitcnt vmcnt(0)")
    k.e("buffer_store_dword v%d, v%d, %s, s%d offen sc1" % (g.one, g.l64, srd(SRD_F), S_T0))
    k.e("s_mov_b64 exec, -1")
    k.label("L_hc_%s" % k.name)
    signal(k, g, E_H, 1)
    k.release(mk0)


def p_w2(k, g):
    MT, NU, KS, CS = 1, 2, 16, 4
    mk0 = k.mark()
    vsw = g.vsw
    w = w_tb(k, g, False, NU, woff512(U_W2), KS)
    X = [k.alloc(4, 4) for _ in range(KS)]
    acc = [[[k.alloc(4, 4)] for _ in range(2)] for _ in range(NU)]
    res, res_issue = res_load(k, vsw, SRD_R, "stat")
    st, st_issue = stats_load(k, g, MT)
    vsh = []
    t = k.alloc()
    for c, d in enumerate((-1, 1, -2, 2)):
        r = k.alloc()
        k.e("s_add_i32 s%d, s%d, %d" % (S_T0, S_TOKB, d))
        k.e("v_add_u32 v%d, s%d, v%d" % (t, S_T0, g.m))
        k.e("v_ashrrev_i32 v%d, 4, v%d" % (r, t))
        k.e("v_lshlrev_b32 v%d, 14, v%d" % (r, r))
        k.e("v_and_b32 v%d, 15, v%d" % (t, t))
        k.e("v_lshl_add_u32 v%d, v%d, 4, v%d" % (r, t, r))
        k.e("v_lshl_add_u32 v%d, v%d, 8, v%d" % (r, g.g, r))
        if c:
            k.e("v_add_u32 v%d, 0x%x, v%d" % (r, 4096 * c, r))
        vsh.append(r)
    make_srd(k, SRD_X, ("l", R_H), XBYTES)
    make_srd(k, SRD_O, ("l", R_X1), XBYTES)
    make_srd(k, SRD_R, ("l", R_XA), XBYTES)
    make_srd(k, SRD_S, ("l", ST_XA), STBYTES)
    make_srd(k, SRD_SO, ("l", ST_X1), STBYTES)
    res_issue()
    st_issue()
    stamp(k, g)
    k.e("s_barrier")
    gemm_pre(k, w, KS, R512)
    k.e("s_barrier")
    stamp(k, g)

    def xl(s):
        k.vmem("buffer_load_dwordx4 %s, v%d, %s, 0 offen offset:%d%s" % (vr(X[s], 4), vsh[s // 4], srd(SRD_X), 1024 * (s % 4), LSC), "x%d" % s)
    gemm_loop(k, g, w, KS, MT, lambda s, mt: X[s], acc, xl, mid={BD512: bar(k)})
    k.e("s_barrier")
    stamp(k, g)
    for s_ in interleave(stats_finish(st[0]), swap_pair(res[0]) + swap_pair(res[1])):
        k.e(s_)
    seqs = []
    pk = [X[8], X[9]]
    for u in range(2):
        for t in range(2):
            i = 2 * u + t
            a = acc[u][t][0]
            tt = X[i]
            sq = unpack2(tt, res[u] + 2 * t)
            sq += ["v_pk_fma_f32 %s, %s, %s, %s op_sel:[0,0,1] op_sel_hi:[1,0,1]" % (vr(tt + j, 2), vr(tt + j, 2), vr(st[0], 2), vr(st[0], 2)) for j in (0, 2)]
            sq += add4(a, tt) + pack2(pk[u] + 2 * t, a)
            seqs.append(sq)
    for s_ in interleave(*seqs):
        k.e(s_)
    stats_store(k, g, [pk[u] + i for u in range(2) for i in range(4)], X[10])
    store_pairs(k, vsw, pk)
    signal(k, g, E_X1, 1)
    k.release(mk0)


def p_w3(k, g):
    MT, NU, KS, CS = 2, 3, 16, 4
    mk0 = k.mark()
    vsw = g.vsw
    k.e("s_mov_b32 s%d, s%d" % (S_TOKB, S_TOKW))
    t16_base(k, S_XO, 512)
    w = w_tb(k, g, False, NU, woff512(U_W3), KS)
    k.e("s_mul_i32 s%d, s%d, %d" % (S_OB, S_TOKB, 2752))
    k.e("s_lshl_b32 s%d, s%d, 10" % (S_T0, S_CU3))
    k.e("s_add_u32 s%d, s%d, s%d" % (S_OB, S_OB, S_T0))
    st, st_issue = stats_load(k, g, MT)
    vcs = k.alloc()
    k.e("v_lshlrev_b32 v%d, 4, v%d" % (vcs, g.g))
    X = [[k.alloc(4, 4) for _ in range(KS)] for _ in range(MT)]
    cs = [[X[0][2 * u + tt] for tt in range(2)] for u in range(NU)]
    acc = [[[k.alloc(4, 4) for _ in range(MT)] for _ in range(2)] for _ in range(NU)]
    make_srd(k, SRD_X, ("l", R_X1), XBYTES)
    make_srd(k, SRD_O, ("l", R_H3), S * 2752)
    make_srd(k, SRD_S, ("l", ST_X1), STBYTES)
    stamp(k, g)
    k.e("s_barrier")
    gemm_pre(k, w, KS, 2)
    colsum(k, g, w, X[0][0], "c", U_W3, 1024)
    k.e("s_barrier")
    stamp(k, g)

    def xl(s):
        for mt in range(MT):
            xload(k, g, X[mt][s], 512, mt, s, "x%d" % s)

    def cs_issue():
        st_issue()
        cs_load(k, vcs, cs, 1024, "stat")
        k.e("s_barrier")
    gemm_loop(k, g, w, KS, MT, lambda s, mt: X[mt][s], acc, xl, mid={10: cs_issue})
    k.e("s_barrier")
    stamp(k, g)
    k.wait_vm("stat")
    for s_ in interleave(*[stats_finish(st[mt]) for mt in range(MT)]):
        k.e(s_)
    k.e("s_add_u32 s%d, s%d, %d" % (S_T1, S_OB, 16 * 2752))
    for mt in range(MT):
        seqs = []
        pk = [X[mt][8 + u] for u in range(NU)]
        for u in range(NU):
            for t in range(2):
                i = 2 * u + t
                a = acc[u][t][mt]
                seqs.append(ln_apply(a, cs[u][t], st[mt], X[1][i]) + gelu4(a, X[1][i], pk[u] + 2 * t))
        for s_ in interleave(*seqs):
            k.e(s_)
        for u in range(NU):
            for s_ in swap_pair(pk[u]):
                k.e(s_)
        for u in range(NU):
            k.vmem("buffer_store_dwordx4 %s, v%d, %s, s%d offen offset:%d%s" % (
                vr(pk[u], 4), vsw, srd(SRD_O), S_T1 if mt else S_OB, 1024 * u, DSC), "st")
    signal(k, g, E_H3, 2)
    k.release(mk0)


KCAP4 = 40


def p_w4(k, g):
    MT, NU, KS, CS = 1, 2, 43, 4
    mk0 = k.mark()
    vsw = g.vsw
    k.e("s_mov_b32 s%d, s%d" % (S_TOKB, S_TOKN))
    t16_base(k, S_XO, F)
    out_base(k)
    w = w_tb(k, g, False, NU, woff4, KS)
    X = [k.alloc(4, 4) for _ in range(KS)]
    acc = [[[k.alloc(4, 4)] for _ in range(2)] for _ in range(NU)]
    res, res_issue = res_load(k, vsw, SRD_R, "res", [X[12], X[13]])
    res1, res1_issue = res_load(k, vsw, SRD_R2, "res", [X[14], X[15]])
    vro = k.alloc()
    t = k.alloc()
    k.e("v_add_u32 v%d, s%d, v%d" % (vro, S_TOKB, g.m))
    k.e("v_lshlrev_b32 v%d, 10, v%d" % (vro, vro))
    k.e("v_and_b32 v%d, 1, v%d" % (t, g.g))
    k.e("v_lshl_add_u32 v%d, v%d, 5, v%d" % (vro, t, vro))
    k.e("v_lshrrev_b32 v%d, 1, v%d" % (t, g.g))
    k.e("v_lshl_add_u32 v%d, v%d, 4, v%d" % (vro, t, vro))
    k.e("s_lshl_b32 s%d, s%d, 7" % (S_T0, S_CB))
    k.e("v_add_u32 v%d, s%d, v%d" % (vro, S_T0, vro))
    make_srd(k, SRD_X, ("l", R_H3), S * 2752)
    make_srd(k, SRD_O, ("n", R_XIN), XBYTES)
    make_srd(k, SRD_R, ("l", R_XA), XBYTES)
    make_srd(k, SRD_R2, ("l", R_X1), XBYTES)
    make_srd(k, SRD_SO, ("n", ST_XIN), STBYTES)
    make_srd(k, SRD_S, ("in", OUT), XBYTES)
    stamp(k, g)
    k.e("s_barrier")
    gemm_pre(k, w, KS, 2)
    k.e("s_barrier")
    stamp(k, g)

    def resi():
        res_issue()
        res1_issue()

    gemm_loop(k, g, w, KS, MT, lambda s, mt: X[s], acc, lambda s: xload(k, g, X[s], F, 0, s, "x%d" % s),
              mid={7: bar(k), 15: bar(k), 23: bar(k), 31: bar(k), 32: resi}, pre={KCAP4: bar(k)})
    k.e("s_barrier")
    stamp(k, g)
    k.wait_vm("res")
    for u in range(2):
        for s_ in swap_pair(res[u]) + swap_pair(res1[u]):
            k.e(s_)
    seqs = []
    pk = [X[8], X[9]]
    for u in range(2):
        for t in range(2):
            i = 2 * u + t
            a = acc[u][t][0]
            tt = X[i]
            seqs.append(unpack2(tt, res1[u] + 2 * t) + add4(a, tt) +
                        unpack2(tt, res[u] + 2 * t) + add4(a, tt) + pack2(pk[u] + 2 * t, a))
    for s_ in interleave(*seqs):
        k.e(s_)
    k.e("s_cmp_lg_u32 s%d, 0" % S_LAYER)
    k.e("s_cbranch_scc1 L_last_%s" % k.name)
    stats_store(k, g, [pk[u] + i for u in range(2) for i in range(4)], X[10])
    store_pairs(k, vsw, pk)
    signal(k, g, E_X, 1, nxt=True)
    k.e("s_add_u32 s%d, s%d, 0x%x" % (S_WSL, S_WSL, LSTRIDE))
    k.e("s_addc_u32 s%d, s%d, 0" % (S_WSH, S_WSH))
    k.e("s_mov_b32 s%d, 1" % S_LAYER)
    k.e("s_branch L_layer_%s" % k.name)
    k.label("L_last_%s" % k.name)
    k.e("s_nop 4")
    for u in range(2):
        for s_ in swap_pair(pk[u]):
            k.e(s_)
    for u in range(2):
        k.e("buffer_store_dwordx4 %s, v%d, %s, 0 offen offset:%d" % (vr(pk[u], 4), vro, srd(SRD_S), 64 * u))
    k.release(mk0)


def w_lane(k, g, r, wrow, swz_bit, t, t2):
    k.e("v_lshrrev_b32 v%d, 2, v%d" % (t, g.l))
    k.e("s_mov_b32 s%d, %d" % (S_T0, wrow))
    k.e("v_mul_lo_u32 v%d, s%d, v%d" % (r, S_T0, t))
    k.e("v_lshrrev_b32 v%d, %d, v%d" % (t, 2 + swz_bit - 1, g.l))
    k.e("v_and_b32 v%d, 2, v%d" % (t, t))
    k.e("v_and_b32 v%d, 3, v%d" % (t2, g.l))
    k.e("v_xor_b32 v%d, v%d, v%d" % (t, t, t2))
    k.e("v_lshl_add_u32 v%d, v%d, 4, v%d" % (r, t, r))


def dma(k, vwo, soff, m0off):
    k.e("s_add_u32 s%d, s%d, 0x%x" % (S_T0, S_WBASE, soff))
    k.e("s_mov_b32 m0, 0x%x" % m0off)
    k.e("buffer_load_dwordx4 v%d, %s, s%d offen lds" % (vwo, srd(SRD_W), S_T0))


_pollid = [0]


def poll(k, g, soff_code, nl, expect, va=None, vf=None):
    i = _pollid[0]
    _pollid[0] += 1
    for s_ in soff_code:
        k.e(s_)
    k.e("s_mov_b32 s%d, 0" % S_CNT)
    if nl < 64:
        k.e("s_mov_b32 exec_lo, 0x%x" % (((1 << nl) - 1) & 0xffffffff))
        k.e("s_mov_b32 exec_hi, 0x%x" % (((1 << nl) - 1) >> 32))
    if PRE_SLEEP:
        k.e("s_sleep %d" % PRE_SLEEP)
    k.label("L_poll%d_%s" % (i, k.name))
    k.e("buffer_load_dword v%d, v%d, %s, s%d offen sc1" % (g.pv, g.l4 if va is None else va, srd(SRD_F), S_T2))
    k.e("s_waitcnt vmcnt(0)")
    k.e("v_subrev_u32 v%d, %s, v%d" % (g.pv, "s%d" % S_FP if vf is None else "v%d" % vf, g.pv))
    k.e("v_and_b32 v%d, 0xffffff9f, v%d" % (g.pv, g.pv))
    k.e("v_cmp_ne_u32 vcc, 0, v%d" % g.pv)
    k.e("s_cbranch_vccz L_go%d_%s" % (i, k.name))
    if POLL_SLEEP:
        k.e("s_sleep %d" % POLL_SLEEP)
    k.e("s_add_u32 s%d, s%d, 1" % (S_CNT, S_CNT))
    k.e("s_cmp_lt_u32 s%d, %d" % (S_CNT, POLL_MAX))
    k.e("s_cbranch_scc1 L_poll%d_%s" % (i, k.name))
    k.label("L_go%d_%s" % (i, k.name))
    k.e("s_mov_b64 exec, -1")


def loader(k, g):
    v3072, v1024, v1024k, v2752 = k.alloc(), k.alloc(), k.alloc(), k.alloc()
    t, t2 = k.alloc(), k.alloc()
    g.pv = k.alloc()
    w_lane(k, g, v3072, 3072, 3, t, t2)
    w_lane(k, g, v1024, 1024, 3, t, t2)
    w_lane(k, g, v1024k, 1024, 2, t, t2)
    w_lane(k, g, v2752, 2752, 3, t, t2)
    g.l4 = k.alloc()
    vh = k.alloc()
    k.e("v_lshlrev_b32 v%d, 2, v%d" % (g.l4, g.l))
    k.e("s_lshl_b32 s%d, s%d, 7" % (S_T0, S_RB))
    k.e("s_add_u32 s%d, s%d, 0x%x" % (S_T0, S_T0, 0x2000 * E_H))
    k.e("s_sub_u32 s%d, s%d, %d" % (S_T1, S_T0, 32 + 128))
    k.e("s_lshr_b32 s%d, s%d, 2" % (S_T2, S_RB))
    k.e("s_lshl_b32 s%d, s%d, 8" % (S_T2, S_T2))
    k.e("s_add_u32 s%d, s%d, 0x%x" % (S_T2, S_T2, FL_HX - 128 - 128))
    k.e("s_and_b32 s%d, s%d, 3" % (S_CNT, S_RB))
    k.e("s_cmp_eq_u32 s%d, 0" % S_CNT)
    k.e("s_cselect_b32 s%d, s%d, s%d" % (S_T1, S_T2, S_T1))
    k.e("s_sub_u32 s%d, s%d, 128" % (S_WBASE, S_T0))
    k.e("s_cmp_eq_u32 s%d, 0" % S_RB)
    k.e("s_cselect_b32 s%d, s%d, s%d" % (S_T1, S_WBASE, S_T1))
    k.e("v_mov_b32 v%d, s%d" % (vh, S_T0))
    k.e("v_mov_b32 v%d, s%d" % (t, S_T1))
    k.e("v_cmp_lt_u32 vcc, 31, v%d" % g.l)
    k.e("v_cndmask_b32 v%d, v%d, v%d, vcc" % (vh, vh, t))
    k.e("s_sub_u32 s%d, s%d, 32" % (S_T1, S_T0))
    k.e("s_add_u32 s%d, s%d, %d" % (S_T2, S_T2, 128 + 128 + 256 - 160))
    k.e("s_cmp_eq_u32 s%d, 3" % S_CNT)
    k.e("s_cselect_b32 s%d, s%d, s%d" % (S_T1, S_T2, S_T1))
    k.e("s_sub_u32 s%d, s%d, 160" % (S_WBASE, S_T0))
    k.e("s_cmp_eq_u32 s%d, 31" % S_RB)
    k.e("s_cselect_b32 s%d, s%d, s%d" % (S_T1, S_WBASE, S_T1))
    k.e("v_mov_b32 v%d, s%d" % (t, S_T1))
    k.e("v_cmp_lt_u32 vcc, 39, v%d" % g.l)
    k.e("v_cndmask_b32 v%d, v%d, v%d, vcc" % (vh, vh, t))
    k.e("v_add_u32 v%d, v%d, v%d" % (vh, vh, g.l4))

    vkv = k.alloc()
    k.e("v_lshrrev_b32 v%d, 3, v%d" % (t, g.l))
    k.e("v_and_b32 v%d, 7, v%d" % (t2, g.l))
    k.e("v_lshlrev_b32 v%d, 2, v%d" % (vkv, t2))
    k.e("v_lshl_add_u32 v%d, v%d, 7, v%d" % (vkv, t, vkv))

    def pn(edge, sh):
        return ["s_lshl_b32 s%d, s%d, %d" % (S_T2, S_RB, sh), "s_add_u32 s%d, s%d, 0x%x" % (S_T2, S_T2, 0x2000 * edge)]

    def pw(edge):
        return ["s_lshl_b32 s%d, s%d, 8" % (S_T2, S_RBW), "s_add_u32 s%d, s%d, 0x%x" % (S_T2, S_T2, 0x2000 * edge)]

    vfk, vfh = k.alloc(), k.alloc()
    k.e("v_and_b32 v%d, 0xffffffe0, v%d" % (vfk, g.tmp))
    k.e("v_add_u32 v%d, 0x%x, v%d" % (vfk, NONCE_K - 32, vfk))
    k.e("s_lshr_b32 s%d, s%d, 2" % (S_T0, S_RB))
    k.e("s_lshl_b32 s%d, s%d, 3" % (S_T0, S_T0))
    k.e("s_sub_u32 s%d, s%d, 8" % (S_T1, S_T0))
    k.e("s_and_b32 s%d, s%d, 63" % (S_T1, S_T1))
    k.e("s_add_u32 s%d, s%d, 8" % (S_T2, S_T0))
    k.e("s_and_b32 s%d, s%d, 63" % (S_T2, S_T2))
    k.e("v_readlane_b32 s%d, v%d, s%d" % (S_T1, vfk, S_T1))
    k.e("v_readlane_b32 s%d, v%d, s%d" % (S_T2, vfk, S_T2))
    k.e("s_cmp_eq_u32 s%d, 0" % S_CNT)
    k.e("s_cselect_b32 s%d, s%d, s%d" % (S_T1, S_T1, S_FP))
    k.e("s_cmp_eq_u32 s%d, 0" % S_RB)
    k.e("s_cselect_b32 s%d, s%d, s%d" % (S_T1, S_FP, S_T1))
    k.e("s_cmp_eq_u32 s%d, 3" % S_CNT)
    k.e("s_cselect_b32 s%d, s%d, s%d" % (S_T2, S_T2, S_FP))
    k.e("s_cmp_eq_u32 s%d, 31" % S_RB)
    k.e("s_cselect_b32 s%d, s%d, s%d" % (S_T2, S_FP, S_T2))
    k.e("v_mov_b32 v%d, s%d" % (vfh, S_FP))
    k.e("v_mov_b32 v%d, s%d" % (t, S_T1))
    k.e("v_cmp_lt_u32 vcc, 31, v%d" % g.l)
    k.e("v_cndmask_b32 v%d, v%d, v%d, vcc" % (vfh, vfh, t))
    k.e("v_mov_b32 v%d, s%d" % (t, S_T2))
    k.e("v_cmp_lt_u32 vcc, 39, v%d" % g.l)
    k.e("v_cndmask_b32 v%d, v%d, v%d, vcc" % (vfh, vfh, t))

    def setw(idx, size, sreg, sh):
        make_srd(k, SRD_W, ("in", idx), size)
        k.e("s_lshl_b32 s%d, s%d, %d" % (S_WBASE, sreg, sh))

    def units(vwo, wrow, ucol, ub, us):
        for j in range(8):
            for wv in range(4):
                for u in us:
                    dma(k, vwo, u * ucol + j * 64 * wrow + wv * 16 * wrow, ub[u] + j * 4096 + wv * 1024)

    def d_qkv(us):
        setw(IN_WQKV, 512 * 3072, S_CBW, 6)
        units(v3072, 3072, 1024, U_QKV, us)

    def d_512(idx, vwo, ub, us):
        setw(idx, 512 * 1024, S_CB, 7)
        units(vwo, 1024, 64, ub, us)

    def d_w3(us):
        setw(IN_W3, 512 * 2752, S_CU3, 6)
        units(v2752, 2752, 64, U_W3, us)

    def d_w4(js):
        setw(IN_W4, F * 1024, S_CB, 7)
        for j in js:
            for wv in range(4):
                dma(k, v1024, j * 32 * 1024 + (wv & 1) * 64 + (wv >> 1) * 16384, woff4(wv & 1, j) + (wv >> 1) * 1024)

    def B():
        k.e("s_barrier")

    def phase(soff, nl, va=None, skip0=False, vf=None, cnt=0):
        stamp(k, g, ld=True)
        k.e("s_waitcnt vmcnt(%d)" % cnt)
        stamp(k, g, ld=True)
        k.e("s_barrier")
        if skip0:
            k.e("s_cmp_eq_u32 s%d, 0" % S_LAYER)
            k.e("s_cbranch_scc1 L_sk0_%s" % k.name)
        poll(k, g, soff, nl, 1, va, vf)
        if skip0:
            k.label("L_sk0_%s" % k.name)
        stamp(k, g, ld=True)
        k.e("s_barrier")

    _nl = [0]

    def not_last(f):
        i = _nl[0]
        _nl[0] += 1
        k.e("s_cmp_lg_u32 s%d, 0" % S_LAYER)
        k.e("s_cbranch_scc1 L_nl%d_%s" % (i, k.name))
        f()
        k.label("L_nl%d_%s" % (i, k.name))

    d_qkv([0, 1, 2])
    k.label("L_llayer_%s" % k.name)
    make_srd(k, SRD_F, ("l", R_FL), FLSZ)
    phase(pw(E_X), 64, skip0=True)
    B()
    d_512(IN_WO, v1024k, U_WO, [0, 1])
    B()
    stamp(k, g, ld=True)
    d_512(IN_W1, v1024, U_W1, [0, 1])
    B()
    poll(k, g, ["s_lshl_b32 s%d, s%d, 10" % (S_T2, S_CBW), "s_add_u32 s%d, s%d, 0x%x" % (S_T2, S_T2, FL_KV)], 64, 1, vkv, vfk)
    B()
    B()
    phase(pn(E_O, 8), 64)
    B()
    d_512(IN_W2, v1024, U_W2, [0])
    B()
    stamp(k, g, ld=True)
    phase(pn(E_XA, 7), 32)
    B()
    d_512(IN_W2, v1024, U_W2, [1])
    d_w3([0])
    B()
    stamp(k, g, ld=True)
    phase(["s_mov_b32 s%d, 0" % S_T2], 48, vh, vf=vfh)
    B()
    d_w3([1, 2])
    B()
    stamp(k, g, ld=True)
    phase(pw(E_X1), 64)
    B()
    d_w4(range(0, 16))
    B()
    stamp(k, g, ld=True)
    d_w4(range(16, 40))
    phase(pn(E_H3, 8), 64, cnt=63)
    B()
    not_last(lambda: d_qkv([2]))
    B()
    d_w4(range(40, 43))
    B()
    not_last(lambda: d_qkv([0]))
    B()
    k.e("s_cmp_lg_u32 s%d, 0" % S_LAYER)
    k.e("s_cbranch_scc1 L_lw_%s" % k.name)
    d_qkv([1])
    k.e("s_waitcnt vmcnt(63)")
    B()
    B()
    stamp(k, g, ld=True)
    k.e("s_add_u32 s%d, s%d, 0x%x" % (S_WSL, S_WSL, LSTRIDE))
    k.e("s_addc_u32 s%d, s%d, 0" % (S_WSH, S_WSH))
    k.e("s_mov_b32 s%d, 1" % S_LAYER)
    k.e("s_branch L_llayer_%s" % k.name)
    k.label("L_lw_%s" % k.name)
    k.e("s_waitcnt vmcnt(0)")
    B()
    B()
    if STAMP and STAMPW == 4:
        stamp(k, g, ld=True)
        k.e("s_cmp_lg_u32 s2, %d" % (STAMP - 1))
        k.e("s_cbranch_scc1 L_lf2_%s" % k.name)
        make_srd(k, 8, ("in", DBG), 256)
        k.e("buffer_store_dword v%d, v%d, s[8:11], 0 offen" % (g.vst, g.l4))
        k.label("L_lf2_%s" % k.name)
    k.e("s_and_b32 s%d, s%d, 3" % (S_T0, S_RB))
    k.e("s_or_b32 s%d, s%d, s%d" % (S_T0, S_T0, S_CB))
    k.e("s_cmp_lg_u32 s%d, 0" % S_T0)
    k.e("s_cbranch_scc1 L_end_%s" % k.name)
    make_srd(k, SRD_F, ("ws", R_FL), FLSZ)
    k.e("s_lshl_b32 s%d, s%d, 5" % (S_T0, S_RB))
    k.e("s_add_u32 s%d, s%d, 0x%x" % (S_T0, S_T0, FL_TK))
    k.e("v_mov_b32 v%d, 96" % t)
    k.e("s_mov_b64 exec, 1")
    k.e("buffer_atomic_add v%d, v%d, %s, s%d offen sc1" % (t, g.l64, srd(SRD_F), S_T0))


def k_main(name):
    k = Kern(name)
    g = G()
    k.e("s_cmp_ge_u32 s2, 256")
    k.e("s_cbranch_scc1 L_end_%s" % k.name)
    k.e("s_load_dwordx16 s[64:79], s[0:1], 0")
    k.e("s_load_dwordx8 s[80:87], s[0:1], 64")
    g.w = k.alloc()
    g.l = k.alloc()
    g.g = k.alloc()
    g.m = k.alloc()
    g.lin = k.alloc()
    g.one = k.alloc()
    g.l128 = k.alloc()
    g.vsw = k.alloc()
    g.vst = k.alloc()
    g.l64 = k.alloc()
    g.tmp = 40
    k.e("v_lshrrev_b32 v%d, 6, v0" % g.w)
    k.e("v_and_b32 v%d, 63, v0" % g.l)
    k.e("v_readfirstlane_b32 s%d, v%d" % (S_WAVE, g.w))
    k.e("v_lshrrev_b32 v%d, 4, v%d" % (g.g, g.l))
    k.e("v_and_b32 v%d, 15, v%d" % (g.m, g.l))
    k.e("v_lshlrev_b32 v%d, 4, v%d" % (g.lin, g.l))
    k.e("v_mov_b32 v%d, 1" % g.one)
    k.e("v_lshlrev_b32 v%d, 7, v%d" % (g.l128, g.l))
    k.e("v_lshlrev_b32 v%d, 6, v%d" % (g.l64, g.l))
    k.e("v_mov_b32 v%d, 0" % g.vst)
    k.e("s_mov_b32 s%d, 0" % S_STI)
    k.phase = STAMPG
    stamp(k, g)
    t = g.w
    k.e("v_and_b32 v%d, 1, v%d" % (t, g.g))
    k.e("v_lshlrev_b32 v%d, 9, v%d" % (g.vsw, t))
    k.e("v_lshrrev_b32 v%d, 1, v%d" % (t, g.g))
    k.e("v_lshl_add_u32 v%d, v%d, 8, v%d" % (g.vsw, t, g.vsw))
    k.e("v_lshl_add_u32 v%d, v%d, 4, v%d" % (g.vsw, g.m, g.vsw))
    k.e("s_getreg_b32 s%d, hwreg(HW_REG_XCC_ID)" % S_T0)
    k.e("s_and_b32 s%d, s%d, 7" % (S_T0, S_T0))
    k.e("v_mov_b32 v%d, 0x%x" % (t, LDS_TK))
    k.e("s_cmp_lg_u32 s%d, 4" % S_WAVE)
    k.e("s_cbranch_scc1 L_nt_%s" % k.name)
    k.e("s_lshl_b32 s%d, s%d, 7" % (S_T1, S_T0))
    k.e("s_add_u32 s%d, s%d, 0x%x" % (S_T1, S_T1, FL_TK))
    k.e("s_mov_b32 s%d, 0x%x" % (S_T2, FL_TK))
    k.e("v_lshrrev_b32 v%d, 3, v%d" % (g.tmp, g.l))
    k.e("v_lshlrev_b32 v%d, 7, v%d" % (g.tmp, g.tmp))
    k.e("s_waitcnt lgkmcnt(0)")
    make_srd(k, SRD_F, ("ws", R_FL), FLSZ)
    k.e("s_mov_b64 exec, 1")
    k.e("buffer_atomic_add v%d, v%d, %s, s%d offen sc0 sc1" % (g.one, g.l64, srd(SRD_F), S_T1))
    k.e("s_mov_b64 exec, -1")
    k.e("buffer_load_dword v%d, v%d, %s, s%d offen sc1" % (g.tmp, g.tmp, srd(SRD_F), S_T2))
    k.e("s_mov_b64 exec, 1")
    k.e("s_waitcnt vmcnt(0)")
    k.e("ds_write_b32 v%d, v%d" % (t, g.one))
    k.e("s_mov_b64 exec, -1")
    k.e("s_waitcnt lgkmcnt(0)")
    k.label("L_nt_%s" % k.name)
    k.e("s_barrier")
    k.e("ds_read_b32 v%d, v%d" % (t, t))
    k.e("s_waitcnt lgkmcnt(0)")
    k.e("s_barrier")
    k.e("v_readfirstlane_b32 s%d, v%d" % (S_T1, t))
    k.e("v_and_b32 v%d, 0xffffffe0, v%d" % (g.one, t))
    k.e("v_add_u32 v%d, 0x%x, v%d" % (g.one, NONCE_K, g.one))
    k.e("v_readfirstlane_b32 s%d, v%d" % (S_FP, g.one))
    k.e("s_sub_u32 s%d, s%d, 32" % (S_FP, S_FP))
    k.e("s_and_b32 s%d, s%d, 31" % (S_T1, S_T1))
    k.e("s_lshr_b32 s%d, s%d, 3" % (S_RB, S_T1))
    k.e("s_lshl_b32 s%d, s%d, 2" % (S_T2, S_T0))
    k.e("s_add_u32 s%d, s%d, s%d" % (S_RB, S_RB, S_T2))
    k.e("s_and_b32 s%d, s%d, 7" % (S_CB, S_T1))
    k.e("s_lshr_b32 s%d, s%d, 4" % (S_RBW, S_T1))
    k.e("s_lshl_b32 s%d, s%d, 1" % (S_T2, S_T0))
    k.e("s_add_u32 s%d, s%d, s%d" % (S_RBW, S_RBW, S_T2))
    k.e("s_and_b32 s%d, s%d, 15" % (S_CBW, S_T1))
    k.e("s_lshl_b32 s%d, s%d, 6" % (S_TOKN, S_RB))
    k.e("s_lshl_b32 s%d, s%d, 4" % (S_T0, S_WAVE))
    k.e("s_add_u32 s%d, s%d, s%d" % (S_TOKN, S_TOKN, S_T0))
    k.e("s_lshl_b32 s%d, s%d, 7" % (S_TOKW, S_RBW))
    k.e("s_lshl_b32 s%d, s%d, 5" % (S_T0, S_WAVE))
    k.e("s_add_u32 s%d, s%d, s%d" % (S_TOKW, S_TOKW, S_T0))
    k.e("s_lshl_b32 s%d, s%d, 3" % (S_WGS, S_RB))
    k.e("s_add_u32 s%d, s%d, s%d" % (S_WGS, S_WGS, S_CB))
    k.e("s_lshl_b32 s%d, s%d, 11" % (S_WGS, S_WGS))
    k.e("s_mul_i32 s%d, s%d, 43" % (S_CU3, S_CBW))
    k.e("s_lshr_b32 s%d, s%d, 4" % (S_CU3, S_CU3))
    k.e("s_min_u32 s%d, s%d, 40" % (S_CU3, S_CU3))
    k.e("s_mov_b32 s%d, 0x3f803f80" % S_ONES)
    k.e("s_mov_b32 s%d, 0x%08x" % (S_L2E, f32bits(LOG2E)))
    k.e("s_mov_b32 s%d, 0x%08x" % (S_EPS, f32bits(1e-6)))
    k.e("s_mov_b32 s%d, 0x%08x" % (S_GC, f32bits(-2.0 * LOG2E * math.sqrt(2.0 / math.pi) * 0.044715)))
    k.e("s_mov_b32 s%d, 0x%08x" % (S_GC + 1, f32bits(-2.0 * LOG2E * math.sqrt(2.0 / math.pi))))
    k.e("s_mov_b32 s%d, 0x4000" % S_K16)
    k.e("s_mov_b32 s%d, 0" % S_LAYER)
    stamp(k, g)
    k.e("s_waitcnt lgkmcnt(0)")
    k.e("s_mov_b32 s%d, s%d" % (S_WSL, PTR(WS)))
    k.e("s_mov_b32 s%d, s%d" % (S_WSH, PTR(WS) + 1))
    k.e("s_cmp_eq_u32 s%d, 4" % S_WAVE)
    k.e("s_cbranch_scc1 L_loader_%s" % k.name)
    mk = k.mark()
    k.started = True
    k.label("L_layer_%s" % k.name)
    k.e("s_nop 4")
    k.phase = "qkv"
    p_qkv(k, g)
    k.phase = "wo"
    p_wo(k, g)
    k.phase = "w1"
    p_w1(k, g)
    k.phase = "w2"
    p_w2(k, g)
    k.phase = "w3"
    p_w3(k, g)
    k.phase = "w4"
    p_w4(k, g)
    k.phase = STAMPG
    if STAMP and STAMPW != 4:
        stamp(k, g)
        k.e("s_waitcnt vmcnt(0)")
        stamp(k, g)
        k.e("s_cmp_lg_u32 s2, %d" % (STAMP - 1))
        k.e("s_cbranch_scc1 L_end_%s" % k.name)
        k.e("s_cmp_lg_u32 s%d, 0" % S_WAVE)
        k.e("s_cbranch_scc1 L_end_%s" % k.name)
        make_srd(k, 8, ("in", DBG), 256)
        k.e("v_lshlrev_b32 v%d, 2, v%d" % (g.w, g.l))
        k.e("buffer_store_dword v%d, v%d, s[8:11], 0 offen" % (g.vst, g.w))
    k.e("s_branch L_end_%s" % k.name)
    k.release(mk)
    k.label("L_loader_%s" % k.name)
    k.e("s_waitcnt vmcnt(0)")
    loader(k, g)
    k.label("L_end_%s" % k.name)
    k.e("s_endpgm")
    return k, 256, 320, 163840


HEADER = """; Kernarg layout for this problem (96 bytes, ptrs only, base s[0:1]):
;   offset  88: d_ws      268435456 bytes workspace
"""


def build():
    kernels = [k_main("main_kernel")]
    out = [HEADER.rstrip("\n")]
    for (k, nwg, blk, lds) in kernels:
        out.append("; @launch kernel=%s grid=(%d,1,1) block=(%d,1,1) lds=%d" % (k.name, nwg, blk, lds))
    out.append('.amdgcn_target "amdgcn-amd-amdhsa--gfx950"')
    out.append(".text")
    for (k, nwg, blk, lds) in kernels:
        out.append(".globl %s" % k.name)
        out.append(".p2align 8")
        out.append(".type %s,@function" % k.name)
        out.append("%s:" % k.name)
        out += hazard_pass(k.lines)
    out.append('.section .rodata,"a"')
    for (k, nwg, blk, lds) in kernels:
        nv = (k.maxv + 7) // 8 * 8
        out.append(".p2align 6")
        out.append(".amdhsa_kernel %s" % k.name)
        out.append("  .amdhsa_next_free_vgpr %d" % nv)
        out.append("  .amdhsa_next_free_sgpr 102")
        out.append("  .amdhsa_accum_offset %d" % nv)
        out.append("  .amdhsa_group_segment_fixed_size 0")
        out.append("  .amdhsa_kernarg_size 96")
        out.append("  .amdhsa_user_sgpr_count 2")
        out.append("  .amdhsa_user_sgpr_kernarg_segment_ptr 1")
        out.append("  .amdhsa_system_sgpr_workgroup_id_x 1")
        out.append(".end_amdhsa_kernel")
    return "\n".join(out) + "\n"


if __name__ == "__main__":
    path = sys.argv[1] if len(sys.argv) > 1 else "cdna_kernels/%s.s" % NAME
    open(path, "w").write(build())
    print("wrote", path)
```

```python
import sys
import os
import math
import struct

sys.path.insert(0, os.path.dirname(os.path.abspath(__file__)))
from asmlib import Kern, vr, interleave, hazard_pass

NAME = "interleave_layers__linear_kernel_hedgehog__mixer_s_mlp__prompt"
S, D, F = 2048, 512, 1376

IN_X, IN_WQKV, IN_WPHI, IN_WO, IN_BX, IN_W1, IN_W2, IN_W3, IN_W4, OUT, DBG, WS = range(12)


def PTR(i):
    return 64 + 2 * i


MB = 1 << 20
LSTRIDE = 32 * MB
R_XIN = 0 * MB
R_XA = 2 * MB
R_O = 4 * MB
R_KVP = 6 * MB
R_H = 8 * MB
R_X1 = 10 * MB
R_H3 = 12 * MB
R_ST = 18 * MB
ST_XIN, ST_XA, ST_X1 = [R_ST + i * 0x20000 for i in range(3)]
R_KVA = 19 * MB
R_FL = 20 * MB
FL_HX = 0xC000
FL_KV = 0x10000
FL_TK = 0xE000
FL_GT = 0xE400
FLSZ = 0x20000
NONCE_K = 0x5bd1e900
LDS_CS = 0x1F000
WS_CS = 64 * MB
CS_QKV, CS_W1, CS_W3 = WS_CS, WS_CS + 0x2000, WS_CS + 0x4000
E_X, E_O, E_XA, E_H, E_X1, E_H3 = range(6)
R512 = int(os.environ.get("R512", "6"))
BIG = 0x10000

XBYTES = S * D * 2
STBYTES = 8 * S * 8
LOG2E = 1.4426950408889634
UN = [i * 32768 for i in range(5)]
LDS_SCR = UN[2]
LDS_TK = 0x27F00
LDS_CSX = UN[3]
U_QKV, U_WO, U_W1, U_W2, U_W3 = [UN[0], UN[1], UN[2]], [UN[3], UN[4]], [UN[0], UN[1]], [UN[2], UN[3]], [UN[4], UN[0], UN[1]]
B_W4 = [UN[2], UN[3], UN[0], UN[1], UN[4], UN[3]]


def woff512(ub):
    return lambda u, s: ub[u] + 2048 * s


def woff4(u, s):
    return B_W4[s // 8] + u * 16384 + (s % 8) * 2048

LDS_KV = 0x10000
LDS_Z = 0x18000
POLL_MAX = 40000
PRE_SLEEP = int(os.environ.get("PRE_SLEEP", "0"))
POLL_SLEEP = int(os.environ.get("POLL_SLEEP", "2"))


def f32bits(x):
    return struct.unpack("<I", struct.pack("<f", x))[0]


S_WAVE, S_RB, S_CB, S_RBW, S_CBW, S_T0, S_T1, S_T2 = 32, 33, 34, 35, 36, 37, 38, 39
S_ONES, S_L2E, S_EPS, S_C1, S_C2, S_XO = 40, 41, 42, 43, 44, 45
S_TOKB, S_OB = 46, 47
SRD_X, SRD_W, SRD_O, SRD_R, SRD_R2, SRD_F = 8, 12, 16, 20, 24, 28
SRD_S, SRD_SO = 48, 52
SRD_C = 56
S_WSL, S_WSH, S_LAYER, S_CNT = 60, 61, 62, 63
S_STI, S_TOKN, S_TOKW, S_CU3, S_WBASE, S_K16 = 90, 92, 93, 94, 95, 96
S_GC = 98
S_FP, S_XST, S_WGS = 91, 97, 7

STAMP = int(os.environ.get("STAMP", "0"))
DSC = os.environ.get("DSC", " sc1")
LSC = os.environ.get("LSC", "")
ASC = os.environ.get("ASC", "")


def make_srd(k, slot, buf, size):
    kind = buf[0]
    if kind == "ws":
        k.e("s_add_u32 s%d, s%d, 0x%x" % (slot, PTR(WS), buf[1]))
        k.e("s_addc_u32 s%d, s%d, 0" % (slot + 1, PTR(WS) + 1))
    elif kind == "l":
        k.e("s_add_u32 s%d, s%d, 0x%x" % (slot, S_WSL, buf[1]))
        k.e("s_addc_u32 s%d, s%d, 0" % (slot + 1, S_WSH))
    elif kind == "n":
        k.e("s_add_u32 s%d, s%d, 0x%x" % (slot, S_WSL, buf[1] + LSTRIDE))
        k.e("s_addc_u32 s%d, s%d, 0" % (slot + 1, S_WSH))
    else:
        idx = buf[1]
        k.e("s_mov_b32 s%d, s%d" % (slot, PTR(idx)))
        k.e("s_mov_b32 s%d, s%d" % (slot + 1, PTR(idx) + 1))
    k.e("s_mov_b32 s%d, 0x%x" % (slot + 2, size))
    k.e("s_mov_b32 s%d, 0x00020000" % (slot + 3))


def srd(slot):
    return "s[%d:%d]" % (slot, slot + 3)


class G:
    pass


STAMPG = os.environ.get("STAMPG", "")


STAMPW = int(os.environ.get("STAMPW", "0"))


def stamp(k, g, fine=False, ld=False):
    if not STAMP:
        return
    if ld != (STAMPW == 4) and getattr(k, "started", False):
        return
    if STAMPG and getattr(k, "phase", "") != STAMPG:
        return
    if fine and not STAMPG:
        return
    k.e("s_memtime s[88:89]")
    k.e("s_waitcnt lgkmcnt(0)")
    k.e("s_mov_b32 m0, s%d" % S_STI)
    k.e("s_nop 0")
    k.e("v_writelane_b32 v%d, s88, m0" % g.vst)
    k.e("s_add_u32 s%d, s%d, 1" % (S_STI, S_STI))


def allreduce(x, t, op):
    return [
        "v_mov_b32 v%d, v%d" % (t, x),
        "v_permlane32_swap_b32 v%d, v%d" % (x, t),
        "%s v%d, v%d, v%d" % (op, x, x, t),
        "v_mov_b32 v%d, v%d" % (t, x),
        "v_permlane16_swap_b32 v%d, v%d" % (x, t),
        "%s v%d, v%d, v%d" % (op, x, x, t),
    ]


def stats_finish(st, double=False, part=True):
    o = []
    s_, q_, t0, t1 = st, st + 1, st + 2, st + 3
    if part:
        o.append("v_add_f32 v%d, v%d, v%d" % (s_, st, st + 2))
        o.append("v_add_f32 v%d, v%d, v%d" % (q_, st + 1, st + 3))
    o += interleave(allreduce(s_, t0, "v_add_f32"), allreduce(q_, t1, "v_add_f32"))
    o.append("v_mul_f32 v%d, 0x%08x, v%d" % (s_, f32bits(1.0 / 512), s_))
    o.append("v_mul_f32 v%d, 0x%08x, v%d" % (q_, f32bits(1.0 / 512), q_))
    o.append("v_fma_f32 v%d, -v%d, v%d, v%d" % (q_, s_, s_, q_))
    o.append("v_max_f32 v%d, 0, v%d" % (q_, q_))
    o.append("v_add_f32 v%d, 0x%08x, v%d" % (t0, f32bits(1e-5), q_))
    o.append("v_rsq_f32 v%d, v%d" % (t0, t0))
    if double:
        o.append("v_mul_f32 v%d, v%d, v%d" % (t1, t0, t0))
        o.append("v_mul_f32 v%d, v%d, v%d" % (t1, t1, q_))
        o.append("v_add_f32 v%d, 0x%08x, v%d" % (t1, f32bits(1e-5), t1))
        o.append("v_rsq_f32 v%d, v%d" % (t1, t1))
        o.append("s_nop 0")
        o.append("v_mul_f32 v%d, v%d, v%d" % (t0, t0, t1))
    o.append("v_mul_f32 v%d, v%d, v%d" % (st + 1, s_, t0))
    o.append("v_sub_f32 v%d, 0, v%d" % (st + 1, st + 1))
    o.append("v_mov_b32 v%d, v%d" % (st, t0))
    return o


def gelu4(a, t, dst):
    o = []
    P = lambda r: vr(r, 2)
    gc = "s[%d:%d]" % (S_GC, S_GC + 1)
    for i in (0, 2):
        o.append("v_pk_mul_f32 %s, %s, %s" % (P(t + i), P(a + i), P(a + i)))
    for i in (0, 2):
        o.append("v_pk_fma_f32 %s, %s, %s, %s op_sel:[0,0,1] op_sel_hi:[1,0,1]" % (P(t + i), P(t + i), gc, gc))
    for i in (0, 2):
        o.append("v_pk_mul_f32 %s, %s, %s" % (P(t + i), P(t + i), P(a + i)))
    for i in range(4):
        o.append("v_exp_f32 v%d, v%d" % (t + i, t + i))
    for i in (0, 2):
        o.append("v_pk_add_f32 %s, %s, 1.0 op_sel_hi:[1,0]" % (P(t + i), P(t + i)))
    for i in range(4):
        o.append("v_rcp_f32 v%d, v%d" % (t + i, t + i))
    for i in (0, 2):
        o.append("v_pk_mul_f32 %s, %s, %s" % (P(t + i), P(t + i), P(a + i)))
    o.append("v_cvt_pk_bf16_f32 v%d, v%d, v%d" % (dst, t, t + 1))
    o.append("v_cvt_pk_bf16_f32 v%d, v%d, v%d" % (dst + 1, t + 2, t + 3))
    return o


def ln_apply(a, cs, st, t):
    o = []
    P = lambda r: vr(r, 2)
    assert a % 2 == 0 and cs % 2 == 0 and st % 2 == 0 and t % 2 == 0
    for i in (0, 2):
        o.append("v_pk_mul_f32 %s, %s, %s op_sel:[0,1] op_sel_hi:[1,1]" % (P(t + i), P(cs + i), P(st)))
    for i in (0, 2):
        o.append("v_pk_fma_f32 %s, %s, %s, %s op_sel_hi:[1,0,1]" % (P(a + i), P(a + i), P(st), P(t + i)))
    return o


class W:
    pass


def w_tb(k, g, k2map, NU, woff, KS):
    w = W()
    w.NU = NU
    w.woff = woff
    w.k2map = k2map
    w.tb = {}
    w.his = sorted({woff(u, s) >> 16 for u in range(NU) for s in range(KS)})
    b0 = k.alloc()
    b1 = k.alloc()
    t = k.alloc()
    t2 = k.alloc()
    k.e("v_and_b32 v%d, 3, v%d" % (t2, g.l))
    k.e("v_lshrrev_b32 v%d, 2, v%d" % (t, g.l))
    k.e("v_and_b32 v%d, 3, v%d" % (t, t))
    k.e("v_lshlrev_b32 v%d, 6, v%d" % (t, t))
    k.e("v_lshl_add_u32 v%d, v%d, 3, v%d" % (t, t2, t))
    k.e("v_lshl_add_u32 v%d, v%d, %d, v%d" % (t, g.g, 8 if k2map else 9, t))
    h0 = w.his[0]
    if h0:
        k.e("v_add_u32 v%d, 0x%x, v%d" % (t, 65536 * h0, t))
    k.e("v_and_b32 v%d, 1, v%d" % (t2, g.g))
    k.e("v_lshl_add_u32 v%d, v%d, 5, v%d" % (b0, t2, t))
    k.e("v_xor_b32 v%d, 1, v%d" % (t2, t2))
    k.e("v_lshl_add_u32 v%d, v%d, 5, v%d" % (b1, t2, t))
    w.tb[(0, h0)] = b0
    w.tb[(1, h0)] = b1
    pool = [t, t2]
    for h in w.his[1:]:
        for tt in (0, 1):
            r = pool.pop() if pool else k.alloc()
            k.e("v_add_u32 v%d, 0x%x, v%d" % (r, 65536 * (h - h0), w.tb[(tt, h0)]))
            w.tb[(tt, h)] = r
    return w


def tr_reads(k, w, dst, u, t, s):
    for hs in (0, 1):
        off = w.woff(u, s) + (1024 if w.k2map else 256) * hs
        h, o = off >> 16, off & 0xffff
        k.e("ds_read_b64_tr_b16 %s, v%d offset:%d" % (vr(dst + 2 * hs, 2), w.tb[(t, h)], o))


def gemm_pre(k, w, KS, R):
    frags = [(u, t) for u in range(w.NU) for t in (0, 1)]
    w.R = R
    w.wb = [[k.alloc(4, 4) for _ in frags] for _ in range(R)]
    for s in range(min(R, KS)):
        for i, (u, t) in enumerate(frags):
            tr_reads(k, w, w.wb[s][i], u, t, s)


XD = int(os.environ.get("XD", "12"))
BD512 = int(os.environ.get("BD512", "4"))


def gemm_loop(k, g, w, KS, MT, xfrag, acc, xl, mid=None, pre=None, extra=None):
    NU = w.NU
    frags = [(u, t) for u in range(NU) for t in (0, 1)]
    n = len(frags)
    R = w.R
    wb = w.wb
    first = set()
    D = XD // MT
    for s in range(min(D, KS)):
        xl(s)
    for s in range(KS):
        later = min(R - 1, KS - 1 - s)
        k.wait_vm("x%d" % s, " lgkmcnt(%d)" % min(15, later * 2 * n))
        if s % 4 == 0:
            stamp(k, g, True)
        if pre and (s + R) in pre:
            pre[s + R]()
        ex = list(extra(s)) if extra else []
        nm = n * MT
        done = 0
        for i, (u, t) in enumerate(frags):
            for mt in range(MT):
                a = acc[u][t][mt]
                cin = vr(a, 4) if (u, t, mt) in first else "0"
                first.add((u, t, mt))
                k.e("v_mfma_f32_16x16x32_bf16 %s, %s, %s, %s" % (vr(a, 4), vr(wb[s % R][i], 4), vr(xfrag(s, mt), 4), cin))
                j = i * MT + mt + 1
                upto = (len(ex) * j + nm - 1) // nm
                for e_ in ex[done:upto]:
                    k.e(e_)
                done = max(done, upto)
            if i == 0 and s + D < KS:
                xl(s + D)
            if s + R < KS:
                tr_reads(k, w, wb[s % R][i], u, t, s + R)
        if mid and s in mid:
            mid[s]()
    return [r for l in wb for r in l]


def t16_base(k, sreg, K):
    k.e("s_mul_i32 s%d, s%d, %d" % (sreg, S_TOKB, K * 2))


def xload(k, g, dst, K, mt, s, tag):
    off = mt * K * 32 + s * 1024
    hi, lo = off // 4096 * 4096, off % 4096
    sr = (S_T1, S_T2)[mt]
    if getattr(k, "_xhi", None) is None:
        k._xhi = {}
    if k._xhi.get(mt) != hi:
        k.e("s_add_u32 s%d, s%d, 0x%x" % (sr, S_XO, hi))
        k._xhi[mt] = hi
    k.vmem("buffer_load_dwordx4 %s, v%d, %s, s%d offen offset:%d%s" % (vr(dst, 4), g.lin, srd(SRD_X), sr, lo, LSC), tag)


def stats_load(k, g, MT):
    v = k.alloc()
    k.e("v_add_u32 v%d, s%d, v%d" % (v, S_TOKB, g.m))
    k.e("v_lshlrev_b32 v%d, 3, v%d" % (v, v))
    k.e("v_lshl_add_u32 v%d, v%d, 15, v%d" % (v, g.g, v))
    st = [k.alloc(4, 4) for _ in range(MT)]

    def issue(dst=None):
        f = k.vmem if dst is None else (lambda a, b: k.e(a))
        dst = st if dst is None else dst
        for mt in range(MT):
            f("buffer_load_dwordx2 %s, v%d, %s, 0 offen offset:%d" % (vr(dst[mt], 2), v, srd(SRD_S), 128 * mt), "stat")
            f("buffer_load_dwordx2 %s, v%d, %s, s%d offen offset:%d" % (vr(dst[mt] + 2, 2), v, srd(SRD_S), S_K16, 128 * mt), "stat")
    return st, issue


def swap_pair(p):
    return ["v_permlane16_swap_b32 v%d, v%d" % (p, p + 2), "v_permlane16_swap_b32 v%d, v%d" % (p + 1, p + 3)]


def unpack2(dst, src):
    return [
        "v_lshlrev_b32 v%d, 16, v%d" % (dst, src),
        "v_and_b32 v%d, 0xffff0000, v%d" % (dst + 1, src),
        "v_lshlrev_b32 v%d, 16, v%d" % (dst + 2, src + 1),
        "v_and_b32 v%d, 0xffff0000, v%d" % (dst + 3, src + 1),
    ]


def pack2(dst, src):
    return [
        "v_cvt_pk_bf16_f32 v%d, v%d, v%d" % (dst, src, src + 1),
        "v_cvt_pk_bf16_f32 v%d, v%d, v%d" % (dst + 1, src + 2, src + 3),
    ]


def round4(a):
    return ["v_cvt_pk_bf16_f32 v%d, v%d, v%d" % (a, a, a + 1),
            "v_cvt_pk_bf16_f32 v%d, v%d, v%d" % (a + 2, a + 2, a + 3),
            "v_and_b32 v%d, 0xffff0000, v%d" % (a + 1, a),
            "v_and_b32 v%d, 0xffff0000, v%d" % (a + 3, a + 2),
            "v_lshlrev_b32 v%d, 16, v%d" % (a, a),
            "v_lshlrev_b32 v%d, 16, v%d" % (a + 2, a + 2)]


def add4(a, b):
    return ["v_pk_add_f32 %s, %s, %s" % (vr(a + i, 2), vr(a + i, 2), vr(b + i, 2)) for i in (0, 2)]


def stats_store(k, g, packed, t):
    s_, q_, t0, t1 = t, t + 1, t + 2, t + 3
    for i, r in enumerate(packed):
        k.e("v_dot2_f32_bf16 v%d, v%d, s%d, %s" % (s_, r, S_ONES, "0" if i == 0 else "v%d" % s_))
        k.e("v_dot2_f32_bf16 v%d, v%d, v%d, %s" % (q_, r, r, "0" if i == 0 else "v%d" % q_))
    for s in interleave(allreduce(s_, t0, "v_add_f32"), allreduce(q_, t1, "v_add_f32")):
        k.e(s)
    k.e("v_add_u32 v%d, s%d, v%d" % (t0, S_TOKB, g.m))
    k.e("v_lshlrev_b32 v%d, 3, v%d" % (t0, t0))
    k.e("s_lshl_b32 s%d, s%d, 14" % (S_T0, S_CB))
    k.e("s_mov_b64 exec, 0xffff")
    k.vmem("buffer_store_dwordx2 %s, v%d, %s, s%d offen%s" % (vr(s_, 2), t0, srd(SRD_SO), S_T0, DSC), "st")
    k.e("s_mov_b64 exec, -1")


def signal(k, g, edge, nblk, nxt=False):
    make_srd(k, SRD_F, ("n" if nxt else "l", R_FL), FLSZ)
    if nblk == 1:
        k.e("s_lshl_b32 s%d, s%d, 1" % (S_T0, S_TOKB))
        k.e("s_lshl_b32 s%d, s%d, 2" % (S_T1, S_CB))
    else:
        k.e("s_lshl_b32 s%d, s%d, 2" % (S_T0, S_TOKB))
        k.e("s_lshl_b32 s%d, s%d, 2" % (S_T1, S_CBW))
    k.e("s_add_u32 s%d, s%d, s%d" % (S_T0, S_T0, S_T1))
    k.e("s_add_u32 s%d, s%d, 0x%x" % (S_T0, S_T0, 0x2000 * edge))
    k.e("s_mov_b64 exec, %d" % ((1 << nblk) - 1))
    k.e("s_waitcnt vmcnt(0)")
    k.e("buffer_store_dword v%d, v%d, %s, s%d offen" % (g.one, g.l64, srd(SRD_F), S_T0))
    k.e("s_mov_b64 exec, -1")
    k.vm = []
    k._xhi = None


def softmax_pair(p, t, outp):
    mx, mn, t0, t1 = t, t + 1, t + 2, t + 3
    ep = [t + 4 + i for i in range(4)]
    em = [t + 8 + i for i in range(4)]
    o = []
    o.append("v_max3_f32 v%d, v%d, v%d, v%d" % (mx, p, p + 1, p + 2))
    o.append("v_min3_f32 v%d, v%d, v%d, v%d" % (mn, p, p + 1, p + 2))
    o.append("v_max_f32 v%d, v%d, v%d" % (mx, mx, p + 3))
    o.append("v_min_f32 v%d, v%d, v%d" % (mn, mn, p + 3))
    o += interleave(allreduce(mx, t0, "v_max_f32"), allreduce(mn, t1, "v_min_f32"))
    o.append("v_mul_f32 v%d, s%d, v%d" % (mx, S_L2E, mx))
    o.append("v_mul_f32 v%d, s%d, v%d" % (mn, S_L2E, mn))
    for i in range(4):
        o.append("v_fma_f32 v%d, v%d, s%d, -v%d" % (ep[i], p + i, S_L2E, mx))
        o.append("v_fma_f32 v%d, -v%d, s%d, v%d" % (em[i], p + i, S_L2E, mn))
    for i in range(4):
        o.append("v_exp_f32 v%d, v%d" % (ep[i], ep[i]))
        o.append("v_exp_f32 v%d, v%d" % (em[i], em[i]))
    sp, sm = mx, mn
    o.append("v_add_f32 v%d, v%d, v%d" % (sp, ep[0], ep[1]))
    o.append("v_add_f32 v%d, v%d, v%d" % (sm, em[0], em[1]))
    o.append("v_add_f32 v%d, v%d, v%d" % (t0, ep[2], ep[3]))
    o.append("v_add_f32 v%d, v%d, v%d" % (t1, em[2], em[3]))
    o.append("v_add_f32 v%d, v%d, v%d" % (sp, sp, t0))
    o.append("v_add_f32 v%d, v%d, v%d" % (sm, sm, t1))
    o += interleave(allreduce(sp, t0, "v_add_f32"), allreduce(sm, t1, "v_add_f32"))
    o.append("v_rcp_f32 v%d, v%d" % (sp, sp))
    o.append("v_rcp_f32 v%d, v%d" % (sm, sm))
    o.append("s_nop 0")
    for i in range(4):
        o.append("v_mul_f32 v%d, v%d, v%d" % (ep[i], ep[i], sp))
        o.append("v_mul_f32 v%d, v%d, v%d" % (em[i], em[i], sm))
    o.append("v_cvt_pk_bf16_f32 v%d, v%d, v%d" % (outp, ep[0], ep[1]))
    o.append("v_cvt_pk_bf16_f32 v%d, v%d, v%d" % (outp + 1, ep[2], ep[3]))
    o.append("v_cvt_pk_bf16_f32 v%d, v%d, v%d" % (outp + 2, em[0], em[1]))
    o.append("v_cvt_pk_bf16_f32 v%d, v%d, v%d" % (outp + 3, em[2], em[3]))
    return o


def xin_srd(k, slot):
    k.e("s_add_u32 s%d, s%d, 0x%x" % (slot, S_WSL, R_XIN))
    k.e("s_addc_u32 s%d, s%d, 0" % (slot + 1, S_WSH))
    k.e("s_cmp_eq_u32 s%d, 0" % S_LAYER)
    k.e("s_cselect_b32 s%d, s%d, s%d" % (slot, PTR(IN_X), slot))
    k.e("s_cselect_b32 s%d, s%d, s%d" % (slot + 1, PTR(IN_X) + 1, slot + 1))
    k.e("s_mov_b32 s%d, 0x%x" % (slot + 2, XBYTES))
    k.e("s_mov_b32 s%d, 0x00020000" % (slot + 3))


_csid = [0]


def cs_load(k, vcs, cs, poff, tag, dummy):
    i = _csid[0]
    _csid[0] += 1
    k.e("s_cmp_lg_u32 s%d, 0" % S_LAYER)
    k.e("s_cbranch_scc1 L_csa%d_%s" % (i, k.name))
    k.e("v_add_u32 v%d, 0x%x, v%d" % (dummy + 4, LDS_CSX, vcs))
    for u in range(len(cs)):
        for tt in range(2):
            k.e("ds_read_b128 %s, v%d offset:%d" % (vr(cs[u][tt], 4), dummy + 4, (2 * u + tt) * 64))
    for u in range(len(cs)):
        for tt in range(2):
            k.e("buffer_load_dwordx4 %s, v%d, %s, s%d offen offset:%d" % (
                vr(dummy, 4), vcs, srd(SRD_C), S_WGS, poff + (2 * u + tt) * 64))
    k.e("s_waitcnt lgkmcnt(0)")
    k.e("s_branch L_csb%d_%s" % (i, k.name))
    k.label("L_csa%d_%s" % (i, k.name))
    for u in range(len(cs)):
        for tt in range(2):
            k.vmem("buffer_load_dwordx4 %s, v%d, %s, s%d offen offset:%d" % (
                vr(cs[u][tt], 4), vcs, srd(SRD_C), S_WGS, poff + (2 * u + tt) * 64), tag)
    k.label("L_csb%d_%s" % (i, k.name))


def colsum(k, g, w, xb, tag, ub, poff):
    R = 4
    ones, ca, vb, vo, vl = xb, xb + 4, xb + 8, xb + 9, xb + 10
    ring = [xb + 12 + 4 * i for i in range(R)]
    h0 = w.his[0]
    k.e("s_cmp_lg_u32 s%d, 0" % S_LAYER)
    k.e("s_cbranch_scc1 L_csf%s_%s" % (tag, k.name))
    for i in range(4):
        k.e("v_mov_b32 v%d, 0x3f803f80" % (ones + i))
    k.e("s_and_b32 s%d, s%d, 1" % (S_T0, S_WAVE))
    k.e("s_lshl_b32 s%d, s%d, 5" % (S_T0, S_T0))
    k.e("v_xor_b32 v%d, s%d, v%d" % (vb, S_T0, w.tb[(0, h0)]))
    k.e("s_cmp_ge_u32 s%d, 2" % S_WAVE)
    k.e("s_cselect_b32 s%d, 0x%x, 0x%x" % (S_T0, (ub[1] - 65536 * h0) & 0xffffffff, (ub[0] - 65536 * h0) & 0xffffffff))
    k.e("v_add_u32 v%d, s%d, v%d" % (vb, S_T0, vb))
    k.e("s_lshl_b32 s%d, s%d, 6" % (S_T0, S_WAVE))
    k.e("v_lshl_add_u32 v%d, v%d, 4, s%d" % (vo, g.g, S_T0))
    k.e("v_add_u32 v%d, 0x%x, v%d" % (vl, LDS_CSX, vo))
    for rnd in range(2 if w.NU == 3 else 1):
        if rnd:
            k.e("s_cmp_ge_u32 s%d, 2" % S_WAVE)
            k.e("s_cbranch_scc1 L_cse%s_%s" % (tag, k.name))
            k.e("v_add_u32 v%d, 0x%x, v%d" % (vb, (ub[2] - ub[0]) & 0xffffffff, vb))

        def rd(s_):
            for hs in (0, 1):
                k.e("ds_read_b64_tr_b16 %s, v%d offset:%d" % (vr(ring[s_ % R] + 2 * hs, 2), vb, 2048 * s_ + 256 * hs))
        for s_ in range(R - 1):
            rd(s_)
        for s_ in range(16):
            if s_ + R - 1 < 16:
                rd(s_ + R - 1)
            k.e("s_waitcnt lgkmcnt(%d)" % (2 * min(R - 1, 15 - s_)))
            k.e("v_mfma_f32_16x16x32_bf16 %s, %s, %s, %s" % (vr(ca, 4), vr(ring[s_ % R], 4), vr(ones, 4), vr(ca, 4) if s_ else "0"))
        k.e("s_mov_b32 exec_lo, 0x00010001")
        k.e("s_mov_b32 exec_hi, 0x00010001")
        k.e("ds_write_b128 v%d, %s offset:%d" % (vl, vr(ca, 4), 256 * rnd))
        k.e("buffer_store_dwordx4 %s, v%d, %s, s%d offen offset:%d" % (vr(ca, 4), vo, srd(SRD_C), S_WGS, poff + 256 * rnd))
        k.e("s_mov_b64 exec, -1")
        if rnd == 0 and w.NU == 3:
            ca = xb + 28
    if w.NU == 3:
        k.label("L_cse%s_%s" % (tag, k.name))
    k.e("s_waitcnt lgkmcnt(0)")
    k.label("L_csf%s_%s" % (tag, k.name))
    k.e("s_nop 4")


def bar(k):
    return lambda: k.e("s_barrier")


def p_qkv(k, g):
    MT, NU, KS, CS = 2, 3, 16, 4
    mk = k.mark()
    k.e("s_mov_b32 s%d, s%d" % (S_TOKB, S_TOKW))
    t16_base(k, S_XO, 512)
    w = w_tb(k, g, False, NU, woff512(U_QKV), KS)
    vph = k.alloc()
    k.e("v_lshlrev_b32 v%d, 7, v%d" % (vph, g.g))
    k.e("v_lshl_add_u32 v%d, v%d, 1, v%d" % (vph, g.m, vph))
    k.e("s_lshl_b32 s%d, s%d, 10" % (S_T0, S_CBW))
    k.e("v_add_u32 v%d, s%d, v%d" % (vph, S_T0, vph))
    st, st_issue = stats_load(k, g, MT)
    vcs = k.alloc()
    k.e("v_lshlrev_b32 v%d, 4, v%d" % (vcs, g.g))
    k.e("s_cmp_eq_u32 s%d, 0" % S_LAYER)
    k.e("s_cselect_b32 s%d, 64, 1024" % S_XST)
    k.e("s_cselect_b64 s[100:101], 0, -1")
    X = [[k.alloc(4, 4) for _ in range(KS)] for _ in range(MT)]
    cs = [[X[0][2 * u + tt] for tt in range(2)] for u in range(NU)]
    wphi = [X[0][6], X[0][6] + 2]
    wphi_hi = [X[0][7], X[0][7] + 2]
    acc = [[[k.alloc(4, 4) for _ in range(MT)] for _ in range(2)] for _ in range(NU)]
    xin_srd(k, SRD_X)
    make_srd(k, SRD_R, ("in", IN_WPHI), 32 * 512)
    make_srd(k, SRD_O, ("l", R_O), XBYTES)
    make_srd(k, SRD_R2, ("l", R_KVP), 2 * MB)
    make_srd(k, SRD_S, ("l", ST_XIN), STBYTES)
    make_srd(k, SRD_C, ("ws", WS_CS), 256 * 2048)
    make_srd(k, SRD_F, ("l", R_FL), FLSZ)

    def xl(s):
        k.e("s_mov_b64 exec, s[100:101]")
        for mt in range(MT):
            xload(k, g, X[mt][s], 512, mt, s, "x%d" % s)
        k.e("s_mov_b64 exec, -1")

    k.e("s_cmp_lg_u32 s%d, 0" % S_LAYER)
    k.e("s_cbranch_scc1 L_np_%s" % k.name)
    for mt in range(MT):
        for r in range(16):
            xload(k, g, X[mt][r], 512, mt, r, "r%d_%d" % (mt, r // 4))
    k._xhi = None
    ab = acc[0][0][0]
    ones4, mS, mQ = ab, [ab + 4, ab + 8], [ab + 12, ab + 16]
    vwb, vrd, tw = ab + 20, [ab + 21 + i for i in range(4)], [ab + 25 + i for i in range(4)]
    k.e("s_lshl_b32 s%d, s%d, 14" % (S_T0, S_WAVE))
    k.e("s_add_u32 s%d, s%d, 0x%x" % (S_T0, S_T0, UN[3]))
    k.e("v_add_u32 v%d, s%d, v%d" % (vwb, S_T0, g.lin))
    for b_ in range(4):
        k.e("v_add_u32 v%d, %d, v%d" % (vrd[b_], 4 * b_, g.g))
        k.e("v_xor_b32 v%d, v%d, v%d" % (vrd[b_], vrd[b_], g.m))
        k.e("v_lshlrev_b32 v%d, 4, v%d" % (vrd[b_], vrd[b_]))
        k.e("v_lshl_add_u32 v%d, v%d, 10, v%d" % (vrd[b_], g.m, vrd[b_]))
        k.e("v_add_u32 v%d, s%d, v%d" % (vrd[b_], S_T0, vrd[b_]))
    for i in range(4):
        k.e("v_mov_b32 v%d, 0x3f803f80" % (ones4 + i))
    for mt in range(MT):
        for r in range(16):
            if r % 4 == 0:
                k.wait_vm("r%d_%d" % (mt, r // 4))
            k.e("v_xor_b32 v%d, %d, v%d" % (tw[r % 4], 16 * r, vwb))
            k.e("ds_write_b128 v%d, %s offset:%d" % (tw[r % 4], vr(X[mt][r], 4), 1024 * r))
        k.e("s_waitcnt lgkmcnt(0)")
        for s in range(KS):
            k.e("ds_read_b128 %s, v%d offset:%d" % (vr(X[mt][s], 4), vrd[s % 4], 256 * (s // 4)))
        for s in range(KS):
            k.e("s_waitcnt lgkmcnt(%d)" % (KS - 1 - s))
            k.e("v_mfma_f32_16x16x32_bf16 %s, %s, %s, %s" % (vr(mS[mt], 4), vr(ones4, 4), vr(X[mt][s], 4), vr(mS[mt], 4) if s else "0"))
            k.e("v_mfma_f32_16x16x32_bf16 %s, %s, %s, %s" % (vr(mQ[mt], 4), vr(X[mt][s], 4), vr(X[mt][s], 4), vr(mQ[mt], 4) if s else "0"))
    k.e("v_and_b32 v%d, 3, v%d" % (tw[0], g.m))
    k.e("v_lshrrev_b32 v%d, 2, v%d" % (tw[1], g.m))
    for mt in range(MT):
        k.e("v_mul_f32 v%d, 0.25, v%d" % (st[mt], mS[mt]))
        k.e("v_mov_b32 v%d, 0" % (st[mt] + 2))
        k.e("v_mov_b32 v%d, 0" % (st[mt] + 3))
    for j in range(1, 4):
        k.e("v_cmp_eq_u32 vcc, %d, v%d" % (j, tw[0]))
        for mt in range(MT):
            k.e("v_cndmask_b32 v%d, v%d, v%d, vcc" % (mQ[mt], mQ[mt], mQ[mt] + j))
    k.e("v_cmp_eq_u32 vcc, v%d, v%d" % (tw[1], g.g))
    for mt in range(MT):
        k.e("v_cndmask_b32 v%d, 0, v%d, vcc" % (st[mt] + 1, mQ[mt]))
    k.vm = []
    k.label("L_np_%s" % k.name)
    k.e("s_nop 4")
    stamp(k, g)
    k.e("s_barrier")
    gemm_pre(k, w, KS, 2)
    colsum(k, g, w, ab, "q", U_QKV, 0)
    k.e("s_barrier")
    stamp(k, g)

    def ph_issue():
        k.e("s_mov_b64 exec, s[100:101]")
        st_issue()
        k.e("s_mov_b64 exec, -1")
        cs_load(k, vcs, cs, 0, "stat", X[1][0])
        for hh in range(2):
            for j in range(4):
                k.vmem("buffer_load_ushort v%d, v%d, %s, 0 offen offset:%d" % (
                    (wphi[hh] if j & 1 == 0 else wphi_hi[hh]) + (j >> 1), vph, srd(SRD_R), 512 * hh + 32 * j), "stat")
        k.e("s_barrier")
    wbr = gemm_loop(k, g, w, KS, MT, lambda s, mt: X[mt][s], acc, xl, mid={10: ph_issue})
    k.e("s_barrier")
    stamp(k, g)
    xb = X[0][0]
    pool = [xb + 32]

    def ta(n, al=2):
        b = (pool[0] + al - 1) // al * al
        pool[0] = b + n
        assert pool[0] <= xb + 128
        return b

    ident = ta(2)
    ones = ta(2)
    t = ta(1)
    t2 = ta(1)
    k.e("v_mov_b32 v%d, 0x3f803f80" % ones)
    k.e("v_mov_b32 v%d, 0x3f803f80" % (ones + 1))
    k.e("v_and_b32 v%d, 1, v%d" % (t, g.m))
    k.e("v_lshlrev_b32 v%d, 4, v%d" % (t, t))
    k.e("v_mov_b32 v%d, 0x3f80" % t2)
    k.e("v_lshlrev_b32 v%d, v%d, v%d" % (t2, t, t2))
    k.e("v_lshrrev_b32 v%d, 2, v%d" % (t, g.m))
    k.e("v_cmp_eq_u32 vcc, v%d, v%d" % (t, g.g))
    k.e("v_cndmask_b32 v%d, 0, v%d, vcc" % (t2, t2))
    k.e("v_and_b32 v%d, 2, v%d" % (t, g.m))
    k.e("v_cmp_eq_u32 vcc, 0, v%d" % t)
    k.e("v_cndmask_b32 v%d, 0, v%d, vcc" % (ident, t2))
    k.e("v_cndmask_b32 v%d, v%d, 0, vcc" % (ident + 1, t2))
    k.e("s_lshl_b32 s%d, s%d, 13" % (S_T0, S_WAVE))
    k.e("s_add_u32 s%d, s%d, 0x%x" % (S_T0, S_T0, LDS_SCR))
    k.e("v_add_u32 v%d, s%d, v%d" % (t, S_T0, g.lin))
    k.e("s_lshr_b32 s%d, s%d, 1" % (S_T0, S_WAVE))
    k.e("s_lshl_b32 s%d, s%d, 12" % (S_T0, S_T0))
    k.e("s_and_b32 s%d, s%d, 1" % (S_T1, S_WAVE))
    k.e("s_lshl_b32 s%d, s%d, 10" % (S_T1, S_T1))
    k.e("s_add_u32 s%d, s%d, s%d" % (S_T0, S_T0, S_T1))
    k.e("s_add_u32 s%d, s%d, 0x%x" % (S_T0, S_T0, LDS_SCR))
    k.e("v_add_u32 v%d, s%d, v%d" % (t2, S_T0, g.lin))
    k.wait_vm("stat")
    for s_ in interleave(*[stats_finish(st[mt]) for mt in range(MT)]):
        k.e(s_)
    for hh in range(2):
        for j in range(2):
            k.e("v_lshl_or_b32 v%d, v%d, 16, v%d" % (wphi[hh] + j, wphi_hi[hh] + j, wphi[hh] + j))
    kvacc = [[wbr[4 * hh + b] for b in range(4)] for hh in range(2)]
    C4 = [(mt, hh) for mt in range(MT) for hh in range(2)]
    oq = [wbr[8 + c] for c in range(4)]
    kb = [ta(2) for _ in C4]
    vb = [ta(2) for _ in C4]
    T = [ta(12, 4) for _ in C4]
    ok = [ta(4, 4) for _ in C4]
    seqs = []
    for c, (mt, hh) in enumerate(C4):
        a = acc[1][hh][mt]
        seqs.append(ln_apply(a, cs[1][hh], st[mt], T[c]) + pack2(kb[c], a))
        a = acc[2][hh][mt]
        seqs.append(ln_apply(a, cs[2][hh], st[mt], T[c] + 4) + pack2(vb[c], a))
    for s_ in interleave(*seqs):
        k.e(s_)
    pk = [acc[1][hh][mt] for (mt, hh) in C4]
    tv = [acc[2][hh][mt] for (mt, hh) in C4]
    for c, (mt, hh) in enumerate(C4):
        k.e("v_mfma_f32_16x16x16_bf16 %s, %s, %s, 0" % (vr(pk[c], 4), vr(wphi[hh], 2), vr(kb[c], 2)))
    for c in range(4):
        k.e("v_mfma_f32_16x16x16_bf16 %s, %s, %s, 0" % (vr(tv[c], 4), vr(vb[c], 2), vr(ident, 2)))
    for s_ in interleave(*[softmax_pair(pk[c], T[c], ok[c]) for c in range(4)]):
        k.e(s_)
    for c in range(4):
        k.e("v_mfma_f32_16x16x16_bf16 %s, %s, %s, 0" % (vr(T[c], 4), vr(ok[c], 2), vr(ident, 2)))
        k.e("v_mfma_f32_16x16x16_bf16 %s, %s, %s, 0" % (vr(T[c] + 4, 4), vr(ok[c] + 2, 2), vr(ident, 2)))
    for c in range(4):
        for s_ in pack2(vb[c], tv[c]):
            k.e(s_)
    for c in range(4):
        for s_ in pack2(T[c] + 8, T[c]) + pack2(T[c] + 10, T[c] + 4):
            k.e(s_)
    for c, (mt, hh) in enumerate(C4):
        kk = kvacc[hh]
        for (dst, a_, b_) in ((kk[0], T[c] + 8, vb[c]), (kk[1], T[c] + 10, vb[c]), (kk[2], T[c] + 8, ones), (kk[3], T[c] + 10, ones)):
            k.e("v_mfma_f32_16x16x16_bf16 %s, %s, %s, %s" % (
                vr(dst, 4), vr(a_, 2), vr(b_, 2), "0" if mt == 0 else vr(dst, 4)))
    for hh in range(2):
        for b in range(4):
            k.e("ds_write_b128 v%d, %s offset:%d" % (t, vr(kvacc[hh][b], 4), (hh * 4 + b) * 1024))
    seqs = []
    for c, (mt, hh) in enumerate(C4):
        a = acc[0][hh][mt]
        seqs.append(ln_apply(a, cs[0][hh], st[mt], T[c]) + pack2(kb[c], a))
    qa = interleave(*seqs)
    for c, (mt, hh) in enumerate(C4):
        qa.append("v_mfma_f32_16x16x16_bf16 %s, %s, %s, 0" % (vr(acc[0][hh][mt], 4), vr(wphi[hh], 2), vr(kb[c], 2)))
    qb = interleave(*[softmax_pair(acc[0][hh][mt], T[c], oq[c]) for c, (mt, hh) in enumerate(C4)])
    k.e("s_waitcnt lgkmcnt(0)")
    k.e("s_barrier")
    rk = [acc[1][hh][mt] for (mt, hh) in C4]
    rz = [acc[2][hh][mt] for (mt, hh) in C4]
    for ww in range(4):
        k.e("ds_read_b128 %s, v%d offset:%d" % (vr(rk[ww], 4), t2, ww * 8192))
        k.e("ds_read_b128 %s, v%d offset:%d" % (vr(rz[ww], 4), t2, ww * 8192 + 2048))
    k.e("s_lshl_b32 s%d, s%d, 2" % (S_T2, S_CBW))
    k.e("s_add_u32 s%d, s%d, s%d" % (S_T2, S_T2, S_WAVE))
    k.e("s_lshl_b32 s%d, s%d, 4" % (S_T2, S_T2))
    k.e("s_add_u32 s%d, s%d, s%d" % (S_T0, S_T2, S_RBW))
    k.e("s_lshl_b32 s%d, s%d, 7" % (S_T1, S_T0))
    k.e("s_add_u32 s%d, s%d, 0x%x" % (S_T1, S_T1, MB))
    k.e("s_lshl_b32 s%d, s%d, 10" % (S_T0, S_T0))
    for s_ in qa[:40]:
        k.e(s_)
    k.e("s_waitcnt lgkmcnt(0)")
    for R_ in (rk, rz):
        for i in (0, 2):
            k.e("v_pk_add_f32 %s, %s, %s" % (vr(R_[0] + i, 2), vr(R_[0] + i, 2), vr(R_[1] + i, 2)))
            k.e("v_pk_add_f32 %s, %s, %s" % (vr(R_[2] + i, 2), vr(R_[2] + i, 2), vr(R_[3] + i, 2)))
    for R_ in (rk, rz):
        for i in (0, 2):
            k.e("v_pk_add_f32 %s, %s, %s" % (vr(R_[0] + i, 2), vr(R_[0] + i, 2), vr(R_[2] + i, 2)))
    k.e("buffer_store_dwordx4 %s, v%d, %s, s%d offen sc1" % (vr(rk[0], 4), g.lin, srd(SRD_R2), S_T0))
    k.e("s_mov_b32 exec_lo, 0x00010001")
    k.e("s_mov_b32 exec_hi, 0x00010001")
    k.e("buffer_store_dwordx4 %s, v%d, %s, s%d offen sc1" % (vr(rz[0], 4), vcs, srd(SRD_R2), S_T1))
    k.e("s_mov_b64 exec, -1")
    k.e("s_lshl_b32 s%d, s%d, 10" % (S_T0, S_CBW))
    k.e("s_lshr_b32 s%d, s%d, 1" % (S_T1, S_RBW))
    k.e("s_lshl_b32 s%d, s%d, 7" % (S_T1, S_T1))
    k.e("s_add_u32 s%d, s%d, s%d" % (S_T0, S_T0, S_T1))
    k.e("s_and_b32 s%d, s%d, 1" % (S_T1, S_RBW))
    k.e("s_lshl_b32 s%d, s%d, 2" % (S_T1, S_T1))
    k.e("s_add_u32 s%d, s%d, s%d" % (S_T1, S_T1, S_WAVE))
    k.e("s_lshl_b32 s%d, s%d, 2" % (S_T1, S_T1))
    k.e("s_add_u32 s%d, s%d, s%d" % (S_T0, S_T0, S_T1))
    k.e("s_add_u32 s%d, s%d, 0x%x" % (S_T0, S_T0, FL_KV))
    rest = qa[40:] + qb
    QS = int(os.environ.get("QSPLIT", "110"))
    for s_ in rest[:QS]:
        k.e(s_)
    k.e("s_mov_b64 exec, 1")
    k.e("s_waitcnt vmcnt(0)")
    k.e("buffer_store_dword v%d, v%d, %s, s%d offen sc1" % (g.one, g.l128, srd(SRD_F), S_T0))
    k.e("s_mov_b64 exec, -1")
    for s_ in rest[QS:]:
        k.e(s_)
    vw_, vr_ = acc[1][0][0], acc[1][0][0] + 1
    k.e("s_lshr_b32 s%d, s%d, 1" % (S_T0, S_WAVE))
    k.e("s_lshl_b32 s%d, s%d, 11" % (S_T0, S_T0))
    k.e("s_and_b32 s%d, s%d, 1" % (S_T1, S_WAVE))
    k.e("s_lshl_b32 s%d, s%d, 3" % (S_T1, S_T1))
    k.e("s_add_u32 s%d, s%d, s%d" % (S_T0, S_T0, S_T1))
    k.e("s_add_u32 s%d, s%d, 0x%x" % (S_T0, S_T0, LDS_SCR))
    k.e("v_add_u32 v%d, s%d, v%d" % (vw_, S_T0, g.lin))
    k.e("v_add_u32 v%d, 0x%x, v%d" % (vr_, LDS_SCR, g.lin))
    k.e("s_lshl_b32 s%d, s%d, 10" % (S_T0, S_T2))
    k.e("s_lshl_b32 s%d, s%d, 7" % (S_T1, S_T2))
    k.e("s_add_u32 s%d, s%d, 0x%x" % (S_T1, S_T1, MB))
    k.e("s_lshl_b32 s%d, s%d, 10" % (S_OB, S_TOKB))
    k.e("s_lshl_b32 s%d, s%d, 10" % (S_T2, S_CBW))
    k.e("s_add_u32 s%d, s%d, s%d" % (S_OB, S_OB, S_T2))
    stamp(k, g)
    k.e("s_barrier")
    stamp(k, g)
    k.vm = []
    P = [xb + 4 * r for r in range(16)]
    Z = [xb + 64 + 4 * r for r in range(16)]
    for r in range(16):
        if r and r % 4 == 0:
            k.e("s_add_u32 s%d, s%d, 4096" % (S_T0, S_T0))
        k.vmem("buffer_load_dwordx4 %s, v%d, %s, s%d offen offset:%d" % (vr(P[r], 4), g.lin, srd(SRD_R2), S_T0, (r % 4) * 1024), "p%d" % (r // 4))
        k.vmem("buffer_load_dwordx4 %s, v%d, %s, s%d offen offset:%d" % (vr(Z[r], 4), vcs, srd(SRD_R2), S_T1, r * 128), "p%d" % (r // 4))
    for q in range(4):
        k.wait_vm("p%d" % q)
        for R_ in (P, Z):
            for i in (0, 2):
                k.e("v_pk_add_f32 %s, %s, %s" % (vr(R_[4 * q] + i, 2), vr(R_[4 * q] + i, 2), vr(R_[4 * q + 1] + i, 2)))
                k.e("v_pk_add_f32 %s, %s, %s" % (vr(R_[4 * q + 2] + i, 2), vr(R_[4 * q + 2] + i, 2), vr(R_[4 * q + 3] + i, 2)))
        for R_ in (P, Z):
            for i in (0, 2):
                k.e("v_pk_add_f32 %s, %s, %s" % (vr(R_[4 * q] + i, 2), vr(R_[4 * q] + i, 2), vr(R_[4 * q + 2] + i, 2)))
        if q:
            for R_ in (P, Z):
                for i in (0, 2):
                    k.e("v_pk_add_f32 %s, %s, %s" % (vr(R_[0] + i, 2), vr(R_[0] + i, 2), vr(R_[4 * q] + i, 2)))
    for s_ in pack2(P[1], P[0]) + pack2(Z[1], Z[0]):
        k.e(s_)
    k.e("ds_write_b64 v%d, %s" % (vw_, vr(P[1], 2)))
    k.e("ds_write_b64 v%d, %s offset:1024" % (vw_, vr(Z[1], 2)))
    k.e("s_waitcnt lgkmcnt(0)")
    k.e("s_barrier")
    kvf = [P[2], P[3]]
    zf = [P[4], P[5]]
    for hh in range(2):
        k.e("ds_read_b128 %s, v%d offset:%d" % (vr(kvf[hh], 4), vr_, hh * 2048))
        k.e("ds_read_b128 %s, v%d offset:%d" % (vr(zf[hh], 4), vr_, hh * 2048 + 1024))
    num = [Z[c] for c in range(4)]
    den = [Z[4 + c] for c in range(4)]
    O = [Z[8], Z[9]]
    k.e("s_waitcnt lgkmcnt(0)")
    for c, (mt, hh) in enumerate(C4):
        k.e("v_mfma_f32_16x16x32_bf16 %s, %s, %s, 0" % (vr(den[c], 4), vr(zf[hh], 4), vr(oq[c], 4)))
    for c, (mt, hh) in enumerate(C4):
        k.e("v_mfma_f32_16x16x32_bf16 %s, %s, %s, 0" % (vr(num[c], 4), vr(kvf[hh], 4), vr(oq[c], 4)))
    for c in range(4):
        k.e("v_add_f32 v%d, s%d, v%d" % (den[c], S_EPS, den[c]))
    for c in range(4):
        k.e("v_rcp_f32 v%d, v%d" % (den[c], den[c]))
    for c in range(4):
        for j in range(4):
            k.e("v_mul_f32 v%d, v%d, v%d" % (num[c] + j, num[c] + j, den[c]))
    for c, (mt, hh) in enumerate(C4):
        for s_ in pack2(O[mt] + 2 * hh, num[c]):
            k.e(s_)
    k.e("s_add_u32 s%d, s%d, 0x4000" % (S_T1, S_OB))
    for mt in range(MT):
        k.vmem("buffer_store_dwordx4 %s, v%d, %s, s%d offen%s" % (vr(O[mt], 4), g.lin, srd(SRD_O), S_T1 if mt else S_OB, DSC), "st")
    signal(k, g, E_O, 2)
    k.release(mk)


def out_base(k):
    k.e("s_lshl_b32 s%d, s%d, 10" % (S_OB, S_TOKB))
    k.e("s_lshl_b32 s%d, s%d, 11" % (S_T0, S_CB))
    k.e("s_add_u32 s%d, s%d, s%d" % (S_OB, S_OB, S_T0))


def res_load(k, vsw, slot, tag, regs=None):
    r = regs if regs is not None else [k.alloc(4, 4) for _ in range(2)]

    def issue():
        for u in range(2):
            k.vmem("buffer_load_dwordx4 %s, v%d, %s, s%d offen offset:%d" % (vr(r[u], 4), vsw, srd(slot), S_OB, 1024 * u), tag)
    return r, issue


def store_pairs(k, vsw, pk, swap=True, mod=DSC):
    for u in range(2):
        for s_ in swap_pair(pk[u]) if swap else []:
            k.e(s_)
    for u in range(2):
        k.vmem("buffer_store_dwordx4 %s, v%d, %s, s%d offen offset:%d%s" % (vr(pk[u], 4), vsw, srd(SRD_O), S_OB, 1024 * u, mod), "st")


def p_wo(k, g):
    MT, NU, KS, CS = 1, 2, 16, 4
    mk0 = k.mark()
    vsw = g.vsw
    k.e("s_mov_b32 s%d, s%d" % (S_TOKB, S_TOKN))
    t16_base(k, S_XO, 512)
    out_base(k)
    w = w_tb(k, g, True, NU, woff512(U_WO), KS)
    X = [k.alloc(4, 4) for _ in range(KS)]
    acc = [[[k.alloc(4, 4)] for _ in range(2)] for _ in range(NU)]
    res = [k.alloc(4, 4) for _ in range(2)]
    vres, t = k.alloc(), k.alloc()
    k.e("v_and_b32 v%d, 1, v%d" % (t, g.g))
    k.e("v_lshlrev_b32 v%d, 10, v%d" % (vres, g.m))
    k.e("v_lshl_add_u32 v%d, v%d, 5, v%d" % (vres, t, vres))
    k.e("v_lshrrev_b32 v%d, 1, v%d" % (t, g.g))
    k.e("v_lshl_add_u32 v%d, v%d, 4, v%d" % (vres, t, vres))
    k.e("s_lshl_b32 s%d, s%d, 10" % (S_T1, S_TOKB))
    k.e("s_lshl_b32 s%d, s%d, 7" % (S_T0, S_CB))
    k.e("s_add_u32 s%d, s%d, s%d" % (S_T1, S_T1, S_T0))
    make_srd(k, SRD_X, ("l", R_O), XBYTES)
    xin_srd(k, SRD_R)
    k.e("s_cselect_b64 vcc, -1, 0")
    k.e("s_cselect_b32 s%d, s%d, s%d" % (S_T1, S_T1, S_OB))
    k.e("s_add_u32 s%d, s%d, s%d" % (S_T2, S_T1, S_XST))
    k.e("v_cndmask_b32 v%d, v%d, v%d, vcc" % (vres, vsw, vres))
    make_srd(k, SRD_O, ("l", R_XA), XBYTES)
    make_srd(k, SRD_SO, ("l", ST_XA), STBYTES)
    for u in range(2):
        k.vmem("buffer_load_dwordx4 %s, v%d, %s, s%d offen" % (vr(res[u], 4), vres, srd(SRD_R), (S_T1, S_T2)[u]), "res")
    stamp(k, g)
    k.e("s_barrier")
    gemm_pre(k, w, KS, R512)
    k.e("s_barrier")
    stamp(k, g)
    gemm_loop(k, g, w, KS, MT, lambda s, mt: X[s], acc, lambda s: xload(k, g, X[s], 512, 0, s, "x%d" % s), mid={BD512: bar(k)})
    k.e("s_barrier")
    stamp(k, g)
    seqs = []
    pk = [X[8], X[9]]
    for u in range(2):
        for s_ in swap_pair(res[u]):
            k.e(s_)
    for u in range(2):
        for t in range(2):
            i = 2 * u + t
            a = acc[u][t][0]
            tt = X[i]
            seqs.append(unpack2(tt, res[u] + 2 * t) + add4(a, tt) + pack2(pk[u] + 2 * t, a))
    for s_ in interleave(*seqs):
        k.e(s_)
    stats_store(k, g, [pk[u] + i for u in range(2) for i in range(4)], X[10])
    store_pairs(k, vsw, pk)
    signal(k, g, E_XA, 1)
    k.release(mk0)


def p_w1(k, g):
    MT, NU, KS, CS = 1, 2, 16, 4
    mk0 = k.mark()
    vsw = g.vsw
    t16_base(k, S_XO, 512)
    w = w_tb(k, g, False, NU, woff512(U_W1), KS)
    X = [k.alloc(4, 4) for _ in range(KS)]
    acc = [[[k.alloc(4, 4)] for _ in range(2)] for _ in range(NU)]
    st, st_issue = stats_load(k, g, MT)
    vcs = k.alloc()
    k.e("v_lshlrev_b32 v%d, 4, v%d" % (vcs, g.g))
    cs = [[k.alloc(4, 4) for _ in range(2)] for _ in range(2)]
    make_srd(k, SRD_X, ("l", R_XA), XBYTES)
    make_srd(k, SRD_O, ("l", R_H), XBYTES)
    make_srd(k, SRD_S, ("l", ST_XA), STBYTES)
    stamp(k, g)
    k.e("s_barrier")
    gemm_pre(k, w, KS, R512)
    colsum(k, g, w, X[0], "a", U_W1, 512)
    k.e("s_barrier")
    stamp(k, g)

    def m4():
        st_issue()
        cs_load(k, vcs, cs, 512, "stat", X[0])
        k.e("s_barrier")
    gemm_loop(k, g, w, KS, MT, lambda s, mt: X[s], acc, lambda s: xload(k, g, X[s], 512, 0, s, "x%d" % s), mid={BD512: m4})
    k.e("s_barrier")
    stamp(k, g)
    k.wait_vm("stat")
    for s_ in stats_finish(st[0], double=True):
        k.e(s_)
    seqs = []
    pk = [X[8], X[9]]
    for u in range(2):
        for t in range(2):
            i = 2 * u + t
            a = acc[u][t][0]
            seqs.append(ln_apply(a, cs[u][t], st[0], X[i]) + gelu4(a, X[i], pk[u] + 2 * t))
    for s_ in interleave(*seqs):
        k.e(s_)
    for u in range(2):
        for s_ in swap_pair(pk[u]):
            k.e(s_)
    k.e("s_add_u32 s%d, s%d, 16" % (S_T0, S_TOKB))
    k.e("s_and_b32 s%d, s%d, 0xe0" % (S_T0, S_T0))
    k.e("s_cmp_eq_u32 s%d, 0" % S_T0)
    k.e("s_cbranch_scc1 L_hb_%s" % k.name)
    store_pairs(k, vsw, pk, swap=False)
    k.e("s_branch L_hc_%s" % k.name)
    k.label("L_hb_%s" % k.name)
    store_pairs(k, vsw, pk, swap=False, mod=" sc1")
    make_srd(k, SRD_F, ("l", R_FL), FLSZ)
    k.e("s_lshr_b32 s%d, s%d, 8" % (S_T0, S_TOKB))
    k.e("s_lshl_b32 s%d, s%d, 8" % (S_T0, S_T0))
    k.e("s_bfe_u32 s%d, s%d, 0x10004" % (S_T1, S_TOKB))
    k.e("s_lshl_b32 s%d, s%d, 7" % (S_T1, S_T1))
    k.e("s_add_u32 s%d, s%d, s%d" % (S_T0, S_T0, S_T1))
    k.e("s_lshl_b32 s%d, s%d, 2" % (S_T1, S_CB))
    k.e("s_add_u32 s%d, s%d, s%d" % (S_T0, S_T0, S_T1))
    k.e("s_add_u32 s%d, s%d, 0x%x" % (S_T0, S_T0, FL_HX))
    k.e("s_mov_b64 exec, 1")
    k.e("s_waitcnt vmcnt(0)")
    k.e("buffer_store_dword v%d, v%d, %s, s%d offen sc1" % (g.one, g.l64, srd(SRD_F), S_T0))
    k.e("s_mov_b64 exec, -1")
    k.label("L_hc_%s" % k.name)
    signal(k, g, E_H, 1)
    k.release(mk0)


def p_w2(k, g):
    MT, NU, KS, CS = 1, 2, 16, 4
    mk0 = k.mark()
    vsw = g.vsw
    w = w_tb(k, g, False, NU, woff512(U_W2), KS)
    X = [k.alloc(4, 4) for _ in range(KS)]
    acc = [[[k.alloc(4, 4)] for _ in range(2)] for _ in range(NU)]
    res, res_issue = res_load(k, vsw, SRD_R, "stat")
    st, st_issue = stats_load(k, g, MT)
    vsh = []
    t = k.alloc()
    for c, d in enumerate((-1, 1, -2, 2)):
        r = k.alloc()
        k.e("s_add_i32 s%d, s%d, %d" % (S_T0, S_TOKB, d))
        k.e("v_add_u32 v%d, s%d, v%d" % (t, S_T0, g.m))
        k.e("v_ashrrev_i32 v%d, 4, v%d" % (r, t))
        k.e("v_lshlrev_b32 v%d, 14, v%d" % (r, r))
        k.e("v_and_b32 v%d, 15, v%d" % (t, t))
        k.e("v_lshl_add_u32 v%d, v%d, 4, v%d" % (r, t, r))
        k.e("v_lshl_add_u32 v%d, v%d, 8, v%d" % (r, g.g, r))
        if c:
            k.e("v_add_u32 v%d, 0x%x, v%d" % (r, 4096 * c, r))
        vsh.append(r)
    make_srd(k, SRD_X, ("l", R_H), XBYTES)
    make_srd(k, SRD_O, ("l", R_X1), XBYTES)
    make_srd(k, SRD_R, ("l", R_XA), XBYTES)
    make_srd(k, SRD_S, ("l", ST_XA), STBYTES)
    make_srd(k, SRD_SO, ("l", ST_X1), STBYTES)
    res_issue()
    st_issue()
    stamp(k, g)
    k.e("s_barrier")
    gemm_pre(k, w, KS, R512)
    k.e("s_barrier")
    stamp(k, g)

    def xl(s):
        k.vmem("buffer_load_dwordx4 %s, v%d, %s, 0 offen offset:%d%s" % (vr(X[s], 4), vsh[s // 4], srd(SRD_X), 1024 * (s % 4), LSC), "x%d" % s)
    gemm_loop(k, g, w, KS, MT, lambda s, mt: X[s], acc, xl, mid={BD512: bar(k)})
    k.e("s_barrier")
    stamp(k, g)
    for s_ in interleave(stats_finish(st[0]), swap_pair(res[0]) + swap_pair(res[1])):
        k.e(s_)
    seqs = []
    pk = [X[8], X[9]]
    for u in range(2):
        for t in range(2):
            i = 2 * u + t
            a = acc[u][t][0]
            tt = X[i]
            sq = unpack2(tt, res[u] + 2 * t)
            sq += ["v_pk_fma_f32 %s, %s, %s, %s op_sel:[0,0,1] op_sel_hi:[1,0,1]" % (vr(tt + j, 2), vr(tt + j, 2), vr(st[0], 2), vr(st[0], 2)) for j in (0, 2)]
            sq += add4(a, tt) + pack2(pk[u] + 2 * t, a)
            seqs.append(sq)
    for s_ in interleave(*seqs):
        k.e(s_)
    stats_store(k, g, [pk[u] + i for u in range(2) for i in range(4)], X[10])
    store_pairs(k, vsw, pk)
    signal(k, g, E_X1, 1)
    k.release(mk0)


def p_w3(k, g):
    MT, NU, KS, CS = 2, 3, 16, 4
    mk0 = k.mark()
    vsw = g.vsw
    k.e("s_mov_b32 s%d, s%d" % (S_TOKB, S_TOKW))
    t16_base(k, S_XO, 512)
    w = w_tb(k, g, False, NU, woff512(U_W3), KS)
    k.e("s_mul_i32 s%d, s%d, %d" % (S_OB, S_TOKB, 2752))
    k.e("s_lshl_b32 s%d, s%d, 10" % (S_T0, S_CU3))
    k.e("s_add_u32 s%d, s%d, s%d" % (S_OB, S_OB, S_T0))
    st, st_issue = stats_load(k, g, MT)
    vcs = k.alloc()
    k.e("v_lshlrev_b32 v%d, 4, v%d" % (vcs, g.g))
    X = [[k.alloc(4, 4) for _ in range(KS)] for _ in range(MT)]
    cs = [[X[0][2 * u + tt] for tt in range(2)] for u in range(NU)]
    acc = [[[k.alloc(4, 4) for _ in range(MT)] for _ in range(2)] for _ in range(NU)]
    make_srd(k, SRD_X, ("l", R_X1), XBYTES)
    make_srd(k, SRD_O, ("l", R_H3), S * 2752)
    make_srd(k, SRD_S, ("l", ST_X1), STBYTES)
    stamp(k, g)
    k.e("s_barrier")
    gemm_pre(k, w, KS, 2)
    colsum(k, g, w, X[0][0], "c", U_W3, 1024)
    k.e("s_barrier")
    stamp(k, g)

    def xl(s):
        for mt in range(MT):
            xload(k, g, X[mt][s], 512, mt, s, "x%d" % s)

    def cs_issue():
        st_issue()
        cs_load(k, vcs, cs, 1024, "stat", X[1][0])
        k.e("s_barrier")
    gemm_loop(k, g, w, KS, MT, lambda s, mt: X[mt][s], acc, xl, mid={10: cs_issue})
    k.e("s_barrier")
    stamp(k, g)
    k.wait_vm("stat")
    for s_ in interleave(*[stats_finish(st[mt]) for mt in range(MT)]):
        k.e(s_)
    k.e("s_add_u32 s%d, s%d, %d" % (S_T1, S_OB, 16 * 2752))
    for mt in range(MT):
        seqs = []
        pk = [X[mt][8 + u] for u in range(NU)]
        for u in range(NU):
            for t in range(2):
                i = 2 * u + t
                a = acc[u][t][mt]
                seqs.append(ln_apply(a, cs[u][t], st[mt], X[1][i]) + gelu4(a, X[1][i], pk[u] + 2 * t))
        for s_ in interleave(*seqs):
            k.e(s_)
        for u in range(NU):
            for s_ in swap_pair(pk[u]):
                k.e(s_)
        for u in range(NU):
            k.vmem("buffer_store_dwordx4 %s, v%d, %s, s%d offen offset:%d%s" % (
                vr(pk[u], 4), vsw, srd(SRD_O), S_T1 if mt else S_OB, 1024 * u, DSC), "st")
    signal(k, g, E_H3, 2)
    k.release(mk0)


KCAP4 = 40


def p_w4(k, g):
    MT, NU, KS, CS = 1, 2, 43, 4
    mk0 = k.mark()
    vsw = g.vsw
    k.e("s_mov_b32 s%d, s%d" % (S_TOKB, S_TOKN))
    t16_base(k, S_XO, F)
    out_base(k)
    w = w_tb(k, g, False, NU, woff4, KS)
    X = [k.alloc(4, 4) for _ in range(KS)]
    acc = [[[k.alloc(4, 4)] for _ in range(2)] for _ in range(NU)]
    res, res_issue = res_load(k, vsw, SRD_R, "res", [X[12], X[13]])
    res1, res1_issue = res_load(k, vsw, SRD_R2, "res", [X[14], X[15]])
    vro = k.alloc()
    t = k.alloc()
    k.e("v_add_u32 v%d, s%d, v%d" % (vro, S_TOKB, g.m))
    k.e("v_lshlrev_b32 v%d, 10, v%d" % (vro, vro))
    k.e("v_and_b32 v%d, 1, v%d" % (t, g.g))
    k.e("v_lshl_add_u32 v%d, v%d, 5, v%d" % (vro, t, vro))
    k.e("v_lshrrev_b32 v%d, 1, v%d" % (t, g.g))
    k.e("v_lshl_add_u32 v%d, v%d, 4, v%d" % (vro, t, vro))
    k.e("s_lshl_b32 s%d, s%d, 7" % (S_T0, S_CB))
    k.e("v_add_u32 v%d, s%d, v%d" % (vro, S_T0, vro))
    make_srd(k, SRD_X, ("l", R_H3), S * 2752)
    make_srd(k, SRD_O, ("n", R_XIN), XBYTES)
    make_srd(k, SRD_R, ("l", R_XA), XBYTES)
    make_srd(k, SRD_R2, ("l", R_X1), XBYTES)
    make_srd(k, SRD_SO, ("n", ST_XIN), STBYTES)
    make_srd(k, SRD_S, ("in", OUT), XBYTES)
    stamp(k, g)
    k.e("s_barrier")
    gemm_pre(k, w, KS, 2)
    k.e("s_barrier")
    stamp(k, g)

    def resi():
        res_issue()
        res1_issue()

    gemm_loop(k, g, w, KS, MT, lambda s, mt: X[s], acc, lambda s: xload(k, g, X[s], F, 0, s, "x%d" % s),
              mid={7: bar(k), 15: bar(k), 23: bar(k), 31: bar(k), 32: resi}, pre={KCAP4: bar(k)})
    k.e("s_barrier")
    stamp(k, g)
    k.wait_vm("res")
    for u in range(2):
        for s_ in swap_pair(res[u]) + swap_pair(res1[u]):
            k.e(s_)
    seqs = []
    pk = [X[8], X[9]]
    for u in range(2):
        for t in range(2):
            i = 2 * u + t
            a = acc[u][t][0]
            tt = X[i]
            seqs.append(unpack2(tt, res1[u] + 2 * t) + add4(a, tt) +
                        unpack2(tt, res[u] + 2 * t) + add4(a, tt) + pack2(pk[u] + 2 * t, a))
    for s_ in interleave(*seqs):
        k.e(s_)
    k.e("s_cmp_lg_u32 s%d, 0" % S_LAYER)
    k.e("s_cbranch_scc1 L_last_%s" % k.name)
    stats_store(k, g, [pk[u] + i for u in range(2) for i in range(4)], X[10])
    store_pairs(k, vsw, pk)
    signal(k, g, E_X, 1, nxt=True)
    k.e("s_add_u32 s%d, s%d, 0x%x" % (S_WSL, S_WSL, LSTRIDE))
    k.e("s_addc_u32 s%d, s%d, 0" % (S_WSH, S_WSH))
    k.e("s_mov_b32 s%d, 1" % S_LAYER)
    k.e("s_branch L_layer_%s" % k.name)
    k.label("L_last_%s" % k.name)
    k.e("s_nop 4")
    for u in range(2):
        for s_ in swap_pair(pk[u]):
            k.e(s_)
    for u in range(2):
        k.e("buffer_store_dwordx4 %s, v%d, %s, 0 offen offset:%d" % (vr(pk[u], 4), vro, srd(SRD_S), 64 * u))
    k.release(mk0)


def w_lane(k, g, r, wrow, swz_bit, t, t2):
    k.e("v_lshrrev_b32 v%d, 2, v%d" % (t, g.l))
    k.e("s_mov_b32 s%d, %d" % (S_T0, wrow))
    k.e("v_mul_lo_u32 v%d, s%d, v%d" % (r, S_T0, t))
    k.e("v_lshrrev_b32 v%d, %d, v%d" % (t, 2 + swz_bit - 1, g.l))
    k.e("v_and_b32 v%d, 2, v%d" % (t, t))
    k.e("v_and_b32 v%d, 3, v%d" % (t2, g.l))
    k.e("v_xor_b32 v%d, v%d, v%d" % (t, t, t2))
    k.e("v_lshl_add_u32 v%d, v%d, 4, v%d" % (r, t, r))


def dma(k, vwo, soff, m0off):
    k.e("s_add_u32 s%d, s%d, 0x%x" % (S_T0, S_WBASE, soff))
    k.e("s_mov_b32 m0, 0x%x" % m0off)
    k.e("buffer_load_dwordx4 v%d, %s, s%d offen lds" % (vwo, srd(SRD_W), S_T0))


_pollid = [0]


def poll(k, g, soff_code, nl, expect, va=None, vf=None):
    i = _pollid[0]
    _pollid[0] += 1
    for s_ in soff_code:
        k.e(s_)
    k.e("s_mov_b32 s%d, 0" % S_CNT)
    if nl < 64:
        k.e("s_mov_b32 exec_lo, 0x%x" % (((1 << nl) - 1) & 0xffffffff))
        k.e("s_mov_b32 exec_hi, 0x%x" % (((1 << nl) - 1) >> 32))
    if PRE_SLEEP:
        k.e("s_sleep %d" % PRE_SLEEP)
    k.label("L_poll%d_%s" % (i, k.name))
    k.e("buffer_load_dword v%d, v%d, %s, s%d offen sc1" % (g.pv, g.l4 if va is None else va, srd(SRD_F), S_T2))
    k.e("s_waitcnt vmcnt(0)")
    k.e("v_subrev_u32 v%d, %s, v%d" % (g.pv, "s%d" % S_FP if vf is None else "v%d" % vf, g.pv))
    k.e("v_and_b32 v%d, 0xffffff9f, v%d" % (g.pv, g.pv))
    k.e("v_cmp_ne_u32 vcc, 0, v%d" % g.pv)
    k.e("s_cbranch_vccz L_go%d_%s" % (i, k.name))
    if POLL_SLEEP:
        k.e("s_sleep %d" % POLL_SLEEP)
    k.e("s_add_u32 s%d, s%d, 1" % (S_CNT, S_CNT))
    k.e("s_cmp_lt_u32 s%d, %d" % (S_CNT, POLL_MAX))
    k.e("s_cbranch_scc1 L_poll%d_%s" % (i, k.name))
    k.label("L_go%d_%s" % (i, k.name))
    k.e("s_mov_b64 exec, -1")


def loader(k, g):
    v3072, v1024, v1024k, v2752 = k.alloc(), k.alloc(), k.alloc(), k.alloc()
    t, t2 = k.alloc(), k.alloc()
    g.pv = k.alloc()
    w_lane(k, g, v3072, 3072, 3, t, t2)
    w_lane(k, g, v1024, 1024, 3, t, t2)
    w_lane(k, g, v1024k, 1024, 2, t, t2)
    w_lane(k, g, v2752, 2752, 3, t, t2)
    g.l4 = k.alloc()
    vh = k.alloc()
    k.e("v_lshlrev_b32 v%d, 2, v%d" % (g.l4, g.l))
    k.e("s_lshl_b32 s%d, s%d, 7" % (S_T0, S_RB))
    k.e("s_add_u32 s%d, s%d, 0x%x" % (S_T0, S_T0, 0x2000 * E_H))
    k.e("s_sub_u32 s%d, s%d, %d" % (S_T1, S_T0, 32 + 128))
    k.e("s_lshr_b32 s%d, s%d, 2" % (S_T2, S_RB))
    k.e("s_lshl_b32 s%d, s%d, 8" % (S_T2, S_T2))
    k.e("s_add_u32 s%d, s%d, 0x%x" % (S_T2, S_T2, FL_HX - 128 - 128))
    k.e("s_and_b32 s%d, s%d, 3" % (S_CNT, S_RB))
    k.e("s_cmp_eq_u32 s%d, 0" % S_CNT)
    k.e("s_cselect_b32 s%d, s%d, s%d" % (S_T1, S_T2, S_T1))
    k.e("s_sub_u32 s%d, s%d, 128" % (S_WBASE, S_T0))
    k.e("s_cmp_eq_u32 s%d, 0" % S_RB)
    k.e("s_cselect_b32 s%d, s%d, s%d" % (S_T1, S_WBASE, S_T1))
    k.e("v_mov_b32 v%d, s%d" % (vh, S_T0))
    k.e("v_mov_b32 v%d, s%d" % (t, S_T1))
    k.e("v_cmp_lt_u32 vcc, 31, v%d" % g.l)
    k.e("v_cndmask_b32 v%d, v%d, v%d, vcc" % (vh, vh, t))
    k.e("s_sub_u32 s%d, s%d, 32" % (S_T1, S_T0))
    k.e("s_add_u32 s%d, s%d, %d" % (S_T2, S_T2, 128 + 128 + 256 - 160))
    k.e("s_cmp_eq_u32 s%d, 3" % S_CNT)
    k.e("s_cselect_b32 s%d, s%d, s%d" % (S_T1, S_T2, S_T1))
    k.e("s_sub_u32 s%d, s%d, 160" % (S_WBASE, S_T0))
    k.e("s_cmp_eq_u32 s%d, 31" % S_RB)
    k.e("s_cselect_b32 s%d, s%d, s%d" % (S_T1, S_WBASE, S_T1))
    k.e("v_mov_b32 v%d, s%d" % (t, S_T1))
    k.e("v_cmp_lt_u32 vcc, 39, v%d" % g.l)
    k.e("v_cndmask_b32 v%d, v%d, v%d, vcc" % (vh, vh, t))
    k.e("v_add_u32 v%d, v%d, v%d" % (vh, vh, g.l4))

    vkv = k.alloc()
    k.e("v_lshrrev_b32 v%d, 3, v%d" % (t, g.l))
    k.e("v_and_b32 v%d, 7, v%d" % (t2, g.l))
    k.e("v_lshlrev_b32 v%d, 2, v%d" % (vkv, t2))
    k.e("v_lshl_add_u32 v%d, v%d, 7, v%d" % (vkv, t, vkv))

    def pn(edge, sh):
        return ["s_lshl_b32 s%d, s%d, %d" % (S_T2, S_RB, sh), "s_add_u32 s%d, s%d, 0x%x" % (S_T2, S_T2, 0x2000 * edge)]

    def pw(edge):
        return ["s_lshl_b32 s%d, s%d, 8" % (S_T2, S_RBW), "s_add_u32 s%d, s%d, 0x%x" % (S_T2, S_T2, 0x2000 * edge)]

    vfk, vfh = k.alloc(), k.alloc()
    k.e("v_and_b32 v%d, 0xffffffe0, v%d" % (vfk, g.tmp))
    k.e("v_add_u32 v%d, 0x%x, v%d" % (vfk, NONCE_K - 32, vfk))
    k.e("s_lshr_b32 s%d, s%d, 2" % (S_T0, S_RB))
    k.e("s_lshl_b32 s%d, s%d, 3" % (S_T0, S_T0))
    k.e("s_sub_u32 s%d, s%d, 8" % (S_T1, S_T0))
    k.e("s_and_b32 s%d, s%d, 63" % (S_T1, S_T1))
    k.e("s_add_u32 s%d, s%d, 8" % (S_T2, S_T0))
    k.e("s_and_b32 s%d, s%d, 63" % (S_T2, S_T2))
    k.e("v_readlane_b32 s%d, v%d, s%d" % (S_T1, vfk, S_T1))
    k.e("v_readlane_b32 s%d, v%d, s%d" % (S_T2, vfk, S_T2))
    k.e("s_cmp_eq_u32 s%d, 0" % S_CNT)
    k.e("s_cselect_b32 s%d, s%d, s%d" % (S_T1, S_T1, S_FP))
    k.e("s_cmp_eq_u32 s%d, 0" % S_RB)
    k.e("s_cselect_b32 s%d, s%d, s%d" % (S_T1, S_FP, S_T1))
    k.e("s_cmp_eq_u32 s%d, 3" % S_CNT)
    k.e("s_cselect_b32 s%d, s%d, s%d" % (S_T2, S_T2, S_FP))
    k.e("s_cmp_eq_u32 s%d, 31" % S_RB)
    k.e("s_cselect_b32 s%d, s%d, s%d" % (S_T2, S_FP, S_T2))
    k.e("v_mov_b32 v%d, s%d" % (vfh, S_FP))
    k.e("v_mov_b32 v%d, s%d" % (t, S_T1))
    k.e("v_cmp_lt_u32 vcc, 31, v%d" % g.l)
    k.e("v_cndmask_b32 v%d, v%d, v%d, vcc" % (vfh, vfh, t))
    k.e("v_mov_b32 v%d, s%d" % (t, S_T2))
    k.e("v_cmp_lt_u32 vcc, 39, v%d" % g.l)
    k.e("v_cndmask_b32 v%d, v%d, v%d, vcc" % (vfh, vfh, t))

    def setw(idx, size, sreg, sh):
        make_srd(k, SRD_W, ("in", idx), size)
        k.e("s_lshl_b32 s%d, s%d, %d" % (S_WBASE, sreg, sh))

    def units(vwo, wrow, ucol, ub, us, js=range(8)):
        for j in js:
            for wv in range(4):
                for u in us:
                    dma(k, vwo, u * ucol + j * 64 * wrow + wv * 16 * wrow, ub[u] + j * 4096 + wv * 1024)

    def d_qkv(us, js=range(8)):
        setw(IN_WQKV, 512 * 3072, S_CBW, 6)
        units(v3072, 3072, 1024, U_QKV, us, js)

    def d_512(idx, vwo, ub, us, js=range(8)):
        setw(idx, 512 * 1024, S_CB, 7)
        units(vwo, 1024, 64, ub, us, js)

    def d_w3(us):
        setw(IN_W3, 512 * 2752, S_CU3, 6)
        units(v2752, 2752, 64, U_W3, us)

    def d_w4(js):
        setw(IN_W4, F * 1024, S_CB, 7)
        for j in js:
            for wv in range(4):
                dma(k, v1024, j * 32 * 1024 + (wv & 1) * 64 + (wv >> 1) * 16384, woff4(wv & 1, j) + (wv >> 1) * 1024)

    def B():
        k.e("s_barrier")

    def phase(soff, nl, va=None, skip0=False, vf=None, cnt=0):
        stamp(k, g, ld=True)
        k.e("s_waitcnt vmcnt(%d)" % cnt)
        stamp(k, g, ld=True)
        k.e("s_barrier")
        if skip0:
            k.e("s_cmp_eq_u32 s%d, 0" % S_LAYER)
            k.e("s_cbranch_scc1 L_sk0_%s" % k.name)
        poll(k, g, soff, nl, 1, va, vf)
        if skip0:
            k.label("L_sk0_%s" % k.name)
        stamp(k, g, ld=True)
        k.e("s_barrier")

    _nl = [0]

    def not_last(f):
        i = _nl[0]
        _nl[0] += 1
        k.e("s_cmp_lg_u32 s%d, 0" % S_LAYER)
        k.e("s_cbranch_scc1 L_nl%d_%s" % (i, k.name))
        f()
        k.label("L_nl%d_%s" % (i, k.name))

    d_qkv([0, 1, 2])
    k.label("L_llayer_%s" % k.name)
    make_srd(k, SRD_F, ("l", R_FL), FLSZ)
    phase(pw(E_X), 64, skip0=True)

    def pf2():
        for i in range(4):
            k.e("s_lshl_b32 s%d, s2, 2" % S_CNT)
            k.e("s_add_u32 s%d, s%d, %d" % (S_CNT, S_CNT, i))
            touch(k, g, t2, [(IN_W1, 128), (IN_W2, 128), (IN_W3, 344), (IN_W4, 344)])
    if PF & 2:
        not_last(pf2)
    B()
    d_512(IN_WO, v1024k, U_WO, [0, 1], range(7))
    B()
    stamp(k, g, ld=True)
    d_512(IN_WO, v1024k, U_WO, [0, 1], range(7, 8))
    d_512(IN_W1, v1024, U_W1, [0, 1])
    B()
    poll(k, g, ["s_lshl_b32 s%d, s%d, 10" % (S_T2, S_CBW), "s_add_u32 s%d, s%d, 0x%x" % (S_T2, S_T2, FL_KV)], 64, 1, vkv, vfk)
    B()
    B()
    phase(pn(E_O, 8), 64)
    B()
    d_512(IN_W2, v1024, U_W2, [0])
    B()
    stamp(k, g, ld=True)
    phase(pn(E_XA, 7), 32)
    B()
    d_512(IN_W2, v1024, U_W2, [1])
    d_w3([0])
    B()
    stamp(k, g, ld=True)
    phase(["s_mov_b32 s%d, 0" % S_T2], 48, vh, vf=vfh)
    B()
    d_w3([1, 2])
    B()
    stamp(k, g, ld=True)
    phase(pw(E_X1), 64)
    B()
    d_w4(range(0, 16))
    B()
    stamp(k, g, ld=True)
    d_w4(range(16, 40))
    phase(pn(E_H3, 8), 64, cnt=63)
    B()
    not_last(lambda: d_qkv([2]))
    B()
    d_w4(range(40, 43))
    B()
    not_last(lambda: d_qkv([0]))
    B()
    k.e("s_cmp_lg_u32 s%d, 0" % S_LAYER)
    k.e("s_cbranch_scc1 L_lw_%s" % k.name)
    d_qkv([1])
    k.e("s_waitcnt vmcnt(63)")
    B()
    B()
    stamp(k, g, ld=True)
    k.e("s_add_u32 s%d, s%d, 0x%x" % (S_WSL, S_WSL, LSTRIDE))
    k.e("s_addc_u32 s%d, s%d, 0" % (S_WSH, S_WSH))
    k.e("s_mov_b32 s%d, 1" % S_LAYER)
    k.e("s_branch L_llayer_%s" % k.name)
    k.label("L_lw_%s" % k.name)
    k.e("s_waitcnt vmcnt(0)")
    B()
    B()
    if STAMP and STAMPW == 4:
        stamp(k, g, ld=True)
        k.e("s_cmp_lg_u32 s2, %d" % (STAMP - 1))
        k.e("s_cbranch_scc1 L_lf2_%s" % k.name)
        make_srd(k, 8, ("in", DBG), 256)
        k.e("buffer_store_dword v%d, v%d, s[8:11], 0 offen" % (g.vst, g.l4))
        k.label("L_lf2_%s" % k.name)
    k.e("s_and_b32 s%d, s%d, 3" % (S_T0, S_RB))
    k.e("s_or_b32 s%d, s%d, s%d" % (S_T0, S_T0, S_CB))
    k.e("s_cmp_lg_u32 s%d, 0" % S_T0)
    k.e("s_cbranch_scc1 L_end_%s" % k.name)
    make_srd(k, SRD_F, ("ws", R_FL), FLSZ)
    k.e("s_lshl_b32 s%d, s%d, 5" % (S_T0, S_RB))
    k.e("s_add_u32 s%d, s%d, 0x%x" % (S_T0, S_T0, FL_TK))
    k.e("v_mov_b32 v%d, 96" % t)
    k.e("s_mov_b64 exec, 1")
    k.e("buffer_atomic_add v%d, v%d, %s, s%d offen%s" % (t, g.l64, srd(SRD_F), S_T0, ASC))


PF = int(os.environ.get("PF", "7"))
PFD = int(os.environ.get("PFD", "6"))


def touch(k, g, dst, parts):
    k.e("s_mov_b32 s%d, s%d" % (SRD_W, PTR(parts[0][0])))
    k.e("s_mov_b32 s%d, s%d" % (SRD_W + 1, PTR(parts[0][0]) + 1))
    k.e("s_mov_b32 s%d, s%d" % (S_T2, S_CNT))
    base = 0
    for j in range(1, len(parts)):
        base += parts[j - 1][1]
        k.e("s_sub_u32 s%d, s%d, %d" % (S_T1, S_CNT, base))
        k.e("s_cmp_ge_u32 s%d, %d" % (S_CNT, base))
        k.e("s_cselect_b32 s%d, s%d, s%d" % (SRD_W, PTR(parts[j][0]), SRD_W))
        k.e("s_cselect_b32 s%d, s%d, s%d" % (SRD_W + 1, PTR(parts[j][0]) + 1, SRD_W + 1))
        k.e("s_cselect_b32 s%d, s%d, s%d" % (S_T2, S_T1, S_T2))
    k.e("s_min_u32 s%d, s%d, %d" % (S_T2, S_T2, max(n for _, n in parts) - 1))
    if base + parts[-1][1] < 1024:
        k.e("s_cmp_ge_u32 s%d, %d" % (S_CNT, base + parts[-1][1]))
        k.e("s_cselect_b32 s%d, 0, s%d" % (S_T2, S_T2))
    k.e("s_lshl_b32 s%d, s%d, 12" % (S_T2, S_T2))
    k.e("s_mov_b32 s%d, 0x200000" % (SRD_W + 2))
    k.e("s_mov_b32 s%d, 0x00020000" % (SRD_W + 3))
    k.e("buffer_load_dword v%d, v%d, %s, s%d offen" % (dst, g.l64, srd(SRD_W), S_T2))


def k_main(name):
    k = Kern(name)
    g = G()
    k.e("s_cmp_ge_u32 s2, 256")
    k.e("s_cbranch_scc1 L_end_%s" % k.name)
    k.e("s_load_dwordx16 s[64:79], s[0:1], 0")
    k.e("s_load_dwordx8 s[80:87], s[0:1], 64")
    g.w = k.alloc()
    g.l = k.alloc()
    g.g = k.alloc()
    g.m = k.alloc()
    g.lin = k.alloc()
    g.one = k.alloc()
    g.l128 = k.alloc()
    g.vsw = k.alloc()
    g.vst = k.alloc()
    g.l64 = k.alloc()
    g.tmp = 40
    t = g.w
    k.e("v_lshrrev_b32 v%d, 6, v0" % g.w)
    k.e("v_and_b32 v%d, 63, v0" % g.l)
    k.e("v_readfirstlane_b32 s%d, v%d" % (S_WAVE, g.w))
    k.e("v_lshlrev_b32 v%d, 6, v%d" % (g.l64, g.l))
    k.e("s_getreg_b32 s%d, hwreg(HW_REG_XCC_ID)" % S_T0)
    k.e("s_and_b32 s%d, s%d, 7" % (S_T0, S_T0))
    k.e("v_mov_b32 v%d, 1" % g.one)
    if STAMP:
        k.e("v_mov_b32 v%d, 0" % g.vst)
        k.e("s_mov_b32 s%d, 0" % S_STI)
    k.phase = STAMPG
    k.e("s_cmp_lg_u32 s%d, 4" % S_WAVE)
    k.e("s_cbranch_scc1 L_pf_%s" % k.name)
    k.e("s_lshl_b32 s%d, s%d, 7" % (S_T1, S_T0))
    k.e("s_add_u32 s%d, s%d, 0x%x" % (S_T1, S_T1, FL_TK))
    k.e("s_mov_b32 s%d, 0x%x" % (S_T2, FL_TK))
    k.e("v_lshrrev_b32 v%d, 3, v%d" % (g.tmp, g.l))
    k.e("v_lshlrev_b32 v%d, 7, v%d" % (g.tmp, g.tmp))
    k.e("s_mov_b32 s%d, 0x%x" % (SRD_F + 2, FLSZ))
    k.e("s_mov_b32 s%d, 0x00020000" % (SRD_F + 3))
    k.e("s_mov_b64 exec, 1")
    k.e("s_waitcnt lgkmcnt(0)")
    k.e("s_add_u32 s%d, s%d, 0x%x" % (SRD_F, PTR(WS), R_FL))
    k.e("s_addc_u32 s%d, s%d, 0" % (SRD_F + 1, PTR(WS) + 1))
    k.e("buffer_atomic_add v%d, v%d, %s, s%d offen sc0%s" % (g.one, g.l64, srd(SRD_F), S_T1, ASC))
    k.e("s_mov_b64 exec, -1")
    k.e("buffer_load_dword v%d, v%d, %s, s%d offen sc1" % (g.tmp, g.tmp, srd(SRD_F), S_T2))
    stamp(k, g)
    k.e("v_mov_b32 v%d, 0x%x" % (t, LDS_TK))
    k.e("s_mov_b64 exec, 1")
    k.e("s_waitcnt vmcnt(1)")
    k.e("ds_write_b32 v%d, v%d" % (t, g.one))
    k.e("s_mov_b64 exec, -1")
    stamp(k, g)
    k.e("s_branch L_nt_%s" % k.name)
    k.label("L_pf_%s" % k.name)
    if PF & 4:
        k.e("s_getpc_b64 s[%d:%d]" % (SRD_W, SRD_W + 1))
        k.label("L_pc_%s" % k.name)
        k.e("s_sub_u32 s%d, s%d, L_pc_%s-%s" % (SRD_W, SRD_W, k.name, k.name))
        k.e("s_subb_u32 s%d, s%d, 0" % (SRD_W + 1, SRD_W + 1))
        k.e("s_mov_b32 s%d, L_end_%s-%s" % (SRD_W + 2, k.name, k.name))
        k.e("s_mov_b32 s%d, 0x00020000" % (SRD_W + 3))
        k.e("s_lshr_b32 s%d, s2, 6" % S_T2)
        k.e("s_lshl_b32 s%d, s%d, 2" % (S_T2, S_T2))
        k.e("s_add_u32 s%d, s%d, s%d" % (S_T2, S_T2, S_WAVE))
        k.e("s_lshl_b32 s%d, s%d, 12" % (S_T2, S_T2))
        k.e("buffer_load_dword v%d, v%d, %s, s%d offen" % (42, g.l64, srd(SRD_W), S_T2))
    stamp(k, g)
    k.e("s_lshl_b32 s%d, s2, 2" % S_CNT)
    k.e("s_add_u32 s%d, s%d, s%d" % (S_CNT, S_CNT, S_WAVE))
    k.e("s_waitcnt lgkmcnt(0)")
    if PFD:
        k.e("s_sleep %d" % PFD)
    if PF & 1:
        touch(k, g, 41, [(IN_X, 512), (IN_WQKV, 384), (IN_WO, 128)])
    k.label("L_nt_%s" % k.name)
    k.e("v_lshrrev_b32 v%d, 4, v%d" % (g.g, g.l))
    k.e("v_and_b32 v%d, 15, v%d" % (g.m, g.l))
    k.e("v_lshlrev_b32 v%d, 4, v%d" % (g.lin, g.l))
    k.e("v_lshlrev_b32 v%d, 7, v%d" % (g.l128, g.l))
    k.e("v_and_b32 v%d, 1, v%d" % (t, g.g))
    k.e("v_lshlrev_b32 v%d, 9, v%d" % (g.vsw, t))
    k.e("v_lshrrev_b32 v%d, 1, v%d" % (t, g.g))
    k.e("v_lshl_add_u32 v%d, v%d, 8, v%d" % (g.vsw, t, g.vsw))
    k.e("v_lshl_add_u32 v%d, v%d, 4, v%d" % (g.vsw, g.m, g.vsw))
    k.e("v_mov_b32 v%d, 0x%x" % (t, LDS_TK))
    k.e("s_waitcnt lgkmcnt(0)")
    k.e("s_barrier")
    k.e("ds_read_b32 v%d, v%d" % (t, t))
    k.e("s_waitcnt lgkmcnt(0)")
    k.e("s_barrier")
    k.e("v_readfirstlane_b32 s%d, v%d" % (S_T1, t))
    k.e("v_and_b32 v%d, 0xffffffe0, v%d" % (g.one, t))
    k.e("v_add_u32 v%d, 0x%x, v%d" % (g.one, NONCE_K, g.one))
    k.e("v_readfirstlane_b32 s%d, v%d" % (S_FP, g.one))
    k.e("s_sub_u32 s%d, s%d, 32" % (S_FP, S_FP))
    k.e("s_and_b32 s%d, s%d, 31" % (S_T1, S_T1))
    k.e("s_lshr_b32 s%d, s%d, 3" % (S_RB, S_T1))
    k.e("s_lshl_b32 s%d, s%d, 2" % (S_T2, S_T0))
    k.e("s_add_u32 s%d, s%d, s%d" % (S_RB, S_RB, S_T2))
    k.e("s_and_b32 s%d, s%d, 7" % (S_CB, S_T1))
    k.e("s_lshr_b32 s%d, s%d, 4" % (S_RBW, S_T1))
    k.e("s_lshl_b32 s%d, s%d, 1" % (S_T2, S_T0))
    k.e("s_add_u32 s%d, s%d, s%d" % (S_RBW, S_RBW, S_T2))
    k.e("s_and_b32 s%d, s%d, 15" % (S_CBW, S_T1))
    k.e("s_lshl_b32 s%d, s%d, 6" % (S_TOKN, S_RB))
    k.e("s_lshl_b32 s%d, s%d, 4" % (S_T0, S_WAVE))
    k.e("s_add_u32 s%d, s%d, s%d" % (S_TOKN, S_TOKN, S_T0))
    k.e("s_lshl_b32 s%d, s%d, 7" % (S_TOKW, S_RBW))
    k.e("s_lshl_b32 s%d, s%d, 5" % (S_T0, S_WAVE))
    k.e("s_add_u32 s%d, s%d, s%d" % (S_TOKW, S_TOKW, S_T0))
    k.e("s_lshl_b32 s%d, s%d, 3" % (S_WGS, S_RB))
    k.e("s_add_u32 s%d, s%d, s%d" % (S_WGS, S_WGS, S_CB))
    k.e("s_lshl_b32 s%d, s%d, 11" % (S_WGS, S_WGS))
    k.e("s_mul_i32 s%d, s%d, 43" % (S_CU3, S_CBW))
    k.e("s_lshr_b32 s%d, s%d, 4" % (S_CU3, S_CU3))
    k.e("s_min_u32 s%d, s%d, 40" % (S_CU3, S_CU3))
    k.e("s_mov_b32 s%d, 0x3f803f80" % S_ONES)
    k.e("s_mov_b32 s%d, 0x%08x" % (S_L2E, f32bits(LOG2E)))
    k.e("s_mov_b32 s%d, 0x%08x" % (S_EPS, f32bits(1e-6)))
    k.e("s_mov_b32 s%d, 0x%08x" % (S_GC, f32bits(-2.0 * LOG2E * math.sqrt(2.0 / math.pi) * 0.044715)))
    k.e("s_mov_b32 s%d, 0x%08x" % (S_GC + 1, f32bits(-2.0 * LOG2E * math.sqrt(2.0 / math.pi))))
    k.e("s_mov_b32 s%d, 0x4000" % S_K16)
    k.e("s_mov_b32 s%d, 0" % S_LAYER)
    stamp(k, g)
    k.e("s_waitcnt lgkmcnt(0)")
    k.e("s_mov_b32 s%d, s%d" % (S_WSL, PTR(WS)))
    k.e("s_mov_b32 s%d, s%d" % (S_WSH, PTR(WS) + 1))
    k.e("s_cmp_eq_u32 s%d, 4" % S_WAVE)
    k.e("s_cbranch_scc1 L_loader_%s" % k.name)
    mk = k.mark()
    k.started = True
    k.label("L_layer_%s" % k.name)
    k.e("s_nop 4")
    k.phase = "qkv"
    p_qkv(k, g)
    k.phase = "wo"
    p_wo(k, g)
    k.phase = "w1"
    p_w1(k, g)
    k.phase = "w2"
    p_w2(k, g)
    k.phase = "w3"
    p_w3(k, g)
    k.phase = "w4"
    p_w4(k, g)
    k.phase = STAMPG
    if STAMP and STAMPW != 4:
        stamp(k, g)
        k.e("s_waitcnt vmcnt(0)")
        stamp(k, g)
        k.e("s_cmp_lg_u32 s2, %d" % (STAMP - 1))
        k.e("s_cbranch_scc1 L_end_%s" % k.name)
        k.e("s_cmp_lg_u32 s%d, 0" % S_WAVE)
        k.e("s_cbranch_scc1 L_end_%s" % k.name)
        make_srd(k, 8, ("in", DBG), 256)
        k.e("v_subrev_u32 v%d, %d, v%d" % (g.w, int(os.environ.get("STAMPOFF", "0")), g.l))
        k.e("v_lshlrev_b32 v%d, 2, v%d" % (g.w, g.w))
        k.e("buffer_store_dword v%d, v%d, s[8:11], 0 offen" % (g.vst, g.w))
    k.e("s_branch L_end_%s" % k.name)
    k.release(mk)
    k.label("L_loader_%s" % k.name)
    k.e("s_waitcnt vmcnt(0)")
    loader(k, g)
    k.label("L_end_%s" % k.name)
    k.e("s_endpgm")
    return k, 256, 320, 163840


HEADER = """; Kernarg layout for this problem (96 bytes, ptrs only, base s[0:1]):
;   offset  88: d_ws      268435456 bytes workspace
"""


def build():
    kernels = [k_main("main_kernel")]
    out = [HEADER.rstrip("\n")]
    for (k, nwg, blk, lds) in kernels:
        out.append("; @launch kernel=%s grid=(%d,1,1) block=(%d,1,1) lds=%d" % (k.name, nwg, blk, lds))
    out.append('.amdgcn_target "amdgcn-amd-amdhsa--gfx950"')
    out.append(".text")
    for (k, nwg, blk, lds) in kernels:
        out.append(".globl %s" % k.name)
        out.append(".p2align 8")
        out.append(".type %s,@function" % k.name)
        out.append("%s:" % k.name)
        out += hazard_pass(k.lines)
    out.append('.section .rodata,"a"')
    for (k, nwg, blk, lds) in kernels:
        nv = (k.maxv + 7) // 8 * 8
        out.append(".p2align 6")
        out.append(".amdhsa_kernel %s" % k.name)
        out.append("  .amdhsa_next_free_vgpr %d" % nv)
        out.append("  .amdhsa_next_free_sgpr 102")
        out.append("  .amdhsa_accum_offset %d" % nv)
        out.append("  .amdhsa_group_segment_fixed_size 0")
        out.append("  .amdhsa_kernarg_size 96")
        out.append("  .amdhsa_user_sgpr_count 2")
        out.append("  .amdhsa_user_sgpr_kernarg_segment_ptr 1")
        out.append("  .amdhsa_system_sgpr_workgroup_id_x 1")
        out.append(".end_amdhsa_kernel")
    return "\n".join(out) + "\n"


if __name__ == "__main__":
    path = sys.argv[1] if len(sys.argv) > 1 else "cdna_kernels/%s.s" % NAME
    open(path, "w").write(build())
    print("wrote", path)
```

```python
import sys
import os
import math
import struct

sys.path.insert(0, os.path.dirname(os.path.abspath(__file__)))
from asmlib import Kern, vr, interleave, hazard_pass

NAME = "interleave_layers__linear_kernel_hedgehog__mixer_s_mlp__prompt"
S, D, F = 2048, 512, 1376

IN_X, IN_WQKV, IN_WPHI, IN_WO, IN_BX, IN_W1, IN_W2, IN_W3, IN_W4, OUT, DBG, WS = range(12)


def PTR(i):
    return 64 + 2 * i


MB = 1 << 20
LSTRIDE = 32 * MB
R_XIN = 0 * MB
R_XA = 2 * MB
R_O = 4 * MB
R_KVP = 6 * MB
R_H = 8 * MB
R_X1 = 10 * MB
R_H3 = 12 * MB
R_ST = 18 * MB
ST_XIN, ST_XA, ST_X1 = [R_ST + i * 0x20000 for i in range(3)]
R_KVA = 19 * MB
R_FL = 20 * MB
FL_HX = 0xC000
FL_KV = 0x10000
FL_TK = 0xE000
FL_GT = 0xE400
FLSZ = 0x20000
NONCE_K = 0x5bd1e900
LDS_CS = 0x1F000
WS_CS = 64 * MB
CS_QKV, CS_W1, CS_W3 = WS_CS, WS_CS + 0x2000, WS_CS + 0x4000
E_X, E_O, E_XA, E_H, E_X1, E_H3 = range(6)
R512 = int(os.environ.get("R512", "6"))
BIG = 0x10000

XBYTES = S * D * 2
STBYTES = 8 * S * 8
LOG2E = 1.4426950408889634
UN = [i * 32768 for i in range(5)]
LDS_SCR = UN[2]
LDS_TK = 0x27F00
LDS_CSX = UN[3]
U_QKV, U_WO, U_W1, U_W2, U_W3 = [UN[0], UN[1], UN[2]], [UN[3], UN[4]], [UN[0], UN[1]], [UN[2], UN[3]], [UN[4], UN[0], UN[1]]
B_W4 = [UN[2], UN[3], UN[0], UN[1], UN[4], UN[3]]


def woff512(ub):
    return lambda u, s: ub[u] + 2048 * s


def woffk(ub):
    return lambda u, s: ub[s // 8] + u * 16384 + (s % 8) * 2048


def woff3(u, s):
    b = 3 * s + u
    return U_W3[b // 16] + (b % 16) * 2048


def woff4(u, s):
    return B_W4[s // 8] + u * 16384 + (s % 8) * 2048

LDS_KV = 0x10000
LDS_Z = 0x18000
POLL_MAX = 40000
PRE_SLEEP = int(os.environ.get("PRE_SLEEP", "0"))
POLL_SLEEP = int(os.environ.get("POLL_SLEEP", "2"))


def f32bits(x):
    return struct.unpack("<I", struct.pack("<f", x))[0]


S_WAVE, S_RB, S_CB, S_RBW, S_CBW, S_T0, S_T1, S_T2 = 32, 33, 34, 35, 36, 37, 38, 39
S_ONES, S_L2E, S_EPS, S_C1, S_C2, S_XO = 40, 41, 42, 43, 44, 45
S_TOKB, S_OB = 46, 47
SRD_X, SRD_W, SRD_O, SRD_R, SRD_R2, SRD_F = 8, 12, 16, 20, 24, 28
SRD_S, SRD_SO = 48, 52
SRD_C = 56
S_WSL, S_WSH, S_LAYER, S_CNT = 60, 61, 62, 63
S_STI, S_TOKN, S_TOKW, S_CU3, S_WBASE, S_K16 = 90, 92, 93, 94, 95, 96
S_GC = 98
S_FP, S_XST, S_WGS = 91, 97, 7

STAMP = int(os.environ.get("STAMP", "0"))
DSC = os.environ.get("DSC", " sc1")
LSC = os.environ.get("LSC", "")
ASC = os.environ.get("ASC", "")


def make_srd(k, slot, buf, size):
    kind = buf[0]
    if kind == "ws":
        k.e("s_add_u32 s%d, s%d, 0x%x" % (slot, PTR(WS), buf[1]))
        k.e("s_addc_u32 s%d, s%d, 0" % (slot + 1, PTR(WS) + 1))
    elif kind == "l":
        k.e("s_add_u32 s%d, s%d, 0x%x" % (slot, S_WSL, buf[1]))
        k.e("s_addc_u32 s%d, s%d, 0" % (slot + 1, S_WSH))
    elif kind == "n":
        k.e("s_add_u32 s%d, s%d, 0x%x" % (slot, S_WSL, buf[1] + LSTRIDE))
        k.e("s_addc_u32 s%d, s%d, 0" % (slot + 1, S_WSH))
    else:
        idx = buf[1]
        k.e("s_mov_b32 s%d, s%d" % (slot, PTR(idx)))
        k.e("s_mov_b32 s%d, s%d" % (slot + 1, PTR(idx) + 1))
    k.e("s_mov_b32 s%d, 0x%x" % (slot + 2, size))
    k.e("s_mov_b32 s%d, 0x00020000" % (slot + 3))


def srd(slot):
    return "s[%d:%d]" % (slot, slot + 3)


class G:
    pass


STAMPG = os.environ.get("STAMPG", "")


STAMPW = int(os.environ.get("STAMPW", "0"))


def stamp(k, g, fine=False, ld=False):
    if not STAMP:
        return
    if ld != (STAMPW == 4) and getattr(k, "started", False):
        return
    if STAMPG and getattr(k, "phase", "") != STAMPG:
        return
    if fine and not STAMPG:
        return
    k.e("s_memtime s[88:89]")
    k.e("s_waitcnt lgkmcnt(0)")
    k.e("s_mov_b32 m0, s%d" % S_STI)
    k.e("s_nop 0")
    k.e("v_writelane_b32 v%d, s88, m0" % g.vst)
    k.e("s_add_u32 s%d, s%d, 1" % (S_STI, S_STI))


def allreduce(x, t, op):
    return [
        "v_mov_b32 v%d, v%d" % (t, x),
        "v_permlane32_swap_b32 v%d, v%d" % (x, t),
        "%s v%d, v%d, v%d" % (op, x, x, t),
        "v_mov_b32 v%d, v%d" % (t, x),
        "v_permlane16_swap_b32 v%d, v%d" % (x, t),
        "%s v%d, v%d, v%d" % (op, x, x, t),
    ]


def stats_finish(st, double=False, part=True):
    o = []
    s_, q_, t0, t1 = st, st + 1, st + 2, st + 3
    if part:
        o.append("v_add_f32 v%d, v%d, v%d" % (s_, st, st + 2))
        o.append("v_add_f32 v%d, v%d, v%d" % (q_, st + 1, st + 3))
    o += interleave(allreduce(s_, t0, "v_add_f32"), allreduce(q_, t1, "v_add_f32"))
    o.append("v_mul_f32 v%d, 0x%08x, v%d" % (s_, f32bits(1.0 / 512), s_))
    o.append("v_mul_f32 v%d, 0x%08x, v%d" % (q_, f32bits(1.0 / 512), q_))
    o.append("v_fma_f32 v%d, -v%d, v%d, v%d" % (q_, s_, s_, q_))
    o.append("v_max_f32 v%d, 0, v%d" % (q_, q_))
    o.append("v_add_f32 v%d, 0x%08x, v%d" % (t0, f32bits(1e-5), q_))
    o.append("v_rsq_f32 v%d, v%d" % (t0, t0))
    if double:
        o.append("v_mul_f32 v%d, v%d, v%d" % (t1, t0, t0))
        o.append("v_mul_f32 v%d, v%d, v%d" % (t1, t1, q_))
        o.append("v_add_f32 v%d, 0x%08x, v%d" % (t1, f32bits(1e-5), t1))
        o.append("v_rsq_f32 v%d, v%d" % (t1, t1))
        o.append("s_nop 0")
        o.append("v_mul_f32 v%d, v%d, v%d" % (t0, t0, t1))
    o.append("v_mul_f32 v%d, v%d, v%d" % (st + 1, s_, t0))
    o.append("v_sub_f32 v%d, 0, v%d" % (st + 1, st + 1))
    o.append("v_mov_b32 v%d, v%d" % (st, t0))
    return o


def stats_fold(st, mode):
    o = []
    s_, q_, t0, t1 = st, st + 1, st + 2, st + 3
    o.append("v_add_f32 v%d, v%d, v%d" % (s_, st, st + 2))
    o.append("v_add_f32 v%d, v%d, v%d" % (q_, st + 1, st + 3))
    o += interleave(allreduce(s_, t0, "v_add_f32"), allreduce(q_, t1, "v_add_f32"))
    o.append("v_mul_f32 v%d, 0x%08x, v%d" % (t1, f32bits(-1.0 / 512), s_))
    o.append("v_mul_f32 v%d, 0x%08x, v%d" % (q_, f32bits(1.0 / 512), q_))
    o.append("v_fma_f32 v%d, -v%d, v%d, v%d" % (q_, t1, t1, q_))
    o.append("v_max_f32 v%d, 0, v%d" % (q_, q_))
    o.append("v_add_f32 v%d, 0x%08x, v%d" % (t0, f32bits(1e-5), q_))
    o.append("v_rsq_f32 v%d, v%d" % (s_, t0))
    if mode == "r":
        return o
    if mode == "g":
        o.append("v_mul_f32 v%d, v%d, v%d" % (t0, t0, s_))
    else:
        o.append("v_mul_f32 v%d, v%d, v%d" % (t0, s_, s_))
        o.append("v_mul_f32 v%d, v%d, v%d" % (t0, t0, q_))
        o.append("v_add_f32 v%d, 0x%08x, v%d" % (t0, f32bits(1e-5), t0))
        o.append("v_rsq_f32 v%d, v%d" % (t0, t0))
        o.append("v_mul_f32 v%d, v%d, v%d" % (s_, s_, t0))
        o.append("v_rcp_f32 v%d, v%d" % (t0, s_))
    o.append("v_mul_f32 v%d, s%d, v%d" % (q_, S_GC + 1, s_))
    o.append("v_mul_f32 v%d, v%d, v%d" % (s_, s_, s_))
    o.append("v_mul_f32 v%d, v%d, v%d" % (s_, s_, q_))
    o.append("v_mul_f32 v%d, 0x%08x, v%d" % (s_, f32bits(0.044715), s_))
    return o


def mean_fix(a, cs, st):
    return ["v_pk_fma_f32 %s, %s, %s, %s op_sel:[0,1,0] op_sel_hi:[1,1,1]" % (vr(a + i, 2), vr(cs + i, 2), vr(st + 2, 2), vr(a + i, 2)) for i in (0, 2)]


def scale4(a, st):
    return ["v_pk_mul_f32 %s, %s, %s op_sel_hi:[1,0]" % (vr(a + i, 2), vr(a + i, 2), vr(st, 2)) for i in (0, 2)]


def gelu4f(a, t, dst, st):
    o = []
    P = lambda r: vr(r, 2)
    for i in (0, 2):
        o.append("v_pk_mul_f32 %s, %s, %s" % (P(t + i), P(a + i), P(a + i)))
    for i in (0, 2):
        o.append("v_pk_fma_f32 %s, %s, %s, %s op_sel:[0,0,1] op_sel_hi:[1,0,1]" % (P(t + i), P(t + i), P(st), P(st)))
    for i in (0, 2):
        o.append("v_pk_mul_f32 %s, %s, %s" % (P(t + i), P(t + i), P(a + i)))
    for i in range(4):
        o.append("v_exp_f32 v%d, v%d" % (t + i, t + i))
    for i in (0, 2):
        o.append("v_pk_fma_f32 %s, %s, %s, %s op_sel_hi:[1,0,0]" % (P(t + i), P(t + i), P(st + 2), P(st + 2)))
    for i in range(4):
        o.append("v_rcp_f32 v%d, v%d" % (t + i, t + i))
    for i in (0, 2):
        o.append("v_pk_mul_f32 %s, %s, %s" % (P(t + i), P(t + i), P(a + i)))
    o.append("v_cvt_pk_bf16_f32 v%d, v%d, v%d" % (dst, t, t + 1))
    o.append("v_cvt_pk_bf16_f32 v%d, v%d, v%d" % (dst + 1, t + 2, t + 3))
    return o


def spread(lst, s0, n):
    return {s0 + i: lst[len(lst) * i // n:len(lst) * (i + 1) // n] for i in range(n)}


def fix_step(acc, cs, st, NU, MT, s0):
    idx = [(u, t, mt) for u in range(NU) for t in (0, 1) for mt in range(MT)]
    nm = len(idx)
    o = []
    for j in range(nm):
        u, t, mt = idx[j]
        o += mean_fix(acc[u][t][mt], cs[u][t], st[mt])
    h = len(o) // 2
    return {s0: [None] * h + o[:h], s0 + 1: o[h:] + [None] * h}


def gelu4(a, t, dst):
    o = []
    P = lambda r: vr(r, 2)
    gc = "s[%d:%d]" % (S_GC, S_GC + 1)
    for i in (0, 2):
        o.append("v_pk_mul_f32 %s, %s, %s" % (P(t + i), P(a + i), P(a + i)))
    for i in (0, 2):
        o.append("v_pk_fma_f32 %s, %s, %s, %s op_sel:[0,0,1] op_sel_hi:[1,0,1]" % (P(t + i), P(t + i), gc, gc))
    for i in (0, 2):
        o.append("v_pk_mul_f32 %s, %s, %s" % (P(t + i), P(t + i), P(a + i)))
    for i in range(4):
        o.append("v_exp_f32 v%d, v%d" % (t + i, t + i))
    for i in (0, 2):
        o.append("v_pk_add_f32 %s, %s, 1.0 op_sel_hi:[1,0]" % (P(t + i), P(t + i)))
    for i in range(4):
        o.append("v_rcp_f32 v%d, v%d" % (t + i, t + i))
    for i in (0, 2):
        o.append("v_pk_mul_f32 %s, %s, %s" % (P(t + i), P(t + i), P(a + i)))
    o.append("v_cvt_pk_bf16_f32 v%d, v%d, v%d" % (dst, t, t + 1))
    o.append("v_cvt_pk_bf16_f32 v%d, v%d, v%d" % (dst + 1, t + 2, t + 3))
    return o


def ln_apply(a, cs, st, t):
    o = []
    P = lambda r: vr(r, 2)
    assert a % 2 == 0 and cs % 2 == 0 and st % 2 == 0 and t % 2 == 0
    for i in (0, 2):
        o.append("v_pk_mul_f32 %s, %s, %s op_sel:[0,1] op_sel_hi:[1,1]" % (P(t + i), P(cs + i), P(st)))
    for i in (0, 2):
        o.append("v_pk_fma_f32 %s, %s, %s, %s op_sel_hi:[1,0,1]" % (P(a + i), P(a + i), P(st), P(t + i)))
    return o


class W:
    pass


def w_tb(k, g, k2map, NU, woff, KS):
    w = W()
    w.NU = NU
    w.woff = woff
    w.k2map = k2map
    w.tb = {}
    w.his = sorted({woff(u, s) >> 16 for u in range(NU) for s in range(KS)})
    b0 = k.alloc()
    b1 = k.alloc()
    t = k.alloc()
    t2 = k.alloc()
    k.e("v_and_b32 v%d, 3, v%d" % (t2, g.l))
    k.e("v_lshrrev_b32 v%d, 2, v%d" % (t, g.l))
    k.e("v_and_b32 v%d, 3, v%d" % (t, t))
    k.e("v_lshlrev_b32 v%d, 6, v%d" % (t, t))
    k.e("v_lshl_add_u32 v%d, v%d, 3, v%d" % (t, t2, t))
    k.e("v_lshl_add_u32 v%d, v%d, %d, v%d" % (t, g.g, 8 if k2map else 9, t))
    h0 = w.his[0]
    if h0:
        k.e("v_add_u32 v%d, 0x%x, v%d" % (t, 65536 * h0, t))
    k.e("v_and_b32 v%d, 1, v%d" % (t2, g.g))
    k.e("v_lshl_add_u32 v%d, v%d, 5, v%d" % (b0, t2, t))
    k.e("v_xor_b32 v%d, 1, v%d" % (t2, t2))
    k.e("v_lshl_add_u32 v%d, v%d, 5, v%d" % (b1, t2, t))
    w.tb[(0, h0)] = b0
    w.tb[(1, h0)] = b1
    pool = [t, t2]
    for h in w.his[1:]:
        for tt in (0, 1):
            r = pool.pop() if pool else k.alloc()
            k.e("v_add_u32 v%d, 0x%x, v%d" % (r, 65536 * (h - h0), w.tb[(tt, h0)]))
            w.tb[(tt, h)] = r
    return w


def tr_reads(k, w, dst, u, t, s):
    for hs in (0, 1):
        off = w.woff(u, s) + (1024 if w.k2map else 256) * hs
        h, o = off >> 16, off & 0xffff
        k.e("ds_read_b64_tr_b16 %s, v%d offset:%d" % (vr(dst + 2 * hs, 2), w.tb[(t, h)], o))


def gemm_pre(k, w, KS, R):
    frags = [(u, t) for u in range(w.NU) for t in (0, 1)]
    w.R = R
    w.wb = [[k.alloc(4, 4) for _ in frags] for _ in range(R)]
    for s in range(min(R, KS)):
        for i, (u, t) in enumerate(frags):
            tr_reads(k, w, w.wb[s][i], u, t, s)


XD = int(os.environ.get("XD", "12"))
BD512 = int(os.environ.get("BD512", "4"))


def gemm_loop(k, g, w, KS, MT, xfrag, acc, xl, mid=None, pre=None, extra=None, init=False, pro=None, top=None):
    NU = w.NU
    frags = [(u, t) for u in range(NU) for t in (0, 1)]
    n = len(frags)
    R = w.R
    wb = w.wb
    first = set()
    D = XD // MT
    for s in range(min(D, KS)):
        xl(s)
        if pro and s in pro:
            pro[s]()
    for s in range(KS):
        later = min(R - 1, KS - 1 - s)
        k.wait_vm(["x%d" % s] + (top.get(s, []) if top else []), " lgkmcnt(%d)" % min(15, later * 2 * n))
        if s % 4 == 0:
            stamp(k, g, True)
        if pre and (s + R) in pre:
            pre[s + R]()
        ex = list(extra.get(s, [])) if extra else []
        nm = n * MT
        done = 0
        for i, (u, t) in enumerate(frags):
            for mt in range(MT):
                a = acc[u][t][mt]
                cin = vr(a, 4) if init or (u, t, mt) in first else "0"
                first.add((u, t, mt))
                k.e("v_mfma_f32_16x16x32_bf16 %s, %s, %s, %s" % (vr(a, 4), vr(wb[s % R][i], 4), vr(xfrag(s, mt), 4), cin))
                j = i * MT + mt + 1
                if None in ex and mt < MT - 1:
                    continue
                upto = (len(ex) * j + nm - 1) // nm
                for e_ in ex[done:upto]:
                    if e_ is not None:
                        k.e(e_)
                done = max(done, upto)
            if i == 0 and s + D < KS:
                xl(s + D)
            if s + R < KS:
                tr_reads(k, w, wb[s % R][i], u, t, s + R)
        if mid and s in mid:
            mid[s]()
    return [r for l in wb for r in l]


def t16_base(k, sreg, K):
    k.e("s_mul_i32 s%d, s%d, %d" % (sreg, S_TOKB, K * 2))


def xload(k, g, dst, K, mt, s, tag):
    off = mt * K * 32 + s * 1024
    hi, lo = off // 4096 * 4096, off % 4096
    sr = (S_T1, S_T2)[mt]
    if getattr(k, "_xhi", None) is None:
        k._xhi = {}
    if k._xhi.get(mt) != hi:
        k.e("s_add_u32 s%d, s%d, 0x%x" % (sr, S_XO, hi))
        k._xhi[mt] = hi
    k.vmem("buffer_load_dwordx4 %s, v%d, %s, s%d offen offset:%d%s" % (vr(dst, 4), g.lin, srd(SRD_X), sr, lo, LSC), tag)


def stats_load(k, g, MT):
    v = k.alloc()
    k.e("v_add_u32 v%d, s%d, v%d" % (v, S_TOKB, g.m))
    k.e("v_lshlrev_b32 v%d, 3, v%d" % (v, v))
    k.e("v_lshl_add_u32 v%d, v%d, 15, v%d" % (v, g.g, v))
    st = [k.alloc(4, 4) for _ in range(MT)]

    def issue(dst=None):
        f = k.vmem if dst is None else (lambda a, b: k.e(a))
        dst = st if dst is None else dst
        for mt in range(MT):
            f("buffer_load_dwordx2 %s, v%d, %s, 0 offen offset:%d" % (vr(dst[mt], 2), v, srd(SRD_S), 128 * mt), "stat")
            f("buffer_load_dwordx2 %s, v%d, %s, s%d offen offset:%d" % (vr(dst[mt] + 2, 2), v, srd(SRD_S), S_K16, 128 * mt), "stat")
    return st, issue


def swap_pair(p):
    return ["v_permlane16_swap_b32 v%d, v%d" % (p, p + 2), "v_permlane16_swap_b32 v%d, v%d" % (p + 1, p + 3)]


def unpack2(dst, src):
    return [
        "v_lshlrev_b32 v%d, 16, v%d" % (dst, src),
        "v_and_b32 v%d, 0xffff0000, v%d" % (dst + 1, src),
        "v_lshlrev_b32 v%d, 16, v%d" % (dst + 2, src + 1),
        "v_and_b32 v%d, 0xffff0000, v%d" % (dst + 3, src + 1),
    ]


def pack2(dst, src):
    return [
        "v_cvt_pk_bf16_f32 v%d, v%d, v%d" % (dst, src, src + 1),
        "v_cvt_pk_bf16_f32 v%d, v%d, v%d" % (dst + 1, src + 2, src + 3),
    ]


def round4(a):
    return ["v_cvt_pk_bf16_f32 v%d, v%d, v%d" % (a, a, a + 1),
            "v_cvt_pk_bf16_f32 v%d, v%d, v%d" % (a + 2, a + 2, a + 3),
            "v_and_b32 v%d, 0xffff0000, v%d" % (a + 1, a),
            "v_and_b32 v%d, 0xffff0000, v%d" % (a + 3, a + 2),
            "v_lshlrev_b32 v%d, 16, v%d" % (a, a),
            "v_lshlrev_b32 v%d, 16, v%d" % (a + 2, a + 2)]


def add4(a, b):
    return ["v_pk_add_f32 %s, %s, %s" % (vr(a + i, 2), vr(a + i, 2), vr(b + i, 2)) for i in (0, 2)]


def stats_store(k, g, packed, t):
    s_, q_, t0, t1 = t, t + 1, t + 2, t + 3
    for i, r in enumerate(packed):
        k.e("v_dot2_f32_bf16 v%d, v%d, s%d, %s" % (s_, r, S_ONES, "0" if i == 0 else "v%d" % s_))
        k.e("v_dot2_f32_bf16 v%d, v%d, v%d, %s" % (q_, r, r, "0" if i == 0 else "v%d" % q_))
    for s in interleave(allreduce(s_, t0, "v_add_f32"), allreduce(q_, t1, "v_add_f32")):
        k.e(s)
    k.e("v_add_u32 v%d, s%d, v%d" % (t0, S_TOKB, g.m))
    k.e("v_lshlrev_b32 v%d, 3, v%d" % (t0, t0))
    k.e("s_lshl_b32 s%d, s%d, 14" % (S_T0, S_CB))
    k.e("s_mov_b64 exec, 0xffff")
    k.vmem("buffer_store_dwordx2 %s, v%d, %s, s%d offen%s" % (vr(s_, 2), t0, srd(SRD_SO), S_T0, DSC), "st")
    k.e("s_mov_b64 exec, -1")


TOUCH = int(os.environ.get('TOUCH', '0'))


def signal(k, g, edge, nblk, nxt=False, own=((S_OB, 2048),)):
    make_srd(k, SRD_F, ("n" if nxt else "l", R_FL), FLSZ)
    if nblk == 1:
        k.e("s_lshl_b32 s%d, s%d, 1" % (S_T0, S_TOKB))
        k.e("s_lshl_b32 s%d, s%d, 2" % (S_T1, S_CB))
    else:
        k.e("s_lshl_b32 s%d, s%d, 2" % (S_T0, S_TOKB))
        k.e("s_lshl_b32 s%d, s%d, 2" % (S_T1, S_CBW))
    k.e("s_add_u32 s%d, s%d, s%d" % (S_T0, S_T0, S_T1))
    k.e("s_add_u32 s%d, s%d, 0x%x" % (S_T0, S_T0, 0x2000 * edge))
    stamp(k, g, True)
    k.e("s_mov_b64 exec, %d" % ((1 << nblk) - 1))
    k.e("s_waitcnt vmcnt(0)")
    k.e("buffer_store_dword v%d, v%d, %s, s%d offen" % (g.one, g.l64, srd(SRD_F), S_T0))
    for (sr, nb) in (own if TOUCH else []):
        k.e("s_mov_b64 exec, 0x%x" % ((1 << (nb // 128)) - 1))
        k.e("buffer_load_dword v%d, v%d, %s, s%d offen" % (g.w, g.l128, srd(SRD_O), sr))
    k.e("s_mov_b64 exec, -1")
    stamp(k, g, True)
    k.vm = []
    k._xhi = None


def softmax_pair(p, t, outp):
    mx, mn, t0, t1 = t, t + 1, t + 2, t + 3
    ep = [t + 4 + i for i in range(4)]
    em = [t + 8 + i for i in range(4)]
    o = []
    o.append("v_max3_f32 v%d, v%d, v%d, v%d" % (mx, p, p + 1, p + 2))
    o.append("v_min3_f32 v%d, v%d, v%d, v%d" % (mn, p, p + 1, p + 2))
    o.append("v_max_f32 v%d, v%d, v%d" % (mx, mx, p + 3))
    o.append("v_min_f32 v%d, v%d, v%d" % (mn, mn, p + 3))
    o += interleave(allreduce(mx, t0, "v_max_f32"), allreduce(mn, t1, "v_min_f32"))
    o.append("v_mul_f32 v%d, s%d, v%d" % (mx, S_L2E, mx))
    o.append("v_mul_f32 v%d, s%d, v%d" % (mn, S_L2E, mn))
    for i in range(4):
        o.append("v_fma_f32 v%d, v%d, s%d, -v%d" % (ep[i], p + i, S_L2E, mx))
        o.append("v_fma_f32 v%d, -v%d, s%d, v%d" % (em[i], p + i, S_L2E, mn))
    for i in range(4):
        o.append("v_exp_f32 v%d, v%d" % (ep[i], ep[i]))
        o.append("v_exp_f32 v%d, v%d" % (em[i], em[i]))
    sp, sm = mx, mn
    o.append("v_add_f32 v%d, v%d, v%d" % (sp, ep[0], ep[1]))
    o.append("v_add_f32 v%d, v%d, v%d" % (sm, em[0], em[1]))
    o.append("v_add_f32 v%d, v%d, v%d" % (t0, ep[2], ep[3]))
    o.append("v_add_f32 v%d, v%d, v%d" % (t1, em[2], em[3]))
    o.append("v_add_f32 v%d, v%d, v%d" % (sp, sp, t0))
    o.append("v_add_f32 v%d, v%d, v%d" % (sm, sm, t1))
    o += interleave(allreduce(sp, t0, "v_add_f32"), allreduce(sm, t1, "v_add_f32"))
    o.append("v_rcp_f32 v%d, v%d" % (sp, sp))
    o.append("v_rcp_f32 v%d, v%d" % (sm, sm))
    o.append("s_nop 0")
    for i in range(4):
        o.append("v_mul_f32 v%d, v%d, v%d" % (ep[i], ep[i], sp))
        o.append("v_mul_f32 v%d, v%d, v%d" % (em[i], em[i], sm))
    o.append("v_cvt_pk_bf16_f32 v%d, v%d, v%d" % (outp, ep[0], ep[1]))
    o.append("v_cvt_pk_bf16_f32 v%d, v%d, v%d" % (outp + 1, ep[2], ep[3]))
    o.append("v_cvt_pk_bf16_f32 v%d, v%d, v%d" % (outp + 2, em[0], em[1]))
    o.append("v_cvt_pk_bf16_f32 v%d, v%d, v%d" % (outp + 3, em[2], em[3]))
    return o


def xin_srd(k, slot):
    k.e("s_add_u32 s%d, s%d, 0x%x" % (slot, S_WSL, R_XIN))
    k.e("s_addc_u32 s%d, s%d, 0" % (slot + 1, S_WSH))
    k.e("s_cmp_eq_u32 s%d, 0" % S_LAYER)
    k.e("s_cselect_b32 s%d, s%d, s%d" % (slot, PTR(IN_X), slot))
    k.e("s_cselect_b32 s%d, s%d, s%d" % (slot + 1, PTR(IN_X) + 1, slot + 1))
    k.e("s_mov_b32 s%d, 0x%x" % (slot + 2, XBYTES))
    k.e("s_mov_b32 s%d, 0x00020000" % (slot + 3))


_csid = [0]


def cs_load(k, vcs, cs, poff, tag, dummy):
    i = _csid[0]
    _csid[0] += 1
    k.e("s_cmp_lg_u32 s%d, 0" % S_LAYER)
    k.e("s_cbranch_scc1 L_csa%d_%s" % (i, k.name))
    k.e("v_add_u32 v%d, 0x%x, v%d" % (dummy + 4, LDS_CSX, vcs))
    for u in range(len(cs)):
        for tt in range(2):
            k.e("ds_read_b128 %s, v%d offset:%d" % (vr(cs[u][tt], 4), dummy + 4, (2 * u + tt) * 64))
    for u in range(len(cs)):
        for tt in range(2):
            k.e("buffer_load_dwordx4 %s, v%d, %s, s%d offen offset:%d" % (
                vr(dummy, 4), vcs, srd(SRD_C), S_WGS, poff + (2 * u + tt) * 64))
    k.e("s_waitcnt lgkmcnt(0)")
    k.e("s_branch L_csb%d_%s" % (i, k.name))
    k.label("L_csa%d_%s" % (i, k.name))
    for u in range(len(cs)):
        for tt in range(2):
            k.vmem("buffer_load_dwordx4 %s, v%d, %s, s%d offen offset:%d" % (
                vr(cs[u][tt], 4), vcs, srd(SRD_C), S_WGS, poff + (2 * u + tt) * 64), tag)
    k.label("L_csb%d_%s" % (i, k.name))


def colsum(k, g, w, xb, tag, poff):
    R = 4
    ones, ca, vb, vo, vl = xb, xb + 4, xb + 8, xb + 9, xb + 10
    ring = [xb + 12 + 4 * i for i in range(R)]
    pool = [xb + 32 + i for i in range(8)]
    h0 = w.his[0]
    k.e("s_cmp_lg_u32 s%d, 0" % S_LAYER)
    k.e("s_cbranch_scc1 L_csf%s_%s" % (tag, k.name))
    for i in range(4):
        k.e("v_mov_b32 v%d, 0x3f803f80" % (ones + i))
    k.e("s_and_b32 s%d, s%d, 1" % (S_T0, S_WAVE))
    k.e("s_lshl_b32 s%d, s%d, 5" % (S_T0, S_T0))
    k.e("v_xor_b32 v%d, s%d, v%d" % (vb, S_T0, w.tb[(0, h0)]))
    k.e("s_lshl_b32 s%d, s%d, 6" % (S_T0, S_WAVE))
    k.e("v_lshl_add_u32 v%d, v%d, 4, s%d" % (vo, g.g, S_T0))
    k.e("v_add_u32 v%d, 0x%x, v%d" % (vl, LDS_CSX, vo))
    for rnd in range(2 if w.NU == 3 else 1):
        k.e("s_cmp_ge_u32 s%d, 2" % S_WAVE)
        if rnd:
            k.e("s_cbranch_scc1 L_cse%s_%s" % (tag, k.name))
        ua, ub_ = (0, 1) if rnd == 0 else (2, 2)
        bases = {}
        for s_ in range(16):
            key = (w.woff(ub_, s_) - w.woff(ua, s_), w.woff(ua, s_) >> 15)
            if key not in bases:
                r = bases[key] = pool.pop()
                lo = (key[1] * 32768 - 65536 * h0) & 0xffffffff
                k.e("s_cselect_b32 s%d, 0x%x, 0" % (S_T0, key[0] & 0xffffffff))
                k.e("v_add_u32 v%d, s%d, v%d" % (r, S_T0, vb))
                if lo:
                    k.e("v_add_u32 v%d, 0x%x, v%d" % (r, lo, r))

        def rd(s_):
            key = (w.woff(ub_, s_) - w.woff(ua, s_), w.woff(ua, s_) >> 15)
            for hs in (0, 1):
                k.e("ds_read_b64_tr_b16 %s, v%d offset:%d" % (vr(ring[s_ % R] + 2 * hs, 2), bases[key], (w.woff(ua, s_) & 32767) + 256 * hs))
        for s_ in range(R - 1):
            rd(s_)
        for s_ in range(16):
            if s_ + R - 1 < 16:
                rd(s_ + R - 1)
            k.e("s_waitcnt lgkmcnt(%d)" % (2 * min(R - 1, 15 - s_)))
            k.e("v_mfma_f32_16x16x32_bf16 %s, %s, %s, %s" % (vr(ca, 4), vr(ring[s_ % R], 4), vr(ones, 4), vr(ca, 4) if s_ else "0"))
        k.e("s_mov_b32 exec_lo, 0x00010001")
        k.e("s_mov_b32 exec_hi, 0x00010001")
        k.e("ds_write_b128 v%d, %s offset:%d" % (vl, vr(ca, 4), 256 * rnd))
        k.e("buffer_store_dwordx4 %s, v%d, %s, s%d offen offset:%d" % (vr(ca, 4), vo, srd(SRD_C), S_WGS, poff + 256 * rnd))
        k.e("s_mov_b64 exec, -1")
        if rnd == 0 and w.NU == 3:
            ca = xb + 28
    if w.NU == 3:
        k.label("L_cse%s_%s" % (tag, k.name))
    k.e("s_waitcnt lgkmcnt(0)")
    k.label("L_csf%s_%s" % (tag, k.name))
    k.e("s_nop 4")


def bar(k):
    return lambda: k.e("s_barrier")


def p_qkv(k, g):
    MT, NU, KS, CS = 2, 3, 16, 4
    mk = k.mark()
    k.e("s_mov_b32 s%d, s%d" % (S_TOKB, S_TOKW))
    t16_base(k, S_XO, 512)
    w = w_tb(k, g, False, NU, woff512(U_QKV), KS)
    vph = k.alloc()
    k.e("v_lshlrev_b32 v%d, 7, v%d" % (vph, g.g))
    k.e("v_lshl_add_u32 v%d, v%d, 1, v%d" % (vph, g.m, vph))
    k.e("s_lshl_b32 s%d, s%d, 10" % (S_T0, S_CBW))
    k.e("v_add_u32 v%d, s%d, v%d" % (vph, S_T0, vph))
    st, st_issue = stats_load(k, g, MT)
    vcs = k.alloc()
    k.e("v_lshlrev_b32 v%d, 4, v%d" % (vcs, g.g))
    k.e("s_cmp_eq_u32 s%d, 0" % S_LAYER)
    k.e("s_cselect_b32 s%d, 64, 1024" % S_XST)
    k.e("s_cselect_b64 s[100:101], 0, -1")
    X = [[k.alloc(4, 4) for _ in range(KS)] for _ in range(MT)]
    cs = [[X[0][2 * u + tt] for tt in range(2)] for u in range(NU)]
    wphi = [X[0][6], X[0][6] + 2]
    wphi_hi = [X[0][7], X[0][7] + 2]
    acc = [[[k.alloc(4, 4) for _ in range(MT)] for _ in range(2)] for _ in range(NU)]
    xin_srd(k, SRD_X)
    make_srd(k, SRD_R, ("in", IN_WPHI), 32 * 512)
    make_srd(k, SRD_O, ("l", R_O), XBYTES)
    make_srd(k, SRD_R2, ("l", R_KVP), 2 * MB)
    make_srd(k, SRD_S, ("l", ST_XIN), STBYTES)
    make_srd(k, SRD_C, ("ws", WS_CS), 256 * 2048)
    make_srd(k, SRD_F, ("l", R_FL), FLSZ)

    def xl(s):
        k.e("s_mov_b64 exec, s[100:101]")
        for mt in range(MT):
            xload(k, g, X[mt][s], 512, mt, s, "x%d" % s)
        k.e("s_mov_b64 exec, -1")

    k.e("s_cmp_lg_u32 s%d, 0" % S_LAYER)
    k.e("s_cbranch_scc1 L_np_%s" % k.name)
    for mt in range(MT):
        for r in range(16):
            xload(k, g, X[mt][r], 512, mt, r, "r%d_%d" % (mt, r // 4))
    k._xhi = None
    ab = acc[0][0][0]
    ones4, mS, mQ = ab, [ab + 4, ab + 8], [ab + 12, ab + 16]
    vwb, vrd, tw = ab + 20, [ab + 21 + i for i in range(4)], [ab + 25 + i for i in range(4)]
    k.e("s_lshl_b32 s%d, s%d, 14" % (S_T0, S_WAVE))
    k.e("s_add_u32 s%d, s%d, 0x%x" % (S_T0, S_T0, UN[3]))
    k.e("v_add_u32 v%d, s%d, v%d" % (vwb, S_T0, g.lin))
    for b_ in range(4):
        k.e("v_add_u32 v%d, %d, v%d" % (vrd[b_], 4 * b_, g.g))
        k.e("v_xor_b32 v%d, v%d, v%d" % (vrd[b_], vrd[b_], g.m))
        k.e("v_lshlrev_b32 v%d, 4, v%d" % (vrd[b_], vrd[b_]))
        k.e("v_lshl_add_u32 v%d, v%d, 10, v%d" % (vrd[b_], g.m, vrd[b_]))
        k.e("v_add_u32 v%d, s%d, v%d" % (vrd[b_], S_T0, vrd[b_]))
    for i in range(4):
        k.e("v_mov_b32 v%d, 0x3f803f80" % (ones4 + i))
    for mt in range(MT):
        for r in range(16):
            if r % 4 == 0:
                k.wait_vm("r%d_%d" % (mt, r // 4))
            k.e("v_xor_b32 v%d, %d, v%d" % (tw[r % 4], 16 * r, vwb))
            k.e("ds_write_b128 v%d, %s offset:%d" % (tw[r % 4], vr(X[mt][r], 4), 1024 * r))
        k.e("s_waitcnt lgkmcnt(0)")
        for s in range(KS):
            k.e("ds_read_b128 %s, v%d offset:%d" % (vr(X[mt][s], 4), vrd[s % 4], 256 * (s // 4)))
        for s in range(KS):
            k.e("s_waitcnt lgkmcnt(%d)" % (KS - 1 - s))
            k.e("v_mfma_f32_16x16x32_bf16 %s, %s, %s, %s" % (vr(mS[mt], 4), vr(ones4, 4), vr(X[mt][s], 4), vr(mS[mt], 4) if s else "0"))
            k.e("v_mfma_f32_16x16x32_bf16 %s, %s, %s, %s" % (vr(mQ[mt], 4), vr(X[mt][s], 4), vr(X[mt][s], 4), vr(mQ[mt], 4) if s else "0"))
    k.e("v_and_b32 v%d, 3, v%d" % (tw[0], g.m))
    k.e("v_lshrrev_b32 v%d, 2, v%d" % (tw[1], g.m))
    for mt in range(MT):
        k.e("v_mul_f32 v%d, 0.25, v%d" % (st[mt], mS[mt]))
        k.e("v_mov_b32 v%d, 0" % (st[mt] + 2))
        k.e("v_mov_b32 v%d, 0" % (st[mt] + 3))
    for j in range(1, 4):
        k.e("v_cmp_eq_u32 vcc, %d, v%d" % (j, tw[0]))
        for mt in range(MT):
            k.e("v_cndmask_b32 v%d, v%d, v%d, vcc" % (mQ[mt], mQ[mt], mQ[mt] + j))
    k.e("v_cmp_eq_u32 vcc, v%d, v%d" % (tw[1], g.g))
    for mt in range(MT):
        k.e("v_cndmask_b32 v%d, 0, v%d, vcc" % (st[mt] + 1, mQ[mt]))
    k.vm = []
    k.label("L_np_%s" % k.name)
    k.e("s_nop 4")
    stamp(k, g)
    k.e("s_barrier")
    gemm_pre(k, w, KS, 2)
    colsum(k, g, w, ab, "q", 0)
    k.e("s_barrier")
    stamp(k, g)

    def st_m():
        k.e("s_mov_b64 exec, s[100:101]")
        st_issue()
        k.e("s_mov_b64 exec, -1")

    def ph_issue():
        cs_load(k, vcs, cs, 0, "cs", X[1][0])
        for hh in range(2):
            for j in range(4):
                k.vmem("buffer_load_ushort v%d, v%d, %s, 0 offen offset:%d" % (
                    (wphi[hh] if j & 1 == 0 else wphi_hi[hh]) + (j >> 1), vph, srd(SRD_R), 512 * hh + 32 * j), "ph")
    ex = spread(interleave(*[stats_fold(st[mt], "r") for mt in range(MT)]), 3, 5)
    ex.update(fix_step(acc, cs, st, NU, MT, 12))
    wbr = gemm_loop(k, g, w, KS, MT, lambda s, mt: X[mt][s], acc, xl, mid={8: ph_issue, 10: bar(k)}, pro={1: st_m},
                    top={12: ["cs"]}, extra=ex)
    k.e("s_barrier")
    stamp(k, g)
    xb = X[0][0]
    pool = [xb + 32]

    def ta(n, al=2):
        b = (pool[0] + al - 1) // al * al
        pool[0] = b + n
        assert pool[0] <= xb + 128
        return b

    ident = ta(2)
    ones = ta(2)
    t = ta(1)
    t2 = ta(1)
    k.e("v_mov_b32 v%d, 0x3f803f80" % ones)
    k.e("v_mov_b32 v%d, 0x3f803f80" % (ones + 1))
    k.e("v_and_b32 v%d, 1, v%d" % (t, g.m))
    k.e("v_lshlrev_b32 v%d, 4, v%d" % (t, t))
    k.e("v_mov_b32 v%d, 0x3f80" % t2)
    k.e("v_lshlrev_b32 v%d, v%d, v%d" % (t2, t, t2))
    k.e("v_lshrrev_b32 v%d, 2, v%d" % (t, g.m))
    k.e("v_cmp_eq_u32 vcc, v%d, v%d" % (t, g.g))
    k.e("v_cndmask_b32 v%d, 0, v%d, vcc" % (t2, t2))
    k.e("v_and_b32 v%d, 2, v%d" % (t, g.m))
    k.e("v_cmp_eq_u32 vcc, 0, v%d" % t)
    k.e("v_cndmask_b32 v%d, 0, v%d, vcc" % (ident, t2))
    k.e("v_cndmask_b32 v%d, v%d, 0, vcc" % (ident + 1, t2))
    k.e("s_lshl_b32 s%d, s%d, 13" % (S_T0, S_WAVE))
    k.e("s_add_u32 s%d, s%d, 0x%x" % (S_T0, S_T0, LDS_SCR))
    k.e("v_add_u32 v%d, s%d, v%d" % (t, S_T0, g.lin))
    k.e("s_lshr_b32 s%d, s%d, 1" % (S_T0, S_WAVE))
    k.e("s_lshl_b32 s%d, s%d, 12" % (S_T0, S_T0))
    k.e("s_and_b32 s%d, s%d, 1" % (S_T1, S_WAVE))
    k.e("s_lshl_b32 s%d, s%d, 10" % (S_T1, S_T1))
    k.e("s_add_u32 s%d, s%d, s%d" % (S_T0, S_T0, S_T1))
    k.e("s_add_u32 s%d, s%d, 0x%x" % (S_T0, S_T0, LDS_SCR))
    k.e("v_add_u32 v%d, s%d, v%d" % (t2, S_T0, g.lin))
    k.wait_vm("ph")
    for hh in range(2):
        for j in range(2):
            k.e("v_lshl_or_b32 v%d, v%d, 16, v%d" % (wphi[hh] + j, wphi_hi[hh] + j, wphi[hh] + j))
    kvacc = [[wbr[4 * hh + b] for b in range(4)] for hh in range(2)]
    C4 = [(mt, hh) for mt in range(MT) for hh in range(2)]
    oq = [wbr[8 + c] for c in range(4)]
    kb = [ta(2) for _ in C4]
    vb = [ta(2) for _ in C4]
    T = [ta(12, 4) for _ in C4]
    ok = [ta(4, 4) for _ in C4]
    seqs = []
    for c, (mt, hh) in enumerate(C4):
        a = acc[1][hh][mt]
        seqs.append(scale4(a, st[mt]) + pack2(kb[c], a))
        a = acc[2][hh][mt]
        seqs.append(scale4(a, st[mt]) + pack2(vb[c], a))
    for s_ in interleave(*seqs):
        k.e(s_)
    pk = [acc[1][hh][mt] for (mt, hh) in C4]
    tv = [acc[2][hh][mt] for (mt, hh) in C4]
    for c, (mt, hh) in enumerate(C4):
        k.e("v_mfma_f32_16x16x16_bf16 %s, %s, %s, 0" % (vr(pk[c], 4), vr(wphi[hh], 2), vr(kb[c], 2)))
    for c in range(4):
        k.e("v_mfma_f32_16x16x16_bf16 %s, %s, %s, 0" % (vr(tv[c], 4), vr(vb[c], 2), vr(ident, 2)))
    for s_ in interleave(*[softmax_pair(pk[c], T[c], ok[c]) for c in range(4)]):
        k.e(s_)
    for c in range(4):
        k.e("v_mfma_f32_16x16x16_bf16 %s, %s, %s, 0" % (vr(T[c], 4), vr(ok[c], 2), vr(ident, 2)))
        k.e("v_mfma_f32_16x16x16_bf16 %s, %s, %s, 0" % (vr(T[c] + 4, 4), vr(ok[c] + 2, 2), vr(ident, 2)))
    for c in range(4):
        for s_ in pack2(vb[c], tv[c]):
            k.e(s_)
    for c in range(4):
        for s_ in pack2(T[c] + 8, T[c]) + pack2(T[c] + 10, T[c] + 4):
            k.e(s_)
    for c, (mt, hh) in enumerate(C4):
        kk = kvacc[hh]
        for (dst, a_, b_) in ((kk[0], T[c] + 8, vb[c]), (kk[1], T[c] + 10, vb[c]), (kk[2], T[c] + 8, ones), (kk[3], T[c] + 10, ones)):
            k.e("v_mfma_f32_16x16x16_bf16 %s, %s, %s, %s" % (
                vr(dst, 4), vr(a_, 2), vr(b_, 2), "0" if mt == 0 else vr(dst, 4)))
    for hh in range(2):
        for b in range(4):
            k.e("ds_write_b128 v%d, %s offset:%d" % (t, vr(kvacc[hh][b], 4), (hh * 4 + b) * 1024))
    seqs = []
    for c, (mt, hh) in enumerate(C4):
        a = acc[0][hh][mt]
        seqs.append(scale4(a, st[mt]) + pack2(kb[c], a))
    qa = interleave(*seqs)
    for c, (mt, hh) in enumerate(C4):
        qa.append("v_mfma_f32_16x16x16_bf16 %s, %s, %s, 0" % (vr(acc[0][hh][mt], 4), vr(wphi[hh], 2), vr(kb[c], 2)))
    qb = interleave(*[softmax_pair(acc[0][hh][mt], T[c], oq[c]) for c, (mt, hh) in enumerate(C4)])
    k.e("s_waitcnt lgkmcnt(0)")
    k.e("s_barrier")
    rk = [acc[1][hh][mt] for (mt, hh) in C4]
    rz = [acc[2][hh][mt] for (mt, hh) in C4]
    for ww in range(4):
        k.e("ds_read_b128 %s, v%d offset:%d" % (vr(rk[ww], 4), t2, ww * 8192))
        k.e("ds_read_b128 %s, v%d offset:%d" % (vr(rz[ww], 4), t2, ww * 8192 + 2048))
    k.e("s_lshl_b32 s%d, s%d, 2" % (S_T2, S_CBW))
    k.e("s_add_u32 s%d, s%d, s%d" % (S_T2, S_T2, S_WAVE))
    k.e("s_lshl_b32 s%d, s%d, 4" % (S_T2, S_T2))
    k.e("s_add_u32 s%d, s%d, s%d" % (S_T0, S_T2, S_RBW))
    k.e("s_lshl_b32 s%d, s%d, 7" % (S_T1, S_T0))
    k.e("s_add_u32 s%d, s%d, 0x%x" % (S_T1, S_T1, MB))
    k.e("s_lshl_b32 s%d, s%d, 10" % (S_T0, S_T0))
    for s_ in qa:
        k.e(s_)
    k.e("s_waitcnt lgkmcnt(0)")
    for R_ in (rk, rz):
        for i in (0, 2):
            k.e("v_pk_add_f32 %s, %s, %s" % (vr(R_[0] + i, 2), vr(R_[0] + i, 2), vr(R_[1] + i, 2)))
            k.e("v_pk_add_f32 %s, %s, %s" % (vr(R_[2] + i, 2), vr(R_[2] + i, 2), vr(R_[3] + i, 2)))
    for R_ in (rk, rz):
        for i in (0, 2):
            k.e("v_pk_add_f32 %s, %s, %s" % (vr(R_[0] + i, 2), vr(R_[0] + i, 2), vr(R_[2] + i, 2)))
    k.e("buffer_store_dwordx4 %s, v%d, %s, s%d offen sc1" % (vr(rk[0], 4), g.lin, srd(SRD_R2), S_T0))
    k.e("s_mov_b32 exec_lo, 0x00010001")
    k.e("s_mov_b32 exec_hi, 0x00010001")
    k.e("buffer_store_dwordx4 %s, v%d, %s, s%d offen sc1" % (vr(rz[0], 4), vcs, srd(SRD_R2), S_T1))
    k.e("s_mov_b64 exec, -1")
    k.e("s_lshl_b32 s%d, s%d, 10" % (S_T0, S_CBW))
    k.e("s_lshr_b32 s%d, s%d, 1" % (S_T1, S_RBW))
    k.e("s_lshl_b32 s%d, s%d, 7" % (S_T1, S_T1))
    k.e("s_add_u32 s%d, s%d, s%d" % (S_T0, S_T0, S_T1))
    k.e("s_and_b32 s%d, s%d, 1" % (S_T1, S_RBW))
    k.e("s_lshl_b32 s%d, s%d, 2" % (S_T1, S_T1))
    k.e("s_add_u32 s%d, s%d, s%d" % (S_T1, S_T1, S_WAVE))
    k.e("s_lshl_b32 s%d, s%d, 2" % (S_T1, S_T1))
    k.e("s_add_u32 s%d, s%d, s%d" % (S_T0, S_T0, S_T1))
    k.e("s_add_u32 s%d, s%d, 0x%x" % (S_T0, S_T0, FL_KV))
    rest = qb
    QS = int(os.environ.get("QSPLIT", "110"))
    for s_ in rest[:QS]:
        k.e(s_)
    k.e("s_mov_b64 exec, 1")
    k.e("s_waitcnt vmcnt(0)")
    k.e("buffer_store_dword v%d, v%d, %s, s%d offen sc1" % (g.one, g.l128, srd(SRD_F), S_T0))
    k.e("s_mov_b64 exec, -1")
    for s_ in rest[QS:]:
        k.e(s_)
    vw_, vr_ = acc[1][0][0], acc[1][0][0] + 1
    k.e("s_lshr_b32 s%d, s%d, 1" % (S_T0, S_WAVE))
    k.e("s_lshl_b32 s%d, s%d, 11" % (S_T0, S_T0))
    k.e("s_and_b32 s%d, s%d, 1" % (S_T1, S_WAVE))
    k.e("s_lshl_b32 s%d, s%d, 3" % (S_T1, S_T1))
    k.e("s_add_u32 s%d, s%d, s%d" % (S_T0, S_T0, S_T1))
    k.e("s_add_u32 s%d, s%d, 0x%x" % (S_T0, S_T0, LDS_SCR))
    k.e("v_add_u32 v%d, s%d, v%d" % (vw_, S_T0, g.lin))
    k.e("v_add_u32 v%d, 0x%x, v%d" % (vr_, LDS_SCR, g.lin))
    k.e("s_lshl_b32 s%d, s%d, 10" % (S_T0, S_T2))
    k.e("s_lshl_b32 s%d, s%d, 7" % (S_T1, S_T2))
    k.e("s_add_u32 s%d, s%d, 0x%x" % (S_T1, S_T1, MB))
    k.e("s_lshl_b32 s%d, s%d, 10" % (S_OB, S_TOKB))
    k.e("s_lshl_b32 s%d, s%d, 10" % (S_T2, S_CBW))
    k.e("s_add_u32 s%d, s%d, s%d" % (S_OB, S_OB, S_T2))
    stamp(k, g)
    k.e("s_barrier")
    stamp(k, g)
    k.vm = []
    P = [xb + 4 * r for r in range(16)]
    Z = [xb + 64 + 4 * r for r in range(16)]
    for r in range(16):
        if r and r % 4 == 0:
            k.e("s_add_u32 s%d, s%d, 4096" % (S_T0, S_T0))
        k.vmem("buffer_load_dwordx4 %s, v%d, %s, s%d offen offset:%d" % (vr(P[r], 4), g.lin, srd(SRD_R2), S_T0, (r % 4) * 1024), "p%d" % (r // 4))
        k.vmem("buffer_load_dwordx4 %s, v%d, %s, s%d offen offset:%d" % (vr(Z[r], 4), vcs, srd(SRD_R2), S_T1, r * 128), "p%d" % (r // 4))
    for q in range(4):
        k.wait_vm("p%d" % q)
        for R_ in (P, Z):
            for i in (0, 2):
                k.e("v_pk_add_f32 %s, %s, %s" % (vr(R_[4 * q] + i, 2), vr(R_[4 * q] + i, 2), vr(R_[4 * q + 1] + i, 2)))
                k.e("v_pk_add_f32 %s, %s, %s" % (vr(R_[4 * q + 2] + i, 2), vr(R_[4 * q + 2] + i, 2), vr(R_[4 * q + 3] + i, 2)))
        for R_ in (P, Z):
            for i in (0, 2):
                k.e("v_pk_add_f32 %s, %s, %s" % (vr(R_[4 * q] + i, 2), vr(R_[4 * q] + i, 2), vr(R_[4 * q + 2] + i, 2)))
        if q:
            for R_ in (P, Z):
                for i in (0, 2):
                    k.e("v_pk_add_f32 %s, %s, %s" % (vr(R_[0] + i, 2), vr(R_[0] + i, 2), vr(R_[4 * q] + i, 2)))
    for s_ in pack2(P[1], P[0]) + pack2(Z[1], Z[0]):
        k.e(s_)
    k.e("ds_write_b64 v%d, %s" % (vw_, vr(P[1], 2)))
    k.e("ds_write_b64 v%d, %s offset:1024" % (vw_, vr(Z[1], 2)))
    k.e("s_waitcnt lgkmcnt(0)")
    k.e("s_barrier")
    kvf = [P[2], P[3]]
    zf = [P[4], P[5]]
    for hh in range(2):
        k.e("ds_read_b128 %s, v%d offset:%d" % (vr(kvf[hh], 4), vr_, hh * 2048))
        k.e("ds_read_b128 %s, v%d offset:%d" % (vr(zf[hh], 4), vr_, hh * 2048 + 1024))
    num = [Z[c] for c in range(4)]
    den = [Z[4 + c] for c in range(4)]
    O = [Z[8], Z[9]]
    k.e("s_waitcnt lgkmcnt(0)")
    for c, (mt, hh) in enumerate(C4):
        k.e("v_mfma_f32_16x16x32_bf16 %s, %s, %s, 0" % (vr(den[c], 4), vr(zf[hh], 4), vr(oq[c], 4)))
    for c, (mt, hh) in enumerate(C4):
        k.e("v_mfma_f32_16x16x32_bf16 %s, %s, %s, 0" % (vr(num[c], 4), vr(kvf[hh], 4), vr(oq[c], 4)))
    for c in range(4):
        k.e("v_add_f32 v%d, s%d, v%d" % (den[c], S_EPS, den[c]))
    for c in range(4):
        k.e("v_rcp_f32 v%d, v%d" % (den[c], den[c]))
    for c in range(4):
        for j in range(4):
            k.e("v_mul_f32 v%d, v%d, v%d" % (num[c] + j, num[c] + j, den[c]))
    for c, (mt, hh) in enumerate(C4):
        for s_ in pack2(O[mt] + 2 * hh, num[c]):
            k.e(s_)
    k.e("s_add_u32 s%d, s%d, 0x4000" % (S_T2, S_OB))
    for mt in range(MT):
        k.vmem("buffer_store_dwordx4 %s, v%d, %s, s%d offen%s" % (vr(O[mt], 4), g.lin, srd(SRD_O), S_T2 if mt else S_OB, DSC), "st")
    signal(k, g, E_O, 2, own=((S_OB, 1024), (S_T2, 1024)))
    k.release(mk)


def out_base(k):
    k.e("s_lshl_b32 s%d, s%d, 10" % (S_OB, S_TOKB))
    k.e("s_lshl_b32 s%d, s%d, 11" % (S_T0, S_CB))
    k.e("s_add_u32 s%d, s%d, s%d" % (S_OB, S_OB, S_T0))


def res_load(k, vsw, slot, tag, regs=None):
    r = regs if regs is not None else [k.alloc(4, 4) for _ in range(2)]

    def issue():
        for u in range(2):
            k.vmem("buffer_load_dwordx4 %s, v%d, %s, s%d offen offset:%d" % (vr(r[u], 4), vsw, srd(slot), S_OB, 1024 * u), tag)
    return r, issue


def store_pairs(k, vsw, pk, swap=True, mod=DSC):
    for u in range(2):
        for s_ in swap_pair(pk[u]) if swap else []:
            k.e(s_)
    for u in range(2):
        k.vmem("buffer_store_dwordx4 %s, v%d, %s, s%d offen offset:%d%s" % (vr(pk[u], 4), vsw, srd(SRD_O), S_OB, 1024 * u, mod), "st")


def fin(k, g, acc, pk):
    for u in range(2):
        for t in range(2):
            for s_ in pack2(pk[u] + 2 * t, acc[u][t][0]):
                k.e(s_)
    k.e("s_barrier")
    stamp(k, g)


def p_wo(k, g):
    MT, NU, KS, CS = 1, 2, 16, 4
    mk0 = k.mark()
    vsw = g.vsw
    k.e("s_mov_b32 s%d, s%d" % (S_TOKB, S_TOKN))
    t16_base(k, S_XO, 512)
    out_base(k)
    w = w_tb(k, g, True, NU, woff512(U_WO), KS)
    X = [k.alloc(4, 4) for _ in range(KS)]
    acc = [[[k.alloc(4, 4)] for _ in range(2)] for _ in range(NU)]
    res = [k.alloc(4, 4) for _ in range(2)]
    vres, t = k.alloc(), k.alloc()
    k.e("v_and_b32 v%d, 1, v%d" % (t, g.g))
    k.e("v_lshlrev_b32 v%d, 10, v%d" % (vres, g.m))
    k.e("v_lshl_add_u32 v%d, v%d, 5, v%d" % (vres, t, vres))
    k.e("v_lshrrev_b32 v%d, 1, v%d" % (t, g.g))
    k.e("v_lshl_add_u32 v%d, v%d, 4, v%d" % (vres, t, vres))
    k.e("s_lshl_b32 s%d, s%d, 10" % (S_T1, S_TOKB))
    k.e("s_lshl_b32 s%d, s%d, 7" % (S_T0, S_CB))
    k.e("s_add_u32 s%d, s%d, s%d" % (S_T1, S_T1, S_T0))
    make_srd(k, SRD_X, ("l", R_O), XBYTES)
    xin_srd(k, SRD_R)
    k.e("s_cselect_b64 vcc, -1, 0")
    k.e("s_cselect_b32 s%d, s%d, s%d" % (S_T1, S_T1, S_OB))
    k.e("s_add_u32 s%d, s%d, s%d" % (S_T2, S_T1, S_XST))
    k.e("v_cndmask_b32 v%d, v%d, v%d, vcc" % (vres, vsw, vres))
    make_srd(k, SRD_O, ("l", R_XA), XBYTES)
    make_srd(k, SRD_SO, ("l", ST_XA), STBYTES)
    for u in range(2):
        k.vmem("buffer_load_dwordx4 %s, v%d, %s, s%d offen" % (vr(res[u], 4), vres, srd(SRD_R), (S_T1, S_T2)[u]), "res")
    stamp(k, g)
    k.e("s_barrier")
    gemm_pre(k, w, KS, R512)
    k.wait_vm("res")
    for u in range(2):
        for s_ in swap_pair(res[u]):
            k.e(s_)
    for u in range(2):
        for t in range(2):
            for s_ in unpack2(acc[u][t][0], res[u] + 2 * t):
                k.e(s_)
    k.e("s_barrier")
    stamp(k, g)
    gemm_loop(k, g, w, KS, MT, lambda s, mt: X[s], acc, lambda s: xload(k, g, X[s], 512, 0, s, "x%d" % s), mid={BD512: bar(k)}, init=True)
    pk = [X[8], X[9]]
    fin(k, g, acc, pk)
    store_pairs(k, vsw, pk)
    stats_store(k, g, [pk[u] + i for u in range(2) for i in range(4)], X[10])
    signal(k, g, E_XA, 1)
    k.release(mk0)


def p_w1(k, g):
    MT, NU, KS, CS = 1, 2, 16, 4
    mk0 = k.mark()
    vsw = g.vsw
    t16_base(k, S_XO, 512)
    w = w_tb(k, g, False, NU, woff512(U_W1), KS)
    X = [k.alloc(4, 4) for _ in range(KS)]
    acc = [[[k.alloc(4, 4)] for _ in range(2)] for _ in range(NU)]
    st, st_issue = stats_load(k, g, MT)
    vcs = k.alloc()
    k.e("v_lshlrev_b32 v%d, 4, v%d" % (vcs, g.g))
    cs = [[k.alloc(4, 4) for _ in range(2)] for _ in range(2)]
    dm = k.alloc(8, 4)
    make_srd(k, SRD_X, ("l", R_XA), XBYTES)
    make_srd(k, SRD_O, ("l", R_H), XBYTES)
    make_srd(k, SRD_S, ("l", ST_XA), STBYTES)
    stamp(k, g)
    k.e("s_barrier")
    gemm_pre(k, w, KS, R512)
    colsum(k, g, w, X[0], "a", 512)
    k.e("s_barrier")
    stamp(k, g)

    def m4():
        st_issue()
        cs_load(k, vcs, cs, 512, "stat", dm)
    ex = spread(stats_fold(st[0], "gg"), 4, 4)
    ex.update(fix_step(acc, cs, st, NU, MT, 8))
    gemm_loop(k, g, w, KS, MT, lambda s, mt: X[s], acc, lambda s: xload(k, g, X[s], 512, 0, s, "x%d" % s), mid={BD512: bar(k)},
              pro={3: m4}, extra=ex)
    k.e("s_barrier")
    stamp(k, g)
    seqs = []
    pk = [X[8], X[9]]
    for u in range(2):
        for t in range(2):
            i = 2 * u + t
            a = acc[u][t][0]
            seqs.append(gelu4f(a, X[i], pk[u] + 2 * t, st[0]))
    for s_ in interleave(*seqs):
        k.e(s_)
    for u in range(2):
        for s_ in swap_pair(pk[u]):
            k.e(s_)
    k.e("s_add_u32 s%d, s%d, 16" % (S_T0, S_TOKB))
    k.e("s_and_b32 s%d, s%d, 0xe0" % (S_T0, S_T0))
    k.e("s_cmp_eq_u32 s%d, 0" % S_T0)
    k.e("s_cbranch_scc1 L_hb_%s" % k.name)
    store_pairs(k, vsw, pk, swap=False)
    k.e("s_branch L_hc_%s" % k.name)
    k.label("L_hb_%s" % k.name)
    store_pairs(k, vsw, pk, swap=False, mod=" sc1")
    make_srd(k, SRD_F, ("l", R_FL), FLSZ)
    k.e("s_lshr_b32 s%d, s%d, 8" % (S_T0, S_TOKB))
    k.e("s_lshl_b32 s%d, s%d, 8" % (S_T0, S_T0))
    k.e("s_bfe_u32 s%d, s%d, 0x10004" % (S_T1, S_TOKB))
    k.e("s_lshl_b32 s%d, s%d, 7" % (S_T1, S_T1))
    k.e("s_add_u32 s%d, s%d, s%d" % (S_T0, S_T0, S_T1))
    k.e("s_lshl_b32 s%d, s%d, 2" % (S_T1, S_CB))
    k.e("s_add_u32 s%d, s%d, s%d" % (S_T0, S_T0, S_T1))
    k.e("s_add_u32 s%d, s%d, 0x%x" % (S_T0, S_T0, FL_HX))
    k.e("s_mov_b64 exec, 1")
    k.e("s_waitcnt vmcnt(0)")
    k.e("buffer_store_dword v%d, v%d, %s, s%d offen sc1" % (g.one, g.l64, srd(SRD_F), S_T0))
    k.e("s_mov_b64 exec, -1")
    k.label("L_hc_%s" % k.name)
    signal(k, g, E_H, 1)
    k.release(mk0)


def p_w2(k, g):
    MT, NU, KS, CS = 1, 2, 16, 4
    mk0 = k.mark()
    vsw = g.vsw
    w = w_tb(k, g, False, NU, woffk(U_W2), KS)
    X = [k.alloc(4, 4) for _ in range(KS)]
    acc = [[[k.alloc(4, 4)] for _ in range(2)] for _ in range(NU)]
    res, res_issue = res_load(k, vsw, SRD_R, "stat")
    st, st_issue = stats_load(k, g, MT)
    vsh = []
    t = k.alloc()
    for c, d in enumerate((-1, 1, -2, 2)):
        r = k.alloc()
        k.e("s_add_i32 s%d, s%d, %d" % (S_T0, S_TOKB, d))
        k.e("v_add_u32 v%d, s%d, v%d" % (t, S_T0, g.m))
        k.e("v_ashrrev_i32 v%d, 4, v%d" % (r, t))
        k.e("v_lshlrev_b32 v%d, 14, v%d" % (r, r))
        k.e("v_and_b32 v%d, 15, v%d" % (t, t))
        k.e("v_lshl_add_u32 v%d, v%d, 4, v%d" % (r, t, r))
        k.e("v_lshl_add_u32 v%d, v%d, 8, v%d" % (r, g.g, r))
        if c:
            k.e("v_add_u32 v%d, 0x%x, v%d" % (r, 4096 * c, r))
        vsh.append(r)
    make_srd(k, SRD_X, ("l", R_H), XBYTES)
    make_srd(k, SRD_O, ("l", R_X1), XBYTES)
    make_srd(k, SRD_R, ("l", R_XA), XBYTES)
    make_srd(k, SRD_S, ("l", ST_XA), STBYTES)
    make_srd(k, SRD_SO, ("l", ST_X1), STBYTES)
    res_issue()
    st_issue()
    stamp(k, g)
    k.e("s_barrier")
    gemm_pre(k, w, KS, R512)
    k.wait_vm("stat")
    for s_ in interleave(stats_finish(st[0]), swap_pair(res[0]) + swap_pair(res[1])):
        k.e(s_)
    seqs = []
    for u in range(2):
        for t in range(2):
            tt = acc[u][t][0]
            sq = unpack2(tt, res[u] + 2 * t)
            sq += ["v_pk_fma_f32 %s, %s, %s, %s op_sel:[0,0,1] op_sel_hi:[1,0,1]" % (vr(tt + j, 2), vr(tt + j, 2), vr(st[0], 2), vr(st[0], 2)) for j in (0, 2)]
            seqs.append(sq)
    for s_ in interleave(*seqs):
        k.e(s_)
    k.e("s_barrier")
    stamp(k, g)

    def xl(s):
        k.vmem("buffer_load_dwordx4 %s, v%d, %s, 0 offen offset:%d%s" % (vr(X[s], 4), vsh[s // 4], srd(SRD_X), 1024 * (s % 4), LSC), "x%d" % s)
    gemm_loop(k, g, w, KS, MT, lambda s, mt: X[s], acc, xl, mid={BD512: bar(k)}, init=True)
    pk = [X[8], X[9]]
    fin(k, g, acc, pk)
    store_pairs(k, vsw, pk)
    stats_store(k, g, [pk[u] + i for u in range(2) for i in range(4)], X[10])
    signal(k, g, E_X1, 1)
    k.release(mk0)


def p_w3(k, g):
    MT, NU, KS, CS = 2, 3, 16, 4
    mk0 = k.mark()
    vsw = g.vsw
    k.e("s_mov_b32 s%d, s%d" % (S_TOKB, S_TOKW))
    t16_base(k, S_XO, 512)
    w = w_tb(k, g, False, NU, woff3, KS)
    k.e("s_mul_i32 s%d, s%d, %d" % (S_OB, S_TOKB, 2752))
    k.e("s_lshl_b32 s%d, s%d, 10" % (S_T0, S_CU3))
    k.e("s_add_u32 s%d, s%d, s%d" % (S_OB, S_OB, S_T0))
    st, st_issue = stats_load(k, g, MT)
    vcs = k.alloc()
    k.e("v_lshlrev_b32 v%d, 4, v%d" % (vcs, g.g))
    X = [[k.alloc(4, 4) for _ in range(KS)] for _ in range(MT)]
    cs = [[X[0][2 * u + tt] for tt in range(2)] for u in range(NU)]
    acc = [[[k.alloc(4, 4) for _ in range(MT)] for _ in range(2)] for _ in range(NU)]
    make_srd(k, SRD_X, ("l", R_X1), XBYTES)
    make_srd(k, SRD_O, ("l", R_H3), S * 2752)
    make_srd(k, SRD_S, ("l", ST_X1), STBYTES)
    stamp(k, g)
    k.e("s_barrier")
    gemm_pre(k, w, KS, 2)
    colsum(k, g, w, X[0][0], "c", 1024)
    k.e("s_barrier")
    stamp(k, g)

    def xl(s):
        for mt in range(MT):
            xload(k, g, X[mt][s], 512, mt, s, "x%d" % s)

    ex = spread(interleave(*[stats_fold(st[mt], "g") for mt in range(MT)]), 3, 6)
    ex.update(fix_step(acc, cs, st, NU, MT, 12))
    gemm_loop(k, g, w, KS, MT, lambda s, mt: X[mt][s], acc, xl, mid={7: lambda: cs_load(k, vcs, cs, 1024, "cs", X[1][0]), 10: bar(k)},
              pro={1: st_issue}, top={12: ["cs"]}, extra=ex)
    k.e("s_barrier")
    stamp(k, g)
    k.e("s_add_u32 s%d, s%d, %d" % (S_T2, S_OB, 16 * 2752))
    for mt in range(MT):
        seqs = []
        pk = [X[mt][8 + u] for u in range(NU)]
        for u in range(NU):
            for t in range(2):
                i = 2 * u + t
                a = acc[u][t][mt]
                seqs.append(gelu4f(a, X[1][i], pk[u] + 2 * t, st[mt]))
        for s_ in interleave(*seqs):
            k.e(s_)
        for u in range(NU):
            for s_ in swap_pair(pk[u]):
                k.e(s_)
        for u in range(NU):
            k.vmem("buffer_store_dwordx4 %s, v%d, %s, s%d offen offset:%d%s" % (
                vr(pk[u], 4), vsw, srd(SRD_O), S_T2 if mt else S_OB, 1024 * u, DSC), "st")
    signal(k, g, E_H3, 2, own=((S_OB, 3072), (S_T2, 3072)))
    k.release(mk0)


KCAP4 = 40


def p_w4(k, g):
    MT, NU, KS, CS = 1, 2, 43, 4
    mk0 = k.mark()
    vsw = g.vsw
    k.e("s_mov_b32 s%d, s%d" % (S_TOKB, S_TOKN))
    t16_base(k, S_XO, F)
    out_base(k)
    w = w_tb(k, g, False, NU, woff4, KS)
    X = [k.alloc(4, 4) for _ in range(KS)]
    acc = [[[k.alloc(4, 4)] for _ in range(2)] for _ in range(NU)]
    res, res_issue = res_load(k, vsw, SRD_R, "res", [X[39], X[40]])
    res1, res1_issue = res_load(k, vsw, SRD_R2, "res", [X[41], X[42]])
    vro = k.alloc()
    t = k.alloc()
    k.e("v_add_u32 v%d, s%d, v%d" % (vro, S_TOKB, g.m))
    k.e("v_lshlrev_b32 v%d, 10, v%d" % (vro, vro))
    k.e("v_and_b32 v%d, 1, v%d" % (t, g.g))
    k.e("v_lshl_add_u32 v%d, v%d, 5, v%d" % (vro, t, vro))
    k.e("v_lshrrev_b32 v%d, 1, v%d" % (t, g.g))
    k.e("v_lshl_add_u32 v%d, v%d, 4, v%d" % (vro, t, vro))
    k.e("s_lshl_b32 s%d, s%d, 7" % (S_T0, S_CB))
    k.e("v_add_u32 v%d, s%d, v%d" % (vro, S_T0, vro))
    make_srd(k, SRD_X, ("l", R_H3), S * 2752)
    make_srd(k, SRD_O, ("n", R_XIN), XBYTES)
    make_srd(k, SRD_R, ("l", R_XA), XBYTES)
    make_srd(k, SRD_R2, ("l", R_X1), XBYTES)
    make_srd(k, SRD_SO, ("n", ST_XIN), STBYTES)
    make_srd(k, SRD_S, ("in", OUT), XBYTES)
    res_issue()
    res1_issue()
    stamp(k, g)
    k.e("s_barrier")
    gemm_pre(k, w, KS, 2)
    k.wait_vm("res")
    for u in range(2):
        for s_ in swap_pair(res[u]) + swap_pair(res1[u]):
            k.e(s_)
    seqs = []
    for u in range(2):
        for t in range(2):
            a = acc[u][t][0]
            tt = X[30 + 2 * u + t]
            seqs.append(unpack2(a, res1[u] + 2 * t) + unpack2(tt, res[u] + 2 * t) + add4(a, tt))
    for s_ in interleave(*seqs):
        k.e(s_)
    k.e("s_barrier")
    stamp(k, g)
    gemm_loop(k, g, w, KS, MT, lambda s, mt: X[s], acc, lambda s: xload(k, g, X[s], F, 0, s, "x%d" % s),
              mid={7: bar(k), 15: bar(k), 23: bar(k), 31: bar(k)}, pre={KCAP4: bar(k)}, init=True)
    pk = [X[8], X[9]]
    fin(k, g, acc, pk)
    k.e("s_cmp_lg_u32 s%d, 0" % S_LAYER)
    k.e("s_cbranch_scc1 L_last_%s" % k.name)
    store_pairs(k, vsw, pk)
    stats_store(k, g, [pk[u] + i for u in range(2) for i in range(4)], X[10])
    signal(k, g, E_X, 1, nxt=True)
    k.e("s_add_u32 s%d, s%d, 0x%x" % (S_WSL, S_WSL, LSTRIDE))
    k.e("s_addc_u32 s%d, s%d, 0" % (S_WSH, S_WSH))
    k.e("s_mov_b32 s%d, 1" % S_LAYER)
    k.e("s_branch L_layer_%s" % k.name)
    k.label("L_last_%s" % k.name)
    k.e("s_nop 4")
    for u in range(2):
        for s_ in swap_pair(pk[u]):
            k.e(s_)
    for u in range(2):
        k.e("buffer_store_dwordx4 %s, v%d, %s, 0 offen offset:%d" % (vr(pk[u], 4), vro, srd(SRD_S), 64 * u))
    k.release(mk0)


def w_lane(k, g, r, wrow, swz_bit, t, t2):
    k.e("v_lshrrev_b32 v%d, 2, v%d" % (t, g.l))
    k.e("s_mov_b32 s%d, %d" % (S_T0, wrow))
    k.e("v_mul_lo_u32 v%d, s%d, v%d" % (r, S_T0, t))
    k.e("v_lshrrev_b32 v%d, %d, v%d" % (t, 2 + swz_bit - 1, g.l))
    k.e("v_and_b32 v%d, 2, v%d" % (t, t))
    k.e("v_and_b32 v%d, 3, v%d" % (t2, g.l))
    k.e("v_xor_b32 v%d, v%d, v%d" % (t, t, t2))
    k.e("v_lshl_add_u32 v%d, v%d, 4, v%d" % (r, t, r))


def dma(k, vwo, soff, m0off):
    k.e("s_add_u32 s%d, s%d, 0x%x" % (S_T0, S_WBASE, soff))
    k.e("s_mov_b32 m0, 0x%x" % m0off)
    k.e("buffer_load_dwordx4 v%d, %s, s%d offen lds" % (vwo, srd(SRD_W), S_T0))


_pollid = [0]


def poll(k, g, soff_code, nl, expect, va=None, vf=None):
    i = _pollid[0]
    _pollid[0] += 1
    for s_ in soff_code:
        k.e(s_)
    k.e("s_mov_b32 s%d, 0" % S_CNT)
    if nl < 64:
        k.e("s_mov_b32 exec_lo, 0x%x" % (((1 << nl) - 1) & 0xffffffff))
        k.e("s_mov_b32 exec_hi, 0x%x" % (((1 << nl) - 1) >> 32))
    if PRE_SLEEP:
        k.e("s_sleep %d" % PRE_SLEEP)
    k.label("L_poll%d_%s" % (i, k.name))
    k.e("buffer_load_dword v%d, v%d, %s, s%d offen sc1" % (g.pv, g.l4 if va is None else va, srd(SRD_F), S_T2))
    k.e("s_waitcnt vmcnt(0)")
    k.e("v_subrev_u32 v%d, %s, v%d" % (g.pv, "s%d" % S_FP if vf is None else "v%d" % vf, g.pv))
    k.e("v_and_b32 v%d, 0xffffff9f, v%d" % (g.pv, g.pv))
    k.e("v_cmp_ne_u32 vcc, 0, v%d" % g.pv)
    k.e("s_cbranch_vccz L_go%d_%s" % (i, k.name))
    if POLL_SLEEP:
        k.e("s_sleep %d" % POLL_SLEEP)
    k.e("s_add_u32 s%d, s%d, 1" % (S_CNT, S_CNT))
    k.e("s_cmp_lt_u32 s%d, %d" % (S_CNT, POLL_MAX))
    k.e("s_cbranch_scc1 L_poll%d_%s" % (i, k.name))
    k.label("L_go%d_%s" % (i, k.name))
    k.e("s_mov_b64 exec, -1")


def loader(k, g):
    v3072, v1024, v1024k, v2752 = k.alloc(), k.alloc(), k.alloc(), k.alloc()
    t, t2 = k.alloc(), k.alloc()
    g.pv = k.alloc()
    w_lane(k, g, v3072, 3072, 3, t, t2)
    w_lane(k, g, v1024, 1024, 3, t, t2)
    w_lane(k, g, v1024k, 1024, 2, t, t2)
    w_lane(k, g, v2752, 2752, 3, t, t2)
    g.l4 = k.alloc()
    vh = k.alloc()
    k.e("v_lshlrev_b32 v%d, 2, v%d" % (g.l4, g.l))
    k.e("s_lshl_b32 s%d, s%d, 7" % (S_T0, S_RB))
    k.e("s_add_u32 s%d, s%d, 0x%x" % (S_T0, S_T0, 0x2000 * E_H))
    k.e("s_sub_u32 s%d, s%d, %d" % (S_T1, S_T0, 32 + 128))
    k.e("s_lshr_b32 s%d, s%d, 2" % (S_T2, S_RB))
    k.e("s_lshl_b32 s%d, s%d, 8" % (S_T2, S_T2))
    k.e("s_add_u32 s%d, s%d, 0x%x" % (S_T2, S_T2, FL_HX - 128 - 128))
    k.e("s_and_b32 s%d, s%d, 3" % (S_CNT, S_RB))
    k.e("s_cmp_eq_u32 s%d, 0" % S_CNT)
    k.e("s_cselect_b32 s%d, s%d, s%d" % (S_T1, S_T2, S_T1))
    k.e("s_sub_u32 s%d, s%d, 128" % (S_WBASE, S_T0))
    k.e("s_cmp_eq_u32 s%d, 0" % S_RB)
    k.e("s_cselect_b32 s%d, s%d, s%d" % (S_T1, S_WBASE, S_T1))
    k.e("v_mov_b32 v%d, s%d" % (vh, S_T0))
    k.e("v_mov_b32 v%d, s%d" % (t, S_T1))
    k.e("v_cmp_lt_u32 vcc, 31, v%d" % g.l)
    k.e("v_cndmask_b32 v%d, v%d, v%d, vcc" % (vh, vh, t))
    k.e("s_sub_u32 s%d, s%d, 32" % (S_T1, S_T0))
    k.e("s_add_u32 s%d, s%d, %d" % (S_T2, S_T2, 128 + 128 + 256 - 160))
    k.e("s_cmp_eq_u32 s%d, 3" % S_CNT)
    k.e("s_cselect_b32 s%d, s%d, s%d" % (S_T1, S_T2, S_T1))
    k.e("s_sub_u32 s%d, s%d, 160" % (S_WBASE, S_T0))
    k.e("s_cmp_eq_u32 s%d, 31" % S_RB)
    k.e("s_cselect_b32 s%d, s%d, s%d" % (S_T1, S_WBASE, S_T1))
    k.e("v_mov_b32 v%d, s%d" % (t, S_T1))
    k.e("v_cmp_lt_u32 vcc, 39, v%d" % g.l)
    k.e("v_cndmask_b32 v%d, v%d, v%d, vcc" % (vh, vh, t))
    k.e("v_add_u32 v%d, v%d, v%d" % (vh, vh, g.l4))

    vkv = k.alloc()
    k.e("v_lshrrev_b32 v%d, 3, v%d" % (t, g.l))
    k.e("v_and_b32 v%d, 7, v%d" % (t2, g.l))
    k.e("v_lshlrev_b32 v%d, 2, v%d" % (vkv, t2))
    k.e("v_lshl_add_u32 v%d, v%d, 7, v%d" % (vkv, t, vkv))

    def pn(edge, sh):
        return ["s_lshl_b32 s%d, s%d, %d" % (S_T2, S_RB, sh), "s_add_u32 s%d, s%d, 0x%x" % (S_T2, S_T2, 0x2000 * edge)]

    def pw(edge):
        return ["s_lshl_b32 s%d, s%d, 8" % (S_T2, S_RBW), "s_add_u32 s%d, s%d, 0x%x" % (S_T2, S_T2, 0x2000 * edge)]

    vfk, vfh = k.alloc(), k.alloc()
    k.e("v_and_b32 v%d, 0xffffffe0, v%d" % (vfk, g.tmp))
    k.e("v_add_u32 v%d, 0x%x, v%d" % (vfk, NONCE_K - 32, vfk))
    k.e("s_lshr_b32 s%d, s%d, 2" % (S_T0, S_RB))
    k.e("s_lshl_b32 s%d, s%d, 3" % (S_T0, S_T0))
    k.e("s_sub_u32 s%d, s%d, 8" % (S_T1, S_T0))
    k.e("s_and_b32 s%d, s%d, 63" % (S_T1, S_T1))
    k.e("s_add_u32 s%d, s%d, 8" % (S_T2, S_T0))
    k.e("s_and_b32 s%d, s%d, 63" % (S_T2, S_T2))
    k.e("v_readlane_b32 s%d, v%d, s%d" % (S_T1, vfk, S_T1))
    k.e("v_readlane_b32 s%d, v%d, s%d" % (S_T2, vfk, S_T2))
    k.e("s_cmp_eq_u32 s%d, 0" % S_CNT)
    k.e("s_cselect_b32 s%d, s%d, s%d" % (S_T1, S_T1, S_FP))
    k.e("s_cmp_eq_u32 s%d, 0" % S_RB)
    k.e("s_cselect_b32 s%d, s%d, s%d" % (S_T1, S_FP, S_T1))
    k.e("s_cmp_eq_u32 s%d, 3" % S_CNT)
    k.e("s_cselect_b32 s%d, s%d, s%d" % (S_T2, S_T2, S_FP))
    k.e("s_cmp_eq_u32 s%d, 31" % S_RB)
    k.e("s_cselect_b32 s%d, s%d, s%d" % (S_T2, S_FP, S_T2))
    k.e("v_mov_b32 v%d, s%d" % (vfh, S_FP))
    k.e("v_mov_b32 v%d, s%d" % (t, S_T1))
    k.e("v_cmp_lt_u32 vcc, 31, v%d" % g.l)
    k.e("v_cndmask_b32 v%d, v%d, v%d, vcc" % (vfh, vfh, t))
    k.e("v_mov_b32 v%d, s%d" % (t, S_T2))
    k.e("v_cmp_lt_u32 vcc, 39, v%d" % g.l)
    k.e("v_cndmask_b32 v%d, v%d, v%d, vcc" % (vfh, vfh, t))

    def setw(idx, size, sreg, sh):
        make_srd(k, SRD_W, ("in", idx), size)
        k.e("s_lshl_b32 s%d, s%d, %d" % (S_WBASE, sreg, sh))

    def units(vwo, wrow, ucol, ub, us, js=range(8)):
        for j in js:
            for wv in range(4):
                for u in us:
                    dma(k, vwo, u * ucol + j * 64 * wrow + wv * 16 * wrow, ub[u] + j * 4096 + wv * 1024)

    def d_qkv(us, js=range(8)):
        setw(IN_WQKV, 512 * 3072, S_CBW, 6)
        units(v3072, 3072, 1024, U_QKV, us, js)

    def d_512(idx, vwo, ub, us, js=range(8)):
        setw(idx, 512 * 1024, S_CB, 7)
        units(vwo, 1024, 64, ub, us, js)

    def blocks(vwo, wrow, woff, bl):
        for s_ in sorted({b[1] for b in bl}):
            for hf in range(2):
                for u in sorted(b[0] for b in bl if b[1] == s_):
                    dma(k, vwo, u * 64 + (s_ * 32 + hf * 16) * wrow, woff(u, s_) + hf * 1024)

    def d_w2(half):
        setw(IN_W2, 512 * 1024, S_CB, 7)
        blocks(v1024, 1024, woffk(U_W2), [(u, s_) for s_ in range(8 * half, 8 * half + 8) for u in range(2)])

    def d_w3(lo, hi):
        setw(IN_W3, 512 * 2752, S_CU3, 6)
        blocks(v2752, 2752, woff3, [(b % 3, b // 3) for b in range(lo, hi)])

    def d_w4(js):
        setw(IN_W4, F * 1024, S_CB, 7)
        for j in js:
            for wv in range(4):
                dma(k, v1024, j * 32 * 1024 + (wv & 1) * 64 + (wv >> 1) * 16384, woff4(wv & 1, j) + (wv >> 1) * 1024)

    def B():
        k.e("s_barrier")

    def phase(soff, nl, va=None, skip0=False, vf=None, cnt=0):
        stamp(k, g, ld=True)
        k.e("s_waitcnt vmcnt(%d)" % cnt)
        stamp(k, g, ld=True)
        k.e("s_barrier")
        if skip0:
            k.e("s_cmp_eq_u32 s%d, 0" % S_LAYER)
            k.e("s_cbranch_scc1 L_sk0_%s" % k.name)
        poll(k, g, soff, nl, 1, va, vf)
        if skip0:
            k.label("L_sk0_%s" % k.name)
        stamp(k, g, ld=True)
        k.e("s_barrier")

    _nl = [0]

    def not_last(f):
        i = _nl[0]
        _nl[0] += 1
        k.e("s_cmp_lg_u32 s%d, 0" % S_LAYER)
        k.e("s_cbranch_scc1 L_nl%d_%s" % (i, k.name))
        f()
        k.label("L_nl%d_%s" % (i, k.name))

    d_qkv([0, 1, 2])
    k.label("L_llayer_%s" % k.name)
    make_srd(k, SRD_F, ("l", R_FL), FLSZ)
    phase(pw(E_X), 64, skip0=True)

    def pf2():
        for i in range(4):
            k.e("s_lshl_b32 s%d, s2, 2" % S_CNT)
            k.e("s_add_u32 s%d, s%d, %d" % (S_CNT, S_CNT, i))
            touch(k, g, t2, [(IN_W1, 128), (IN_W2, 128), (IN_W3, 344), (IN_W4, 344)])
    if PF & 2:
        not_last(pf2)
    B()
    d_512(IN_WO, v1024k, U_WO, [0, 1], range(7))
    B()
    stamp(k, g, ld=True)
    d_512(IN_WO, v1024k, U_WO, [0, 1], range(7, 8))
    d_512(IN_W1, v1024, U_W1, [0, 1])
    B()
    poll(k, g, ["s_lshl_b32 s%d, s%d, 10" % (S_T2, S_CBW), "s_add_u32 s%d, s%d, 0x%x" % (S_T2, S_T2, FL_KV)], 64, 1, vkv, vfk)
    B()
    B()
    phase(pn(E_O, 8), 64)
    B()
    d_w2(0)
    B()
    stamp(k, g, ld=True)
    phase(pn(E_XA, 7), 32)
    B()
    d_w2(1)
    d_w3(0, 12)
    B()
    stamp(k, g, ld=True)
    d_w3(12, 16)
    phase(["s_mov_b32 s%d, 0" % S_T2], 48, vh, vf=vfh)
    B()
    d_w3(16, 44)
    B()
    stamp(k, g, ld=True)
    d_w3(44, 48)
    phase(pw(E_X1), 64)
    B()
    d_w4(range(0, 14))
    B()
    stamp(k, g, ld=True)
    d_w4(range(14, 40))
    phase(pn(E_H3, 8), 64, cnt=63)
    B()
    not_last(lambda: d_qkv([2]))
    B()
    d_w4(range(40, 43))
    B()
    not_last(lambda: d_qkv([0]))
    B()
    k.e("s_cmp_lg_u32 s%d, 0" % S_LAYER)
    k.e("s_cbranch_scc1 L_lw_%s" % k.name)
    d_qkv([1])
    k.e("s_waitcnt vmcnt(63)")
    B()
    B()
    stamp(k, g, ld=True)
    k.e("s_add_u32 s%d, s%d, 0x%x" % (S_WSL, S_WSL, LSTRIDE))
    k.e("s_addc_u32 s%d, s%d, 0" % (S_WSH, S_WSH))
    k.e("s_mov_b32 s%d, 1" % S_LAYER)
    k.e("s_branch L_llayer_%s" % k.name)
    k.label("L_lw_%s" % k.name)
    k.e("s_waitcnt vmcnt(0)")
    B()
    B()
    if STAMP and STAMPW == 4:
        stamp(k, g, ld=True)
        k.e("s_cmp_lg_u32 s2, %d" % (STAMP - 1))
        k.e("s_cbranch_scc1 L_lf2_%s" % k.name)
        make_srd(k, 8, ("in", DBG), 256)
        k.e("buffer_store_dword v%d, v%d, s[8:11], 0 offen" % (g.vst, g.l4))
        k.label("L_lf2_%s" % k.name)
    k.e("s_and_b32 s%d, s%d, 3" % (S_T0, S_RB))
    k.e("s_or_b32 s%d, s%d, s%d" % (S_T0, S_T0, S_CB))
    k.e("s_cmp_lg_u32 s%d, 0" % S_T0)
    k.e("s_cbranch_scc1 L_end_%s" % k.name)
    make_srd(k, SRD_F, ("ws", R_FL), FLSZ)
    k.e("s_lshl_b32 s%d, s%d, 5" % (S_T0, S_RB))
    k.e("s_add_u32 s%d, s%d, 0x%x" % (S_T0, S_T0, FL_TK))
    k.e("v_mov_b32 v%d, 96" % t)
    k.e("s_mov_b64 exec, 1")
    k.e("buffer_atomic_add v%d, v%d, %s, s%d offen%s" % (t, g.l64, srd(SRD_F), S_T0, ASC))


PF = int(os.environ.get("PF", "7"))
PFD = int(os.environ.get("PFD", "6"))


def touch(k, g, dst, parts):
    k.e("s_mov_b32 s%d, s%d" % (SRD_W, PTR(parts[0][0])))
    k.e("s_mov_b32 s%d, s%d" % (SRD_W + 1, PTR(parts[0][0]) + 1))
    k.e("s_mov_b32 s%d, s%d" % (S_T2, S_CNT))
    base = 0
    for j in range(1, len(parts)):
        base += parts[j - 1][1]
        k.e("s_sub_u32 s%d, s%d, %d" % (S_T1, S_CNT, base))
        k.e("s_cmp_ge_u32 s%d, %d" % (S_CNT, base))
        k.e("s_cselect_b32 s%d, s%d, s%d" % (SRD_W, PTR(parts[j][0]), SRD_W))
        k.e("s_cselect_b32 s%d, s%d, s%d" % (SRD_W + 1, PTR(parts[j][0]) + 1, SRD_W + 1))
        k.e("s_cselect_b32 s%d, s%d, s%d" % (S_T2, S_T1, S_T2))
    k.e("s_min_u32 s%d, s%d, %d" % (S_T2, S_T2, max(n for _, n in parts) - 1))
    if base + parts[-1][1] < 1024:
        k.e("s_cmp_ge_u32 s%d, %d" % (S_CNT, base + parts[-1][1]))
        k.e("s_cselect_b32 s%d, 0, s%d" % (S_T2, S_T2))
    k.e("s_lshl_b32 s%d, s%d, 12" % (S_T2, S_T2))
    k.e("s_mov_b32 s%d, 0x200000" % (SRD_W + 2))
    k.e("s_mov_b32 s%d, 0x00020000" % (SRD_W + 3))
    k.e("buffer_load_dword v%d, v%d, %s, s%d offen" % (dst, g.l64, srd(SRD_W), S_T2))


def k_main(name):
    k = Kern(name)
    g = G()
    k.e("s_cmp_ge_u32 s2, 256")
    k.e("s_cbranch_scc1 L_end_%s" % k.name)
    k.e("s_load_dwordx16 s[64:79], s[0:1], 0")
    k.e("s_load_dwordx8 s[80:87], s[0:1], 64")
    g.w = k.alloc()
    g.l = k.alloc()
    g.g = k.alloc()
    g.m = k.alloc()
    g.lin = k.alloc()
    g.one = k.alloc()
    g.l128 = k.alloc()
    g.vsw = k.alloc()
    g.vst = k.alloc()
    g.l64 = k.alloc()
    g.tmp = 40
    t = g.w
    k.e("v_lshrrev_b32 v%d, 6, v0" % g.w)
    k.e("v_and_b32 v%d, 63, v0" % g.l)
    k.e("v_readfirstlane_b32 s%d, v%d" % (S_WAVE, g.w))
    k.e("v_lshlrev_b32 v%d, 6, v%d" % (g.l64, g.l))
    k.e("s_getreg_b32 s%d, hwreg(HW_REG_XCC_ID)" % S_T0)
    k.e("s_and_b32 s%d, s%d, 7" % (S_T0, S_T0))
    k.e("v_mov_b32 v%d, 1" % g.one)
    if STAMP:
        k.e("v_mov_b32 v%d, 0" % g.vst)
        k.e("s_mov_b32 s%d, 0" % S_STI)
    k.phase = STAMPG
    k.e("s_cmp_lg_u32 s%d, 4" % S_WAVE)
    k.e("s_cbranch_scc1 L_pf_%s" % k.name)
    k.e("s_lshl_b32 s%d, s%d, 7" % (S_T1, S_T0))
    k.e("s_add_u32 s%d, s%d, 0x%x" % (S_T1, S_T1, FL_TK))
    k.e("s_mov_b32 s%d, 0x%x" % (S_T2, FL_TK))
    k.e("v_lshrrev_b32 v%d, 3, v%d" % (g.tmp, g.l))
    k.e("v_lshlrev_b32 v%d, 7, v%d" % (g.tmp, g.tmp))
    k.e("s_mov_b32 s%d, 0x%x" % (SRD_F + 2, FLSZ))
    k.e("s_mov_b32 s%d, 0x00020000" % (SRD_F + 3))
    k.e("s_mov_b64 exec, 1")
    k.e("s_waitcnt lgkmcnt(0)")
    k.e("s_add_u32 s%d, s%d, 0x%x" % (SRD_F, PTR(WS), R_FL))
    k.e("s_addc_u32 s%d, s%d, 0" % (SRD_F + 1, PTR(WS) + 1))
    k.e("buffer_atomic_add v%d, v%d, %s, s%d offen sc0%s" % (g.one, g.l64, srd(SRD_F), S_T1, ASC))
    k.e("s_mov_b64 exec, -1")
    k.e("buffer_load_dword v%d, v%d, %s, s%d offen sc1" % (g.tmp, g.tmp, srd(SRD_F), S_T2))
    stamp(k, g)
    k.e("v_mov_b32 v%d, 0x%x" % (t, LDS_TK))
    k.e("s_mov_b64 exec, 1")
    k.e("s_waitcnt vmcnt(1)")
    k.e("ds_write_b32 v%d, v%d" % (t, g.one))
    k.e("s_mov_b64 exec, -1")
    stamp(k, g)
    k.e("s_branch L_nt_%s" % k.name)
    k.label("L_pf_%s" % k.name)
    if PF & 4:
        k.e("s_getpc_b64 s[%d:%d]" % (SRD_W, SRD_W + 1))
        k.label("L_pc_%s" % k.name)
        k.e("s_sub_u32 s%d, s%d, L_pc_%s-%s" % (SRD_W, SRD_W, k.name, k.name))
        k.e("s_subb_u32 s%d, s%d, 0" % (SRD_W + 1, SRD_W + 1))
        k.e("s_mov_b32 s%d, L_end_%s-%s" % (SRD_W + 2, k.name, k.name))
        k.e("s_mov_b32 s%d, 0x00020000" % (SRD_W + 3))
        k.e("s_lshr_b32 s%d, s2, 6" % S_T2)
        k.e("s_lshl_b32 s%d, s%d, 2" % (S_T2, S_T2))
        k.e("s_add_u32 s%d, s%d, s%d" % (S_T2, S_T2, S_WAVE))
        k.e("s_lshl_b32 s%d, s%d, 12" % (S_T2, S_T2))
        k.e("buffer_load_dword v%d, v%d, %s, s%d offen" % (42, g.l64, srd(SRD_W), S_T2))
    stamp(k, g)
    k.e("s_lshl_b32 s%d, s2, 2" % S_CNT)
    k.e("s_add_u32 s%d, s%d, s%d" % (S_CNT, S_CNT, S_WAVE))
    k.e("s_waitcnt lgkmcnt(0)")
    if PFD:
        k.e("s_sleep %d" % PFD)
    if PF & 1:
        touch(k, g, 41, [(IN_X, 512), (IN_WQKV, 384), (IN_WO, 128)])
    k.label("L_nt_%s" % k.name)
    k.e("v_lshrrev_b32 v%d, 4, v%d" % (g.g, g.l))
    k.e("v_and_b32 v%d, 15, v%d" % (g.m, g.l))
    k.e("v_lshlrev_b32 v%d, 4, v%d" % (g.lin, g.l))
    k.e("v_lshlrev_b32 v%d, 7, v%d" % (g.l128, g.l))
    k.e("v_and_b32 v%d, 1, v%d" % (t, g.g))
    k.e("v_lshlrev_b32 v%d, 9, v%d" % (g.vsw, t))
    k.e("v_lshrrev_b32 v%d, 1, v%d" % (t, g.g))
    k.e("v_lshl_add_u32 v%d, v%d, 8, v%d" % (g.vsw, t, g.vsw))
    k.e("v_lshl_add_u32 v%d, v%d, 4, v%d" % (g.vsw, g.m, g.vsw))
    k.e("v_mov_b32 v%d, 0x%x" % (t, LDS_TK))
    k.e("s_waitcnt lgkmcnt(0)")
    k.e("s_barrier")
    k.e("ds_read_b32 v%d, v%d" % (t, t))
    k.e("s_waitcnt lgkmcnt(0)")
    k.e("s_barrier")
    k.e("v_readfirstlane_b32 s%d, v%d" % (S_T1, t))
    k.e("v_and_b32 v%d, 0xffffffe0, v%d" % (g.one, t))
    k.e("v_add_u32 v%d, 0x%x, v%d" % (g.one, NONCE_K, g.one))
    k.e("v_readfirstlane_b32 s%d, v%d" % (S_FP, g.one))
    k.e("s_sub_u32 s%d, s%d, 32" % (S_FP, S_FP))
    k.e("s_and_b32 s%d, s%d, 31" % (S_T1, S_T1))
    k.e("s_lshr_b32 s%d, s%d, 3" % (S_RB, S_T1))
    k.e("s_lshl_b32 s%d, s%d, 2" % (S_T2, S_T0))
    k.e("s_add_u32 s%d, s%d, s%d" % (S_RB, S_RB, S_T2))
    k.e("s_and_b32 s%d, s%d, 7" % (S_CB, S_T1))
    k.e("s_lshr_b32 s%d, s%d, 4" % (S_RBW, S_T1))
    k.e("s_lshl_b32 s%d, s%d, 1" % (S_T2, S_T0))
    k.e("s_add_u32 s%d, s%d, s%d" % (S_RBW, S_RBW, S_T2))
    k.e("s_and_b32 s%d, s%d, 15" % (S_CBW, S_T1))
    k.e("s_lshl_b32 s%d, s%d, 6" % (S_TOKN, S_RB))
    k.e("s_lshl_b32 s%d, s%d, 4" % (S_T0, S_WAVE))
    k.e("s_add_u32 s%d, s%d, s%d" % (S_TOKN, S_TOKN, S_T0))
    k.e("s_lshl_b32 s%d, s%d, 7" % (S_TOKW, S_RBW))
    k.e("s_lshl_b32 s%d, s%d, 5" % (S_T0, S_WAVE))
    k.e("s_add_u32 s%d, s%d, s%d" % (S_TOKW, S_TOKW, S_T0))
    k.e("s_lshl_b32 s%d, s%d, 3" % (S_WGS, S_RB))
    k.e("s_add_u32 s%d, s%d, s%d" % (S_WGS, S_WGS, S_CB))
    k.e("s_lshl_b32 s%d, s%d, 11" % (S_WGS, S_WGS))
    k.e("s_mul_i32 s%d, s%d, 43" % (S_CU3, S_CBW))
    k.e("s_lshr_b32 s%d, s%d, 4" % (S_CU3, S_CU3))
    k.e("s_min_u32 s%d, s%d, 40" % (S_CU3, S_CU3))
    k.e("s_mov_b32 s%d, 0x3f803f80" % S_ONES)
    k.e("s_mov_b32 s%d, 0x%08x" % (S_L2E, f32bits(LOG2E)))
    k.e("s_mov_b32 s%d, 0x%08x" % (S_EPS, f32bits(1e-6)))
    k.e("s_mov_b32 s%d, 0x%08x" % (S_GC, f32bits(-2.0 * LOG2E * math.sqrt(2.0 / math.pi) * 0.044715)))
    k.e("s_mov_b32 s%d, 0x%08x" % (S_GC + 1, f32bits(-2.0 * LOG2E * math.sqrt(2.0 / math.pi))))
    k.e("s_mov_b32 s%d, 0x4000" % S_K16)
    k.e("s_mov_b32 s%d, 0" % S_LAYER)
    stamp(k, g)
    k.e("s_waitcnt lgkmcnt(0)")
    k.e("s_mov_b32 s%d, s%d" % (S_WSL, PTR(WS)))
    k.e("s_mov_b32 s%d, s%d" % (S_WSH, PTR(WS) + 1))
    k.e("s_cmp_eq_u32 s%d, 4" % S_WAVE)
    k.e("s_cbranch_scc1 L_loader_%s" % k.name)
    mk = k.mark()
    k.started = True
    k.label("L_layer_%s" % k.name)
    k.e("s_nop 4")
    k.phase = "qkv"
    p_qkv(k, g)
    k.phase = "wo"
    p_wo(k, g)
    k.phase = "w1"
    p_w1(k, g)
    k.phase = "w2"
    p_w2(k, g)
    k.phase = "w3"
    p_w3(k, g)
    k.phase = "w4"
    p_w4(k, g)
    k.phase = STAMPG
    if STAMP and STAMPW != 4:
        stamp(k, g)
        k.e("s_waitcnt vmcnt(0)")
        stamp(k, g)
        k.e("s_cmp_lg_u32 s2, %d" % (STAMP - 1))
        k.e("s_cbranch_scc1 L_end_%s" % k.name)
        k.e("s_cmp_lg_u32 s%d, 0" % S_WAVE)
        k.e("s_cbranch_scc1 L_end_%s" % k.name)
        make_srd(k, 8, ("in", DBG), 256)
        k.e("v_subrev_u32 v%d, %d, v%d" % (g.w, int(os.environ.get("STAMPOFF", "0")), g.l))
        k.e("v_lshlrev_b32 v%d, 2, v%d" % (g.w, g.w))
        k.e("buffer_store_dword v%d, v%d, s[8:11], 0 offen" % (g.vst, g.w))
    k.e("s_branch L_end_%s" % k.name)
    k.release(mk)
    k.label("L_loader_%s" % k.name)
    k.e("s_waitcnt vmcnt(0)")
    loader(k, g)
    k.label("L_end_%s" % k.name)
    k.e("s_endpgm")
    return k, 256, 320, 163840


HEADER = """; Kernarg layout for this problem (96 bytes, ptrs only, base s[0:1]):
;   offset  88: d_ws      268435456 bytes workspace
"""


def build():
    kernels = [k_main("main_kernel")]
    out = [HEADER.rstrip("\n")]
    for (k, nwg, blk, lds) in kernels:
        out.append("; @launch kernel=%s grid=(%d,1,1) block=(%d,1,1) lds=%d" % (k.name, nwg, blk, lds))
    out.append('.amdgcn_target "amdgcn-amd-amdhsa--gfx950"')
    out.append(".text")
    for (k, nwg, blk, lds) in kernels:
        out.append(".globl %s" % k.name)
        out.append(".p2align 8")
        out.append(".type %s,@function" % k.name)
        out.append("%s:" % k.name)
        out += hazard_pass(k.lines)
    out.append('.section .rodata,"a"')
    for (k, nwg, blk, lds) in kernels:
        nv = (k.maxv + 7) // 8 * 8
        out.append(".p2align 6")
        out.append(".amdhsa_kernel %s" % k.name)
        out.append("  .amdhsa_next_free_vgpr %d" % nv)
        out.append("  .amdhsa_next_free_sgpr 102")
        out.append("  .amdhsa_accum_offset %d" % nv)
        out.append("  .amdhsa_group_segment_fixed_size 0")
        out.append("  .amdhsa_kernarg_size 96")
        out.append("  .amdhsa_user_sgpr_count 2")
        out.append("  .amdhsa_user_sgpr_kernarg_segment_ptr 1")
        out.append("  .amdhsa_system_sgpr_workgroup_id_x 1")
        out.append(".end_amdhsa_kernel")
    return "\n".join(out) + "\n"


if __name__ == "__main__":
    path = sys.argv[1] if len(sys.argv) > 1 else "cdna_kernels/%s.s" % NAME
    open(path, "w").write(build())
    print("wrote", path)
```

```python
import sys
import os
import math
import struct

sys.path.insert(0, os.path.dirname(os.path.abspath(__file__)))
from asmlib import Kern, vr, interleave, hazard_pass

NAME = "interleave_layers__linear_kernel_hedgehog__mixer_s_mlp__prompt"
S, D, F = 2048, 512, 1376

IN_X, IN_WQKV, IN_WPHI, IN_WO, IN_BX, IN_W1, IN_W2, IN_W3, IN_W4, OUT, DBG, WS = range(12)


def PTR(i):
    return 64 + 2 * i


MB = 1 << 20
LSTRIDE = 32 * MB
R_XIN = 0 * MB
R_XA = 2 * MB
R_O = 4 * MB
R_KVP = 6 * MB
R_H = 8 * MB
R_X1 = 10 * MB
R_H3 = 12 * MB
R_ST = 18 * MB
ST_XIN, ST_XA, ST_X1 = [R_ST + i * 0x20000 for i in range(3)]
R_KVA = 19 * MB
R_FL = 20 * MB
FL_HX = 0xC000
FL_KV = 0x10000
FL_TK = 0xE000
FL_GT = 0xE400
FLSZ = 0x20000
NONCE_K = 0x5bd1e900
LDS_CS = 0x1F000
WS_CS = 64 * MB
CS_QKV, CS_W1, CS_W3 = WS_CS, WS_CS + 0x2000, WS_CS + 0x4000
E_X, E_O, E_XA, E_H, E_X1, E_H3 = range(6)
R512 = int(os.environ.get("R512", "6"))
BIG = 0x10000

XBYTES = S * D * 2
STBYTES = 8 * S * 8
LOG2E = 1.4426950408889634
UN = [i * 32768 for i in range(5)]
LDS_SCR = UN[2]
LDS_TK = 0x27F00
LDS_CSX = UN[3]
U_QKV, U_WO, U_W1, U_W2, U_W3 = [UN[1], UN[0], UN[2]], [UN[3], UN[4]], [UN[0], UN[1]], [UN[2], UN[3]], [UN[4], UN[0], UN[1]]
B_W4 = [UN[2], UN[3], UN[0], UN[4], UN[1], UN[3]]
CSX_W, CSX_1 = UN[3] + 30720, UN[4] + 30720


def woff512(ub):
    return lambda u, s: ub[u] + 2048 * s


def woffk(ub):
    return lambda u, s: ub[s // 8] + u * 16384 + (s % 8) * 2048


def woff3(u, s):
    return U_W3[s // 8] + u * 16384 + (s % 8) * 2048 if u < 2 else U_W3[2] + s * 2048


def woff4(u, s):
    return B_W4[s // 8] + u * 16384 + (s % 8) * 2048

LDS_KV = 0x10000
LDS_Z = 0x18000
POLL_MAX = 40000
PRE_SLEEP = int(os.environ.get("PRE_SLEEP", "0"))
POLL_SLEEP = int(os.environ.get("POLL_SLEEP", "2"))


def f32bits(x):
    return struct.unpack("<I", struct.pack("<f", x))[0]


S_WAVE, S_RB, S_CB, S_RBW, S_CBW, S_T0, S_T1, S_T2 = 32, 33, 34, 35, 36, 37, 38, 39
S_ONES, S_L2E, S_EPS, S_C1, S_C2, S_XO = 40, 41, 42, 43, 44, 45
S_TOKB, S_OB = 46, 47
SRD_X, SRD_W, SRD_O, SRD_R, SRD_R2, SRD_F = 8, 12, 16, 20, 24, 28
SRD_S, SRD_SO = 48, 52
SRD_C = 56
S_WSL, S_WSH, S_LAYER, S_CNT = 60, 61, 62, 63
S_STI, S_TOKN, S_TOKW, S_CU3, S_WBASE, S_K16 = 90, 92, 93, 94, 95, 96
S_GC = 98
S_FP, S_XST, S_WGS = 91, 97, 7

STAMP = int(os.environ.get("STAMP", "0"))
RT = int(os.environ.get("RT", "0"))
DSC = os.environ.get("DSC", "")
LSC = os.environ.get("LSC", " sc1")
PSC = os.environ.get("PSC", "")
S_BUD, S_P0 = 3, 4
BUDGET = 20000
PSL = int(os.environ.get("PSL", "0"))
ASC = os.environ.get("ASC", "")


def make_srd(k, slot, buf, size):
    kind = buf[0]
    if kind == "ws":
        k.e("s_add_u32 s%d, s%d, 0x%x" % (slot, PTR(WS), buf[1]))
        k.e("s_addc_u32 s%d, s%d, 0" % (slot + 1, PTR(WS) + 1))
    elif kind == "l":
        k.e("s_add_u32 s%d, s%d, 0x%x" % (slot, S_WSL, buf[1]))
        k.e("s_addc_u32 s%d, s%d, 0" % (slot + 1, S_WSH))
    elif kind == "n":
        k.e("s_add_u32 s%d, s%d, 0x%x" % (slot, S_WSL, buf[1] + LSTRIDE))
        k.e("s_addc_u32 s%d, s%d, 0" % (slot + 1, S_WSH))
    else:
        idx = buf[1]
        k.e("s_mov_b32 s%d, s%d" % (slot, PTR(idx)))
        k.e("s_mov_b32 s%d, s%d" % (slot + 1, PTR(idx) + 1))
    k.e("s_mov_b32 s%d, 0x%x" % (slot + 2, size))
    k.e("s_mov_b32 s%d, 0x00020000" % (slot + 3))


def srd(slot):
    return "s[%d:%d]" % (slot, slot + 3)


class G:
    pass


STAMPG = os.environ.get("STAMPG", "")


STAMPW = int(os.environ.get("STAMPW", "0"))
STAMPL = int(os.environ.get("STAMPL", "0"))


def stamp(k, g, fine=False, ld=False):
    if not STAMP:
        return
    if ld != (STAMPW == 4) and getattr(k, "started", False):
        return
    if STAMPG and getattr(k, "phase", "") != STAMPG:
        return
    if fine is True and not STAMPG:
        return
    if fine == 2 and not (STAMPG or STAMP == 1000):
        return
    k.e("s_memrealtime s[88:89]" if STAMP == 1000 else "s_memtime s[88:89]")
    k.e("s_waitcnt lgkmcnt(0)")
    k.e("s_mov_b32 m0, s%d" % S_STI)
    k.e("s_nop 0")
    k.e("v_writelane_b32 v%d, s88, m0" % g.vst)
    k.e("s_add_u32 s%d, s%d, 1" % (S_STI, S_STI))
    k.e("s_min_u32 s%d, s%d, 63" % (S_STI, S_STI))


def allreduce(x, t, op):
    return [
        "v_mov_b32 v%d, v%d" % (t, x),
        "v_permlane32_swap_b32 v%d, v%d" % (x, t),
        "%s v%d, v%d, v%d" % (op, x, x, t),
        "v_mov_b32 v%d, v%d" % (t, x),
        "v_permlane16_swap_b32 v%d, v%d" % (x, t),
        "%s v%d, v%d, v%d" % (op, x, x, t),
    ]


def stats_finish(st, double=False, part=True):
    o = []
    s_, q_, t0, t1 = st, st + 1, st + 2, st + 3
    if part:
        o.append("v_add_f32 v%d, v%d, v%d" % (s_, st, st + 2))
        o.append("v_add_f32 v%d, v%d, v%d" % (q_, st + 1, st + 3))
    o += interleave(allreduce(s_, t0, "v_add_f32"), allreduce(q_, t1, "v_add_f32"))
    o.append("v_mul_f32 v%d, 0x%08x, v%d" % (s_, f32bits(1.0 / 512), s_))
    o.append("v_mul_f32 v%d, 0x%08x, v%d" % (q_, f32bits(1.0 / 512), q_))
    o.append("v_fma_f32 v%d, -v%d, v%d, v%d" % (q_, s_, s_, q_))
    o.append("v_max_f32 v%d, 0, v%d" % (q_, q_))
    o.append("v_add_f32 v%d, 0x%08x, v%d" % (t0, f32bits(1e-5), q_))
    o.append("v_rsq_f32 v%d, v%d" % (t0, t0))
    if double:
        o.append("v_mul_f32 v%d, v%d, v%d" % (t1, t0, t0))
        o.append("v_mul_f32 v%d, v%d, v%d" % (t1, t1, q_))
        o.append("v_add_f32 v%d, 0x%08x, v%d" % (t1, f32bits(1e-5), t1))
        o.append("v_rsq_f32 v%d, v%d" % (t1, t1))
        o.append("s_nop 0")
        o.append("v_mul_f32 v%d, v%d, v%d" % (t0, t0, t1))
    o.append("v_mul_f32 v%d, v%d, v%d" % (st + 1, s_, t0))
    o.append("v_sub_f32 v%d, 0, v%d" % (st + 1, st + 1))
    o.append("v_mov_b32 v%d, v%d" % (st, t0))
    return o


def stats_fold(st, mode):
    o = []
    s_, q_, t0, t1 = st, st + 1, st + 2, st + 3
    o.append("v_add_f32 v%d, v%d, v%d" % (s_, st, st + 2))
    o.append("v_add_f32 v%d, v%d, v%d" % (q_, st + 1, st + 3))
    o += interleave(allreduce(s_, t0, "v_add_f32"), allreduce(q_, t1, "v_add_f32"))
    o.append("v_mul_f32 v%d, 0x%08x, v%d" % (t1, f32bits(-1.0 / 512), s_))
    o.append("v_mul_f32 v%d, 0x%08x, v%d" % (q_, f32bits(1.0 / 512), q_))
    o.append("v_fma_f32 v%d, -v%d, v%d, v%d" % (q_, t1, t1, q_))
    o.append("v_max_f32 v%d, 0, v%d" % (q_, q_))
    o.append("v_add_f32 v%d, 0x%08x, v%d" % (t0, f32bits(1e-5), q_))
    o.append("v_rsq_f32 v%d, v%d" % (s_, t0))
    if mode == "r":
        return o
    if mode == "g":
        o.append("v_mul_f32 v%d, v%d, v%d" % (t0, t0, s_))
    else:
        o.append("v_mul_f32 v%d, v%d, v%d" % (t0, s_, s_))
        o.append("v_mul_f32 v%d, v%d, v%d" % (t0, t0, q_))
        o.append("v_add_f32 v%d, 0x%08x, v%d" % (t0, f32bits(1e-5), t0))
        o.append("v_rsq_f32 v%d, v%d" % (t0, t0))
        o.append("v_mul_f32 v%d, v%d, v%d" % (s_, s_, t0))
        o.append("v_rcp_f32 v%d, v%d" % (t0, s_))
    o.append("v_mul_f32 v%d, s%d, v%d" % (q_, S_GC + 1, s_))
    o.append("v_mul_f32 v%d, v%d, v%d" % (s_, s_, s_))
    o.append("v_mul_f32 v%d, v%d, v%d" % (s_, s_, q_))
    o.append("v_mul_f32 v%d, 0x%08x, v%d" % (s_, f32bits(0.044715), s_))
    return o


def mean_fix(a, cs, st):
    return ["v_pk_fma_f32 %s, %s, %s, %s op_sel:[0,1,0] op_sel_hi:[1,1,1]" % (vr(a + i, 2), vr(cs + i, 2), vr(st + 2, 2), vr(a + i, 2)) for i in (0, 2)]


def scale4(a, st):
    return ["v_pk_mul_f32 %s, %s, %s op_sel_hi:[1,0]" % (vr(a + i, 2), vr(a + i, 2), vr(st, 2)) for i in (0, 2)]


def gelu4f(a, t, dst, st):
    o = []
    P = lambda r: vr(r, 2)
    for i in (0, 2):
        o.append("v_pk_mul_f32 %s, %s, %s" % (P(t + i), P(a + i), P(a + i)))
    for i in (0, 2):
        o.append("v_pk_fma_f32 %s, %s, %s, %s op_sel:[0,0,1] op_sel_hi:[1,0,1]" % (P(t + i), P(t + i), P(st), P(st)))
    for i in (0, 2):
        o.append("v_pk_mul_f32 %s, %s, %s" % (P(t + i), P(t + i), P(a + i)))
    for i in range(4):
        o.append("v_exp_f32 v%d, v%d" % (t + i, t + i))
    for i in (0, 2):
        o.append("v_pk_fma_f32 %s, %s, %s, %s op_sel_hi:[1,0,0]" % (P(t + i), P(t + i), P(st + 2), P(st + 2)))
    for i in range(4):
        o.append("v_rcp_f32 v%d, v%d" % (t + i, t + i))
    for i in (0, 2):
        o.append("v_pk_mul_f32 %s, %s, %s" % (P(t + i), P(t + i), P(a + i)))
    o.append("v_cvt_pk_bf16_f32 v%d, v%d, v%d" % (dst, t, t + 1))
    o.append("v_cvt_pk_bf16_f32 v%d, v%d, v%d" % (dst + 1, t + 2, t + 3))
    return o


def spread(lst, s0, n):
    return {s0 + i: lst[len(lst) * i // n:len(lst) * (i + 1) // n] for i in range(n)}


def fix_step(acc, cs, st, us, MT, s0):
    idx = [(u, t, mt) for u in us for t in (0, 1) for mt in range(MT)]
    nm = len(idx)
    o = []
    for j in range(nm):
        u, t, mt = idx[j]
        o += mean_fix(acc[u][t][mt], cs[u][t], st[mt])
    h = len(o) // 2
    return {s0: [None] * h + o[:h], s0 + 1: o[h:] + [None] * h}


def gelu4(a, t, dst):
    o = []
    P = lambda r: vr(r, 2)
    gc = "s[%d:%d]" % (S_GC, S_GC + 1)
    for i in (0, 2):
        o.append("v_pk_mul_f32 %s, %s, %s" % (P(t + i), P(a + i), P(a + i)))
    for i in (0, 2):
        o.append("v_pk_fma_f32 %s, %s, %s, %s op_sel:[0,0,1] op_sel_hi:[1,0,1]" % (P(t + i), P(t + i), gc, gc))
    for i in (0, 2):
        o.append("v_pk_mul_f32 %s, %s, %s" % (P(t + i), P(t + i), P(a + i)))
    for i in range(4):
        o.append("v_exp_f32 v%d, v%d" % (t + i, t + i))
    for i in (0, 2):
        o.append("v_pk_add_f32 %s, %s, 1.0 op_sel_hi:[1,0]" % (P(t + i), P(t + i)))
    for i in range(4):
        o.append("v_rcp_f32 v%d, v%d" % (t + i, t + i))
    for i in (0, 2):
        o.append("v_pk_mul_f32 %s, %s, %s" % (P(t + i), P(t + i), P(a + i)))
    o.append("v_cvt_pk_bf16_f32 v%d, v%d, v%d" % (dst, t, t + 1))
    o.append("v_cvt_pk_bf16_f32 v%d, v%d, v%d" % (dst + 1, t + 2, t + 3))
    return o


def ln_apply(a, cs, st, t):
    o = []
    P = lambda r: vr(r, 2)
    assert a % 2 == 0 and cs % 2 == 0 and st % 2 == 0 and t % 2 == 0
    for i in (0, 2):
        o.append("v_pk_mul_f32 %s, %s, %s op_sel:[0,1] op_sel_hi:[1,1]" % (P(t + i), P(cs + i), P(st)))
    for i in (0, 2):
        o.append("v_pk_fma_f32 %s, %s, %s, %s op_sel_hi:[1,0,1]" % (P(a + i), P(a + i), P(st), P(t + i)))
    return o


class W:
    pass


def w_tb(k, g, k2map, NU, woff, KS):
    w = W()
    w.NU = NU
    w.woff = woff
    w.k2map = k2map
    w.tb = {}
    w.his = sorted({woff(u, s) >> 16 for u in range(NU) for s in range(KS)})
    b0 = k.alloc()
    b1 = k.alloc()
    t = k.alloc()
    t2 = k.alloc()
    k.e("v_and_b32 v%d, 3, v%d" % (t2, g.l))
    k.e("v_lshrrev_b32 v%d, 2, v%d" % (t, g.l))
    k.e("v_and_b32 v%d, 3, v%d" % (t, t))
    k.e("v_lshlrev_b32 v%d, 6, v%d" % (t, t))
    k.e("v_lshl_add_u32 v%d, v%d, 3, v%d" % (t, t2, t))
    k.e("v_lshl_add_u32 v%d, v%d, %d, v%d" % (t, g.g, 8 if k2map else 9, t))
    h0 = w.his[0]
    if h0:
        k.e("v_add_u32 v%d, 0x%x, v%d" % (t, 65536 * h0, t))
    k.e("v_and_b32 v%d, 1, v%d" % (t2, g.g))
    k.e("v_lshl_add_u32 v%d, v%d, 5, v%d" % (b0, t2, t))
    k.e("v_xor_b32 v%d, 1, v%d" % (t2, t2))
    k.e("v_lshl_add_u32 v%d, v%d, 5, v%d" % (b1, t2, t))
    w.tb[(0, h0)] = b0
    w.tb[(1, h0)] = b1
    pool = [t, t2]
    for h in w.his[1:]:
        for tt in (0, 1):
            r = pool.pop() if pool else k.alloc()
            k.e("v_add_u32 v%d, 0x%x, v%d" % (r, 65536 * (h - h0), w.tb[(tt, h0)]))
            w.tb[(tt, h)] = r
    return w


def ds(k, text, tag="-"):
    k.e(text)
    k.lg.append(tag)


def lgn(k, tags):
    if isinstance(tags, str):
        tags = [tags]
    last = max(i for i, t in enumerate(k.lg) if t in tags)
    return min(15, len(k.lg) - 1 - last)


def put(k, e_):
    if e_ is None:
        return
    if isinstance(e_, str):
        k.e(e_)
    elif e_[0] == "ds":
        ds(k, e_[1], e_[2])
    elif e_[0] == "w":
        k.e("s_waitcnt lgkmcnt(%d)" % lgn(k, e_[1]))
    elif e_[0] == "vm":
        k.vmem(e_[1], e_[2])
    else:
        e_[1]()


def tr_reads(k, w, dst, u, t, s, tag="-"):
    for hs in (0, 1):
        off = w.woff(u, s) + (1024 if w.k2map else 256) * hs
        h, o = off >> 16, off & 0xffff
        ds(k, "ds_read_b64_tr_b16 %s, v%d offset:%d" % (vr(dst + 2 * hs, 2), w.tb[(t, h)], o), tag)


def gemm_pre(k, w, KS, R, us=None, u2=None):
    frags = [(u, t) for u in (us or range(w.NU)) for t in (0, 1)]
    w.frags = frags
    w.R = R
    w.u2 = u2
    k.lg = []
    w.wb = [[k.alloc(4, 4) for _ in frags] for _ in range(R)]
    if u2 is not None:
        w.ring2 = w.wb[(KS - 3) % R] + w.wb[(KS - 2) % R]
        w.free = w.wb[(KS - 1) % R]
    for s in range(min(R, KS)):
        for i, (u, t) in enumerate(frags):
            tr_reads(k, w, w.wb[s][i], u, t, s, "w%d" % s)


def pass2(k, w, KS, MT, xfrag, acc, stream, pos):
    R2 = 4
    units = []
    for s in range(KS):
        for t in (0, 1):
            for mt in range(MT):
                o = []
                if t == 0 and mt == 0:
                    o.append(("w", "v%d" % s))
                a = acc[t][mt]
                wr = w.ring2[(s % R2) * 2 + t]
                o.append("v_mfma_f32_16x16x32_bf16 %s, %s, %s, %s" % (vr(a, 4), vr(wr, 4), vr(xfrag(s, mt), 4), vr(a, 4)))
                if mt == MT - 1 and s + R2 < KS:
                    o.append(("f", lambda wr=wr, t=t, s=s: tr_reads(k, w, wr, w.u2, t, s + R2, "v%d" % (s + R2))))
                units.append(o)
    j = 0
    for i in range(len(stream) + 1):
        while j < len(units) and (pos(j) <= i or i == len(stream)):
            for e_ in units[j]:
                put(k, e_)
            j += 1
        if i < len(stream):
            put(k, stream[i])


def cs_init(acc, st):
    o = []
    for t in (0, 1):
        for mt in (1, 0):
            o += ["v_pk_mul_f32 %s, %s, %s op_sel:[0,1] op_sel_hi:[1,1]" % (vr(acc[t][mt] + i, 2), vr(acc[t][0] + i, 2), vr(st[mt] + 2, 2)) for i in (0, 2)]
    return o


EXP = int(os.environ.get("EXP", "0"))
LV = int(os.environ.get("LV", "1"))
LS1 = int(os.environ.get("LS1", "4"))
LS2 = int(os.environ.get("LS2", "16"))
LS3 = int(os.environ.get("LS3", "4"))
LS4 = int(os.environ.get("LS4", "0"))
LS5 = int(os.environ.get("LS5", "0"))
XS = int(os.environ.get("XS", "4"))
NP = os.environ.get("NP", "").split(",")
XR = int(os.environ.get("XR", "3"))
RSL = int(os.environ.get("RSL", "0"))
SD = int(os.environ.get("SD", "4"))
PSW = int(os.environ.get("PSW", "3"))
PS1 = int(os.environ.get("PS1", "4"))
W4S = int(os.environ.get("W4S", "28"))
XDW = int(os.environ.get("XDW", "6"))
XDN = int(os.environ.get("XDN", "12"))
XD4 = int(os.environ.get("XD4", "12"))
WB = int(os.environ.get("WB", "0"))
OSC = os.environ.get("OSC", "")
CKA = int(os.environ.get("CKA", "1"))
BD512 = int(os.environ.get("BD512", "4"))


_ckid = [0]


def budget(k, lab):
    k.e("s_cmp_eq_u32 s%d, 0" % S_BUD)
    k.e("s_cbranch_scc1 %s" % lab)
    k.e("s_sub_u32 s%d, s%d, 1" % (S_BUD, S_BUD))


def check_a(k, regs, mask=False):
    k.e("v_cmp_eq_u32 vcc, -1, v%d" % regs[0])
    if len(regs) == 2:
        k.e("v_cmp_eq_u32 s[%d:%d], -1, v%d" % (S_P0, S_P0 + 1, regs[1]))


def check_b(k, regs, reload, mask=False):
    i = _ckid[0]
    _ckid[0] += 1
    ok, rt = ["L_%s%d_%s" % (n, i, k.name) for n in ("ok", "rt")]

    def comb():
        if len(regs) == 2:
            k.e("s_or_b64 vcc, vcc, s[%d:%d]" % (S_P0, S_P0 + 1))
        if mask:
            k.e("s_and_b64 vcc, vcc, s[100:101]")
        k.e("s_cbranch_vccnz %s" % rt)
    comb()
    k.label(ok)
    main = k.lines
    k.lines = k.stubs
    k.label(rt)
    budget(k, ok)
    reload()
    k.e("s_waitcnt vmcnt(0)")
    check_a(k, regs, mask)
    comb()
    k.e("s_branch %s" % ok)
    k.lines = main


def check_r(k, regs, rl, c, last, MT, mask=False):
    i = _ckid[0]
    _ckid[0] += 1
    ok, rt = ["L_%s%d_%s" % (n, i, k.name) for n in ("ok", "rt")]

    def comb():
        if len(regs) == 2:
            k.e("s_or_b64 vcc, vcc, s[%d:%d]" % (S_P0, S_P0 + 1))
        if mask:
            k.e("s_and_b64 vcc, vcc, s[100:101]")
        k.e("s_cbranch_vccnz %s" % rt)
    comb()
    k.label(ok)
    main = k.lines
    k.lines = k.stubs
    k.label(rt)
    budget(k, rt + "x")
    if RSL:
        k.e("s_sleep %d" % RSL)
    hd = min(last + 1, c + XR)
    for s_ in range(c, hd):
        rl(s_)
    k.e("s_waitcnt vmcnt(%d)" % (MT * (hd - c - 1)))
    check_a(k, regs, mask)
    comb()
    k.label(rt + "x")
    for s_ in range(hd, last + 1):
        rl(s_)
    k.e("s_branch %s" % ok)
    k.lines = main


def stat_r(k, poll, rl, c, last, MT, n_after, mask=False):
    ok, rt = poll.lab("go"), poll.lab("pl")
    k.e("s_waitcnt vmcnt(%d)" % n_after)

    def tst():
        poll.test(True)
        if mask:
            k.e("s_and_b64 vcc, vcc, s[100:101]")
        k.e("s_cbranch_vccnz %s" % rt)
    tst()
    k.label(ok)
    main = k.lines
    k.lines = k.stubs
    k.label(rt)
    budget(k, rt + "x")
    if RSL:
        k.e("s_sleep %d" % RSL)
    poll.issue(lambda a_, b_: k.e(a_), True)
    hd = min(last + 1, c + XR)
    for s_ in range(c, hd):
        rl(s_)
    k.e("s_waitcnt vmcnt(%d)" % (MT * (hd - c)))
    tst()
    k.label(rt + "x")
    for s_ in range(hd, last + 1):
        rl(s_)
    k.e("s_branch %s" % ok)
    k.lines = main


def xreload(k, g, dst, K, mt, s):
    off = mt * K * 32 + s * 1024
    hi, lo = off // 4096 * 4096, off % 4096
    k.e("s_add_u32 s%d, s%d, 0x%x" % (S_P0, S_XO, hi))
    k.e("buffer_load_dwordx4 %s, v%d, %s, s%d offen offset:%d sc1" % (vr(dst, 4), g.lin, srd(SRD_X), S_P0, lo))


class Poll:
    def __init__(self, k, skip0=False):
        self.k = k
        self.i = _ckid[0]
        _ckid[0] += 1
        self.skip0 = skip0
        self.masked = False

    def lab(self, n):
        return "L_%s%d_%s" % (n, self.i, self.k.name)

    def l0(self, n):
        if self.skip0:
            self.k.e("s_cmp_eq_u32 s%d, 0" % S_LAYER)
            self.k.e("s_cbranch_scc1 %s" % self.lab(n))

    def first(self):
        self.l0("go")
        self.issue(self.k.vmem)

    def second(self, xlines):
        k = self.k
        k.wait_vm("stat")
        self.test()
        k.e("s_cbranch_vccnz %s" % self.lab("pl"))
        k.label(self.lab("go"))
        main = k.lines
        k.lines = k.stubs
        k.label(self.lab("pl"))
        budget(k, self.lab("px"))
        if PSL:
            k.e("s_sleep %d" % PSL)
        self.issue(lambda a_, b_: k.e(a_), True)
        if XS:
            head = [l for p_ in xlines[:XS] for l in p_]
            if self.masked:
                k.e("s_mov_b64 s[%d:%d], vcc" % (S_P0, S_P0 + 1))
                k.e("s_mov_b64 exec, -1")
            k.lines += head
            k.e("s_waitcnt vmcnt(%d)" % sum("buffer_load" in str(l) for l in head))
            self.test(True)
            if self.masked:
                k.e("s_and_b64 vcc, vcc, s[%d:%d]" % (S_P0, S_P0 + 1))
            k.e("s_cbranch_vccnz %s" % self.lab("pl"))
            k.lines += [l for p_ in xlines[XS:] for l in p_]
            k.e("s_branch %s" % self.lab("go"))
        else:
            k.e("s_waitcnt vmcnt(0)")
            self.test(True)
            k.e("s_cbranch_vccnz %s" % self.lab("pl"))
        k.label(self.lab("px"))
        k.e("s_mov_b64 exec, -1")
        k.lines += [l for p_ in xlines for l in p_]
        k.e("s_branch %s" % self.lab("go"))
        k.lines = main


def poll_stats(k, g, st, issue, t, skip0=False):
    p = Poll(k, skip0)
    p.issue = lambda f, again=False: issue(None if f == k.vmem else st)

    def test(again=False):
        k.e("v_max_u32 v%d, v%d, v%d" % (t, st[0] + 1, st[0] + 3))
        if len(st) == 2:
            k.e("v_max3_u32 v%d, v%d, v%d, v%d" % (t, t, st[1] + 1, st[1] + 3))
        k.e("v_cmp_eq_u32 vcc, -1, v%d" % t)
    p.test = test
    return p


def poll_blocks(k, g, va, soff, t, nl=16):
    p = Poll(k)
    p.masked = True

    def issue(f, again=False):
        k.e("s_mov_b64 exec, %s" % ("vcc" if again else "0x%x" % ((1 << nl) - 1)))
        f("buffer_load_dword v%d, v%d, %s, %s offen offset:1020 sc1" % (t, va, srd(SRD_X), soff), "stat")
        if not again:
            k.e("s_mov_b64 exec, -1")

    def test(again=False):
        k.e("v_cmp_eq_u32 vcc, -1, v%d" % t)
        if not again:
            k.e("s_and_b64 vcc, vcc, 0x%x" % ((1 << nl) - 1))
    p.issue = issue
    p.test = test
    return p


def gemm_loop(k, g, w, KS, MT, xfrag, acc, xl, mid=None, pre=None, extra=None, init=False, pro=None, top=None, rl=None, mask=False, poll=None, ps=None):
    frags = w.frags
    n = len(frags)
    R = w.R
    wb = w.wb
    first = set()
    D = XDW if MT == 2 else XD4 if KS > 16 else XDN
    k.vm = []
    relax = k.phase in NP
    last = min(D, KS) - 1
    if relax:
        poll.l0("pa")
        for s in range(min(D, KS)):
            xl(s)
        if poll.skip0:
            k.label(poll.lab("pa"))
    else:
        poll.first()
        xlines = []
        for s in range(min(D, KS)):
            n0 = len(k.lines)
            xl(s)
            xlines.append(k.lines[n0:])
        poll.second(xlines)

    def ckb(c):
        if relax:
            check_r(k, ckr(c), rl, c, last, MT, mask)
        else:
            check_b(k, ckr(c), lambda: rl(c), mask)
    stamp(k, g, 2)
    for s in range(min(D, KS)):
        if pro and s in pro:
            pro[s]()
    for s in range(KS):
        ckr = lambda s_: [xfrag(s_, mt) + 3 for mt in range(MT)]
        if s == 0:
            k.wait_vm(["x0"])
            check_a(k, ckr(0), mask)
            ckb(0)
        if relax and ps is not None and s == ps:
            stat_r(k, poll, rl, s + 1, last, MT, len(k.vm) - st_idx, mask)
        k.e("s_waitcnt lgkmcnt(%d)" % lgn(k, ["w%d" % s] + ((top or {}).get(s, []))))
        if s % 4 == 0 and not (EXP & 16 and s):
            stamp(k, g, True)
        if pre and (s + R) in pre:
            pre[s + R]()
        ex = list(extra.get(s, [])) if extra and not (EXP & 4 and k.phase == STAMPG) else []
        xp = EXP if k.phase == STAMPG else 0
        nm = n * MT
        done = 0
        for i, (u, t) in enumerate(frags):
            for mt in range(MT):
                a = acc[u][t][mt]
                cin = vr(a, 4) if init or (u, t, mt) in first else "0"
                first.add((u, t, mt))
                k.e("v_mfma_f32_16x16x32_bf16 %s, %s, %s, %s" % (vr(a, 4), vr(wb[s % R][i], 4), vr(xfrag(s, mt), 4), cin))
                j = i * MT + mt + 1
                if None in ex and mt < MT - 1:
                    continue
                upto = (len(ex) * j + nm - 1) // nm
                for e_ in ex[done:upto]:
                    put(k, e_)
                done = max(done, upto)
            if i == 0 and s + D < KS and not xp & 2:
                xl(s + D)
                last = s + D
            if i == 0 and relax and ps is not None and s == max(0, ps - SD // MT):
                if mask:
                    k.e("s_mov_b64 exec, s[100:101]")
                    k.e("s_cbranch_execz %s" % poll.lab("sk"))
                poll.issue(lambda a_, b_: k.e(a_), True)
                if mask:
                    k.label(poll.lab("sk"))
                    k.e("s_mov_b64 exec, -1")
                st_idx = len(k.vm)
            if i == CKA and s + 1 < KS and not (xp & 2 and s + 1 >= D):
                k.wait_vm(["x%d" % (s + 1)])
            if i == CKA and s + 1 < KS and not xp & 1:
                check_a(k, ckr(s + 1), mask)
            if i == CKA + 1 and s + 1 < KS and not xp & 1:
                ckb(s + 1)
            if s + R < KS:
                tr_reads(k, w, wb[s % R][i], u, t, s + R, "w%d" % (s + R))
            elif w.u2 is not None and s < KS - 1:
                s2 = 2 * (s + R - KS) + i // 2
                tr_reads(k, w, wb[s % R][i], w.u2, i % 2, s2, "v%d" % s2)
        if mid and s in mid:
            mid[s]()
    return [r for l in wb for r in l]


def t16_base(k, sreg, K):
    k.e("s_mul_i32 s%d, s%d, %d" % (sreg, S_TOKB, K * 2))


def xload(k, g, dst, K, mt, s, tag):
    off = mt * K * 32 + s * 1024
    hi, lo = off // 4096 * 4096, off % 4096
    sr = (S_T1, S_T2)[mt]
    if getattr(k, "_xhi", None) is None:
        k._xhi = {}
    if k._xhi.get(mt) != hi:
        k.e("s_add_u32 s%d, s%d, 0x%x" % (sr, S_XO, hi))
        k._xhi[mt] = hi
    k.vmem("buffer_load_dwordx4 %s, v%d, %s, s%d offen offset:%d%s" % (vr(dst, 4), g.lin, srd(SRD_X), sr, lo, LSC), tag)


def stats_load(k, g, MT):
    v = k.alloc()
    k.e("v_add_u32 v%d, s%d, v%d" % (v, S_TOKB, g.m))
    k.e("v_lshlrev_b32 v%d, 3, v%d" % (v, v))
    k.e("v_lshl_add_u32 v%d, v%d, 15, v%d" % (v, g.g, v))
    st = [k.alloc(4, 4) for _ in range(MT)]

    def issue(dst=None):
        f = k.vmem if dst is None else (lambda a, b: k.e(a))
        dst = st if dst is None else dst
        for mt in range(MT):
            f("buffer_load_dwordx2 %s, v%d, %s, 0 offen offset:%d sc1" % (vr(dst[mt], 2), v, srd(SRD_S), 128 * mt), "stat")
            f("buffer_load_dwordx2 %s, v%d, %s, s%d offen offset:%d sc1" % (vr(dst[mt] + 2, 2), v, srd(SRD_S), S_K16, 128 * mt), "stat")
    return st, issue


def swap_pair(p):
    return ["v_permlane16_swap_b32 v%d, v%d" % (p, p + 2), "v_permlane16_swap_b32 v%d, v%d" % (p + 1, p + 3)]


def unpack2(dst, src):
    return [
        "v_lshlrev_b32 v%d, 16, v%d" % (dst, src),
        "v_and_b32 v%d, 0xffff0000, v%d" % (dst + 1, src),
        "v_lshlrev_b32 v%d, 16, v%d" % (dst + 2, src + 1),
        "v_and_b32 v%d, 0xffff0000, v%d" % (dst + 3, src + 1),
    ]


def pack2(dst, src):
    return [
        "v_cvt_pk_bf16_f32 v%d, v%d, v%d" % (dst, src, src + 1),
        "v_cvt_pk_bf16_f32 v%d, v%d, v%d" % (dst + 1, src + 2, src + 3),
    ]


def round4(a):
    return ["v_cvt_pk_bf16_f32 v%d, v%d, v%d" % (a, a, a + 1),
            "v_cvt_pk_bf16_f32 v%d, v%d, v%d" % (a + 2, a + 2, a + 3),
            "v_and_b32 v%d, 0xffff0000, v%d" % (a + 1, a),
            "v_and_b32 v%d, 0xffff0000, v%d" % (a + 3, a + 2),
            "v_lshlrev_b32 v%d, 16, v%d" % (a, a),
            "v_lshlrev_b32 v%d, 16, v%d" % (a + 2, a + 2)]


def add4(a, b):
    return ["v_pk_add_f32 %s, %s, %s" % (vr(a + i, 2), vr(a + i, 2), vr(b + i, 2)) for i in (0, 2)]


def stats_store(k, g, packed, t):
    s_, q_, t0, t1 = t, t + 1, t + 2, t + 3
    for i, r in enumerate(packed):
        k.e("v_dot2_f32_bf16 v%d, v%d, s%d, %s" % (s_, r, S_ONES, "0" if i == 0 else "v%d" % s_))
        k.e("v_dot2_f32_bf16 v%d, v%d, v%d, %s" % (q_, r, r, "0" if i == 0 else "v%d" % q_))
    for s in interleave(allreduce(s_, t0, "v_add_f32"), allreduce(q_, t1, "v_add_f32")):
        k.e(s)
    k.e("v_add_u32 v%d, s%d, v%d" % (t0, S_TOKB, g.m))
    k.e("v_lshlrev_b32 v%d, 3, v%d" % (t0, t0))
    k.e("s_lshl_b32 s%d, s%d, 14" % (S_T0, S_CB))
    k.e("s_mov_b64 exec, 0xffff")
    k.vmem("buffer_store_dwordx2 %s, v%d, %s, s%d offen%s" % (vr(s_, 2), t0, srd(SRD_SO), S_T0, DSC), "st")
    k.e("s_mov_b64 exec, -1")


TOUCH = int(os.environ.get('TOUCH', '0'))


def signal(k, g, edge, nblk, nxt=False, own=None):
    stamp(k, g, 2)
    k.vm = []
    k._xhi = None


def softmax_pair(p, t, outp):
    mx, mn, t0, t1 = t, t + 1, t + 2, t + 3
    ep = [t + 4 + i for i in range(4)]
    em = [t + 8 + i for i in range(4)]
    o = []
    o.append("v_max3_f32 v%d, v%d, v%d, v%d" % (mx, p, p + 1, p + 2))
    o.append("v_min3_f32 v%d, v%d, v%d, v%d" % (mn, p, p + 1, p + 2))
    o.append("v_max_f32 v%d, v%d, v%d" % (mx, mx, p + 3))
    o.append("v_min_f32 v%d, v%d, v%d" % (mn, mn, p + 3))
    o += interleave(allreduce(mx, t0, "v_max_f32"), allreduce(mn, t1, "v_min_f32"))
    o.append("v_mul_f32 v%d, s%d, v%d" % (mx, S_L2E, mx))
    o.append("v_mul_f32 v%d, s%d, v%d" % (mn, S_L2E, mn))
    for i in range(4):
        o.append("v_fma_f32 v%d, v%d, s%d, -v%d" % (ep[i], p + i, S_L2E, mx))
        o.append("v_fma_f32 v%d, -v%d, s%d, v%d" % (em[i], p + i, S_L2E, mn))
    for i in range(4):
        o.append("v_exp_f32 v%d, v%d" % (ep[i], ep[i]))
        o.append("v_exp_f32 v%d, v%d" % (em[i], em[i]))
    sp, sm = mx, mn
    o.append("v_add_f32 v%d, v%d, v%d" % (sp, ep[0], ep[1]))
    o.append("v_add_f32 v%d, v%d, v%d" % (sm, em[0], em[1]))
    o.append("v_add_f32 v%d, v%d, v%d" % (t0, ep[2], ep[3]))
    o.append("v_add_f32 v%d, v%d, v%d" % (t1, em[2], em[3]))
    o.append("v_add_f32 v%d, v%d, v%d" % (sp, sp, t0))
    o.append("v_add_f32 v%d, v%d, v%d" % (sm, sm, t1))
    o += interleave(allreduce(sp, t0, "v_add_f32"), allreduce(sm, t1, "v_add_f32"))
    o.append("v_rcp_f32 v%d, v%d" % (sp, sp))
    o.append("v_rcp_f32 v%d, v%d" % (sm, sm))
    o.append("s_nop 0")
    for i in range(4):
        o.append("v_mul_f32 v%d, v%d, v%d" % (ep[i], ep[i], sp))
        o.append("v_mul_f32 v%d, v%d, v%d" % (em[i], em[i], sm))
    o.append("v_cvt_pk_bf16_f32 v%d, v%d, v%d" % (outp, ep[0], ep[1]))
    o.append("v_cvt_pk_bf16_f32 v%d, v%d, v%d" % (outp + 1, ep[2], ep[3]))
    o.append("v_cvt_pk_bf16_f32 v%d, v%d, v%d" % (outp + 2, em[0], em[1]))
    o.append("v_cvt_pk_bf16_f32 v%d, v%d, v%d" % (outp + 3, em[2], em[3]))
    return o


def xin_srd(k, slot):
    k.e("s_add_u32 s%d, s%d, 0x%x" % (slot, S_WSL, R_XIN))
    k.e("s_addc_u32 s%d, s%d, 0" % (slot + 1, S_WSH))
    k.e("s_cmp_eq_u32 s%d, 0" % S_LAYER)
    k.e("s_cselect_b32 s%d, s%d, s%d" % (slot, PTR(IN_X), slot))
    k.e("s_cselect_b32 s%d, s%d, s%d" % (slot + 1, PTR(IN_X) + 1, slot + 1))
    k.e("s_mov_b32 s%d, 0x%x" % (slot + 2, XBYTES))
    k.e("s_mov_b32 s%d, 0x00020000" % (slot + 3))


def cs_read(k, vcs, dst, c, tag):
    ds(k, "ds_read_b128 %s, v%d offset:%d" % (vr(dst, 4), vcs, 64 * c), tag)


def wide_hooks(k, acc, st, vcx, P1, P2, MT, mode, n_st):
    park = [acc[P2][t][mt] for t in (0, 1) for mt in range(MT)]
    cs = {u: [park[2 * i + t] for t in (0, 1)] for i, u in enumerate(P1)}

    def m10():
        k.e("s_barrier")
        for u in P1:
            for t in (0, 1):
                cs_read(k, vcx, cs[u][t], 2 * u + t, "cs")

    def m13():
        for t in (0, 1):
            cs_read(k, vcx, acc[P2][t][0], 2 * P2 + t, "c2")
    ex = spread(interleave(*[stats_fold(st[mt], mode) for mt in range(MT)]), PSW, n_st)
    ex.update(fix_step(acc, cs, st, P1, MT, 12))
    ex[15] = [("w", "c2")] + cs_init(acc[P2], st)
    return ex, {BDW: m10, 13: m13}, {12: ["cs"]}


BDW = int(os.environ.get("BDW", "10"))
QH = int(os.environ.get("QH", "5"))
BH = 2 * QH - 3 <= BDW
PJ = int(os.environ.get("PJ", "6"))
PCS = int(os.environ.get("PCS", "2"))
PQ = int(os.environ.get("PQ", "0"))
PBH = int(os.environ.get("PBH", "3"))
PRO = int(os.environ.get("PRO", "3"))
TP = int(os.environ.get("TP", "1"))
L2W = int(os.environ.get("L2W", "0"))
PFS = int(os.environ.get("PFS", "7"))
QCS = int(os.environ.get("QCS", "8"))
QTAIL = int(os.environ.get("QTAIL", "16"))
WTAIL = int(os.environ.get("WTAIL", "8"))
WPOS = int(os.environ.get("WPOS", "1"))


def bar(k):
    return lambda: k.e("s_barrier")


def p_qkv(k, g):
    MT, NU, KS, CS = 2, 3, 16, 4
    mk = k.mark()
    k.e("s_mov_b32 s%d, s%d" % (S_TOKB, S_TOKW))
    t16_base(k, S_XO, 512)
    w = w_tb(k, g, False, NU, woff512(U_QKV), KS)
    vph = k.alloc()
    k.e("v_add_u32 v%d, 0x%x, v%d" % (vph, CSX_W + 1024, g.lin))
    st, st_issue = stats_load(k, g, MT)
    vcs, vcx = k.alloc(), k.alloc()
    k.e("v_lshlrev_b32 v%d, 4, v%d" % (vcs, g.g))
    k.e("v_add_u32 v%d, 0x%x, v%d" % (vcx, CSX_W, vcs))
    k.e("s_cmp_eq_u32 s%d, 0" % S_LAYER)
    k.e("s_cselect_b32 s%d, 64, 1024" % S_XST)
    k.e("s_cselect_b64 s[100:101], 0, -1")
    X = [[k.alloc(4, 4) for _ in range(KS)] for _ in range(MT)]
    wphi = [X[0][0], X[0][0] + 2]
    acc = [[[k.alloc(4, 4) for _ in range(MT)] for _ in range(2)] for _ in range(NU)]
    xin_srd(k, SRD_X)
    make_srd(k, SRD_O, ("l", R_O), XBYTES)
    make_srd(k, SRD_R2, ("l", R_KVP), 2 * MB)
    make_srd(k, SRD_S, ("l", ST_XIN), STBYTES)
    make_srd(k, SRD_SO, ("l", 0), 2 * LSTRIDE)

    def xl(s):
        if s >= XDW:
            k.e("s_mov_b64 exec, s[100:101]")
            k.e("s_cbranch_execz L_sx%d_%s" % (s, k.name))
        for mt in range(MT):
            xload(k, g, X[mt][s], 512, mt, s, "x%d" % s)
        if s >= XDW:
            k.label("L_sx%d_%s" % (s, k.name))
            k.e("s_mov_b64 exec, -1")

    k.e("s_cmp_lg_u32 s%d, 0" % S_LAYER)
    k.e("s_cbranch_scc1 L_np_%s" % k.name)
    for mt in range(MT):
        for r in range(16):
            xload(k, g, X[mt][r], 512, mt, r, "r%d_%d" % (mt, r // 4))
    k._xhi = None
    ab = acc[0][0][0]
    pz, pl8 = ab + 32, ab + 36

    def marks():
        for i in range(4):
            k.e("v_mov_b32 v%d, -1" % (pz + i))
        k.e("v_lshlrev_b32 v%d, 3, v%d" % (pl8, g.l))
        k.e("s_lshl_b32 s%d, s%d, 2" % (S_T2, S_CBW))
        k.e("s_add_u32 s%d, s%d, s%d" % (S_T2, S_T2, S_WAVE))
        k.e("s_lshl_b32 s%d, s%d, 4" % (S_T2, S_T2))
        k.e("s_add_u32 s%d, s%d, s%d" % (S_T2, S_T2, S_RBW))
        k.e("s_lshl_b32 s%d, s%d, 6" % (S_T1, S_T2))
        k.e("s_lshl_b32 s%d, s%d, 9" % (S_T0, S_T2))
        k.e("s_add_u32 s%d, s%d, s%d" % (S_T2, S_TOKB, S_CBW))
        k.e("s_lshl_b32 s%d, s%d, 10" % (S_T2, S_T2))
        for L in range(2):
            k.e("s_add_u32 s%d, s%d, 0x%x" % (S_P0, S_T0, R_KVP + L * LSTRIDE))
            k.vmem("buffer_store_dwordx2 %s, v%d, %s, s%d offen sc1" % (vr(pz, 2), pl8, srd(SRD_SO), S_P0), "pz")
            k.e("s_add_u32 s%d, s%d, 0x%x" % (S_P0, S_T1, R_KVP + MB + L * LSTRIDE))
            k.e("s_mov_b32 exec_lo, 0x00010001")
            k.e("s_mov_b32 exec_hi, 0x00010001")
            k.vmem("buffer_store_dwordx4 %s, v%d, %s, s%d offen sc1" % (vr(pz, 4), vcs, srd(SRD_SO), S_P0), "pz")
            k.e("s_mov_b64 exec, -1")
            for mt in range(MT):
                k.e("s_add_u32 s%d, s%d, 0x%x" % (S_P0, S_T2, R_O + 0x4000 * mt + L * LSTRIDE))
                k.vmem("buffer_store_dwordx4 %s, v%d, %s, s%d offen%s" % (vr(pz, 4), g.lin, srd(SRD_SO), S_P0, PSC), "pz")
    def ctouch():
        k.e("s_lshl_b32 s%d, s2, 2" % S_CNT)
        k.e("s_add_u32 s%d, s%d, s%d" % (S_CNT, S_CNT, S_WAVE))
        touch(k, g, g.l128, [(IN_W1, 128), (IN_W2, 128), (IN_W3, 344), (IN_W4, 344)])
        k.vm.append("tch")
    if TP == 4:
        ctouch()
    if not PRO & 1:
        marks()
    ones4, mS, mQ = ab, [ab + 4, ab + 8], [ab + 12, ab + 16]
    vwb, vrd, tw = ab + 20, [ab + 21 + i for i in range(4)], [ab + 25 + i for i in range(4)]
    k.e("s_lshl_b32 s%d, s%d, 14" % (S_T0, S_WAVE))
    k.e("s_add_u32 s%d, s%d, 0x%x" % (S_T0, S_T0, UN[3]))
    k.e("v_add_u32 v%d, s%d, v%d" % (vwb, S_T0, g.lin))
    for b_ in range(4):
        k.e("v_add_u32 v%d, %d, v%d" % (vrd[b_], 4 * b_, g.g))
        k.e("v_xor_b32 v%d, v%d, v%d" % (vrd[b_], vrd[b_], g.m))
        k.e("v_lshlrev_b32 v%d, 4, v%d" % (vrd[b_], vrd[b_]))
        k.e("v_lshl_add_u32 v%d, v%d, 10, v%d" % (vrd[b_], g.m, vrd[b_]))
        k.e("v_add_u32 v%d, s%d, v%d" % (vrd[b_], S_T0, vrd[b_]))
    for i in range(4):
        k.e("v_mov_b32 v%d, 0x3f803f80" % (ones4 + i))

    def smf(mt, s):
        k.e("v_mfma_f32_16x16x32_bf16 %s, %s, %s, %s" % (vr(mS[mt], 4), vr(ones4, 4), vr(X[mt][s], 4), vr(mS[mt], 4) if s else "0"))
        k.e("v_mfma_f32_16x16x32_bf16 %s, %s, %s, %s" % (vr(mQ[mt], 4), vr(X[mt][s], 4), vr(X[mt][s], 4), vr(mQ[mt], 4) if s else "0"))
    for mt in range(MT):
        for r in range(16):
            if r % 4 == 0:
                if r == 0:
                    stamp(k, g, True)
                k.wait_vm("r%d_%d" % (mt, r // 4))
                if r in (0, 12):
                    stamp(k, g, True)
            k.e("v_xor_b32 v%d, %d, v%d" % (tw[r % 4], 16 * r, vwb))
            k.e("ds_write_b128 v%d, %s offset:%d" % (tw[r % 4], vr(X[mt][r], 4), 1024 * r))
            if mt == 1 and PRO & 2 and r < 12:
                smf(0, r)
        k.e("s_waitcnt lgkmcnt(0)")
        for s in range(KS):
            k.e("ds_read_b128 %s, v%d offset:%d" % (vr(X[mt][s], 4), vrd[s % 4], 256 * (s // 4)))
        if mt == 0 and PRO & 1:
            marks()
        if (mt, TP) in ((0, 2), (1, 3)):
            ctouch()
        if mt == 0 and PRO & 2:
            k.e("s_waitcnt lgkmcnt(0)")
            continue
        if PRO & 2:
            for s in range(12, 16):
                smf(0, s)
        for s in range(KS):
            k.e("s_waitcnt lgkmcnt(%d)" % (KS - 1 - s))
            smf(mt, s)
    k.e("v_and_b32 v%d, 3, v%d" % (tw[0], g.m))
    k.e("v_lshrrev_b32 v%d, 2, v%d" % (tw[1], g.m))
    for mt in range(MT):
        k.e("v_mul_f32 v%d, 0.25, v%d" % (st[mt], mS[mt]))
        k.e("v_mov_b32 v%d, 0" % (st[mt] + 2))
        k.e("v_mov_b32 v%d, 0" % (st[mt] + 3))
    for j in range(1, 4):
        k.e("v_cmp_eq_u32 vcc, %d, v%d" % (j, tw[0]))
        for mt in range(MT):
            k.e("v_cndmask_b32 v%d, v%d, v%d, vcc" % (mQ[mt], mQ[mt], mQ[mt] + j))
    k.e("v_cmp_eq_u32 vcc, v%d, v%d" % (tw[1], g.g))
    for mt in range(MT):
        k.e("v_cndmask_b32 v%d, 0, v%d, vcc" % (st[mt] + 1, mQ[mt]))
    stamp(k, g, True)
    k.e("s_waitcnt vmcnt(0)")
    k.vm = []
    stamp(k, g, True)
    if TP == 5:
        ctouch()
        k.vm = []
    k.e("s_barrier")
    k.label("L_np_%s" % k.name)
    k.e("s_nop 4")
    stamp(k, g)
    gemm_pre(k, w, KS, 3, [1, 2], 0)
    pl = poll_stats(k, g, st, st_issue, g.l128, True)
    stamp(k, g)

    def rl(s):
        for mt in range(MT):
            xreload(k, g, X[mt][s], 512, mt, s)

    ex, mid, top = wide_hooks(k, acc, st, vcx, [1, 2], 0, MT, "r", 5)
    gemm_loop(k, g, w, KS, MT, lambda s, mt: X[mt][s], acc, xl, mid=mid, top=top, extra=ex, rl=rl, mask=True, poll=pl, ps=PSW,
              pre={2 * QH: bar(k)} if BH else None)
    k.e("s_barrier")
    stamp(k, g)
    xb = X[0][0]
    ident, ones = X[1][0], X[1][0] + 2
    t, t2 = st[0] + 1, st[0] + 2
    C4 = [(mt, hh) for mt in range(MT) for hh in range(2)]
    kvacc = [[w.ring2[4 * hh + b] for b in range(4)] for hh in range(2)]
    oq = list(w.free)
    kb = [w.free[c // 2] + 2 * (c % 2) for c in range(4)]
    vb = [w.free[2 + c // 2] + 2 * (c % 2) for c in range(4)]
    T = [X[0][1], X[1][1], X[0][6], X[1][6]]
    ok = [X[0][4], X[1][4], X[0][5], X[1][5]]
    E1 = [("ds", "ds_read_b128 %s, v%d" % (vr(wphi[0], 4), vph), "ph")]
    E1 += ["v_mov_b32 v%d, 0x3f803f80" % ones,
           "v_mov_b32 v%d, 0x3f803f80" % (ones + 1),
           "v_and_b32 v%d, 1, v%d" % (t, g.m),
           "v_lshlrev_b32 v%d, 4, v%d" % (t, t),
           "v_mov_b32 v%d, 0x3f80" % t2,
           "v_lshlrev_b32 v%d, v%d, v%d" % (t2, t, t2),
           "v_lshrrev_b32 v%d, 2, v%d" % (t, g.m),
           "v_cmp_eq_u32 vcc, v%d, v%d" % (t, g.g),
           "v_cndmask_b32 v%d, 0, v%d, vcc" % (t2, t2),
           "v_and_b32 v%d, 2, v%d" % (t, g.m),
           "v_cmp_eq_u32 vcc, 0, v%d" % t,
           "v_cndmask_b32 v%d, 0, v%d, vcc" % (ident, t2),
           "v_cndmask_b32 v%d, v%d, 0, vcc" % (ident + 1, t2)]
    E1 += ["s_lshl_b32 s%d, s%d, 13" % (S_T0, S_WAVE),
           "s_add_u32 s%d, s%d, 0x%x" % (S_T0, S_T0, LDS_SCR),
           "v_add_u32 v%d, s%d, v%d" % (t, S_T0, g.lin),
           "s_lshr_b32 s%d, s%d, 1" % (S_T0, S_WAVE),
           "s_lshl_b32 s%d, s%d, 12" % (S_T0, S_T0),
           "s_and_b32 s%d, s%d, 1" % (S_T1, S_WAVE),
           "s_lshl_b32 s%d, s%d, 10" % (S_T1, S_T1),
           "s_add_u32 s%d, s%d, s%d" % (S_T0, S_T0, S_T1),
           "s_add_u32 s%d, s%d, 0x%x" % (S_T0, S_T0, LDS_SCR),
           "v_add_u32 v%d, s%d, v%d" % (t2, S_T0, g.lin)]
    pk = [acc[1][hh][mt] for (mt, hh) in C4]
    tv = [acc[2][hh][mt] for (mt, hh) in C4]
    E0 = interleave(*[scale4(pk[c], st[mt]) + pack2(kb[c], pk[c]) for c, (mt, hh) in enumerate(C4)])
    E1 += interleave(*[scale4(tv[c], st[mt]) + pack2(vb[c], tv[c]) for c, (mt, hh) in enumerate(C4)])
    E1.append(("w", "ph"))
    for c, (mt, hh) in enumerate(C4):
        E1.append("v_mfma_f32_16x16x16_bf16 %s, %s, %s, 0" % (vr(pk[c], 4), vr(wphi[hh], 2), vr(kb[c], 2)))
    for c in range(4):
        E1.append("v_mfma_f32_16x16x16_bf16 %s, %s, %s, 0" % (vr(tv[c], 4), vr(vb[c], 2), vr(ident, 2)))

    def tr_ph(c):
        return ["v_mfma_f32_16x16x16_bf16 %s, %s, %s, 0" % (vr(T[c], 4), vr(ok[c], 2), vr(ident, 2)),
                "v_mfma_f32_16x16x16_bf16 %s, %s, %s, 0" % (vr(T[c] + 4, 4), vr(ok[c] + 2, 2), vr(ident, 2))]

    def pk_ph(c):
        return pack2(T[c] + 8, T[c]) + pack2(T[c] + 10, T[c] + 4)
    R1 = interleave(*[softmax_pair(pk[c], T[c], ok[c]) for c in range(2)])
    R1 = R1[:8] + [x_ for c in range(4) for x_ in pack2(vb[c], tv[c])] + R1[8:]
    R2 = interleave(*[softmax_pair(pk[c], T[c], ok[c]) for c in range(2, 4)])
    R2 = R2[:2] + tr_ph(0) + tr_ph(1) + R2[2:24] + pk_ph(0) + pk_ph(1) + R2[24:]
    n0, n1, n2, n3 = len(E0), len(E1), len(R1), len(R2) - QTAIL

    def pos(j):
        if j < 4:
            return n0 * j // 4
        if j < 20:
            return n0 + 1 + (n1 - 9) * (j - 4) // 16
        if j < 42:
            return n0 + n1 + n2 * (j - 20) // 22
        return n0 + n1 + n2 + n3 * (j - 42) // 22
    pass2(k, w, KS, MT, lambda s, mt: X[mt][s], acc[0], E0 + E1 + R1 + R2, pos)
    stamp(k, g, True)
    for s_ in tr_ph(2) + tr_ph(3):
        k.e(s_)

    def kvm(c):
        mt, hh = C4[c]
        kk = kvacc[hh]
        for (dst, a_, b_) in ((kk[0], T[c] + 8, vb[c]), (kk[1], T[c] + 10, vb[c]), (kk[2], T[c] + 8, ones), (kk[3], T[c] + 10, ones)):
            k.e("v_mfma_f32_16x16x16_bf16 %s, %s, %s, %s" % (
                vr(dst, 4), vr(a_, 2), vr(b_, 2), "0" if mt == 0 else vr(dst, 4)))
    kvm(0)
    kvm(1)
    for s_ in pk_ph(2) + pk_ph(3):
        k.e(s_)
    kvm(2)
    kvm(3)
    kb = [X[c // 2][4] + 2 * (c % 2) for c in range(4)]
    for hh in range(2):
        for b in range(4):
            k.e("ds_write_b128 v%d, %s offset:%d" % (t, vr(kvacc[hh][b], 4), (hh * 4 + b) * 1024))
    seqs = []
    for c, (mt, hh) in enumerate(C4):
        a = acc[0][hh][mt]
        seqs.append(scale4(a, st[mt]) + pack2(kb[c], a))
    qa = interleave(*seqs)
    for c, (mt, hh) in enumerate(C4):
        qa.append("v_mfma_f32_16x16x16_bf16 %s, %s, %s, 0" % (vr(acc[0][hh][mt], 4), vr(wphi[hh], 2), vr(kb[c], 2)))
    qb = interleave(*[softmax_pair(acc[0][hh][mt], T[c], oq[c]) for c, (mt, hh) in enumerate(C4)])
    k.e("s_waitcnt lgkmcnt(0)")
    stamp(k, g, True)
    k.e("s_barrier")
    stamp(k, g, True)
    rk = [acc[1][hh][mt] for (mt, hh) in C4]
    rz = [acc[2][hh][mt] for (mt, hh) in C4]
    for ww in range(4):
        k.e("ds_read_b128 %s, v%d offset:%d" % (vr(rk[ww], 4), t2, ww * 8192))
        k.e("ds_read_b128 %s, v%d offset:%d" % (vr(rz[ww], 4), t2, ww * 8192 + 2048))
    k.e("s_lshl_b32 s%d, s%d, 2" % (S_T2, S_CBW))
    k.e("s_add_u32 s%d, s%d, s%d" % (S_T2, S_T2, S_WAVE))
    k.e("s_lshl_b32 s%d, s%d, 4" % (S_T2, S_T2))
    k.e("s_add_u32 s%d, s%d, s%d" % (S_T0, S_T2, S_RBW))
    k.e("s_lshl_b32 s%d, s%d, 6" % (S_T1, S_T0))
    k.e("s_add_u32 s%d, s%d, 0x%x" % (S_T1, S_T1, MB))
    k.e("s_lshl_b32 s%d, s%d, 9" % (S_T0, S_T0))
    l8 = vph
    k.e("v_lshlrev_b32 v%d, 3, v%d" % (l8, g.l))
    for s_ in qa:
        k.e(s_)
    k.e("s_waitcnt lgkmcnt(0)")
    for R_ in (rk, rz):
        for i in (0, 2):
            k.e("v_pk_add_f32 %s, %s, %s" % (vr(R_[0] + i, 2), vr(R_[0] + i, 2), vr(R_[1] + i, 2)))
            k.e("v_pk_add_f32 %s, %s, %s" % (vr(R_[2] + i, 2), vr(R_[2] + i, 2), vr(R_[3] + i, 2)))
    for R_ in (rk, rz):
        for i in (0, 2):
            k.e("v_pk_add_f32 %s, %s, %s" % (vr(R_[0] + i, 2), vr(R_[0] + i, 2), vr(R_[2] + i, 2)))
    for s_ in pack2(rk[1], rk[0]):
        k.e(s_)
    k.e("buffer_store_dwordx2 %s, v%d, %s, s%d offen sc1" % (vr(rk[1], 2), l8, srd(SRD_R2), S_T0))
    k.e("s_mov_b32 exec_lo, 0x00010001")
    k.e("s_mov_b32 exec_hi, 0x00010001")
    k.e("buffer_store_dwordx4 %s, v%d, %s, s%d offen sc1" % (vr(rz[0], 4), vcs, srd(SRD_R2), S_T1))
    k.e("s_mov_b64 exec, -1")
    stamp(k, g, True)
    for s_ in qb:
        k.e(s_)
    vw_, vr_ = acc[1][0][0], acc[1][0][0] + 1
    k.e("s_lshr_b32 s%d, s%d, 1" % (S_T0, S_WAVE))
    k.e("s_lshl_b32 s%d, s%d, 11" % (S_T0, S_T0))
    k.e("s_and_b32 s%d, s%d, 1" % (S_T1, S_WAVE))
    k.e("s_lshl_b32 s%d, s%d, 3" % (S_T1, S_T1))
    k.e("s_add_u32 s%d, s%d, s%d" % (S_T0, S_T0, S_T1))
    k.e("s_add_u32 s%d, s%d, 0x%x" % (S_T0, S_T0, LDS_SCR))
    k.e("v_add_u32 v%d, s%d, v%d" % (vw_, S_T0, g.lin))
    k.e("v_add_u32 v%d, 0x%x, v%d" % (vr_, LDS_SCR, g.lin))
    vz = acc[1][0][0] + 2
    k.e("v_lshl_add_u32 v%d, v%d, 6, v%d" % (vz, g.m, vcs))
    k.e("s_lshl_b32 s%d, s%d, 9" % (S_T0, S_T2))
    k.e("s_lshl_b32 s%d, s%d, 6" % (S_T1, S_T2))
    k.e("s_add_u32 s%d, s%d, 0x%x" % (S_T1, S_T1, MB))
    k.e("s_mov_b32 s%d, 0x3f80" % S_C1)
    k.e("s_mov_b32 s%d, 0x3f800000" % S_C2)
    k.e("s_lshl_b32 s%d, s%d, 10" % (S_OB, S_TOKB))
    k.e("s_lshl_b32 s%d, s%d, 10" % (S_T2, S_CBW))
    k.e("s_add_u32 s%d, s%d, s%d" % (S_OB, S_OB, S_T2))
    stamp(k, g)
    k.e("s_cmp_lg_u32 s%d, 0" % S_LAYER)
    k.e("s_cbranch_scc1 L_ny_%s" % k.name)
    k.e("s_barrier")
    k.label("L_ny_%s" % k.name)
    k.vm = []
    P = [xb + 4 * r for r in range(16)]
    Z = [xb + 64 + 4 * r for r in range(16)]
    H = [xb + 96 + 2 * r for r in range(16)]
    k.e("s_add_u32 s%d, s%d, 4096" % (S_P0 + 1, S_T0))

    def zl(f):
        f("buffer_load_dwordx4 %s, v%d, %s, s%d offen sc1" % (vr(Z[0], 4), vz, srd(SRD_R2), S_T1), "z")

    def kvl(f):
        for r in range(16):
            f("buffer_load_dwordx2 %s, v%d, %s, s%d offen offset:%d sc1" % (vr(H[r], 2), l8, srd(SRD_R2), S_P0 + 1 if r >= 8 else S_T0, (r % 8) * 512), "p%d" % (r // 4))
    raw = lambda a_, b_: k.e(a_)
    zl(k.vmem)
    kvl(k.vmem)
    k.wait_vm("z")
    k.e("v_cmp_eq_u32 vcc, -1, v%d" % (Z[0] + 3))
    k.e("s_cbranch_vccnz L_zr_%s" % k.name)
    k.label("L_zo_%s" % k.name)
    stamp(k, g)
    main = k.lines
    k.lines = k.stubs
    k.label("L_zr_%s" % k.name)
    budget(k, "L_zo_%s" % k.name)
    if PSL:
        k.e("s_sleep %d" % PSL)
    zl(raw)
    k.e("s_waitcnt vmcnt(0)")
    k.e("v_cmp_eq_u32 vcc, -1, v%d" % (Z[0] + 3))
    k.e("s_cbranch_vccnz L_zr_%s" % k.name)
    kvl(raw)
    k.e("s_branch L_zo_%s" % k.name)
    k.label("L_kr_%s" % k.name)
    budget(k, "L_ko_%s" % k.name)
    kvl(raw)
    k.e("s_branch L_ks_%s" % k.name)
    k.lines = main
    for sh in (8, 4, 2, 1):
        for i in range(4):
            k.e("v_add_f32_dpp v%d, v%d, v%d row_ror:%d row_mask:0xf bank_mask:0xf" % (Z[0] + i, Z[0] + i, Z[0] + i, sh))
    k.label("L_ks_%s" % k.name)
    vmx = P[2]
    for q in range(4):
        k.wait_vm("p%d" % q)
        stamp(k, g, True)
        for r in range(4 * q, 4 * q + 4):
            a = P[r & 1]
            for i in range(4):
                k.e("v_dot2_f32_bf16 v%d, v%d, s%d, %s" % (a + i, H[r] + (i >> 1), S_C2 if i & 1 else S_C1, "0" if r < 2 else "v%d" % (a + i)))
            if r & 1:
                if r == 1:
                    k.e("v_max_u32 v%d, v%d, v%d" % (vmx, H[0], H[1]))
                else:
                    k.e("v_max3_u32 v%d, v%d, v%d, v%d" % (vmx, vmx, H[r - 1], H[r]))
    k.e("v_cmp_eq_u32 vcc, -1, v%d" % vmx)
    k.e("s_cbranch_vccnz L_kr_%s" % k.name)
    k.label("L_ko_%s" % k.name)
    for s_ in add4(P[0], P[1]):
        k.e(s_)
    for s_ in pack2(P[1], P[0]) + pack2(Z[1], Z[0]):
        k.e(s_)
    k.e("ds_write_b64 v%d, %s" % (vw_, vr(P[1], 2)))
    k.e("ds_write_b64 v%d, %s offset:1024" % (vw_, vr(Z[1], 2)))
    k.e("s_waitcnt lgkmcnt(0)")
    stamp(k, g, True)
    k.e("s_barrier")
    stamp(k, g, True)
    kvf = [P[2], P[3]]
    zf = [P[4], P[5]]
    for hh in range(2):
        k.e("ds_read_b128 %s, v%d offset:%d" % (vr(kvf[hh], 4), vr_, hh * 2048))
        k.e("ds_read_b128 %s, v%d offset:%d" % (vr(zf[hh], 4), vr_, hh * 2048 + 1024))
    num = [Z[c] for c in range(4)]
    den = [Z[4 + c] for c in range(4)]
    O = [Z[8], Z[9]]
    k.e("s_waitcnt lgkmcnt(0)")
    for c, (mt, hh) in enumerate(C4):
        k.e("v_mfma_f32_16x16x32_bf16 %s, %s, %s, 0" % (vr(den[c], 4), vr(zf[hh], 4), vr(oq[c], 4)))
    for c, (mt, hh) in enumerate(C4):
        k.e("v_mfma_f32_16x16x32_bf16 %s, %s, %s, 0" % (vr(num[c], 4), vr(kvf[hh], 4), vr(oq[c], 4)))
    for c in range(4):
        k.e("v_add_f32 v%d, s%d, v%d" % (den[c], S_EPS, den[c]))
    for c in range(4):
        k.e("v_rcp_f32 v%d, v%d" % (den[c], den[c]))
    for c in range(4):
        for j in range(4):
            k.e("v_mul_f32 v%d, v%d, v%d" % (num[c] + j, num[c] + j, den[c]))
    for c, (mt, hh) in enumerate(C4):
        for s_ in pack2(O[mt] + 2 * hh, num[c]):
            k.e(s_)
    k.e("s_add_u32 s%d, s%d, 0x4000" % (S_T2, S_OB))
    for mt in range(MT):
        k.vmem("buffer_store_dwordx4 %s, v%d, %s, s%d offen%s" % (vr(O[mt], 4), g.lin, srd(SRD_O), S_T2 if mt else S_OB, DSC), "st")
    signal(k, g, E_O, 2, own=((S_OB, 1024), (S_T2, 1024)))
    k.release(mk)


def out_base(k):
    k.e("s_lshl_b32 s%d, s%d, 10" % (S_OB, S_TOKB))
    k.e("s_lshl_b32 s%d, s%d, 11" % (S_T0, S_CB))
    k.e("s_add_u32 s%d, s%d, s%d" % (S_OB, S_OB, S_T0))


def res_load(k, vsw, slot, tag, regs=None):
    r = regs if regs is not None else [k.alloc(4, 4) for _ in range(2)]

    def issue():
        for u in range(2):
            k.vmem("buffer_load_dwordx4 %s, v%d, %s, s%d offen offset:%d" % (vr(r[u], 4), vsw, srd(slot), S_OB, 1024 * u), tag)
    return r, issue


def store_pairs(k, vsw, pk, swap=True, mod=DSC):
    for u in range(2):
        for s_ in swap_pair(pk[u]) if swap else []:
            k.e(s_)
    for u in range(2):
        k.vmem("buffer_store_dwordx4 %s, v%d, %s, s%d offen offset:%d%s" % (vr(pk[u], 4), vsw, srd(SRD_O), S_OB, 1024 * u, mod), "st")


def fin(k, g, acc, pk):
    for u in range(2):
        for t in range(2):
            for s_ in pack2(pk[u] + 2 * t, acc[u][t][0]):
                k.e(s_)
    k.e("s_barrier")
    stamp(k, g)


def p_wo(k, g):
    MT, NU, KS, CS = 1, 2, 16, 4
    mk0 = k.mark()
    vsw = g.vsw
    k.e("s_mov_b32 s%d, s%d" % (S_TOKB, S_TOKN))
    t16_base(k, S_XO, 512)
    out_base(k)
    w = w_tb(k, g, True, NU, woff512(U_WO), KS)
    X = [k.alloc(4, 4) for _ in range(KS)]
    acc = [[[k.alloc(4, 4)] for _ in range(2)] for _ in range(NU)]
    res = [k.alloc(4, 4) for _ in range(2)]
    vres, t = k.alloc(), k.alloc()
    k.e("v_and_b32 v%d, 1, v%d" % (t, g.g))
    k.e("v_lshlrev_b32 v%d, 10, v%d" % (vres, g.m))
    k.e("v_lshl_add_u32 v%d, v%d, 5, v%d" % (vres, t, vres))
    k.e("v_lshrrev_b32 v%d, 1, v%d" % (t, g.g))
    k.e("v_lshl_add_u32 v%d, v%d, 4, v%d" % (vres, t, vres))
    k.e("s_lshl_b32 s%d, s%d, 10" % (S_T1, S_TOKB))
    k.e("s_lshl_b32 s%d, s%d, 7" % (S_T0, S_CB))
    k.e("s_add_u32 s%d, s%d, s%d" % (S_T1, S_T1, S_T0))
    make_srd(k, SRD_X, ("l", R_O), XBYTES)
    xin_srd(k, SRD_R)
    k.e("s_cselect_b64 vcc, -1, 0")
    k.e("s_cselect_b32 s%d, s%d, s%d" % (S_T1, S_T1, S_OB))
    k.e("s_add_u32 s%d, s%d, s%d" % (S_T2, S_T1, S_XST))
    k.e("v_cndmask_b32 v%d, v%d, v%d, vcc" % (vres, vsw, vres))
    make_srd(k, SRD_O, ("l", R_XA), XBYTES)
    make_srd(k, SRD_SO, ("l", ST_XA), STBYTES)
    for u in range(2):
        k.vmem("buffer_load_dwordx4 %s, v%d, %s, s%d offen" % (vr(res[u], 4), vres, srd(SRD_R), (S_T1, S_T2)[u]), "res")
    stamp(k, g)
    gemm_pre(k, w, KS, R512)
    k.wait_vm("res")
    for u in range(2):
        for s_ in swap_pair(res[u]):
            k.e(s_)
    for u in range(2):
        for t in range(2):
            for s_ in unpack2(acc[u][t][0], res[u] + 2 * t):
                k.e(s_)
    k.e("v_lshlrev_b32 v%d, 10, v%d" % (vres, g.l))
    pl = poll_blocks(k, g, vres, "s%d" % S_XO, X[15])
    stamp(k, g)
    gemm_loop(k, g, w, KS, MT, lambda s, mt: X[s], acc, lambda s: xload(k, g, X[s], 512, 0, s, "x%d" % s), mid={BD512: bar(k)}, init=True,
              rl=lambda s: xreload(k, g, X[s], 512, 0, s), poll=pl)
    pk = [X[8], X[9]]
    fin(k, g, acc, pk)
    store_pairs(k, vsw, pk)
    stats_store(k, g, [pk[u] + i for u in range(2) for i in range(4)], X[10])
    signal(k, g, E_XA, 1)
    k.release(mk0)


def p_w1(k, g):
    MT, NU, KS, CS = 1, 2, 16, 4
    mk0 = k.mark()
    vsw = g.vsw
    t16_base(k, S_XO, 512)
    w = w_tb(k, g, False, NU, woff512(U_W1), KS)
    X = [k.alloc(4, 4) for _ in range(KS)]
    acc = [[[k.alloc(4, 4)] for _ in range(2)] for _ in range(NU)]
    st, st_issue = stats_load(k, g, MT)
    vcs = k.alloc()
    k.e("v_lshlrev_b32 v%d, 4, v%d" % (vcs, g.g))
    k.e("v_add_u32 v%d, 0x%x, v%d" % (vcs, CSX_1, vcs))
    cs = [[k.alloc(4, 4) for _ in range(2)] for _ in range(2)]
    make_srd(k, SRD_X, ("l", R_XA), XBYTES)
    make_srd(k, SRD_O, ("l", R_H), XBYTES)
    make_srd(k, SRD_S, ("l", ST_XA), STBYTES)
    stamp(k, g)
    gemm_pre(k, w, KS, R512)
    pl = poll_stats(k, g, st, st_issue, g.l128)
    stamp(k, g)

    def m4():
        k.e("s_barrier")
        for c in range(4):
            cs_read(k, vcs, cs[c // 2][c % 2], c, "cs")
    ex = spread(stats_fold(st[0], "gg"), PS1, 4)
    ex.update(fix_step(acc, cs, st, range(NU), MT, PS1 + 4))
    gemm_loop(k, g, w, KS, MT, lambda s, mt: X[s], acc, lambda s: xload(k, g, X[s], 512, 0, s, "x%d" % s), mid={BD512: m4},
              top={PS1 + 4: ["cs"]}, extra=ex, rl=lambda s: xreload(k, g, X[s], 512, 0, s), poll=pl, ps=PS1)
    k.e("s_barrier")
    stamp(k, g)
    seqs = []
    pk = [X[8], X[9]]
    for u in range(2):
        for t in range(2):
            i = 2 * u + t
            a = acc[u][t][0]
            seqs.append(gelu4f(a, X[i], pk[u] + 2 * t, st[0]))
    for s_ in interleave(*seqs):
        k.e(s_)
    for u in range(2):
        for s_ in swap_pair(pk[u]):
            k.e(s_)
    if DSC == " sc1":
        store_pairs(k, vsw, pk, swap=False)
    else:
        k.e("s_add_u32 s%d, s%d, 16" % (S_T0, S_TOKB))
        k.e("s_and_b32 s%d, s%d, 0xe0" % (S_T0, S_T0))
        k.e("s_cmp_eq_u32 s%d, 0" % S_T0)
        k.e("s_cbranch_scc1 L_hb_%s" % k.name)
        store_pairs(k, vsw, pk, swap=False)
        k.e("s_branch L_hc_%s" % k.name)
        k.label("L_hb_%s" % k.name)
        store_pairs(k, vsw, pk, swap=False, mod=" sc1")
        k.label("L_hc_%s" % k.name)
    signal(k, g, E_H, 1)
    k.release(mk0)


def p_w2(k, g):
    MT, NU, KS, CS = 1, 2, 16, 4
    mk0 = k.mark()
    vsw = g.vsw
    w = w_tb(k, g, False, NU, woffk(U_W2), KS)
    X = [k.alloc(4, 4) for _ in range(KS)]
    acc = [[[k.alloc(4, 4)] for _ in range(2)] for _ in range(NU)]
    res, res_issue = res_load(k, vsw, SRD_R, "stat")
    st, st_issue = stats_load(k, g, MT)
    vsh = []
    t = k.alloc()
    for c, d in enumerate((-1, 1, -2, 2)):
        r = k.alloc()
        k.e("s_add_i32 s%d, s%d, %d" % (S_T0, S_TOKB, d))
        k.e("v_add_u32 v%d, s%d, v%d" % (t, S_T0, g.m))
        k.e("v_ashrrev_i32 v%d, 4, v%d" % (r, t))
        k.e("v_lshlrev_b32 v%d, 14, v%d" % (r, r))
        k.e("v_and_b32 v%d, 15, v%d" % (t, t))
        k.e("v_lshl_add_u32 v%d, v%d, 4, v%d" % (r, t, r))
        k.e("v_lshl_add_u32 v%d, v%d, 8, v%d" % (r, g.g, r))
        if c:
            k.e("v_add_u32 v%d, 0x%x, v%d" % (r, 4096 * c, r))
        vsh.append(r)
    vpl = k.alloc()
    k.e("v_and_b32 v%d, 7, v%d" % (vpl, g.l))
    k.e("v_lshlrev_b32 v%d, 11, v%d" % (vpl, vpl))
    k.e("s_lshl_b32 s%d, s%d, 10" % (S_T0, S_TOKB))
    k.e("s_add_u32 s%d, s%d, 1024" % (S_T0, S_T0))
    k.e("v_add_u32 v%d, s%d, v%d" % (vpl, S_T0, vpl))
    k.e("v_and_b32 v%d, 2, v%d" % (t, g.l))
    k.e("v_lshlrev_b32 v%d, 14, v%d" % (t, t))
    k.e("v_subrev_u32 v%d, 0x4000, v%d" % (t, t))
    k.e("v_cmp_lt_u32 vcc, 7, v%d" % g.l)
    k.e("v_cndmask_b32 v%d, 0, v%d, vcc" % (t, t))
    k.e("v_add_u32 v%d, v%d, v%d" % (vpl, vpl, t))
    make_srd(k, SRD_X, ("l", R_H), XBYTES)
    make_srd(k, SRD_O, ("l", R_X1), XBYTES)
    make_srd(k, SRD_R, ("l", R_XA), XBYTES)
    make_srd(k, SRD_S, ("l", ST_XA), STBYTES)
    make_srd(k, SRD_SO, ("l", ST_X1), STBYTES)
    res_issue()
    st_issue()
    stamp(k, g)
    gemm_pre(k, w, KS, R512)
    k.wait_vm("stat")
    for s_ in interleave(stats_finish(st[0]), swap_pair(res[0]) + swap_pair(res[1])):
        k.e(s_)
    seqs = []
    for u in range(2):
        for t in range(2):
            tt = acc[u][t][0]
            sq = unpack2(tt, res[u] + 2 * t)
            sq += ["v_pk_fma_f32 %s, %s, %s, %s op_sel:[0,0,1] op_sel_hi:[1,0,1]" % (vr(tt + j, 2), vr(tt + j, 2), vr(st[0], 2), vr(st[0], 2)) for j in (0, 2)]
            seqs.append(sq)
    for s_ in interleave(*seqs):
        k.e(s_)
    pl = poll_blocks(k, g, vpl, "0", X[15])
    stamp(k, g)

    def xl(s):
        k.vmem("buffer_load_dwordx4 %s, v%d, %s, 0 offen offset:%d sc1" % (vr(X[s], 4), vsh[s // 4], srd(SRD_X), 1024 * (s % 4)), "x%d" % s)

    def rl(s):
        k.e("buffer_load_dwordx4 %s, v%d, %s, 0 offen offset:%d sc1" % (vr(X[s], 4), vsh[s // 4], srd(SRD_X), 1024 * (s % 4)))
    gemm_loop(k, g, w, KS, MT, lambda s, mt: X[s], acc, xl, init=True, rl=rl, poll=pl)
    pk = [X[8], X[9]]
    fin(k, g, acc, pk)
    store_pairs(k, vsw, pk)
    stats_store(k, g, [pk[u] + i for u in range(2) for i in range(4)], X[10])
    signal(k, g, E_X1, 1)
    k.release(mk0)


def p_w3(k, g):
    MT, NU, KS, CS = 2, 3, 16, 4
    mk0 = k.mark()
    vsw = g.vsw
    k.e("s_mov_b32 s%d, s%d" % (S_TOKB, S_TOKW))
    t16_base(k, S_XO, 512)
    w = w_tb(k, g, False, NU, woff3, KS)
    k.e("s_mul_i32 s%d, s%d, %d" % (S_OB, S_TOKB, 2752))
    k.e("s_lshl_b32 s%d, s%d, 10" % (S_T0, S_CU3))
    k.e("s_add_u32 s%d, s%d, s%d" % (S_OB, S_OB, S_T0))
    st, st_issue = stats_load(k, g, MT)
    vcs = k.alloc()
    k.e("v_lshlrev_b32 v%d, 4, v%d" % (vcs, g.g))
    k.e("v_add_u32 v%d, 0x%x, v%d" % (vcs, CSX_W, vcs))
    X = [[k.alloc(4, 4) for _ in range(KS)] for _ in range(MT)]
    acc = [[[k.alloc(4, 4) for _ in range(MT)] for _ in range(2)] for _ in range(NU)]
    make_srd(k, SRD_X, ("l", R_X1), XBYTES)
    make_srd(k, SRD_O, ("l", R_H3), S * 2752)
    make_srd(k, SRD_S, ("l", ST_X1), STBYTES)
    stamp(k, g)
    gemm_pre(k, w, KS, 3, [0, 1], 2)
    pl = poll_stats(k, g, st, st_issue, g.l128)
    stamp(k, g)

    def rl(s):
        for mt in range(MT):
            xreload(k, g, X[mt][s], 512, mt, s)

    def xl(s):
        for mt in range(MT):
            xload(k, g, X[mt][s], 512, mt, s, "x%d" % s)

    ex, mid, top = wide_hooks(k, acc, st, vcs, [0, 1], 2, MT, "g", 6)
    gemm_loop(k, g, w, KS, MT, lambda s, mt: X[mt][s], acc, xl, mid=mid, top=top, extra=ex, rl=rl, poll=pl, ps=PSW)
    k.e("s_barrier")
    stamp(k, g)
    k.e("s_add_u32 s%d, s%d, %d" % (S_T2, S_OB, 16 * 2752))

    def epi(u):
        o = interleave(*[gelu4f(acc[u][t][mt], w.free[2 * mt + t], acc[u][0][mt] + 2 * t, st[mt]) for mt in range(MT) for t in range(2)])
        for mt in range(MT):
            o += swap_pair(acc[u][0][mt])
        for mt in range(MT):
            o.append(("vm", "buffer_store_dwordx4 %s, v%d, %s, s%d offen offset:%d%s" % (
                vr(acc[u][0][mt], 4), vsw, srd(SRD_O), S_T2 if mt else S_OB, 1024 * u, DSC), "st"))
        return o
    E = epi(0) + epi(1)
    tp = [i for i, e_ in enumerate(E) if isinstance(e_, str) and e_.split()[0] in ("v_exp_f32", "v_rcp_f32")]
    pass2(k, w, KS, MT, lambda s, mt: X[mt][s], acc[2], E, (lambda j: tp[j] + 1) if WPOS else (lambda j: (len(E) - WTAIL) * j // 64))
    for e_ in epi(2):
        put(k, e_)
    signal(k, g, E_H3, 2, own=((S_OB, 3072), (S_T2, 3072)))
    k.release(mk0)


KCAP4 = 40


def p_w4(k, g):
    MT, NU, KS, CS = 1, 2, 43, 4
    mk0 = k.mark()
    vsw = g.vsw
    k.e("s_mov_b32 s%d, s%d" % (S_TOKB, S_TOKN))
    t16_base(k, S_XO, F)
    out_base(k)
    w = w_tb(k, g, False, NU, woff4, KS)
    X = [k.alloc(4, 4) for _ in range(KS)]
    acc = [[[k.alloc(4, 4)] for _ in range(2)] for _ in range(NU)]
    res, res_issue = res_load(k, vsw, SRD_R, "res", [X[39], X[40]])
    res1, res1_issue = res_load(k, vsw, SRD_R2, "res", [X[41], X[42]])
    vro = k.alloc()
    t = k.alloc()
    k.e("v_add_u32 v%d, s%d, v%d" % (vro, S_TOKB, g.m))
    k.e("v_lshlrev_b32 v%d, 10, v%d" % (vro, vro))
    k.e("v_and_b32 v%d, 1, v%d" % (t, g.g))
    k.e("v_lshl_add_u32 v%d, v%d, 5, v%d" % (vro, t, vro))
    k.e("v_lshrrev_b32 v%d, 1, v%d" % (t, g.g))
    k.e("v_lshl_add_u32 v%d, v%d, 4, v%d" % (vro, t, vro))
    k.e("s_lshl_b32 s%d, s%d, 7" % (S_T0, S_CB))
    k.e("v_add_u32 v%d, s%d, v%d" % (vro, S_T0, vro))
    k.e("v_mul_u32_u24 v%d, 43, v%d" % (t, g.l))
    k.e("v_lshrrev_b32 v%d, 4, v%d" % (t, t))
    k.e("v_min_u32 v%d, 40, v%d" % (t, t))
    k.e("v_add_u32 v%d, 2, v%d" % (t, t))
    k.e("v_lshlrev_b32 v%d, 10, v%d" % (t, t))
    vpl = t
    make_srd(k, SRD_X, ("l", R_H3), S * 2752)
    make_srd(k, SRD_O, ("n", R_XIN), XBYTES)
    make_srd(k, SRD_R, ("l", R_XA), XBYTES)
    make_srd(k, SRD_R2, ("l", R_X1), XBYTES)
    make_srd(k, SRD_SO, ("n", ST_XIN), STBYTES)
    make_srd(k, SRD_S, ("in", OUT), XBYTES)
    res_issue()
    res1_issue()
    stamp(k, g)
    k.e("s_barrier")
    gemm_pre(k, w, KS, 2)
    k.wait_vm("res")
    for u in range(2):
        for s_ in swap_pair(res[u]) + swap_pair(res1[u]):
            k.e(s_)
    seqs = []
    for u in range(2):
        for t in range(2):
            a = acc[u][t][0]
            tt = X[30 + 2 * u + t]
            seqs.append(unpack2(a, res1[u] + 2 * t) + unpack2(tt, res[u] + 2 * t) + add4(a, tt))
    for s_ in interleave(*seqs):
        k.e(s_)
    pl = poll_blocks(k, g, vpl, "s%d" % S_XO, X[29])
    stamp(k, g)
    gemm_loop(k, g, w, KS, MT, lambda s, mt: X[s], acc, lambda s: xload(k, g, X[s], F, 0, s, "x%d" % s),
              mid={7: bar(k), 15: bar(k), 23: bar(k), 31: bar(k)}, pre={KCAP4: bar(k)}, init=True,
              rl=lambda s: xreload(k, g, X[s], F, 0, s), poll=pl)
    pk = [X[8], X[9]]
    fin(k, g, acc, pk)
    k.e("s_cmp_lg_u32 s%d, 0" % S_LAYER)
    k.e("s_cbranch_scc1 L_last_%s" % k.name)
    store_pairs(k, vsw, pk)
    stats_store(k, g, [pk[u] + i for u in range(2) for i in range(4)], X[10])
    signal(k, g, E_X, 1, nxt=True)
    k.e("s_add_u32 s%d, s%d, 0x%x" % (S_WSL, S_WSL, LSTRIDE))
    k.e("s_addc_u32 s%d, s%d, 0" % (S_WSH, S_WSH))
    k.e("s_mov_b32 s%d, 1" % S_LAYER)
    k.e("s_branch L_layer_%s" % k.name)
    k.label("L_last_%s" % k.name)
    k.e("s_nop 4")
    for u in range(2):
        for s_ in swap_pair(pk[u]):
            k.e(s_)
    for u in range(2):
        k.e("buffer_store_dwordx4 %s, v%d, %s, 0 offen offset:%d%s" % (vr(pk[u], 4), vro, srd(SRD_S), 64 * u, OSC))
    k.release(mk0)


def w_lane(k, g, r, wrow, swz_bit, t, t2):
    k.e("v_lshrrev_b32 v%d, 2, v%d" % (t, g.l))
    k.e("s_mov_b32 s%d, %d" % (S_T0, wrow))
    k.e("v_mul_lo_u32 v%d, s%d, v%d" % (r, S_T0, t))
    k.e("v_lshrrev_b32 v%d, %d, v%d" % (t, 2 + swz_bit - 1, g.l))
    k.e("v_and_b32 v%d, 2, v%d" % (t, t))
    k.e("v_and_b32 v%d, 3, v%d" % (t2, g.l))
    k.e("v_xor_b32 v%d, v%d, v%d" % (t, t, t2))
    k.e("v_lshl_add_u32 v%d, v%d, 4, v%d" % (r, t, r))


def dma(k, vwo, soff, m0off):
    k.e("s_add_u32 s%d, s%d, 0x%x" % (S_T0, S_WBASE, soff))
    k.e("s_mov_b32 m0, 0x%x" % m0off)
    k.e("buffer_load_dwordx4 v%d, %s, s%d offen lds" % (vwo, srd(SRD_W), S_T0))


_pollid = [0]


def poll_all(k, g, vf):
    k.e("s_mov_b32 s%d, 0" % S_CNT)
    k.e("s_mov_b32 s%d, 0x%x" % (S_T2, FL_KV))
    k.label("L_pa_%s" % k.name)
    k.e("buffer_load_dwordx4 %s, v%d, %s, s%d offen sc1" % (vr(g.pv, 4), g.lin, srd(SRD_F), S_T2))
    k.e("s_waitcnt vmcnt(0)")
    for i in range(4):
        k.e("v_subrev_u32 v%d, v%d, v%d" % (g.pv + i, vf, g.pv + i))
    k.e("v_or3_b32 v%d, v%d, v%d, v%d" % (g.pv, g.pv, g.pv + 1, g.pv + 2))
    k.e("v_or_b32 v%d, v%d, v%d" % (g.pv, g.pv, g.pv + 3))
    k.e("v_and_b32 v%d, 0xffffff9f, v%d" % (g.pv, g.pv))
    k.e("v_cmp_ne_u32 vcc, 0, v%d" % g.pv)
    k.e("s_cbranch_vccz L_ga_%s" % k.name)
    k.e("s_sleep %d" % POLL_SLEEP)
    k.e("s_add_u32 s%d, s%d, 1" % (S_CNT, S_CNT))
    k.e("s_cmp_lt_u32 s%d, %d" % (S_CNT, POLL_MAX))
    k.e("s_cbranch_scc1 L_pa_%s" % k.name)
    k.label("L_ga_%s" % k.name)


def loader(k, g):
    v3072, v1024, v1024k, v2752 = k.alloc(), k.alloc(), k.alloc(), k.alloc()
    t, t2 = k.alloc(), k.alloc()
    g.pv = k.alloc(4, 4)
    w_lane(k, g, v3072, 3072, 3, t, t2)
    w_lane(k, g, v1024, 1024, 3, t, t2)
    w_lane(k, g, v1024k, 1024, 2, t, t2)
    w_lane(k, g, v2752, 2752, 3, t, t2)
    g.l4 = k.alloc()
    k.e("v_lshlrev_b32 v%d, 2, v%d" % (g.l4, g.l))
    vfk = k.alloc()
    k.e("v_and_b32 v%d, 0xffffffe0, v%d" % (vfk, g.tmp))
    k.e("v_add_u32 v%d, 0x%x, v%d" % (vfk, NONCE_K - 32, vfk))

    pz = k.alloc(4, 4)
    for i in range(4):
        k.e("v_mov_b32 v%d, -1" % (pz + i))

    def mark(sb, off, mod=None):
        k.e("s_add_u32 s%d, s%d, 0x%x" % (S_P0, sb, off & ~1023))
        k.e("buffer_store_dwordx4 %s, v%d, %s, s%d offen offset:%d%s" % (vr(pz, 4), g.lin, srd(SRD_SO), S_P0, off & 1023, PSC if mod is None else mod))

    def m_n(regs, sts):
        k.e("s_lshl_b32 s%d, s%d, 16" % (S_T1, S_RB))
        k.e("s_lshl_b32 s%d, s%d, 11" % (S_T2, S_CB))
        k.e("s_add_u32 s%d, s%d, s%d" % (S_T1, S_T1, S_T2))
        for r in regs:
            for wv in range(4):
                for u in range(2):
                    mark(S_T1, r + wv * 16384 + u * 1024, " sc1" if r == R_H and wv in (0, 3) else None)
        k.e("s_lshl_b32 s%d, s%d, 14" % (S_T1, S_CB))
        k.e("s_lshl_b32 s%d, s%d, 9" % (S_T2, S_RB))
        k.e("s_add_u32 s%d, s%d, s%d" % (S_T1, S_T1, S_T2))
        k.e("s_mov_b64 exec, 0xffffffff")
        for r in sts:
            mark(S_T1, r)
        k.e("s_mov_b64 exec, -1")

    def m_h3():
        k.e("s_mul_i32 s%d, s%d, %d" % (S_T1, S_RBW, 128 * 2752))
        k.e("s_lshl_b32 s%d, s%d, 10" % (S_T2, S_CU3))
        k.e("s_add_u32 s%d, s%d, s%d" % (S_T1, S_T1, S_T2))
        for j in range(8):
            for u in range(3):
                mark(S_T1, R_H3 + j * 16 * 2752 + u * 1024)

    def setw(idx, size, sreg, sh):
        make_srd(k, SRD_W, ("in", idx), size)
        k.e("s_lshl_b32 s%d, s%d, %d" % (S_WBASE, sreg, sh))

    def units(vwo, wrow, ucol, ub, us, js=range(8)):
        for j in js:
            for wv in range(4):
                for u in us:
                    dma(k, vwo, u * ucol + j * 64 * wrow + wv * 16 * wrow, ub[u] + j * 4096 + wv * 1024)

    def d_qkv(us, js=range(8)):
        setw(IN_WQKV, 512 * 3072, S_CBW, 6)
        units(v3072, 3072, 1024, U_QKV, us, js)

    def d_512(idx, vwo, ub, us, js=range(8)):
        setw(idx, 512 * 1024, S_CB, 7)
        units(vwo, 1024, 64, ub, us, js)

    def blocks(vwo, wrow, woff, bl):
        for s_ in sorted({b[1] for b in bl}):
            for hf in range(2):
                for u in sorted(b[0] for b in bl if b[1] == s_):
                    dma(k, vwo, u * 64 + (s_ * 32 + hf * 16) * wrow, woff(u, s_) + hf * 1024)

    def d_w2(half):
        setw(IN_W2, 512 * 1024, S_CB, 7)
        blocks(v1024, 1024, woffk(U_W2), [(u, s_) for s_ in range(8 * half, 8 * half + 8) for u in range(2)])

    def d_w3(bl):
        setw(IN_W3, 512 * 2752, S_CU3, 6)
        blocks(v2752, 2752, woff3, bl)

    wl = w_tb(k, g, False, 1, lambda u, s_: 65536 * s_, 3)
    ones = k.alloc(4, 4)
    fr = [k.alloc(4, 4) for _ in range(4)]
    caq, ca1, ca3 = [[k.alloc(4, 4) for _ in range(n_)] for n_ in (6, 4, 6)]
    wph, wph2 = k.alloc(4, 4), k.alloc(4, 4)
    vcw = k.alloc()
    seen = set()

    def colsum(woff, ca, bl):
        wl.woff = woff
        fl = [(u, s_, tt) for (u, s_) in bl for tt in range(2)]
        k.lg = []

        def rd(j):
            u, s_, tt = fl[j]
            tr_reads(k, wl, fr[j % 4], u, tt, s_, "c%d" % j)
        for j in range(3):
            rd(j)
        for j in range(len(fl)):
            u, s_, tt = fl[j]
            if j + 3 < len(fl):
                rd(j + 3)
            k.e("s_waitcnt lgkmcnt(%d)" % lgn(k, "c%d" % j))
            a = ca[2 * u + tt]
            k.e("v_mfma_f32_16x16x32_bf16 %s, %s, %s, %s" % (vr(a, 4), vr(fr[j % 4], 4), vr(ones, 4), vr(a, 4) if a in seen else "0"))
            seen.add(a)

    def cs_out(ca, base):
        k.e("s_nop 7")
        k.e("s_mov_b32 exec_lo, 0x00010001")
        k.e("s_mov_b32 exec_hi, 0x00010001")
        for c in range(len(ca)):
            k.e("ds_write_b128 v%d, %s offset:%d" % (vcw, vr(ca[c], 4), base - CSX_W + 64 * c))
        k.e("s_mov_b64 exec, -1")

    def d_w4(js):
        setw(IN_W4, F * 1024, S_CB, 7)
        for j in js:
            for wv in range(4):
                dma(k, v1024, j * 32 * 1024 + (wv & 1) * 64 + (wv >> 1) * 16384, woff4(wv & 1, j) + (wv >> 1) * 1024)

    def B():
        k.e("s_barrier")

    vpf = k.alloc()
    k.e("v_lshlrev_b32 v%d, %d, v%d" % (vpf, PFS, g.l))

    def warm(idx, size, bit):
        if not L2W & bit:
            return
        make_srd(k, SRD_R, ("in", idx), size)
        per = size // 32
        k.e("s_and_b32 s%d, s%d, 3" % (S_T0, S_RB))
        k.e("s_lshl_b32 s%d, s%d, 3" % (S_T0, S_T0))
        k.e("s_add_u32 s%d, s%d, s%d" % (S_T0, S_T0, S_CB))
        k.e("s_mul_i32 s%d, s%d, %d" % (S_T0, S_T0, per))
        step = 64 << PFS
        for o in range(0, per, step):
            k.e("buffer_load_dword v%d, v%d, %s, s%d offen" % (t2, vpf, srd(SRD_R), S_T0))
            if o + step < per:
                k.e("s_add_u32 s%d, s%d, %d" % (S_T0, S_T0, step))

    def phase(b1b, cnt=0):
        stamp(k, g, ld=True)
        k.e("s_waitcnt vmcnt(%d)" % cnt)
        stamp(k, g, ld=True)
        k.e("s_barrier")
        if b1b:
            k.e("s_barrier")
        stamp(k, g, ld=True)

    _nl = [0]

    def not_last(f):
        i = _nl[0]
        _nl[0] += 1
        k.e("s_cmp_lg_u32 s%d, 0" % S_LAYER)
        k.e("s_cbranch_scc1 L_nl%d_%s" % (i, k.name))
        f()
        k.label("L_nl%d_%s" % (i, k.name))

    _wb = [0]

    def wb(layer):
        i = _wb[0]
        _wb[0] += 1
        k.e("s_and_b32 s%d, s%d, 3" % (S_T0, S_RB))
        k.e("s_or_b32 s%d, s%d, s%d" % (S_T0, S_T0, S_CB))
        k.e("s_xor_b32 s%d, s%d, %d" % (S_T1, S_LAYER, layer))
        k.e("s_or_b32 s%d, s%d, s%d" % (S_T0, S_T0, S_T1))
        k.e("s_cmp_lg_u32 s%d, 0" % S_T0)
        k.e("s_cbranch_scc1 L_wb%d_%s" % (i, k.name))
        k.e("buffer_wbl2 sc1")
        k.label("L_wb%d_%s" % (i, k.name))

    def tch():
        for i in range(4):
            k.e("s_lshl_b32 s%d, s2, 2" % S_CNT)
            k.e("s_add_u32 s%d, s%d, %d" % (S_CNT, S_CNT, i))
            touch(k, g, t2, [(IN_W1, 128), (IN_W2, 128), (IN_W3, 344), (IN_W4, 344)])

    wq = woff512(U_QKV)
    kvs = lambda j: colsum(wq, caq, [(u, s_) for s_ in range(4 * j, 4 * j + 4) for u in (1, 2)])
    d_qkv([1, 2], range(PJ))
    for i in range(4):
        k.e("v_mov_b32 v%d, 0x3f803f80" % (ones + i))
    k.e("v_lshlrev_b32 v%d, 4, v%d" % (vcw, g.g))
    k.e("v_add_u32 v%d, 0x%x, v%d" % (vcw, CSX_W, vcw))
    if PCS:
        stamp(k, g, ld=True)
        k.e("s_waitcnt vmcnt(%d)" % (8 * (PJ - 2)))
        stamp(k, g, ld=True)
        kvs(0)
    d_qkv([1, 2], range(PJ, 8))
    make_srd(k, SRD_R, ("in", IN_WPHI), 32 * 512)
    k.e("v_lshlrev_b32 v%d, 7, v%d" % (t, g.g))
    k.e("v_lshl_add_u32 v%d, v%d, 1, v%d" % (t, g.m, t))
    k.e("s_lshl_b32 s%d, s%d, 10" % (S_T0, S_CBW))
    for hh in range(2):
        for j in range(4):
            k.e("buffer_load_ushort v%d, v%d, %s, s%d offen offset:%d" % (
                (wph if j & 1 == 0 else wph2) + 2 * hh + (j >> 1), t, srd(SRD_R), S_T0, 512 * hh + 32 * j))
    d_qkv([0], range(PQ))
    for j in range(1, PCS):
        stamp(k, g, ld=True)
        k.e("s_waitcnt vmcnt(%d)" % min(63, 8 * (6 - 2 * j) + 8 + 4 * PQ))
        stamp(k, g, ld=True)
        kvs(j)
    phase(False, cnt=min(63, 8 * (8 - QH) + 8 + 4 * PQ))
    k.label("L_llayer_%s" % k.name)
    make_srd(k, SRD_F, ("l", R_FL), FLSZ)
    make_srd(k, SRD_SO, ("l", 0), 2 * LSTRIDE)

    def pf2():
        if PQ < 8:
            d_qkv([0], range(PQ, 8))
        k.e("s_waitcnt vmcnt(32)")
        for i in range(4):
            k.e("v_lshl_or_b32 v%d, v%d, 16, v%d" % (wph + i, wph2 + i, wph + i))
        for j in range(PCS, 4):
            if BH and j == PBH:
                B()
            kvs(j)
        if BH and PBH == 4:
            B()
        k.e("s_waitcnt vmcnt(0)")
        if TP == 1:
            tch()
        k.e("s_lshl_b32 s%d, s%d, 5" % (S_T0, S_RB))
        k.e("s_lshl_b32 s%d, s%d, 2" % (S_T1, S_CB))
        k.e("s_add_u32 s%d, s%d, s%d" % (S_T0, S_T0, S_T1))
        k.e("s_add_u32 s%d, s%d, 0x%x" % (S_T0, S_T0, FL_KV))
        k.e("s_mov_b64 exec, 1")
        k.e("buffer_store_dword v%d, v%d, %s, s%d offen sc1" % (g.one, g.l64, srd(SRD_F), S_T0))
        k.e("s_mov_b64 exec, -1")
        colsum(wq, caq, [(0, s_) for s_ in range(16)])
    not_last(pf2)
    if BH:
        k.e("s_cmp_eq_u32 s%d, 0" % S_LAYER)
        k.e("s_cbranch_scc1 L_lh_%s" % k.name)
        k.e("s_waitcnt vmcnt(32)")
        B()
        k.label("L_lh_%s" % k.name)
    cs_out(caq, CSX_W)
    k.e("v_add_u32 v%d, 0x%x, v%d" % (t, CSX_W + 1024, g.lin))
    k.e("ds_write_b128 v%d, %s" % (t, vr(wph, 4)))
    k.e("s_cmp_eq_u32 s%d, 0" % S_LAYER)
    k.e("s_cbranch_scc1 L_lq_%s" % k.name)
    k.e("s_waitcnt vmcnt(0)")
    k.label("L_lq_%s" % k.name)
    k.e("s_waitcnt lgkmcnt(0)")
    B()
    if TP == 0:
        not_last(tch)
    B()
    stamp(k, g, ld=True)
    warm(IN_W1, 512 * 1024, 1)
    warm(IN_W2, 512 * 1024, 2)
    warm(IN_W3, 512 * 2752, 4)
    warm(IN_W4, F * 1024, 8)
    d_512(IN_WO, v1024k, U_WO, [0, 1], range(7))
    m_n([R_XA, R_H, R_X1], [ST_XA, ST_X1])
    d_512(IN_W1, v1024, U_W1, [0])
    k.e("s_waitcnt vmcnt(32)")
    B()
    d_512(IN_WO, v1024k, U_WO, [0, 1], range(7, 8))
    d_512(IN_W1, v1024, U_W1, [1])

    def hs():
        poll_all(k, g, vfk)
        B()
        colsum(woff512(U_W1), ca1, [(u, s_) for s_ in range(16) for u in range(2)])
    not_last(hs)
    k.e("s_waitcnt vmcnt(32)")
    B()
    B()
    d_w2(0)
    m_h3()
    k.e("s_waitcnt vmcnt(56)")
    B()
    stamp(k, g, ld=True)
    cs_out(ca1, CSX_1)
    if LV & 1:
        k.e("s_sleep %d" % LS1)
        d_w2(1)
        k.e("s_waitcnt lgkmcnt(0)")
        B()
    else:
        k.e("s_waitcnt lgkmcnt(0)")
        B()
        d_w2(1)
    d_w3([(u, s_) for s_ in range(6) for u in range(2)])
    k.e("s_waitcnt vmcnt(24)")
    B()
    stamp(k, g, ld=True)
    if LS2:
        k.e("s_sleep %d" % LS2)
    d_w3([(u, s_) for s_ in range(6, 8) for u in range(2)])
    d_w3([(u, s_) for s_ in range(8, 16) for u in range(3)])
    not_last(lambda: m_n([LSTRIDE + R_XIN], [LSTRIDE + ST_XIN]))
    k.e("s_waitcnt vmcnt(0)")
    B()
    stamp(k, g, ld=True)
    if LS3:
        k.e("s_sleep %d" % LS3)
    d_w3([(2, s_) for s_ in range(8)])

    def f4():
        colsum(woff3, ca3, [(u, s_) for s_ in range(16) for u in range(3) if u < 2 or s_ >= 8])
        k.e("s_waitcnt vmcnt(0)")
        colsum(woff3, ca3, [(2, s_) for s_ in range(8)])
    not_last(f4)
    cs_out(ca3, CSX_W)
    k.e("s_waitcnt vmcnt(0) lgkmcnt(0)")
    B()
    B()
    stamp(k, g, ld=True)
    warm(IN_W4, F * 1024, 32)
    if L2W & 16:
        not_last(lambda: warm(IN_WQKV, 512 * 3072, 16))
    d_w4(range(0, W4S))
    phase(False, cnt=min(63, 4 * (W4S - 10)))
    if LS4:
        k.e("s_sleep %d" % LS4)
    d_w4(range(W4S, 40))
    k.e("s_waitcnt vmcnt(63)")
    B()
    k.e("s_waitcnt vmcnt(0)")
    not_last(lambda: d_qkv([2], range(QH)))
    B()
    d_w4(range(40, 43))
    B()
    not_last(lambda: d_qkv([1], range(QH)))
    B()
    k.e("s_cmp_lg_u32 s%d, 0" % S_LAYER)
    k.e("s_cbranch_scc1 L_lw_%s" % k.name)
    k.e("s_waitcnt vmcnt(%d)" % (4 * QH))
    B()
    k.e("s_waitcnt vmcnt(0)")
    B()
    if LS5:
        k.e("s_sleep %d" % LS5)
    d_qkv([1, 2], range(QH, 8))
    d_qkv([0])
    stamp(k, g, ld=True)
    k.e("s_add_u32 s%d, s%d, 0x%x" % (S_WSL, S_WSL, LSTRIDE))
    k.e("s_addc_u32 s%d, s%d, 0" % (S_WSH, S_WSH))
    k.e("s_mov_b32 s%d, 1" % S_LAYER)
    k.e("s_branch L_llayer_%s" % k.name)
    k.label("L_lw_%s" % k.name)
    k.e("s_waitcnt vmcnt(0)")
    B()
    B()
    if STAMP and STAMPW == 4:
        stamp(k, g, ld=True)
        k.e("s_cmp_lg_u32 s2, %d" % (STAMP - 1))
        k.e("s_cbranch_scc1 L_lf2_%s" % k.name)
        make_srd(k, 8, ("in", DBG), 256)
        k.e("buffer_store_dword v%d, v%d, s[8:11], 0 offen" % (g.vst, g.l4))
        k.label("L_lf2_%s" % k.name)
    k.e("s_and_b32 s%d, s%d, 3" % (S_T0, S_RB))
    k.e("s_or_b32 s%d, s%d, s%d" % (S_T0, S_T0, S_CB))
    k.e("s_cmp_lg_u32 s%d, 0" % S_T0)
    k.e("s_cbranch_scc1 L_end_%s" % k.name)
    make_srd(k, SRD_F, ("ws", R_FL), FLSZ)
    k.e("s_lshl_b32 s%d, s%d, 5" % (S_T0, S_RB))
    k.e("s_add_u32 s%d, s%d, 0x%x" % (S_T0, S_T0, FL_TK))
    k.e("v_mov_b32 v%d, 96" % t)
    k.e("s_mov_b64 exec, 1")
    k.e("buffer_atomic_add v%d, v%d, %s, s%d offen%s" % (t, g.l64, srd(SRD_F), S_T0, ASC))


PF = int(os.environ.get("PF", "7"))
PFD = int(os.environ.get("PFD", "6"))


def touch(k, g, dst, parts):
    k.e("s_mov_b32 s%d, s%d" % (SRD_W, PTR(parts[0][0])))
    k.e("s_mov_b32 s%d, s%d" % (SRD_W + 1, PTR(parts[0][0]) + 1))
    k.e("s_mov_b32 s%d, s%d" % (S_T2, S_CNT))
    base = 0
    for j in range(1, len(parts)):
        base += parts[j - 1][1]
        k.e("s_sub_u32 s%d, s%d, %d" % (S_T1, S_CNT, base))
        k.e("s_cmp_ge_u32 s%d, %d" % (S_CNT, base))
        k.e("s_cselect_b32 s%d, s%d, s%d" % (SRD_W, PTR(parts[j][0]), SRD_W))
        k.e("s_cselect_b32 s%d, s%d, s%d" % (SRD_W + 1, PTR(parts[j][0]) + 1, SRD_W + 1))
        k.e("s_cselect_b32 s%d, s%d, s%d" % (S_T2, S_T1, S_T2))
    k.e("s_min_u32 s%d, s%d, %d" % (S_T2, S_T2, max(n for _, n in parts) - 1))
    if base + parts[-1][1] < 1024:
        k.e("s_cmp_ge_u32 s%d, %d" % (S_CNT, base + parts[-1][1]))
        k.e("s_cselect_b32 s%d, 0, s%d" % (S_T2, S_T2))
    k.e("s_lshl_b32 s%d, s%d, 12" % (S_T2, S_T2))
    k.e("s_mov_b32 s%d, 0x200000" % (SRD_W + 2))
    k.e("s_mov_b32 s%d, 0x00020000" % (SRD_W + 3))
    k.e("buffer_load_dword v%d, v%d, %s, s%d offen" % (dst, g.l64, srd(SRD_W), S_T2))


def k_main(name):
    k = Kern(name)
    k.stubs = []
    g = G()
    k.e("s_cmp_ge_u32 s2, 256")
    k.e("s_cbranch_scc1 L_end_%s" % k.name)
    if RT:
        k.e("s_memrealtime s[88:89]")
    k.e("s_load_dwordx16 s[64:79], s[0:1], 0")
    k.e("s_load_dwordx8 s[80:87], s[0:1], 64")
    g.w = k.alloc()
    g.l = k.alloc()
    g.g = k.alloc()
    g.m = k.alloc()
    g.lin = k.alloc()
    g.one = k.alloc()
    g.l128 = k.alloc()
    g.vsw = k.alloc()
    g.vst = k.alloc()
    g.l64 = k.alloc()
    g.tmp = 40
    t = g.w
    k.e("v_lshrrev_b32 v%d, 6, v0" % g.w)
    k.e("v_and_b32 v%d, 63, v0" % g.l)
    k.e("v_readfirstlane_b32 s%d, v%d" % (S_WAVE, g.w))
    k.e("v_lshlrev_b32 v%d, 6, v%d" % (g.l64, g.l))
    k.e("s_getreg_b32 s%d, hwreg(HW_REG_XCC_ID)" % S_T0)
    k.e("s_and_b32 s%d, s%d, 7" % (S_T0, S_T0))
    k.e("v_mov_b32 v%d, 1" % g.one)
    if STAMP:
        k.e("v_mov_b32 v%d, 0" % g.vst)
        k.e("s_mov_b32 s%d, 0" % S_STI)
    k.phase = STAMPG
    k.e("s_cmp_lg_u32 s%d, 4" % S_WAVE)
    k.e("s_cbranch_scc1 L_pf_%s" % k.name)
    k.e("s_lshl_b32 s%d, s%d, 7" % (S_T1, S_T0))
    k.e("s_add_u32 s%d, s%d, 0x%x" % (S_T1, S_T1, FL_TK))
    k.e("s_mov_b32 s%d, 0x%x" % (S_T2, FL_TK))
    k.e("v_lshrrev_b32 v%d, 3, v%d" % (g.tmp, g.l))
    k.e("v_lshlrev_b32 v%d, 7, v%d" % (g.tmp, g.tmp))
    k.e("s_mov_b32 s%d, 0x%x" % (SRD_F + 2, FLSZ))
    k.e("s_mov_b32 s%d, 0x00020000" % (SRD_F + 3))
    k.e("s_mov_b64 exec, 1")
    k.e("s_waitcnt lgkmcnt(0)")
    k.e("s_add_u32 s%d, s%d, 0x%x" % (SRD_F, PTR(WS), R_FL))
    k.e("s_addc_u32 s%d, s%d, 0" % (SRD_F + 1, PTR(WS) + 1))
    k.e("buffer_atomic_add v%d, v%d, %s, s%d offen sc0%s" % (g.one, g.l64, srd(SRD_F), S_T1, ASC))
    k.e("s_mov_b64 exec, -1")
    k.e("buffer_load_dword v%d, v%d, %s, s%d offen sc1" % (g.tmp, g.tmp, srd(SRD_F), S_T2))
    stamp(k, g)
    k.e("v_mov_b32 v%d, 0x%x" % (t, LDS_TK))
    k.e("s_mov_b64 exec, 1")
    k.e("s_waitcnt vmcnt(1)")
    k.e("ds_write_b32 v%d, v%d" % (t, g.one))
    k.e("s_mov_b64 exec, -1")
    stamp(k, g)
    k.e("s_branch L_nt_%s" % k.name)
    k.label("L_pf_%s" % k.name)
    if PF & 4:
        k.e("s_getpc_b64 s[%d:%d]" % (SRD_W, SRD_W + 1))
        k.label("L_pc_%s" % k.name)
        k.e("s_sub_u32 s%d, s%d, L_pc_%s-%s" % (SRD_W, SRD_W, k.name, k.name))
        k.e("s_subb_u32 s%d, s%d, 0" % (SRD_W + 1, SRD_W + 1))
        k.e("s_mov_b32 s%d, L_end_%s-%s" % (SRD_W + 2, k.name, k.name))
        k.e("s_mov_b32 s%d, 0x00020000" % (SRD_W + 3))
        k.e("s_lshr_b32 s%d, s2, 6" % S_T2)
        k.e("s_lshl_b32 s%d, s%d, 2" % (S_T2, S_T2))
        k.e("s_add_u32 s%d, s%d, s%d" % (S_T2, S_T2, S_WAVE))
        k.e("s_lshl_b32 s%d, s%d, 12" % (S_T2, S_T2))
        k.e("buffer_load_dword v%d, v%d, %s, s%d offen" % (42, g.l64, srd(SRD_W), S_T2))
    stamp(k, g)
    k.e("s_lshl_b32 s%d, s2, 2" % S_CNT)
    k.e("s_add_u32 s%d, s%d, s%d" % (S_CNT, S_CNT, S_WAVE))
    k.e("s_waitcnt lgkmcnt(0)")
    if PFD:
        k.e("s_sleep %d" % PFD)
    if PF & 1:
        touch(k, g, 41, [(IN_X, 512), (IN_WQKV, 384), (IN_WO, 128)])
    if PF & 8:
        k.e("s_getreg_b32 s%d, hwreg(HW_REG_HW_ID)" % S_T1)
        k.e("s_bfe_u32 s%d, s%d, 0x2000d" % (S_T2, S_T1))
        k.e("s_bfe_u32 s%d, s%d, 0x30008" % (S_T1, S_T1))
        k.e("s_lshl_b32 s%d, s%d, 3" % (S_T2, S_T2))
        k.e("s_add_u32 s%d, s%d, s%d" % (S_T1, S_T1, S_T2))
        k.e("s_lshl_b32 s%d, s%d, 2" % (S_T1, S_T1))
        k.e("s_add_u32 s%d, s%d, s%d" % (S_T1, S_T1, S_WAVE))
        k.e("v_lshlrev_b32 v%d, 7, v%d" % (g.l128, g.l))
        make_srd(k, SRD_W, ("in", IN_X), XBYTES)
        k.e("s_lshl_b32 s%d, s%d, 18" % (S_T2, S_T0))
        k.e("s_lshl_b32 s%d, s%d, 11" % (S_CNT, S_T1))
        k.e("s_add_u32 s%d, s%d, s%d" % (S_T2, S_T2, S_CNT))
        k.e("s_mov_b64 exec, 0xffff")
        k.e("buffer_load_dword v%d, v%d, %s, s%d offen" % (41, g.l128, srd(SRD_W), S_T2))
        k.e("s_mov_b64 exec, -1")
        make_srd(k, SRD_W, ("in", IN_WQKV), 512 * 3072)
        k.e("s_mul_i32 s%d, s%d, 12288" % (S_T2, S_T1))
        k.e("buffer_load_dword v%d, v%d, %s, s%d offen" % (43, g.l128, srd(SRD_W), S_T2))
        k.e("s_add_u32 s%d, s%d, 8192" % (S_T2, S_T2))
        k.e("s_mov_b64 exec, 0xffffffff")
        k.e("buffer_load_dword v%d, v%d, %s, s%d offen" % (44, g.l128, srd(SRD_W), S_T2))
        if PF & 16:
            make_srd(k, SRD_W, ("in", IN_WO), 512 * 1024)
            k.e("s_lshl_b32 s%d, s%d, 12" % (S_T2, S_T1))
            k.e("buffer_load_dword v%d, v%d, %s, s%d offen" % (45, g.l128, srd(SRD_W), S_T2))
        k.e("s_mov_b64 exec, -1")
    k.label("L_nt_%s" % k.name)
    k.e("v_lshrrev_b32 v%d, 4, v%d" % (g.g, g.l))
    k.e("v_and_b32 v%d, 15, v%d" % (g.m, g.l))
    k.e("v_lshlrev_b32 v%d, 4, v%d" % (g.lin, g.l))
    k.e("v_lshlrev_b32 v%d, 7, v%d" % (g.l128, g.l))
    k.e("v_and_b32 v%d, 1, v%d" % (t, g.g))
    k.e("v_lshlrev_b32 v%d, 9, v%d" % (g.vsw, t))
    k.e("v_lshrrev_b32 v%d, 1, v%d" % (t, g.g))
    k.e("v_lshl_add_u32 v%d, v%d, 8, v%d" % (g.vsw, t, g.vsw))
    k.e("v_lshl_add_u32 v%d, v%d, 4, v%d" % (g.vsw, g.m, g.vsw))
    k.e("v_mov_b32 v%d, 0x%x" % (t, LDS_TK))
    k.e("s_waitcnt lgkmcnt(0)")
    k.e("s_barrier")
    k.e("ds_read_b32 v%d, v%d" % (t, t))
    k.e("s_waitcnt lgkmcnt(0)")
    k.e("s_barrier")
    k.e("v_readfirstlane_b32 s%d, v%d" % (S_T1, t))
    k.e("v_and_b32 v%d, 0xffffffe0, v%d" % (g.one, t))
    k.e("v_add_u32 v%d, 0x%x, v%d" % (g.one, NONCE_K, g.one))
    k.e("v_readfirstlane_b32 s%d, v%d" % (S_FP, g.one))
    k.e("s_sub_u32 s%d, s%d, 32" % (S_FP, S_FP))
    k.e("s_and_b32 s%d, s%d, 31" % (S_T1, S_T1))
    k.e("s_lshr_b32 s%d, s%d, 3" % (S_RB, S_T1))
    k.e("s_lshl_b32 s%d, s%d, 2" % (S_T2, S_T0))
    k.e("s_add_u32 s%d, s%d, s%d" % (S_RB, S_RB, S_T2))
    k.e("s_and_b32 s%d, s%d, 7" % (S_CB, S_T1))
    k.e("s_lshr_b32 s%d, s%d, 4" % (S_RBW, S_T1))
    k.e("s_lshl_b32 s%d, s%d, 1" % (S_T2, S_T0))
    k.e("s_add_u32 s%d, s%d, s%d" % (S_RBW, S_RBW, S_T2))
    k.e("s_and_b32 s%d, s%d, 15" % (S_CBW, S_T1))
    k.e("s_lshl_b32 s%d, s%d, 6" % (S_TOKN, S_RB))
    k.e("s_lshl_b32 s%d, s%d, 4" % (S_T0, S_WAVE))
    k.e("s_add_u32 s%d, s%d, s%d" % (S_TOKN, S_TOKN, S_T0))
    k.e("s_lshl_b32 s%d, s%d, 7" % (S_TOKW, S_RBW))
    k.e("s_lshl_b32 s%d, s%d, 5" % (S_T0, S_WAVE))
    k.e("s_add_u32 s%d, s%d, s%d" % (S_TOKW, S_TOKW, S_T0))
    k.e("s_lshl_b32 s%d, s%d, 3" % (S_WGS, S_RB))
    k.e("s_add_u32 s%d, s%d, s%d" % (S_WGS, S_WGS, S_CB))
    k.e("s_lshl_b32 s%d, s%d, 11" % (S_WGS, S_WGS))
    k.e("s_mul_i32 s%d, s%d, 43" % (S_CU3, S_CBW))
    k.e("s_lshr_b32 s%d, s%d, 4" % (S_CU3, S_CU3))
    k.e("s_min_u32 s%d, s%d, 40" % (S_CU3, S_CU3))
    k.e("s_mov_b32 s%d, 0x3f803f80" % S_ONES)
    k.e("s_mov_b32 s%d, 0x%08x" % (S_L2E, f32bits(LOG2E)))
    k.e("s_mov_b32 s%d, 0x%08x" % (S_EPS, f32bits(1e-6)))
    k.e("s_mov_b32 s%d, 0x%08x" % (S_GC, f32bits(-2.0 * LOG2E * math.sqrt(2.0 / math.pi) * 0.044715)))
    k.e("s_mov_b32 s%d, 0x%08x" % (S_GC + 1, f32bits(-2.0 * LOG2E * math.sqrt(2.0 / math.pi))))
    k.e("s_mov_b32 s%d, 0x4000" % S_K16)
    k.e("s_mov_b32 s%d, 0" % S_LAYER)
    k.e("s_mov_b32 s%d, %d" % (S_BUD, BUDGET))
    stamp(k, g)
    k.e("s_waitcnt lgkmcnt(0)")
    k.e("s_mov_b32 s%d, s%d" % (S_WSL, PTR(WS)))
    k.e("s_mov_b32 s%d, s%d" % (S_WSH, PTR(WS) + 1))
    k.e("s_cmp_eq_u32 s%d, 4" % S_WAVE)
    k.e("s_cbranch_scc1 L_loader_%s" % k.name)
    mk = k.mark()
    k.started = True
    k.label("L_layer_%s" % k.name)
    k.e("s_nop 4")
    if STAMP and STAMPL:
        k.e("v_mov_b32 v%d, 0" % g.vst)
        k.e("s_mov_b32 s%d, 0" % S_STI)
    k.phase = "qkv"
    p_qkv(k, g)
    k.phase = "wo"
    p_wo(k, g)
    k.phase = "w1"
    p_w1(k, g)
    k.phase = "w2"
    p_w2(k, g)
    k.phase = "w3"
    p_w3(k, g)
    k.phase = "w4"
    p_w4(k, g)
    k.phase = STAMPG
    if STAMP and STAMPW != 4:
        stamp(k, g)
        k.e("s_waitcnt vmcnt(0)")
        stamp(k, g)
        if STAMP == 1000:
            make_srd(k, 8, ("ws", 128 * MB), MB)
            k.e("s_lshl_b32 s%d, s%d, 3" % (S_T0, S_RB))
            k.e("s_add_u32 s%d, s%d, s%d" % (S_T0, S_T0, S_CB))
            k.e("s_lshl_b32 s%d, s%d, 3" % (S_T0, S_T0))
            k.e("s_add_u32 s%d, s%d, s%d" % (S_T0, S_T0, S_WAVE))
            k.e("s_lshl_b32 s%d, s%d, 8" % (S_T0, S_T0))
            k.e("v_lshlrev_b32 v%d, 2, v%d" % (g.w, g.l))
            k.e("buffer_store_dword v%d, v%d, s[8:11], s%d offen" % (g.vst, g.w, S_T0))
            k.e("s_branch L_end_%s" % k.name)
        k.e("s_cmp_lg_u32 s2, %d" % (STAMP - 1))
        k.e("s_cbranch_scc1 L_end_%s" % k.name)
        k.e("s_cmp_lg_u32 s%d, 0" % S_WAVE)
        k.e("s_cbranch_scc1 L_end_%s" % k.name)
        make_srd(k, 8, ("in", DBG), 256)
        k.e("v_subrev_u32 v%d, %d, v%d" % (g.w, int(os.environ.get("STAMPOFF", "0")), g.l))
        k.e("v_lshlrev_b32 v%d, 2, v%d" % (g.w, g.w))
        k.e("buffer_store_dword v%d, v%d, s[8:11], 0 offen" % (g.vst, g.w))
    if RT:
        k.e("s_waitcnt vmcnt(0)")
        k.e("s_memrealtime s[90:91]")
        k.e("s_cmp_lg_u32 s%d, 0" % S_WAVE)
        k.e("s_cbranch_scc1 L_end_%s" % k.name)
        make_srd(k, 8, ("in", DBG), 65536)
        k.e("s_waitcnt lgkmcnt(0)")
        k.e("v_mov_b32 v0, s88")
        k.e("v_mov_b32 v1, s90")
        k.e("v_mov_b32 v2, s%d" % S_RB)
        k.e("v_mov_b32 v3, s%d" % S_CB)
        k.e("s_lshl_b32 s%d, s2, 4" % S_T0)
        k.e("s_mov_b64 exec, 1")
        k.e("buffer_store_dwordx4 v[0:3], v%d, s[8:11], s%d offen" % (g.lin, S_T0))
    k.e("s_branch L_end_%s" % k.name)
    k.lines += k.stubs
    k.release(mk)
    k.label("L_loader_%s" % k.name)
    k.e("s_waitcnt vmcnt(0)")
    loader(k, g)
    k.label("L_end_%s" % k.name)
    k.e("s_endpgm")
    return k, 256, 320, 163840


HEADER = """; Kernarg layout for this problem (96 bytes, ptrs only, base s[0:1]):
;   offset  88: d_ws      268435456 bytes workspace
"""


def build():
    kernels = [k_main("main_kernel")]
    out = [HEADER.rstrip("\n")]
    for (k, nwg, blk, lds) in kernels:
        out.append("; @launch kernel=%s grid=(%d,1,1) block=(%d,1,1) lds=%d" % (k.name, nwg, blk, lds))
    out.append('.amdgcn_target "amdgcn-amd-amdhsa--gfx950"')
    out.append(".text")
    for (k, nwg, blk, lds) in kernels:
        out.append(".globl %s" % k.name)
        out.append(".p2align 8")
        out.append(".type %s,@function" % k.name)
        out.append("%s:" % k.name)
        out += hazard_pass(k.lines)
    out.append('.section .rodata,"a"')
    for (k, nwg, blk, lds) in kernels:
        nv = (k.maxv + 7) // 8 * 8
        out.append(".p2align 6")
        out.append(".amdhsa_kernel %s" % k.name)
        out.append("  .amdhsa_next_free_vgpr %d" % nv)
        out.append("  .amdhsa_next_free_sgpr 102")
        out.append("  .amdhsa_accum_offset %d" % nv)
        out.append("  .amdhsa_group_segment_fixed_size 0")
        out.append("  .amdhsa_kernarg_size 96")
        out.append("  .amdhsa_user_sgpr_count 2")
        out.append("  .amdhsa_user_sgpr_kernarg_segment_ptr 1")
        out.append("  .amdhsa_system_sgpr_workgroup_id_x 1")
        out.append(".end_amdhsa_kernel")
    return "\n".join(out) + "\n"


if __name__ == "__main__":
    path = sys.argv[1] if len(sys.argv) > 1 else "cdna_kernels/%s.s" % NAME
    open(path, "w").write(build())
    print("wrote", path)
```

```python
import sys
import os
import math
import struct

sys.path.insert(0, os.path.dirname(os.path.abspath(__file__)))
from asmlib import Kern, vr, interleave, hazard_pass

NAME = "interleave_layers__linear_kernel_hedgehog__mixer_s_mlp__prompt"
S, D, F = 2048, 512, 1376

IN_X, IN_WQKV, IN_WPHI, IN_WO, IN_BX, IN_W1, IN_W2, IN_W3, IN_W4, OUT, DBG, WS = range(12)


def PTR(i):
    return 64 + 2 * i


MB = 1 << 20
LSTRIDE = 32 * MB
R_XIN = 0 * MB
R_XA = 2 * MB
R_O = 4 * MB
R_KVP = 6 * MB
R_H = 8 * MB
R_X1 = 10 * MB
R_H3 = 12 * MB
R_ST = 18 * MB
ST_XIN, ST_XA, ST_X1 = [R_ST + i * 0x20000 for i in range(3)]
R_KVA = 19 * MB
R_FL = 20 * MB
FL_HX = 0xC000
FL_KV = 0x10000
FL_TK = 0xE000
FL_GT = 0xE400
FLSZ = 0x20000
NONCE_K = 0x5bd1e900
LDS_CS = 0x1F000
WS_CS = 64 * MB
CS_QKV, CS_W1, CS_W3 = WS_CS, WS_CS + 0x2000, WS_CS + 0x4000
E_X, E_O, E_XA, E_H, E_X1, E_H3 = range(6)
R512 = int(os.environ.get("R512", "6"))
BIG = 0x10000

XBYTES = S * D * 2
STBYTES = 8 * S * 8
LOG2E = 1.4426950408889634
UN = [i * 32768 for i in range(5)]
LDS_SCR = UN[2]
LDS_TK = 0x27F00
LDS_CSX = UN[3]
U_QKV, U_WO, U_W1, U_W2, U_W3 = [UN[1], UN[0], UN[2]], [UN[3], UN[4]], [UN[0], UN[1]], [UN[2], UN[3]], [UN[4], UN[0], UN[1]]
B_W4 = [UN[2], UN[3], UN[0], UN[4], UN[1], UN[3]]
CSX_W, CSX_1 = UN[3] + 30720, UN[4] + 30720


def woff512(ub):
    return lambda u, s: ub[u] + 2048 * s


def woffk(ub):
    return lambda u, s: ub[s // 8] + u * 16384 + (s % 8) * 2048


def woff3(u, s):
    return U_W3[s // 8] + u * 16384 + (s % 8) * 2048 if u < 2 else U_W3[2] + s * 2048


def woff4(u, s):
    return B_W4[s // 8] + u * 16384 + (s % 8) * 2048

LDS_KV = 0x10000
LDS_Z = 0x18000
POLL_MAX = 40000
PRE_SLEEP = int(os.environ.get("PRE_SLEEP", "0"))
POLL_SLEEP = int(os.environ.get("POLL_SLEEP", "2"))


def f32bits(x):
    return struct.unpack("<I", struct.pack("<f", x))[0]


S_WAVE, S_RB, S_CB, S_RBW, S_CBW, S_T0, S_T1, S_T2 = 32, 33, 34, 35, 36, 37, 38, 39
S_ONES, S_L2E, S_EPS, S_C1, S_C2, S_XO = 40, 41, 42, 43, 44, 45
S_TOKB, S_OB = 46, 47
SRD_X, SRD_W, SRD_O, SRD_R, SRD_R2, SRD_F = 8, 12, 16, 20, 24, 28
SRD_S, SRD_SO = 48, 52
SRD_C = 56
S_WSL, S_WSH, S_LAYER, S_CNT = 60, 61, 62, 63
S_STI, S_TOKN, S_TOKW, S_CU3, S_WBASE, S_K16 = 90, 92, 93, 94, 95, 96
S_GC = 98
S_FP, S_XST, S_WGS = 91, 97, 7

STAMP = int(os.environ.get("STAMP", "0"))
RT = int(os.environ.get("RT", "0"))
DSC = os.environ.get("DSC", "")
LSC = os.environ.get("LSC", " sc1")
PSC = os.environ.get("PSC", "")
S_BUD, S_P0 = 3, 4
BUDGET = 20000
PSL = int(os.environ.get("PSL", "0"))
ASC = os.environ.get("ASC", "")


def make_srd(k, slot, buf, size):
    kind = buf[0]
    if kind == "ws":
        k.e("s_add_u32 s%d, s%d, 0x%x" % (slot, PTR(WS), buf[1]))
        k.e("s_addc_u32 s%d, s%d, 0" % (slot + 1, PTR(WS) + 1))
    elif kind == "l":
        k.e("s_add_u32 s%d, s%d, 0x%x" % (slot, S_WSL, buf[1]))
        k.e("s_addc_u32 s%d, s%d, 0" % (slot + 1, S_WSH))
    elif kind == "n":
        k.e("s_add_u32 s%d, s%d, 0x%x" % (slot, S_WSL, buf[1] + LSTRIDE))
        k.e("s_addc_u32 s%d, s%d, 0" % (slot + 1, S_WSH))
    else:
        idx = buf[1]
        k.e("s_mov_b32 s%d, s%d" % (slot, PTR(idx)))
        k.e("s_mov_b32 s%d, s%d" % (slot + 1, PTR(idx) + 1))
    k.e("s_mov_b32 s%d, 0x%x" % (slot + 2, size))
    k.e("s_mov_b32 s%d, 0x00020000" % (slot + 3))


def srd(slot):
    return "s[%d:%d]" % (slot, slot + 3)


class G:
    pass


STAMPG = os.environ.get("STAMPG", "")


STAMPW = int(os.environ.get("STAMPW", "0"))
STAMPL = int(os.environ.get("STAMPL", "0"))


def stamp(k, g, fine=False, ld=False):
    if not STAMP:
        return
    if ld != (STAMPW == 4) and getattr(k, "started", False):
        return
    if STAMPG and getattr(k, "phase", "") != STAMPG:
        return
    if fine is True and not STAMPG:
        return
    if fine == 2 and not (STAMPG or STAMP == 1000):
        return
    k.e("s_memrealtime s[88:89]" if STAMP == 1000 else "s_memtime s[88:89]")
    k.e("s_waitcnt lgkmcnt(0)")
    k.e("s_mov_b32 m0, s%d" % S_STI)
    k.e("s_nop 0")
    k.e("v_writelane_b32 v%d, s88, m0" % g.vst)
    k.e("s_add_u32 s%d, s%d, 1" % (S_STI, S_STI))
    k.e("s_min_u32 s%d, s%d, 63" % (S_STI, S_STI))


def allreduce(x, t, op):
    return [
        "v_mov_b32 v%d, v%d" % (t, x),
        "v_permlane32_swap_b32 v%d, v%d" % (x, t),
        "%s v%d, v%d, v%d" % (op, x, x, t),
        "v_mov_b32 v%d, v%d" % (t, x),
        "v_permlane16_swap_b32 v%d, v%d" % (x, t),
        "%s v%d, v%d, v%d" % (op, x, x, t),
    ]


def stats_finish(st, double=False, part=True):
    o = []
    s_, q_, t0, t1 = st, st + 1, st + 2, st + 3
    if part:
        o.append("v_add_f32 v%d, v%d, v%d" % (s_, st, st + 2))
        o.append("v_add_f32 v%d, v%d, v%d" % (q_, st + 1, st + 3))
    o += interleave(allreduce(s_, t0, "v_add_f32"), allreduce(q_, t1, "v_add_f32"))
    o.append("v_mul_f32 v%d, 0x%08x, v%d" % (s_, f32bits(1.0 / 512), s_))
    o.append("v_mul_f32 v%d, 0x%08x, v%d" % (q_, f32bits(1.0 / 512), q_))
    o.append("v_fma_f32 v%d, -v%d, v%d, v%d" % (q_, s_, s_, q_))
    o.append("v_max_f32 v%d, 0, v%d" % (q_, q_))
    o.append("v_add_f32 v%d, 0x%08x, v%d" % (t0, f32bits(1e-5), q_))
    o.append("v_rsq_f32 v%d, v%d" % (t0, t0))
    if double:
        o.append("v_mul_f32 v%d, v%d, v%d" % (t1, t0, t0))
        o.append("v_mul_f32 v%d, v%d, v%d" % (t1, t1, q_))
        o.append("v_add_f32 v%d, 0x%08x, v%d" % (t1, f32bits(1e-5), t1))
        o.append("v_rsq_f32 v%d, v%d" % (t1, t1))
        o.append("s_nop 0")
        o.append("v_mul_f32 v%d, v%d, v%d" % (t0, t0, t1))
    o.append("v_mul_f32 v%d, v%d, v%d" % (st + 1, s_, t0))
    o.append("v_sub_f32 v%d, 0, v%d" % (st + 1, st + 1))
    o.append("v_mov_b32 v%d, v%d" % (st, t0))
    return o


def stats_fold(st, mode):
    o = []
    s_, q_, t0, t1 = st, st + 1, st + 2, st + 3
    o.append("v_add_f32 v%d, v%d, v%d" % (s_, st, st + 2))
    o.append("v_add_f32 v%d, v%d, v%d" % (q_, st + 1, st + 3))
    o += interleave(allreduce(s_, t0, "v_add_f32"), allreduce(q_, t1, "v_add_f32"))
    o.append("v_mul_f32 v%d, 0x%08x, v%d" % (t1, f32bits(-1.0 / 512), s_))
    o.append("v_mul_f32 v%d, 0x%08x, v%d" % (q_, f32bits(1.0 / 512), q_))
    o.append("v_fma_f32 v%d, -v%d, v%d, v%d" % (q_, t1, t1, q_))
    o.append("v_max_f32 v%d, 0, v%d" % (q_, q_))
    o.append("v_add_f32 v%d, 0x%08x, v%d" % (t0, f32bits(1e-5), q_))
    o.append("v_rsq_f32 v%d, v%d" % (s_, t0))
    if mode == "r":
        return o
    if mode == "g":
        o.append("v_mul_f32 v%d, v%d, v%d" % (t0, t0, s_))
    else:
        o.append("v_mul_f32 v%d, v%d, v%d" % (t0, s_, s_))
        o.append("v_mul_f32 v%d, v%d, v%d" % (t0, t0, q_))
        o.append("v_add_f32 v%d, 0x%08x, v%d" % (t0, f32bits(1e-5), t0))
        o.append("v_rsq_f32 v%d, v%d" % (t0, t0))
        o.append("v_mul_f32 v%d, v%d, v%d" % (s_, s_, t0))
        o.append("v_rcp_f32 v%d, v%d" % (t0, s_))
    o.append("v_mul_f32 v%d, s%d, v%d" % (q_, S_GC + 1, s_))
    o.append("v_mul_f32 v%d, v%d, v%d" % (s_, s_, s_))
    o.append("v_mul_f32 v%d, v%d, v%d" % (s_, s_, q_))
    o.append("v_mul_f32 v%d, 0x%08x, v%d" % (s_, f32bits(0.044715), s_))
    return o


def mean_fix(a, cs, st):
    return ["v_pk_fma_f32 %s, %s, %s, %s op_sel:[0,1,0] op_sel_hi:[1,1,1]" % (vr(a + i, 2), vr(cs + i, 2), vr(st + 2, 2), vr(a + i, 2)) for i in (0, 2)]


def scale4(a, st):
    return ["v_pk_mul_f32 %s, %s, %s op_sel_hi:[1,0]" % (vr(a + i, 2), vr(a + i, 2), vr(st, 2)) for i in (0, 2)]


def gelu4f(a, t, dst, st):
    o = []
    P = lambda r: vr(r, 2)
    for i in (0, 2):
        o.append("v_pk_mul_f32 %s, %s, %s" % (P(t + i), P(a + i), P(a + i)))
    for i in (0, 2):
        o.append("v_pk_fma_f32 %s, %s, %s, %s op_sel:[0,0,1] op_sel_hi:[1,0,1]" % (P(t + i), P(t + i), P(st), P(st)))
    for i in (0, 2):
        o.append("v_pk_mul_f32 %s, %s, %s" % (P(t + i), P(t + i), P(a + i)))
    for i in range(4):
        o.append("v_exp_f32 v%d, v%d" % (t + i, t + i))
    for i in (0, 2):
        o.append("v_pk_fma_f32 %s, %s, %s, %s op_sel_hi:[1,0,0]" % (P(t + i), P(t + i), P(st + 2), P(st + 2)))
    for i in range(4):
        o.append("v_rcp_f32 v%d, v%d" % (t + i, t + i))
    for i in (0, 2):
        o.append("v_pk_mul_f32 %s, %s, %s" % (P(t + i), P(t + i), P(a + i)))
    o.append("v_cvt_pk_bf16_f32 v%d, v%d, v%d" % (dst, t, t + 1))
    o.append("v_cvt_pk_bf16_f32 v%d, v%d, v%d" % (dst + 1, t + 2, t + 3))
    return o


def spread(lst, s0, n):
    return {s0 + i: lst[len(lst) * i // n:len(lst) * (i + 1) // n] for i in range(n)}


def fix_step(acc, cs, st, us, MT, s0):
    idx = [(u, t, mt) for u in us for t in (0, 1) for mt in range(MT)]
    nm = len(idx)
    o = []
    for j in range(nm):
        u, t, mt = idx[j]
        o += mean_fix(acc[u][t][mt], cs[u][t], st[mt])
    h = len(o) // 2
    return {s0: [None] * h + o[:h], s0 + 1: o[h:] + [None] * h}


def gelu4(a, t, dst):
    o = []
    P = lambda r: vr(r, 2)
    gc = "s[%d:%d]" % (S_GC, S_GC + 1)
    for i in (0, 2):
        o.append("v_pk_mul_f32 %s, %s, %s" % (P(t + i), P(a + i), P(a + i)))
    for i in (0, 2):
        o.append("v_pk_fma_f32 %s, %s, %s, %s op_sel:[0,0,1] op_sel_hi:[1,0,1]" % (P(t + i), P(t + i), gc, gc))
    for i in (0, 2):
        o.append("v_pk_mul_f32 %s, %s, %s" % (P(t + i), P(t + i), P(a + i)))
    for i in range(4):
        o.append("v_exp_f32 v%d, v%d" % (t + i, t + i))
    for i in (0, 2):
        o.append("v_pk_add_f32 %s, %s, 1.0 op_sel_hi:[1,0]" % (P(t + i), P(t + i)))
    for i in range(4):
        o.append("v_rcp_f32 v%d, v%d" % (t + i, t + i))
    for i in (0, 2):
        o.append("v_pk_mul_f32 %s, %s, %s" % (P(t + i), P(t + i), P(a + i)))
    o.append("v_cvt_pk_bf16_f32 v%d, v%d, v%d" % (dst, t, t + 1))
    o.append("v_cvt_pk_bf16_f32 v%d, v%d, v%d" % (dst + 1, t + 2, t + 3))
    return o


def ln_apply(a, cs, st, t):
    o = []
    P = lambda r: vr(r, 2)
    assert a % 2 == 0 and cs % 2 == 0 and st % 2 == 0 and t % 2 == 0
    for i in (0, 2):
        o.append("v_pk_mul_f32 %s, %s, %s op_sel:[0,1] op_sel_hi:[1,1]" % (P(t + i), P(cs + i), P(st)))
    for i in (0, 2):
        o.append("v_pk_fma_f32 %s, %s, %s, %s op_sel_hi:[1,0,1]" % (P(a + i), P(a + i), P(st), P(t + i)))
    return o


class W:
    pass


def w_tb(k, g, k2map, NU, woff, KS):
    w = W()
    w.NU = NU
    w.woff = woff
    w.k2map = k2map
    w.tb = {}
    w.his = sorted({woff(u, s) >> 16 for u in range(NU) for s in range(KS)})
    b0 = k.alloc()
    b1 = k.alloc()
    t = k.alloc()
    t2 = k.alloc()
    k.e("v_and_b32 v%d, 3, v%d" % (t2, g.l))
    k.e("v_lshrrev_b32 v%d, 2, v%d" % (t, g.l))
    k.e("v_and_b32 v%d, 3, v%d" % (t, t))
    k.e("v_lshlrev_b32 v%d, 6, v%d" % (t, t))
    k.e("v_lshl_add_u32 v%d, v%d, 3, v%d" % (t, t2, t))
    k.e("v_lshl_add_u32 v%d, v%d, %d, v%d" % (t, g.g, 8 if k2map else 9, t))
    h0 = w.his[0]
    if h0:
        k.e("v_add_u32 v%d, 0x%x, v%d" % (t, 65536 * h0, t))
    k.e("v_and_b32 v%d, 1, v%d" % (t2, g.g))
    k.e("v_lshl_add_u32 v%d, v%d, 5, v%d" % (b0, t2, t))
    k.e("v_xor_b32 v%d, 1, v%d" % (t2, t2))
    k.e("v_lshl_add_u32 v%d, v%d, 5, v%d" % (b1, t2, t))
    w.tb[(0, h0)] = b0
    w.tb[(1, h0)] = b1
    pool = [t, t2]
    for h in w.his[1:]:
        for tt in (0, 1):
            r = pool.pop() if pool else k.alloc()
            k.e("v_add_u32 v%d, 0x%x, v%d" % (r, 65536 * (h - h0), w.tb[(tt, h0)]))
            w.tb[(tt, h)] = r
    return w


def ds(k, text, tag="-"):
    k.e(text)
    k.lg.append(tag)


def lgn(k, tags):
    if isinstance(tags, str):
        tags = [tags]
    last = max(i for i, t in enumerate(k.lg) if t in tags)
    return min(15, len(k.lg) - 1 - last)


def put(k, e_):
    if e_ is None:
        return
    if isinstance(e_, str):
        k.e(e_)
    elif e_[0] == "ds":
        ds(k, e_[1], e_[2])
    elif e_[0] == "w":
        k.e("s_waitcnt lgkmcnt(%d)" % lgn(k, e_[1]))
    elif e_[0] == "vm":
        k.vmem(e_[1], e_[2])
    else:
        e_[1]()


def tr_reads(k, w, dst, u, t, s, tag="-"):
    for hs in (0, 1):
        off = w.woff(u, s) + (1024 if w.k2map else 256) * hs
        h, o = off >> 16, off & 0xffff
        ds(k, "ds_read_b64_tr_b16 %s, v%d offset:%d" % (vr(dst + 2 * hs, 2), w.tb[(t, h)], o), tag)


def gemm_pre(k, w, KS, R, us=None, u2=None):
    frags = [(u, t) for u in (us or range(w.NU)) for t in (0, 1)]
    w.frags = frags
    w.R = R
    w.u2 = u2
    k.lg = []
    w.wb = [[k.alloc(4, 4) for _ in frags] for _ in range(R)]
    if u2 is not None:
        w.ring2 = w.wb[(KS - 3) % R] + w.wb[(KS - 2) % R]
        w.free = w.wb[(KS - 1) % R]
    for s in range(min(R, KS)):
        for i, (u, t) in enumerate(frags):
            tr_reads(k, w, w.wb[s][i], u, t, s, "w%d" % s)


def pass2(k, w, KS, MT, xfrag, acc, stream, pos):
    R2 = 4
    units = []
    for s in range(KS):
        for t in (0, 1):
            for mt in range(MT):
                o = []
                if t == 0 and mt == 0:
                    o.append(("w", "v%d" % s))
                a = acc[t][mt]
                wr = w.ring2[(s % R2) * 2 + t]
                o.append("v_mfma_f32_16x16x32_bf16 %s, %s, %s, %s" % (vr(a, 4), vr(wr, 4), vr(xfrag(s, mt), 4), vr(a, 4)))
                if mt == MT - 1 and s + R2 < KS:
                    o.append(("f", lambda wr=wr, t=t, s=s: tr_reads(k, w, wr, w.u2, t, s + R2, "v%d" % (s + R2))))
                units.append(o)
    j = 0
    for i in range(len(stream) + 1):
        while j < len(units) and (pos(j) <= i or i == len(stream)):
            for e_ in units[j]:
                put(k, e_)
            j += 1
        if i < len(stream):
            put(k, stream[i])


def cs_init(acc, st):
    o = []
    for t in (0, 1):
        for mt in (1, 0):
            o += ["v_pk_mul_f32 %s, %s, %s op_sel:[0,1] op_sel_hi:[1,1]" % (vr(acc[t][mt] + i, 2), vr(acc[t][0] + i, 2), vr(st[mt] + 2, 2)) for i in (0, 2)]
    return o


EXP = int(os.environ.get("EXP", "0"))
LV = int(os.environ.get("LV", "1"))
LS1 = int(os.environ.get("LS1", "4"))
LS2 = int(os.environ.get("LS2", "16"))
LS3 = int(os.environ.get("LS3", "4"))
LS4 = int(os.environ.get("LS4", "0"))
LS5 = int(os.environ.get("LS5", "0"))
XS = int(os.environ.get("XS", "4"))
NP = os.environ.get("NP", "wo,w2,w4").split(",")
XR = int(os.environ.get("XR", "3"))
RSL = int(os.environ.get("RSL", "0"))
SD = int(os.environ.get("SD", "4"))
PSW = int(os.environ.get("PSW", "3"))
PS1 = int(os.environ.get("PS1", "4"))
W4S = int(os.environ.get("W4S", "28"))
XDW = int(os.environ.get("XDW", "6"))
XDN = int(os.environ.get("XDN", "12"))
XD4 = int(os.environ.get("XD4", "12"))
WB = int(os.environ.get("WB", "0"))
OSC = os.environ.get("OSC", "")
CKA = int(os.environ.get("CKA", "1"))
BD512 = int(os.environ.get("BD512", "4"))


_ckid = [0]


def budget(k, lab):
    k.e("s_cmp_eq_u32 s%d, 0" % S_BUD)
    k.e("s_cbranch_scc1 %s" % lab)
    k.e("s_sub_u32 s%d, s%d, 1" % (S_BUD, S_BUD))


def check_a(k, regs, mask=False):
    k.e("v_cmp_eq_u32 vcc, -1, v%d" % regs[0])
    if len(regs) == 2:
        k.e("v_cmp_eq_u32 s[%d:%d], -1, v%d" % (S_P0, S_P0 + 1, regs[1]))


def check_b(k, regs, reload, mask=False):
    i = _ckid[0]
    _ckid[0] += 1
    ok, rt = ["L_%s%d_%s" % (n, i, k.name) for n in ("ok", "rt")]

    def comb():
        if len(regs) == 2:
            k.e("s_or_b64 vcc, vcc, s[%d:%d]" % (S_P0, S_P0 + 1))
        if mask:
            k.e("s_and_b64 vcc, vcc, s[100:101]")
        k.e("s_cbranch_vccnz %s" % rt)
    comb()
    k.label(ok)
    main = k.lines
    k.lines = k.stubs
    k.label(rt)
    budget(k, ok)
    reload()
    k.e("s_waitcnt vmcnt(0)")
    check_a(k, regs, mask)
    comb()
    k.e("s_branch %s" % ok)
    k.lines = main


def check_r(k, regs, rl, c, last, MT, mask=False):
    i = _ckid[0]
    _ckid[0] += 1
    ok, rt = ["L_%s%d_%s" % (n, i, k.name) for n in ("ok", "rt")]

    def comb():
        if len(regs) == 2:
            k.e("s_or_b64 vcc, vcc, s[%d:%d]" % (S_P0, S_P0 + 1))
        if mask:
            k.e("s_and_b64 vcc, vcc, s[100:101]")
        k.e("s_cbranch_vccnz %s" % rt)
    comb()
    k.label(ok)
    main = k.lines
    k.lines = k.stubs
    k.label(rt)
    budget(k, rt + "x")
    if RSL:
        k.e("s_sleep %d" % RSL)
    hd = min(last + 1, c + XR)
    for s_ in range(c, hd):
        rl(s_)
    k.e("s_waitcnt vmcnt(%d)" % (MT * (hd - c - 1)))
    check_a(k, regs, mask)
    comb()
    k.label(rt + "x")
    for s_ in range(hd, last + 1):
        rl(s_)
    k.e("s_branch %s" % ok)
    k.lines = main


def stat_r(k, poll, rl, c, last, MT, n_after, mask=False):
    ok, rt = poll.lab("go"), poll.lab("pl")
    k.e("s_waitcnt vmcnt(%d)" % n_after)

    def tst():
        poll.test(True)
        if mask:
            k.e("s_and_b64 vcc, vcc, s[100:101]")
        k.e("s_cbranch_vccnz %s" % rt)
    tst()
    k.label(ok)
    main = k.lines
    k.lines = k.stubs
    k.label(rt)
    budget(k, rt + "x")
    if RSL:
        k.e("s_sleep %d" % RSL)
    poll.issue(lambda a_, b_: k.e(a_), True)
    hd = min(last + 1, c + XR)
    for s_ in range(c, hd):
        rl(s_)
    k.e("s_waitcnt vmcnt(%d)" % (MT * (hd - c)))
    tst()
    k.label(rt + "x")
    for s_ in range(hd, last + 1):
        rl(s_)
    k.e("s_branch %s" % ok)
    k.lines = main


def xreload(k, g, dst, K, mt, s):
    off = mt * K * 32 + s * 1024
    hi, lo = off // 4096 * 4096, off % 4096
    k.e("s_add_u32 s%d, s%d, 0x%x" % (S_P0, S_XO, hi))
    k.e("buffer_load_dwordx4 %s, v%d, %s, s%d offen offset:%d sc1" % (vr(dst, 4), g.lin, srd(SRD_X), S_P0, lo))


class Poll:
    def __init__(self, k, skip0=False):
        self.k = k
        self.i = _ckid[0]
        _ckid[0] += 1
        self.skip0 = skip0
        self.masked = False

    def lab(self, n):
        return "L_%s%d_%s" % (n, self.i, self.k.name)

    def l0(self, n):
        if self.skip0:
            self.k.e("s_cmp_eq_u32 s%d, 0" % S_LAYER)
            self.k.e("s_cbranch_scc1 %s" % self.lab(n))

    def first(self):
        self.l0("go")
        self.issue(self.k.vmem)

    def second(self, xlines):
        k = self.k
        k.wait_vm("stat")
        self.test()
        k.e("s_cbranch_vccnz %s" % self.lab("pl"))
        k.label(self.lab("go"))
        main = k.lines
        k.lines = k.stubs
        k.label(self.lab("pl"))
        budget(k, self.lab("px"))
        if PSL:
            k.e("s_sleep %d" % PSL)
        self.issue(lambda a_, b_: k.e(a_), True)
        if XS:
            head = [l for p_ in xlines[:XS] for l in p_]
            if self.masked:
                k.e("s_mov_b64 s[%d:%d], vcc" % (S_P0, S_P0 + 1))
                k.e("s_mov_b64 exec, -1")
            k.lines += head
            k.e("s_waitcnt vmcnt(%d)" % sum("buffer_load" in str(l) for l in head))
            self.test(True)
            if self.masked:
                k.e("s_and_b64 vcc, vcc, s[%d:%d]" % (S_P0, S_P0 + 1))
            k.e("s_cbranch_vccnz %s" % self.lab("pl"))
            k.lines += [l for p_ in xlines[XS:] for l in p_]
            k.e("s_branch %s" % self.lab("go"))
        else:
            k.e("s_waitcnt vmcnt(0)")
            self.test(True)
            k.e("s_cbranch_vccnz %s" % self.lab("pl"))
        k.label(self.lab("px"))
        k.e("s_mov_b64 exec, -1")
        k.lines += [l for p_ in xlines for l in p_]
        k.e("s_branch %s" % self.lab("go"))
        k.lines = main


def poll_stats(k, g, st, issue, t, skip0=False):
    p = Poll(k, skip0)
    p.issue = lambda f, again=False: issue(None if f == k.vmem else st)

    def test(again=False):
        k.e("v_max_u32 v%d, v%d, v%d" % (t, st[0] + 1, st[0] + 3))
        if len(st) == 2:
            k.e("v_max3_u32 v%d, v%d, v%d, v%d" % (t, t, st[1] + 1, st[1] + 3))
        k.e("v_cmp_eq_u32 vcc, -1, v%d" % t)
    p.test = test
    return p


def poll_blocks(k, g, va, soff, t, nl=16):
    p = Poll(k)
    p.masked = True

    def issue(f, again=False):
        k.e("s_mov_b64 exec, %s" % ("vcc" if again else "0x%x" % ((1 << nl) - 1)))
        f("buffer_load_dword v%d, v%d, %s, %s offen offset:1020 sc1" % (t, va, srd(SRD_X), soff), "stat")
        if not again:
            k.e("s_mov_b64 exec, -1")

    def test(again=False):
        k.e("v_cmp_eq_u32 vcc, -1, v%d" % t)
        if not again:
            k.e("s_and_b64 vcc, vcc, 0x%x" % ((1 << nl) - 1))
    p.issue = issue
    p.test = test
    return p


def gemm_loop(k, g, w, KS, MT, xfrag, acc, xl, mid=None, pre=None, extra=None, init=False, pro=None, top=None, rl=None, mask=False, poll=None, ps=None):
    frags = w.frags
    n = len(frags)
    R = w.R
    wb = w.wb
    first = set()
    D = XDW if MT == 2 else XD4 if KS > 16 else XDN
    k.vm = []
    relax = k.phase in NP
    last = min(D, KS) - 1
    if relax:
        poll.l0("pa")
        for s in range(min(D, KS)):
            xl(s)
        if poll.skip0:
            k.label(poll.lab("pa"))
    else:
        poll.first()
        xlines = []
        for s in range(min(D, KS)):
            n0 = len(k.lines)
            xl(s)
            xlines.append(k.lines[n0:])
        poll.second(xlines)

    def ckb(c):
        if relax:
            check_r(k, ckr(c), rl, c, last, MT, mask)
        else:
            check_b(k, ckr(c), lambda: rl(c), mask)
    stamp(k, g, 2)
    for s in range(min(D, KS)):
        if pro and s in pro:
            pro[s]()
    for s in range(KS):
        ckr = lambda s_: [xfrag(s_, mt) + 3 for mt in range(MT)]
        if s == 0:
            k.wait_vm(["x0"])
            check_a(k, ckr(0), mask)
            ckb(0)
        if relax and ps is not None and s == ps:
            stat_r(k, poll, rl, s + 1, last, MT, len(k.vm) - st_idx, mask)
        k.e("s_waitcnt lgkmcnt(%d)" % lgn(k, ["w%d" % s] + ((top or {}).get(s, []))))
        if s % 4 == 0 and not (EXP & 16 and s):
            stamp(k, g, True)
        if pre and (s + R) in pre:
            pre[s + R]()
        ex = list(extra.get(s, [])) if extra and not (EXP & 4 and k.phase == STAMPG) else []
        xp = EXP if k.phase == STAMPG else 0
        nm = n * MT
        done = 0
        for i, (u, t) in enumerate(frags):
            for mt in range(MT):
                a = acc[u][t][mt]
                cin = vr(a, 4) if init or (u, t, mt) in first else "0"
                first.add((u, t, mt))
                k.e("v_mfma_f32_16x16x32_bf16 %s, %s, %s, %s" % (vr(a, 4), vr(wb[s % R][i], 4), vr(xfrag(s, mt), 4), cin))
                j = i * MT + mt + 1
                if None in ex and mt < MT - 1:
                    continue
                upto = (len(ex) * j + nm - 1) // nm
                for e_ in ex[done:upto]:
                    put(k, e_)
                done = max(done, upto)
            if i == 0 and s + D < KS and not xp & 2:
                xl(s + D)
                last = s + D
            if i == 0 and relax and ps is not None and s == max(0, ps - SD // MT):
                if mask:
                    k.e("s_mov_b64 exec, s[100:101]")
                    k.e("s_cbranch_execz %s" % poll.lab("sk"))
                poll.issue(lambda a_, b_: k.e(a_), True)
                if mask:
                    k.label(poll.lab("sk"))
                    k.e("s_mov_b64 exec, -1")
                st_idx = len(k.vm)
            if i == CKA and s + 1 < KS and not (xp & 2 and s + 1 >= D):
                k.wait_vm(["x%d" % (s + 1)])
            if i == CKA and s + 1 < KS and not xp & 1:
                check_a(k, ckr(s + 1), mask)
            if i == CKA + 1 and s + 1 < KS and not xp & 1:
                ckb(s + 1)
            if s + R < KS:
                tr_reads(k, w, wb[s % R][i], u, t, s + R, "w%d" % (s + R))
            elif w.u2 is not None and s < KS - 1:
                s2 = 2 * (s + R - KS) + i // 2
                tr_reads(k, w, wb[s % R][i], w.u2, i % 2, s2, "v%d" % s2)
        if mid and s in mid:
            mid[s]()
    return [r for l in wb for r in l]


def t16_base(k, sreg, K):
    k.e("s_mul_i32 s%d, s%d, %d" % (sreg, S_TOKB, K * 2))


def xload(k, g, dst, K, mt, s, tag):
    off = mt * K * 32 + s * 1024
    hi, lo = off // 4096 * 4096, off % 4096
    sr = (S_T1, S_T2)[mt]
    if getattr(k, "_xhi", None) is None:
        k._xhi = {}
    if k._xhi.get(mt) != hi:
        k.e("s_add_u32 s%d, s%d, 0x%x" % (sr, S_XO, hi))
        k._xhi[mt] = hi
    k.vmem("buffer_load_dwordx4 %s, v%d, %s, s%d offen offset:%d%s" % (vr(dst, 4), g.lin, srd(SRD_X), sr, lo, LSC), tag)


def stats_load(k, g, MT):
    v = k.alloc()
    k.e("v_add_u32 v%d, s%d, v%d" % (v, S_TOKB, g.m))
    k.e("v_lshlrev_b32 v%d, 3, v%d" % (v, v))
    k.e("v_lshl_add_u32 v%d, v%d, 15, v%d" % (v, g.g, v))
    st = [k.alloc(4, 4) for _ in range(MT)]

    def issue(dst=None):
        f = k.vmem if dst is None else (lambda a, b: k.e(a))
        dst = st if dst is None else dst
        for mt in range(MT):
            f("buffer_load_dwordx2 %s, v%d, %s, 0 offen offset:%d sc1" % (vr(dst[mt], 2), v, srd(SRD_S), 128 * mt), "stat")
            f("buffer_load_dwordx2 %s, v%d, %s, s%d offen offset:%d sc1" % (vr(dst[mt] + 2, 2), v, srd(SRD_S), S_K16, 128 * mt), "stat")
    return st, issue


def swap_pair(p):
    return ["v_permlane16_swap_b32 v%d, v%d" % (p, p + 2), "v_permlane16_swap_b32 v%d, v%d" % (p + 1, p + 3)]


def unpack2(dst, src):
    return [
        "v_lshlrev_b32 v%d, 16, v%d" % (dst, src),
        "v_and_b32 v%d, 0xffff0000, v%d" % (dst + 1, src),
        "v_lshlrev_b32 v%d, 16, v%d" % (dst + 2, src + 1),
        "v_and_b32 v%d, 0xffff0000, v%d" % (dst + 3, src + 1),
    ]


def pack2(dst, src):
    return [
        "v_cvt_pk_bf16_f32 v%d, v%d, v%d" % (dst, src, src + 1),
        "v_cvt_pk_bf16_f32 v%d, v%d, v%d" % (dst + 1, src + 2, src + 3),
    ]


def round4(a):
    return ["v_cvt_pk_bf16_f32 v%d, v%d, v%d" % (a, a, a + 1),
            "v_cvt_pk_bf16_f32 v%d, v%d, v%d" % (a + 2, a + 2, a + 3),
            "v_and_b32 v%d, 0xffff0000, v%d" % (a + 1, a),
            "v_and_b32 v%d, 0xffff0000, v%d" % (a + 3, a + 2),
            "v_lshlrev_b32 v%d, 16, v%d" % (a, a),
            "v_lshlrev_b32 v%d, 16, v%d" % (a + 2, a + 2)]


def add4(a, b):
    return ["v_pk_add_f32 %s, %s, %s" % (vr(a + i, 2), vr(a + i, 2), vr(b + i, 2)) for i in (0, 2)]


def stats_store(k, g, packed, t):
    s_, q_, t0, t1 = t, t + 1, t + 2, t + 3
    for i, r in enumerate(packed):
        k.e("v_dot2_f32_bf16 v%d, v%d, s%d, %s" % (s_, r, S_ONES, "0" if i == 0 else "v%d" % s_))
        k.e("v_dot2_f32_bf16 v%d, v%d, v%d, %s" % (q_, r, r, "0" if i == 0 else "v%d" % q_))
    for s in interleave(allreduce(s_, t0, "v_add_f32"), allreduce(q_, t1, "v_add_f32")):
        k.e(s)
    k.e("v_add_u32 v%d, s%d, v%d" % (t0, S_TOKB, g.m))
    k.e("v_lshlrev_b32 v%d, 3, v%d" % (t0, t0))
    k.e("s_lshl_b32 s%d, s%d, 14" % (S_T0, S_CB))
    k.e("s_mov_b64 exec, 0xffff")
    k.vmem("buffer_store_dwordx2 %s, v%d, %s, s%d offen%s" % (vr(s_, 2), t0, srd(SRD_SO), S_T0, DSC), "st")
    k.e("s_mov_b64 exec, -1")


TOUCH = int(os.environ.get('TOUCH', '0'))


def signal(k, g, edge, nblk, nxt=False, own=None):
    stamp(k, g, 2)
    k.vm = []
    k._xhi = None


def softmax_pair(p, t, outp):
    mx, mn, t0, t1 = t, t + 1, t + 2, t + 3
    ep = [t + 4 + i for i in range(4)]
    em = [t + 8 + i for i in range(4)]
    o = []
    o.append("v_max3_f32 v%d, v%d, v%d, v%d" % (mx, p, p + 1, p + 2))
    o.append("v_min3_f32 v%d, v%d, v%d, v%d" % (mn, p, p + 1, p + 2))
    o.append("v_max_f32 v%d, v%d, v%d" % (mx, mx, p + 3))
    o.append("v_min_f32 v%d, v%d, v%d" % (mn, mn, p + 3))
    o += interleave(allreduce(mx, t0, "v_max_f32"), allreduce(mn, t1, "v_min_f32"))
    o.append("v_mul_f32 v%d, s%d, v%d" % (mx, S_L2E, mx))
    o.append("v_mul_f32 v%d, s%d, v%d" % (mn, S_L2E, mn))
    for i in range(4):
        o.append("v_fma_f32 v%d, v%d, s%d, -v%d" % (ep[i], p + i, S_L2E, mx))
        o.append("v_fma_f32 v%d, -v%d, s%d, v%d" % (em[i], p + i, S_L2E, mn))
    for i in range(4):
        o.append("v_exp_f32 v%d, v%d" % (ep[i], ep[i]))
        o.append("v_exp_f32 v%d, v%d" % (em[i], em[i]))
    sp, sm = mx, mn
    o.append("v_add_f32 v%d, v%d, v%d" % (sp, ep[0], ep[1]))
    o.append("v_add_f32 v%d, v%d, v%d" % (sm, em[0], em[1]))
    o.append("v_add_f32 v%d, v%d, v%d" % (t0, ep[2], ep[3]))
    o.append("v_add_f32 v%d, v%d, v%d" % (t1, em[2], em[3]))
    o.append("v_add_f32 v%d, v%d, v%d" % (sp, sp, t0))
    o.append("v_add_f32 v%d, v%d, v%d" % (sm, sm, t1))
    o += interleave(allreduce(sp, t0, "v_add_f32"), allreduce(sm, t1, "v_add_f32"))
    o.append("v_rcp_f32 v%d, v%d" % (sp, sp))
    o.append("v_rcp_f32 v%d, v%d" % (sm, sm))
    o.append("s_nop 0")
    for i in range(4):
        o.append("v_mul_f32 v%d, v%d, v%d" % (ep[i], ep[i], sp))
        o.append("v_mul_f32 v%d, v%d, v%d" % (em[i], em[i], sm))
    o.append("v_cvt_pk_bf16_f32 v%d, v%d, v%d" % (outp, ep[0], ep[1]))
    o.append("v_cvt_pk_bf16_f32 v%d, v%d, v%d" % (outp + 1, ep[2], ep[3]))
    o.append("v_cvt_pk_bf16_f32 v%d, v%d, v%d" % (outp + 2, em[0], em[1]))
    o.append("v_cvt_pk_bf16_f32 v%d, v%d, v%d" % (outp + 3, em[2], em[3]))
    return o


def xin_srd(k, slot):
    k.e("s_add_u32 s%d, s%d, 0x%x" % (slot, S_WSL, R_XIN))
    k.e("s_addc_u32 s%d, s%d, 0" % (slot + 1, S_WSH))
    k.e("s_cmp_eq_u32 s%d, 0" % S_LAYER)
    k.e("s_cselect_b32 s%d, s%d, s%d" % (slot, PTR(IN_X), slot))
    k.e("s_cselect_b32 s%d, s%d, s%d" % (slot + 1, PTR(IN_X) + 1, slot + 1))
    k.e("s_mov_b32 s%d, 0x%x" % (slot + 2, XBYTES))
    k.e("s_mov_b32 s%d, 0x00020000" % (slot + 3))


def cs_read(k, vcs, dst, c, tag):
    ds(k, "ds_read_b128 %s, v%d offset:%d" % (vr(dst, 4), vcs, 64 * c), tag)


def wide_hooks(k, acc, st, vcx, P1, P2, MT, mode, n_st):
    park = [acc[P2][t][mt] for t in (0, 1) for mt in range(MT)]
    cs = {u: [park[2 * i + t] for t in (0, 1)] for i, u in enumerate(P1)}

    def m10():
        k.e("s_barrier")
        for u in P1:
            for t in (0, 1):
                cs_read(k, vcx, cs[u][t], 2 * u + t, "cs")

    def m13():
        for t in (0, 1):
            cs_read(k, vcx, acc[P2][t][0], 2 * P2 + t, "c2")
    ex = spread(interleave(*[stats_fold(st[mt], mode) for mt in range(MT)]), PSW, n_st)
    ex.update(fix_step(acc, cs, st, P1, MT, 12))
    ex[15] = [("w", "c2")] + cs_init(acc[P2], st)
    return ex, {BDW: m10, 13: m13}, {12: ["cs"]}


BDW = int(os.environ.get("BDW", "10"))
QH = int(os.environ.get("QH", "5"))
BH = 2 * QH - 3 <= BDW
PJ = int(os.environ.get("PJ", "6"))
PCS = int(os.environ.get("PCS", "2"))
PQ = int(os.environ.get("PQ", "0"))
PBH = int(os.environ.get("PBH", "3"))
PRO = int(os.environ.get("PRO", "3"))
TP = int(os.environ.get("TP", "1"))
L2W = int(os.environ.get("L2W", "0"))
PFS = int(os.environ.get("PFS", "7"))
QCS = int(os.environ.get("QCS", "8"))
QTAIL = int(os.environ.get("QTAIL", "16"))
WTAIL = int(os.environ.get("WTAIL", "8"))
WPOS = int(os.environ.get("WPOS", "1"))


def bar(k):
    return lambda: k.e("s_barrier")


def p_qkv(k, g):
    MT, NU, KS, CS = 2, 3, 16, 4
    mk = k.mark()
    k.e("s_mov_b32 s%d, s%d" % (S_TOKB, S_TOKW))
    t16_base(k, S_XO, 512)
    w = w_tb(k, g, False, NU, woff512(U_QKV), KS)
    vph = k.alloc()
    k.e("v_add_u32 v%d, 0x%x, v%d" % (vph, CSX_W + 1024, g.lin))
    st, st_issue = stats_load(k, g, MT)
    vcs, vcx = k.alloc(), k.alloc()
    k.e("v_lshlrev_b32 v%d, 4, v%d" % (vcs, g.g))
    k.e("v_add_u32 v%d, 0x%x, v%d" % (vcx, CSX_W, vcs))
    k.e("s_cmp_eq_u32 s%d, 0" % S_LAYER)
    k.e("s_cselect_b32 s%d, 64, 1024" % S_XST)
    k.e("s_cselect_b64 s[100:101], 0, -1")
    X = [[k.alloc(4, 4) for _ in range(KS)] for _ in range(MT)]
    wphi = [X[0][0], X[0][0] + 2]
    acc = [[[k.alloc(4, 4) for _ in range(MT)] for _ in range(2)] for _ in range(NU)]
    xin_srd(k, SRD_X)
    make_srd(k, SRD_O, ("l", R_O), XBYTES)
    make_srd(k, SRD_R2, ("l", R_KVP), 2 * MB)
    make_srd(k, SRD_S, ("l", ST_XIN), STBYTES)
    make_srd(k, SRD_SO, ("l", 0), 2 * LSTRIDE)

    def xl(s):
        if s >= XDW:
            k.e("s_mov_b64 exec, s[100:101]")
            k.e("s_cbranch_execz L_sx%d_%s" % (s, k.name))
        for mt in range(MT):
            xload(k, g, X[mt][s], 512, mt, s, "x%d" % s)
        if s >= XDW:
            k.label("L_sx%d_%s" % (s, k.name))
            k.e("s_mov_b64 exec, -1")

    k.e("s_cmp_lg_u32 s%d, 0" % S_LAYER)
    k.e("s_cbranch_scc1 L_np_%s" % k.name)
    for mt in range(MT):
        for r in range(16):
            xload(k, g, X[mt][r], 512, mt, r, "r%d_%d" % (mt, r // 4))
    k._xhi = None
    ab = acc[0][0][0]
    pz, pl8 = ab + 32, ab + 36

    def marks():
        for i in range(4):
            k.e("v_mov_b32 v%d, -1" % (pz + i))
        k.e("v_lshlrev_b32 v%d, 3, v%d" % (pl8, g.l))
        k.e("s_lshl_b32 s%d, s%d, 2" % (S_T2, S_CBW))
        k.e("s_add_u32 s%d, s%d, s%d" % (S_T2, S_T2, S_WAVE))
        k.e("s_lshl_b32 s%d, s%d, 4" % (S_T2, S_T2))
        k.e("s_add_u32 s%d, s%d, s%d" % (S_T2, S_T2, S_RBW))
        k.e("s_lshl_b32 s%d, s%d, 6" % (S_T1, S_T2))
        k.e("s_lshl_b32 s%d, s%d, 9" % (S_T0, S_T2))
        k.e("s_add_u32 s%d, s%d, s%d" % (S_T2, S_TOKB, S_CBW))
        k.e("s_lshl_b32 s%d, s%d, 10" % (S_T2, S_T2))
        for L in range(2):
            k.e("s_add_u32 s%d, s%d, 0x%x" % (S_P0, S_T0, R_KVP + L * LSTRIDE))
            k.vmem("buffer_store_dwordx2 %s, v%d, %s, s%d offen sc1" % (vr(pz, 2), pl8, srd(SRD_SO), S_P0), "pz")
            k.e("s_add_u32 s%d, s%d, 0x%x" % (S_P0, S_T1, R_KVP + MB + L * LSTRIDE))
            k.e("s_mov_b32 exec_lo, 0x00010001")
            k.e("s_mov_b32 exec_hi, 0x00010001")
            k.vmem("buffer_store_dwordx4 %s, v%d, %s, s%d offen sc1" % (vr(pz, 4), vcs, srd(SRD_SO), S_P0), "pz")
            k.e("s_mov_b64 exec, -1")
            for mt in range(MT):
                k.e("s_add_u32 s%d, s%d, 0x%x" % (S_P0, S_T2, R_O + 0x4000 * mt + L * LSTRIDE))
                k.vmem("buffer_store_dwordx4 %s, v%d, %s, s%d offen%s" % (vr(pz, 4), g.lin, srd(SRD_SO), S_P0, PSC), "pz")
    def ctouch():
        k.e("s_lshl_b32 s%d, s2, 2" % S_CNT)
        k.e("s_add_u32 s%d, s%d, s%d" % (S_CNT, S_CNT, S_WAVE))
        touch(k, g, g.l128, [(IN_W1, 128), (IN_W2, 128), (IN_W3, 344), (IN_W4, 344)])
        k.vm.append("tch")
    if TP == 4:
        ctouch()
    if not PRO & 1:
        marks()
    ones4, mS, mQ = ab, [ab + 4, ab + 8], [ab + 12, ab + 16]
    vwb, vrd, tw = ab + 20, [ab + 21 + i for i in range(4)], [ab + 25 + i for i in range(4)]
    k.e("s_lshl_b32 s%d, s%d, 14" % (S_T0, S_WAVE))
    k.e("s_add_u32 s%d, s%d, 0x%x" % (S_T0, S_T0, UN[3]))
    k.e("v_add_u32 v%d, s%d, v%d" % (vwb, S_T0, g.lin))
    for b_ in range(4):
        k.e("v_add_u32 v%d, %d, v%d" % (vrd[b_], 4 * b_, g.g))
        k.e("v_xor_b32 v%d, v%d, v%d" % (vrd[b_], vrd[b_], g.m))
        k.e("v_lshlrev_b32 v%d, 4, v%d" % (vrd[b_], vrd[b_]))
        k.e("v_lshl_add_u32 v%d, v%d, 10, v%d" % (vrd[b_], g.m, vrd[b_]))
        k.e("v_add_u32 v%d, s%d, v%d" % (vrd[b_], S_T0, vrd[b_]))
    for i in range(4):
        k.e("v_mov_b32 v%d, 0x3f803f80" % (ones4 + i))

    def smf(mt, s):
        k.e("v_mfma_f32_16x16x32_bf16 %s, %s, %s, %s" % (vr(mS[mt], 4), vr(ones4, 4), vr(X[mt][s], 4), vr(mS[mt], 4) if s else "0"))
        k.e("v_mfma_f32_16x16x32_bf16 %s, %s, %s, %s" % (vr(mQ[mt], 4), vr(X[mt][s], 4), vr(X[mt][s], 4), vr(mQ[mt], 4) if s else "0"))
    for mt in range(MT):
        for r in range(16):
            if r % 4 == 0:
                if r == 0:
                    stamp(k, g, True)
                k.wait_vm("r%d_%d" % (mt, r // 4))
                if r in (0, 12):
                    stamp(k, g, True)
            k.e("v_xor_b32 v%d, %d, v%d" % (tw[r % 4], 16 * r, vwb))
            k.e("ds_write_b128 v%d, %s offset:%d" % (tw[r % 4], vr(X[mt][r], 4), 1024 * r))
            if mt == 1 and PRO & 2 and r < 12:
                smf(0, r)
        k.e("s_waitcnt lgkmcnt(0)")
        for s in range(KS):
            k.e("ds_read_b128 %s, v%d offset:%d" % (vr(X[mt][s], 4), vrd[s % 4], 256 * (s // 4)))
        if mt == 0 and PRO & 1:
            marks()
        if (mt, TP) in ((0, 2), (1, 3)):
            ctouch()
        if mt == 0 and PRO & 2:
            k.e("s_waitcnt lgkmcnt(0)")
            continue
        if PRO & 2:
            for s in range(12, 16):
                smf(0, s)
        for s in range(KS):
            k.e("s_waitcnt lgkmcnt(%d)" % (KS - 1 - s))
            smf(mt, s)
    k.e("v_and_b32 v%d, 3, v%d" % (tw[0], g.m))
    k.e("v_lshrrev_b32 v%d, 2, v%d" % (tw[1], g.m))
    for mt in range(MT):
        k.e("v_mul_f32 v%d, 0.25, v%d" % (st[mt], mS[mt]))
        k.e("v_mov_b32 v%d, 0" % (st[mt] + 2))
        k.e("v_mov_b32 v%d, 0" % (st[mt] + 3))
    for j in range(1, 4):
        k.e("v_cmp_eq_u32 vcc, %d, v%d" % (j, tw[0]))
        for mt in range(MT):
            k.e("v_cndmask_b32 v%d, v%d, v%d, vcc" % (mQ[mt], mQ[mt], mQ[mt] + j))
    k.e("v_cmp_eq_u32 vcc, v%d, v%d" % (tw[1], g.g))
    for mt in range(MT):
        k.e("v_cndmask_b32 v%d, 0, v%d, vcc" % (st[mt] + 1, mQ[mt]))
    stamp(k, g, True)
    k.e("s_waitcnt vmcnt(0)")
    k.vm = []
    stamp(k, g, True)
    if TP == 5:
        ctouch()
        k.vm = []
    k.e("s_barrier")
    k.label("L_np_%s" % k.name)
    k.e("s_nop 4")
    stamp(k, g)
    gemm_pre(k, w, KS, 3, [1, 2], 0)
    pl = poll_stats(k, g, st, st_issue, g.l128, True)
    stamp(k, g)

    def rl(s):
        for mt in range(MT):
            xreload(k, g, X[mt][s], 512, mt, s)

    ex, mid, top = wide_hooks(k, acc, st, vcx, [1, 2], 0, MT, "r", 5)
    gemm_loop(k, g, w, KS, MT, lambda s, mt: X[mt][s], acc, xl, mid=mid, top=top, extra=ex, rl=rl, mask=True, poll=pl, ps=PSW,
              pre={2 * QH: bar(k)} if BH else None)
    k.e("s_barrier")
    stamp(k, g)
    xb = X[0][0]
    ident, ones = X[1][0], X[1][0] + 2
    t, t2 = st[0] + 1, st[0] + 2
    C4 = [(mt, hh) for mt in range(MT) for hh in range(2)]
    kvacc = [[w.ring2[4 * hh + b] for b in range(4)] for hh in range(2)]
    oq = list(w.free)
    kb = [w.free[c // 2] + 2 * (c % 2) for c in range(4)]
    vb = [w.free[2 + c // 2] + 2 * (c % 2) for c in range(4)]
    T = [X[0][1], X[1][1], X[0][6], X[1][6]]
    ok = [X[0][4], X[1][4], X[0][5], X[1][5]]
    E1 = [("ds", "ds_read_b128 %s, v%d" % (vr(wphi[0], 4), vph), "ph")]
    E1 += ["v_mov_b32 v%d, 0x3f803f80" % ones,
           "v_mov_b32 v%d, 0x3f803f80" % (ones + 1),
           "v_and_b32 v%d, 1, v%d" % (t, g.m),
           "v_lshlrev_b32 v%d, 4, v%d" % (t, t),
           "v_mov_b32 v%d, 0x3f80" % t2,
           "v_lshlrev_b32 v%d, v%d, v%d" % (t2, t, t2),
           "v_lshrrev_b32 v%d, 2, v%d" % (t, g.m),
           "v_cmp_eq_u32 vcc, v%d, v%d" % (t, g.g),
           "v_cndmask_b32 v%d, 0, v%d, vcc" % (t2, t2),
           "v_and_b32 v%d, 2, v%d" % (t, g.m),
           "v_cmp_eq_u32 vcc, 0, v%d" % t,
           "v_cndmask_b32 v%d, 0, v%d, vcc" % (ident, t2),
           "v_cndmask_b32 v%d, v%d, 0, vcc" % (ident + 1, t2)]
    E1 += ["s_lshl_b32 s%d, s%d, 13" % (S_T0, S_WAVE),
           "s_add_u32 s%d, s%d, 0x%x" % (S_T0, S_T0, LDS_SCR),
           "v_add_u32 v%d, s%d, v%d" % (t, S_T0, g.lin),
           "s_lshr_b32 s%d, s%d, 1" % (S_T0, S_WAVE),
           "s_lshl_b32 s%d, s%d, 12" % (S_T0, S_T0),
           "s_and_b32 s%d, s%d, 1" % (S_T1, S_WAVE),
           "s_lshl_b32 s%d, s%d, 10" % (S_T1, S_T1),
           "s_add_u32 s%d, s%d, s%d" % (S_T0, S_T0, S_T1),
           "s_add_u32 s%d, s%d, 0x%x" % (S_T0, S_T0, LDS_SCR),
           "v_add_u32 v%d, s%d, v%d" % (t2, S_T0, g.lin)]
    pk = [acc[1][hh][mt] for (mt, hh) in C4]
    tv = [acc[2][hh][mt] for (mt, hh) in C4]
    E0 = interleave(*[scale4(pk[c], st[mt]) + pack2(kb[c], pk[c]) for c, (mt, hh) in enumerate(C4)])
    E1 += interleave(*[scale4(tv[c], st[mt]) + pack2(vb[c], tv[c]) for c, (mt, hh) in enumerate(C4)])
    E1.append(("w", "ph"))
    for c, (mt, hh) in enumerate(C4):
        E1.append("v_mfma_f32_16x16x16_bf16 %s, %s, %s, 0" % (vr(pk[c], 4), vr(wphi[hh], 2), vr(kb[c], 2)))
    for c in range(4):
        E1.append("v_mfma_f32_16x16x16_bf16 %s, %s, %s, 0" % (vr(tv[c], 4), vr(vb[c], 2), vr(ident, 2)))

    def tr_ph(c):
        return ["v_mfma_f32_16x16x16_bf16 %s, %s, %s, 0" % (vr(T[c], 4), vr(ok[c], 2), vr(ident, 2)),
                "v_mfma_f32_16x16x16_bf16 %s, %s, %s, 0" % (vr(T[c] + 4, 4), vr(ok[c] + 2, 2), vr(ident, 2))]

    def pk_ph(c):
        return pack2(T[c] + 8, T[c]) + pack2(T[c] + 10, T[c] + 4)
    R1 = interleave(*[softmax_pair(pk[c], T[c], ok[c]) for c in range(2)])
    R1 = R1[:8] + [x_ for c in range(4) for x_ in pack2(vb[c], tv[c])] + R1[8:]
    R2 = interleave(*[softmax_pair(pk[c], T[c], ok[c]) for c in range(2, 4)])
    R2 = R2[:2] + tr_ph(0) + tr_ph(1) + R2[2:24] + pk_ph(0) + pk_ph(1) + R2[24:]
    n0, n1, n2, n3 = len(E0), len(E1), len(R1), len(R2) - QTAIL

    def pos(j):
        if j < 4:
            return n0 * j // 4
        if j < 20:
            return n0 + 1 + (n1 - 9) * (j - 4) // 16
        if j < 42:
            return n0 + n1 + n2 * (j - 20) // 22
        return n0 + n1 + n2 + n3 * (j - 42) // 22
    pass2(k, w, KS, MT, lambda s, mt: X[mt][s], acc[0], E0 + E1 + R1 + R2, pos)
    stamp(k, g, True)
    for s_ in tr_ph(2) + tr_ph(3):
        k.e(s_)

    def kvm(c):
        mt, hh = C4[c]
        kk = kvacc[hh]
        for (dst, a_, b_) in ((kk[0], T[c] + 8, vb[c]), (kk[1], T[c] + 10, vb[c]), (kk[2], T[c] + 8, ones), (kk[3], T[c] + 10, ones)):
            k.e("v_mfma_f32_16x16x16_bf16 %s, %s, %s, %s" % (
                vr(dst, 4), vr(a_, 2), vr(b_, 2), "0" if mt == 0 else vr(dst, 4)))
    kvm(0)
    kvm(1)
    for s_ in pk_ph(2) + pk_ph(3):
        k.e(s_)
    kvm(2)
    kvm(3)
    kb = [X[c // 2][4] + 2 * (c % 2) for c in range(4)]
    for hh in range(2):
        for b in range(4):
            k.e("ds_write_b128 v%d, %s offset:%d" % (t, vr(kvacc[hh][b], 4), (hh * 4 + b) * 1024))
    seqs = []
    for c, (mt, hh) in enumerate(C4):
        a = acc[0][hh][mt]
        seqs.append(scale4(a, st[mt]) + pack2(kb[c], a))
    qa = interleave(*seqs)
    for c, (mt, hh) in enumerate(C4):
        qa.append("v_mfma_f32_16x16x16_bf16 %s, %s, %s, 0" % (vr(acc[0][hh][mt], 4), vr(wphi[hh], 2), vr(kb[c], 2)))
    qb = interleave(*[softmax_pair(acc[0][hh][mt], T[c], oq[c]) for c, (mt, hh) in enumerate(C4)])
    k.e("s_waitcnt lgkmcnt(0)")
    stamp(k, g, True)
    k.e("s_barrier")
    stamp(k, g, True)
    rk = [acc[1][hh][mt] for (mt, hh) in C4]
    rz = [acc[2][hh][mt] for (mt, hh) in C4]
    for ww in range(4):
        k.e("ds_read_b128 %s, v%d offset:%d" % (vr(rk[ww], 4), t2, ww * 8192))
        k.e("ds_read_b128 %s, v%d offset:%d" % (vr(rz[ww], 4), t2, ww * 8192 + 2048))
    k.e("s_lshl_b32 s%d, s%d, 2" % (S_T2, S_CBW))
    k.e("s_add_u32 s%d, s%d, s%d" % (S_T2, S_T2, S_WAVE))
    k.e("s_lshl_b32 s%d, s%d, 4" % (S_T2, S_T2))
    k.e("s_add_u32 s%d, s%d, s%d" % (S_T0, S_T2, S_RBW))
    k.e("s_lshl_b32 s%d, s%d, 6" % (S_T1, S_T0))
    k.e("s_add_u32 s%d, s%d, 0x%x" % (S_T1, S_T1, MB))
    k.e("s_lshl_b32 s%d, s%d, 9" % (S_T0, S_T0))
    l8 = vph
    k.e("v_lshlrev_b32 v%d, 3, v%d" % (l8, g.l))
    for s_ in qa:
        k.e(s_)
    k.e("s_waitcnt lgkmcnt(0)")
    for R_ in (rk, rz):
        for i in (0, 2):
            k.e("v_pk_add_f32 %s, %s, %s" % (vr(R_[0] + i, 2), vr(R_[0] + i, 2), vr(R_[1] + i, 2)))
            k.e("v_pk_add_f32 %s, %s, %s" % (vr(R_[2] + i, 2), vr(R_[2] + i, 2), vr(R_[3] + i, 2)))
    for R_ in (rk, rz):
        for i in (0, 2):
            k.e("v_pk_add_f32 %s, %s, %s" % (vr(R_[0] + i, 2), vr(R_[0] + i, 2), vr(R_[2] + i, 2)))
    for s_ in pack2(rk[1], rk[0]):
        k.e(s_)
    k.e("buffer_store_dwordx2 %s, v%d, %s, s%d offen sc1" % (vr(rk[1], 2), l8, srd(SRD_R2), S_T0))
    k.e("s_mov_b32 exec_lo, 0x00010001")
    k.e("s_mov_b32 exec_hi, 0x00010001")
    k.e("buffer_store_dwordx4 %s, v%d, %s, s%d offen sc1" % (vr(rz[0], 4), vcs, srd(SRD_R2), S_T1))
    k.e("s_mov_b64 exec, -1")
    stamp(k, g, True)
    for s_ in qb:
        k.e(s_)
    vw_, vr_ = acc[1][0][0], acc[1][0][0] + 1
    k.e("s_lshr_b32 s%d, s%d, 1" % (S_T0, S_WAVE))
    k.e("s_lshl_b32 s%d, s%d, 11" % (S_T0, S_T0))
    k.e("s_and_b32 s%d, s%d, 1" % (S_T1, S_WAVE))
    k.e("s_lshl_b32 s%d, s%d, 3" % (S_T1, S_T1))
    k.e("s_add_u32 s%d, s%d, s%d" % (S_T0, S_T0, S_T1))
    k.e("s_add_u32 s%d, s%d, 0x%x" % (S_T0, S_T0, LDS_SCR))
    k.e("v_add_u32 v%d, s%d, v%d" % (vw_, S_T0, g.lin))
    k.e("v_add_u32 v%d, 0x%x, v%d" % (vr_, LDS_SCR, g.lin))
    vz = acc[1][0][0] + 2
    k.e("v_lshl_add_u32 v%d, v%d, 6, v%d" % (vz, g.m, vcs))
    k.e("s_lshl_b32 s%d, s%d, 9" % (S_T0, S_T2))
    k.e("s_lshl_b32 s%d, s%d, 6" % (S_T1, S_T2))
    k.e("s_add_u32 s%d, s%d, 0x%x" % (S_T1, S_T1, MB))
    k.e("s_mov_b32 s%d, 0x3f80" % S_C1)
    k.e("s_mov_b32 s%d, 0x3f800000" % S_C2)
    k.e("s_lshl_b32 s%d, s%d, 10" % (S_OB, S_TOKB))
    k.e("s_lshl_b32 s%d, s%d, 10" % (S_T2, S_CBW))
    k.e("s_add_u32 s%d, s%d, s%d" % (S_OB, S_OB, S_T2))
    stamp(k, g)
    k.e("s_cmp_lg_u32 s%d, 0" % S_LAYER)
    k.e("s_cbranch_scc1 L_ny_%s" % k.name)
    k.e("s_barrier")
    k.label("L_ny_%s" % k.name)
    k.vm = []
    P = [xb + 4 * r for r in range(16)]
    Z = [xb + 64 + 4 * r for r in range(16)]
    H = [xb + 96 + 2 * r for r in range(16)]
    k.e("s_add_u32 s%d, s%d, 4096" % (S_P0 + 1, S_T0))

    def zl(f):
        f("buffer_load_dwordx4 %s, v%d, %s, s%d offen sc1" % (vr(Z[0], 4), vz, srd(SRD_R2), S_T1), "z")

    def kvl(f):
        for r in range(16):
            f("buffer_load_dwordx2 %s, v%d, %s, s%d offen offset:%d sc1" % (vr(H[r], 2), l8, srd(SRD_R2), S_P0 + 1 if r >= 8 else S_T0, (r % 8) * 512), "p%d" % (r // 4))
    raw = lambda a_, b_: k.e(a_)
    zl(k.vmem)
    kvl(k.vmem)
    k.wait_vm("z")
    k.e("v_cmp_eq_u32 vcc, -1, v%d" % (Z[0] + 3))
    k.e("s_cbranch_vccnz L_zr_%s" % k.name)
    k.label("L_zo_%s" % k.name)
    stamp(k, g)
    main = k.lines
    k.lines = k.stubs
    k.label("L_zr_%s" % k.name)
    budget(k, "L_zo_%s" % k.name)
    if PSL:
        k.e("s_sleep %d" % PSL)
    zl(raw)
    k.e("s_waitcnt vmcnt(0)")
    k.e("v_cmp_eq_u32 vcc, -1, v%d" % (Z[0] + 3))
    k.e("s_cbranch_vccnz L_zr_%s" % k.name)
    kvl(raw)
    k.e("s_branch L_zo_%s" % k.name)
    k.label("L_kr_%s" % k.name)
    budget(k, "L_ko_%s" % k.name)
    kvl(raw)
    k.e("s_branch L_ks_%s" % k.name)
    k.lines = main
    for sh in (8, 4, 2, 1):
        for i in range(4):
            k.e("v_add_f32_dpp v%d, v%d, v%d row_ror:%d row_mask:0xf bank_mask:0xf" % (Z[0] + i, Z[0] + i, Z[0] + i, sh))
    k.label("L_ks_%s" % k.name)
    vmx = P[2]
    for q in range(4):
        k.wait_vm("p%d" % q)
        stamp(k, g, True)
        for r in range(4 * q, 4 * q + 4):
            a = P[r & 1]
            for i in range(4):
                k.e("v_dot2_f32_bf16 v%d, v%d, s%d, %s" % (a + i, H[r] + (i >> 1), S_C2 if i & 1 else S_C1, "0" if r < 2 else "v%d" % (a + i)))
            if r & 1:
                if r == 1:
                    k.e("v_max_u32 v%d, v%d, v%d" % (vmx, H[0], H[1]))
                else:
                    k.e("v_max3_u32 v%d, v%d, v%d, v%d" % (vmx, vmx, H[r - 1], H[r]))
    k.e("v_cmp_eq_u32 vcc, -1, v%d" % vmx)
    k.e("s_cbranch_vccnz L_kr_%s" % k.name)
    k.label("L_ko_%s" % k.name)
    for s_ in add4(P[0], P[1]):
        k.e(s_)
    for s_ in pack2(P[1], P[0]) + pack2(Z[1], Z[0]):
        k.e(s_)
    k.e("ds_write_b64 v%d, %s" % (vw_, vr(P[1], 2)))
    k.e("ds_write_b64 v%d, %s offset:1024" % (vw_, vr(Z[1], 2)))
    k.e("s_waitcnt lgkmcnt(0)")
    stamp(k, g, True)
    k.e("s_barrier")
    stamp(k, g, True)
    kvf = [P[2], P[3]]
    zf = [P[4], P[5]]
    for hh in range(2):
        k.e("ds_read_b128 %s, v%d offset:%d" % (vr(kvf[hh], 4), vr_, hh * 2048))
        k.e("ds_read_b128 %s, v%d offset:%d" % (vr(zf[hh], 4), vr_, hh * 2048 + 1024))
    num = [Z[c] for c in range(4)]
    den = [Z[4 + c] for c in range(4)]
    O = [Z[8], Z[9]]
    k.e("s_waitcnt lgkmcnt(0)")
    for c, (mt, hh) in enumerate(C4):
        k.e("v_mfma_f32_16x16x32_bf16 %s, %s, %s, 0" % (vr(den[c], 4), vr(zf[hh], 4), vr(oq[c], 4)))
    for c, (mt, hh) in enumerate(C4):
        k.e("v_mfma_f32_16x16x32_bf16 %s, %s, %s, 0" % (vr(num[c], 4), vr(kvf[hh], 4), vr(oq[c], 4)))
    for c in range(4):
        k.e("v_add_f32 v%d, s%d, v%d" % (den[c], S_EPS, den[c]))
    for c in range(4):
        k.e("v_rcp_f32 v%d, v%d" % (den[c], den[c]))
    for c in range(4):
        for j in range(4):
            k.e("v_mul_f32 v%d, v%d, v%d" % (num[c] + j, num[c] + j, den[c]))
    for c, (mt, hh) in enumerate(C4):
        for s_ in pack2(O[mt] + 2 * hh, num[c]):
            k.e(s_)
    k.e("s_add_u32 s%d, s%d, 0x4000" % (S_T2, S_OB))
    for mt in range(MT):
        k.vmem("buffer_store_dwordx4 %s, v%d, %s, s%d offen%s" % (vr(O[mt], 4), g.lin, srd(SRD_O), S_T2 if mt else S_OB, DSC), "st")
    signal(k, g, E_O, 2, own=((S_OB, 1024), (S_T2, 1024)))
    k.release(mk)


def out_base(k):
    k.e("s_lshl_b32 s%d, s%d, 10" % (S_OB, S_TOKB))
    k.e("s_lshl_b32 s%d, s%d, 11" % (S_T0, S_CB))
    k.e("s_add_u32 s%d, s%d, s%d" % (S_OB, S_OB, S_T0))


def res_load(k, vsw, slot, tag, regs=None):
    r = regs if regs is not None else [k.alloc(4, 4) for _ in range(2)]

    def issue():
        for u in range(2):
            k.vmem("buffer_load_dwordx4 %s, v%d, %s, s%d offen offset:%d" % (vr(r[u], 4), vsw, srd(slot), S_OB, 1024 * u), tag)
    return r, issue


def store_pairs(k, vsw, pk, swap=True, mod=DSC):
    for u in range(2):
        for s_ in swap_pair(pk[u]) if swap else []:
            k.e(s_)
    for u in range(2):
        k.vmem("buffer_store_dwordx4 %s, v%d, %s, s%d offen offset:%d%s" % (vr(pk[u], 4), vsw, srd(SRD_O), S_OB, 1024 * u, mod), "st")


def fin(k, g, acc, pk):
    for u in range(2):
        for t in range(2):
            for s_ in pack2(pk[u] + 2 * t, acc[u][t][0]):
                k.e(s_)
    k.e("s_barrier")
    stamp(k, g)


def p_wo(k, g):
    MT, NU, KS, CS = 1, 2, 16, 4
    mk0 = k.mark()
    vsw = g.vsw
    k.e("s_mov_b32 s%d, s%d" % (S_TOKB, S_TOKN))
    t16_base(k, S_XO, 512)
    out_base(k)
    w = w_tb(k, g, True, NU, woff512(U_WO), KS)
    X = [k.alloc(4, 4) for _ in range(KS)]
    acc = [[[k.alloc(4, 4)] for _ in range(2)] for _ in range(NU)]
    res = [k.alloc(4, 4) for _ in range(2)]
    vres, t = k.alloc(), k.alloc()
    k.e("v_and_b32 v%d, 1, v%d" % (t, g.g))
    k.e("v_lshlrev_b32 v%d, 10, v%d" % (vres, g.m))
    k.e("v_lshl_add_u32 v%d, v%d, 5, v%d" % (vres, t, vres))
    k.e("v_lshrrev_b32 v%d, 1, v%d" % (t, g.g))
    k.e("v_lshl_add_u32 v%d, v%d, 4, v%d" % (vres, t, vres))
    k.e("s_lshl_b32 s%d, s%d, 10" % (S_T1, S_TOKB))
    k.e("s_lshl_b32 s%d, s%d, 7" % (S_T0, S_CB))
    k.e("s_add_u32 s%d, s%d, s%d" % (S_T1, S_T1, S_T0))
    make_srd(k, SRD_X, ("l", R_O), XBYTES)
    xin_srd(k, SRD_R)
    k.e("s_cselect_b64 vcc, -1, 0")
    k.e("s_cselect_b32 s%d, s%d, s%d" % (S_T1, S_T1, S_OB))
    k.e("s_add_u32 s%d, s%d, s%d" % (S_T2, S_T1, S_XST))
    k.e("v_cndmask_b32 v%d, v%d, v%d, vcc" % (vres, vsw, vres))
    make_srd(k, SRD_O, ("l", R_XA), XBYTES)
    make_srd(k, SRD_SO, ("l", ST_XA), STBYTES)
    for u in range(2):
        k.vmem("buffer_load_dwordx4 %s, v%d, %s, s%d offen" % (vr(res[u], 4), vres, srd(SRD_R), (S_T1, S_T2)[u]), "res")
    stamp(k, g)
    gemm_pre(k, w, KS, R512)
    k.wait_vm("res")
    for u in range(2):
        for s_ in swap_pair(res[u]):
            k.e(s_)
    for u in range(2):
        for t in range(2):
            for s_ in unpack2(acc[u][t][0], res[u] + 2 * t):
                k.e(s_)
    k.e("v_lshlrev_b32 v%d, 10, v%d" % (vres, g.l))
    pl = poll_blocks(k, g, vres, "s%d" % S_XO, X[15])
    stamp(k, g)
    gemm_loop(k, g, w, KS, MT, lambda s, mt: X[s], acc, lambda s: xload(k, g, X[s], 512, 0, s, "x%d" % s), mid={BD512: bar(k)}, init=True,
              rl=lambda s: xreload(k, g, X[s], 512, 0, s), poll=pl)
    pk = [X[8], X[9]]
    fin(k, g, acc, pk)
    store_pairs(k, vsw, pk)
    stats_store(k, g, [pk[u] + i for u in range(2) for i in range(4)], X[10])
    signal(k, g, E_XA, 1)
    k.release(mk0)


def p_w1(k, g):
    MT, NU, KS, CS = 1, 2, 16, 4
    mk0 = k.mark()
    vsw = g.vsw
    t16_base(k, S_XO, 512)
    w = w_tb(k, g, False, NU, woff512(U_W1), KS)
    X = [k.alloc(4, 4) for _ in range(KS)]
    acc = [[[k.alloc(4, 4)] for _ in range(2)] for _ in range(NU)]
    st, st_issue = stats_load(k, g, MT)
    vcs = k.alloc()
    k.e("v_lshlrev_b32 v%d, 4, v%d" % (vcs, g.g))
    k.e("v_add_u32 v%d, 0x%x, v%d" % (vcs, CSX_1, vcs))
    cs = [[k.alloc(4, 4) for _ in range(2)] for _ in range(2)]
    make_srd(k, SRD_X, ("l", R_XA), XBYTES)
    make_srd(k, SRD_O, ("l", R_H), XBYTES)
    make_srd(k, SRD_S, ("l", ST_XA), STBYTES)
    stamp(k, g)
    gemm_pre(k, w, KS, R512)
    pl = poll_stats(k, g, st, st_issue, g.l128)
    stamp(k, g)

    def m4():
        k.e("s_barrier")
        for c in range(4):
            cs_read(k, vcs, cs[c // 2][c % 2], c, "cs")
    ex = spread(stats_fold(st[0], "gg"), PS1, 4)
    ex.update(fix_step(acc, cs, st, range(NU), MT, PS1 + 4))
    gemm_loop(k, g, w, KS, MT, lambda s, mt: X[s], acc, lambda s: xload(k, g, X[s], 512, 0, s, "x%d" % s), mid={BD512: m4},
              top={PS1 + 4: ["cs"]}, extra=ex, rl=lambda s: xreload(k, g, X[s], 512, 0, s), poll=pl, ps=PS1)
    k.e("s_barrier")
    stamp(k, g)
    seqs = []
    pk = [X[8], X[9]]
    for u in range(2):
        for t in range(2):
            i = 2 * u + t
            a = acc[u][t][0]
            seqs.append(gelu4f(a, X[i], pk[u] + 2 * t, st[0]))
    for s_ in interleave(*seqs):
        k.e(s_)
    for u in range(2):
        for s_ in swap_pair(pk[u]):
            k.e(s_)
    if DSC == " sc1":
        store_pairs(k, vsw, pk, swap=False)
    else:
        k.e("s_add_u32 s%d, s%d, 16" % (S_T0, S_TOKB))
        k.e("s_and_b32 s%d, s%d, 0xe0" % (S_T0, S_T0))
        k.e("s_cmp_eq_u32 s%d, 0" % S_T0)
        k.e("s_cbranch_scc1 L_hb_%s" % k.name)
        store_pairs(k, vsw, pk, swap=False)
        k.e("s_branch L_hc_%s" % k.name)
        k.label("L_hb_%s" % k.name)
        store_pairs(k, vsw, pk, swap=False, mod=" sc1")
        k.label("L_hc_%s" % k.name)
    signal(k, g, E_H, 1)
    k.release(mk0)


def p_w2(k, g):
    MT, NU, KS, CS = 1, 2, 16, 4
    mk0 = k.mark()
    vsw = g.vsw
    w = w_tb(k, g, False, NU, woffk(U_W2), KS)
    X = [k.alloc(4, 4) for _ in range(KS)]
    acc = [[[k.alloc(4, 4)] for _ in range(2)] for _ in range(NU)]
    res, res_issue = res_load(k, vsw, SRD_R, "stat")
    st, st_issue = stats_load(k, g, MT)
    vsh = []
    t = k.alloc()
    for c, d in enumerate((-1, 1, -2, 2)):
        r = k.alloc()
        k.e("s_add_i32 s%d, s%d, %d" % (S_T0, S_TOKB, d))
        k.e("v_add_u32 v%d, s%d, v%d" % (t, S_T0, g.m))
        k.e("v_ashrrev_i32 v%d, 4, v%d" % (r, t))
        k.e("v_lshlrev_b32 v%d, 14, v%d" % (r, r))
        k.e("v_and_b32 v%d, 15, v%d" % (t, t))
        k.e("v_lshl_add_u32 v%d, v%d, 4, v%d" % (r, t, r))
        k.e("v_lshl_add_u32 v%d, v%d, 8, v%d" % (r, g.g, r))
        if c:
            k.e("v_add_u32 v%d, 0x%x, v%d" % (r, 4096 * c, r))
        vsh.append(r)
    vpl = k.alloc()
    k.e("v_and_b32 v%d, 7, v%d" % (vpl, g.l))
    k.e("v_lshlrev_b32 v%d, 11, v%d" % (vpl, vpl))
    k.e("s_lshl_b32 s%d, s%d, 10" % (S_T0, S_TOKB))
    k.e("s_add_u32 s%d, s%d, 1024" % (S_T0, S_T0))
    k.e("v_add_u32 v%d, s%d, v%d" % (vpl, S_T0, vpl))
    k.e("v_and_b32 v%d, 2, v%d" % (t, g.l))
    k.e("v_lshlrev_b32 v%d, 14, v%d" % (t, t))
    k.e("v_subrev_u32 v%d, 0x4000, v%d" % (t, t))
    k.e("v_cmp_lt_u32 vcc, 7, v%d" % g.l)
    k.e("v_cndmask_b32 v%d, 0, v%d, vcc" % (t, t))
    k.e("v_add_u32 v%d, v%d, v%d" % (vpl, vpl, t))
    make_srd(k, SRD_X, ("l", R_H), XBYTES)
    make_srd(k, SRD_O, ("l", R_X1), XBYTES)
    make_srd(k, SRD_R, ("l", R_XA), XBYTES)
    make_srd(k, SRD_S, ("l", ST_XA), STBYTES)
    make_srd(k, SRD_SO, ("l", ST_X1), STBYTES)
    res_issue()
    st_issue()
    stamp(k, g)
    gemm_pre(k, w, KS, R512)
    k.wait_vm("stat")
    for s_ in interleave(stats_finish(st[0]), swap_pair(res[0]) + swap_pair(res[1])):
        k.e(s_)
    seqs = []
    for u in range(2):
        for t in range(2):
            tt = acc[u][t][0]
            sq = unpack2(tt, res[u] + 2 * t)
            sq += ["v_pk_fma_f32 %s, %s, %s, %s op_sel:[0,0,1] op_sel_hi:[1,0,1]" % (vr(tt + j, 2), vr(tt + j, 2), vr(st[0], 2), vr(st[0], 2)) for j in (0, 2)]
            seqs.append(sq)
    for s_ in interleave(*seqs):
        k.e(s_)
    pl = poll_blocks(k, g, vpl, "0", X[15])
    stamp(k, g)

    def xl(s):
        k.vmem("buffer_load_dwordx4 %s, v%d, %s, 0 offen offset:%d sc1" % (vr(X[s], 4), vsh[s // 4], srd(SRD_X), 1024 * (s % 4)), "x%d" % s)

    def rl(s):
        k.e("buffer_load_dwordx4 %s, v%d, %s, 0 offen offset:%d sc1" % (vr(X[s], 4), vsh[s // 4], srd(SRD_X), 1024 * (s % 4)))
    gemm_loop(k, g, w, KS, MT, lambda s, mt: X[s], acc, xl, init=True, rl=rl, poll=pl)
    pk = [X[8], X[9]]
    fin(k, g, acc, pk)
    store_pairs(k, vsw, pk)
    stats_store(k, g, [pk[u] + i for u in range(2) for i in range(4)], X[10])
    signal(k, g, E_X1, 1)
    k.release(mk0)


def p_w3(k, g):
    MT, NU, KS, CS = 2, 3, 16, 4
    mk0 = k.mark()
    vsw = g.vsw
    k.e("s_mov_b32 s%d, s%d" % (S_TOKB, S_TOKW))
    t16_base(k, S_XO, 512)
    w = w_tb(k, g, False, NU, woff3, KS)
    k.e("s_mul_i32 s%d, s%d, %d" % (S_OB, S_TOKB, 2752))
    k.e("s_lshl_b32 s%d, s%d, 10" % (S_T0, S_CU3))
    k.e("s_add_u32 s%d, s%d, s%d" % (S_OB, S_OB, S_T0))
    st, st_issue = stats_load(k, g, MT)
    vcs = k.alloc()
    k.e("v_lshlrev_b32 v%d, 4, v%d" % (vcs, g.g))
    k.e("v_add_u32 v%d, 0x%x, v%d" % (vcs, CSX_W, vcs))
    X = [[k.alloc(4, 4) for _ in range(KS)] for _ in range(MT)]
    acc = [[[k.alloc(4, 4) for _ in range(MT)] for _ in range(2)] for _ in range(NU)]
    make_srd(k, SRD_X, ("l", R_X1), XBYTES)
    make_srd(k, SRD_O, ("l", R_H3), S * 2752)
    make_srd(k, SRD_S, ("l", ST_X1), STBYTES)
    stamp(k, g)
    gemm_pre(k, w, KS, 3, [0, 1], 2)
    pl = poll_stats(k, g, st, st_issue, g.l128)
    stamp(k, g)

    def rl(s):
        for mt in range(MT):
            xreload(k, g, X[mt][s], 512, mt, s)

    def xl(s):
        for mt in range(MT):
            xload(k, g, X[mt][s], 512, mt, s, "x%d" % s)

    ex, mid, top = wide_hooks(k, acc, st, vcs, [0, 1], 2, MT, "g", 6)
    gemm_loop(k, g, w, KS, MT, lambda s, mt: X[mt][s], acc, xl, mid=mid, top=top, extra=ex, rl=rl, poll=pl, ps=PSW)
    k.e("s_barrier")
    stamp(k, g)
    k.e("s_add_u32 s%d, s%d, %d" % (S_T2, S_OB, 16 * 2752))

    def epi(u):
        o = interleave(*[gelu4f(acc[u][t][mt], w.free[2 * mt + t], acc[u][0][mt] + 2 * t, st[mt]) for mt in range(MT) for t in range(2)])
        for mt in range(MT):
            o += swap_pair(acc[u][0][mt])
        for mt in range(MT):
            o.append(("vm", "buffer_store_dwordx4 %s, v%d, %s, s%d offen offset:%d%s" % (
                vr(acc[u][0][mt], 4), vsw, srd(SRD_O), S_T2 if mt else S_OB, 1024 * u, DSC), "st"))
        return o
    E = epi(0) + epi(1)
    tp = [i for i, e_ in enumerate(E) if isinstance(e_, str) and e_.split()[0] in ("v_exp_f32", "v_rcp_f32")]
    pass2(k, w, KS, MT, lambda s, mt: X[mt][s], acc[2], E, (lambda j: tp[j] + 1) if WPOS else (lambda j: (len(E) - WTAIL) * j // 64))
    for e_ in epi(2):
        put(k, e_)
    signal(k, g, E_H3, 2, own=((S_OB, 3072), (S_T2, 3072)))
    k.release(mk0)


KCAP4 = 40


def p_w4(k, g):
    MT, NU, KS, CS = 1, 2, 43, 4
    mk0 = k.mark()
    vsw = g.vsw
    k.e("s_mov_b32 s%d, s%d" % (S_TOKB, S_TOKN))
    t16_base(k, S_XO, F)
    out_base(k)
    w = w_tb(k, g, False, NU, woff4, KS)
    X = [k.alloc(4, 4) for _ in range(KS)]
    acc = [[[k.alloc(4, 4)] for _ in range(2)] for _ in range(NU)]
    res, res_issue = res_load(k, vsw, SRD_R, "res", [X[39], X[40]])
    res1, res1_issue = res_load(k, vsw, SRD_R2, "res", [X[41], X[42]])
    vro = k.alloc()
    t = k.alloc()
    k.e("v_add_u32 v%d, s%d, v%d" % (vro, S_TOKB, g.m))
    k.e("v_lshlrev_b32 v%d, 10, v%d" % (vro, vro))
    k.e("v_and_b32 v%d, 1, v%d" % (t, g.g))
    k.e("v_lshl_add_u32 v%d, v%d, 5, v%d" % (vro, t, vro))
    k.e("v_lshrrev_b32 v%d, 1, v%d" % (t, g.g))
    k.e("v_lshl_add_u32 v%d, v%d, 4, v%d" % (vro, t, vro))
    k.e("s_lshl_b32 s%d, s%d, 7" % (S_T0, S_CB))
    k.e("v_add_u32 v%d, s%d, v%d" % (vro, S_T0, vro))
    k.e("v_mul_u32_u24 v%d, 43, v%d" % (t, g.l))
    k.e("v_lshrrev_b32 v%d, 4, v%d" % (t, t))
    k.e("v_min_u32 v%d, 40, v%d" % (t, t))
    k.e("v_add_u32 v%d, 2, v%d" % (t, t))
    k.e("v_lshlrev_b32 v%d, 10, v%d" % (t, t))
    vpl = t
    make_srd(k, SRD_X, ("l", R_H3), S * 2752)
    make_srd(k, SRD_O, ("n", R_XIN), XBYTES)
    make_srd(k, SRD_R, ("l", R_XA), XBYTES)
    make_srd(k, SRD_R2, ("l", R_X1), XBYTES)
    make_srd(k, SRD_SO, ("n", ST_XIN), STBYTES)
    make_srd(k, SRD_S, ("in", OUT), XBYTES)
    res_issue()
    res1_issue()
    stamp(k, g)
    k.e("s_barrier")
    gemm_pre(k, w, KS, 2)
    k.wait_vm("res")
    for u in range(2):
        for s_ in swap_pair(res[u]) + swap_pair(res1[u]):
            k.e(s_)
    seqs = []
    for u in range(2):
        for t in range(2):
            a = acc[u][t][0]
            tt = X[30 + 2 * u + t]
            seqs.append(unpack2(a, res1[u] + 2 * t) + unpack2(tt, res[u] + 2 * t) + add4(a, tt))
    for s_ in interleave(*seqs):
        k.e(s_)
    pl = poll_blocks(k, g, vpl, "s%d" % S_XO, X[29])
    stamp(k, g)
    gemm_loop(k, g, w, KS, MT, lambda s, mt: X[s], acc, lambda s: xload(k, g, X[s], F, 0, s, "x%d" % s),
              mid={7: bar(k), 15: bar(k), 23: bar(k), 31: bar(k)}, pre={KCAP4: bar(k)}, init=True,
              rl=lambda s: xreload(k, g, X[s], F, 0, s), poll=pl)
    pk = [X[8], X[9]]
    fin(k, g, acc, pk)
    k.e("s_cmp_lg_u32 s%d, 0" % S_LAYER)
    k.e("s_cbranch_scc1 L_last_%s" % k.name)
    store_pairs(k, vsw, pk)
    stats_store(k, g, [pk[u] + i for u in range(2) for i in range(4)], X[10])
    signal(k, g, E_X, 1, nxt=True)
    k.e("s_add_u32 s%d, s%d, 0x%x" % (S_WSL, S_WSL, LSTRIDE))
    k.e("s_addc_u32 s%d, s%d, 0" % (S_WSH, S_WSH))
    k.e("s_mov_b32 s%d, 1" % S_LAYER)
    k.e("s_branch L_layer_%s" % k.name)
    k.label("L_last_%s" % k.name)
    k.e("s_nop 4")
    for u in range(2):
        for s_ in swap_pair(pk[u]):
            k.e(s_)
    for u in range(2):
        k.e("buffer_store_dwordx4 %s, v%d, %s, 0 offen offset:%d%s" % (vr(pk[u], 4), vro, srd(SRD_S), 64 * u, OSC))
    k.release(mk0)


def w_lane(k, g, r, wrow, swz_bit, t, t2):
    k.e("v_lshrrev_b32 v%d, 2, v%d" % (t, g.l))
    k.e("s_mov_b32 s%d, %d" % (S_T0, wrow))
    k.e("v_mul_lo_u32 v%d, s%d, v%d" % (r, S_T0, t))
    k.e("v_lshrrev_b32 v%d, %d, v%d" % (t, 2 + swz_bit - 1, g.l))
    k.e("v_and_b32 v%d, 2, v%d" % (t, t))
    k.e("v_and_b32 v%d, 3, v%d" % (t2, g.l))
    k.e("v_xor_b32 v%d, v%d, v%d" % (t, t, t2))
    k.e("v_lshl_add_u32 v%d, v%d, 4, v%d" % (r, t, r))


def dma(k, vwo, soff, m0off):
    k.e("s_add_u32 s%d, s%d, 0x%x" % (S_T0, S_WBASE, soff))
    k.e("s_mov_b32 m0, 0x%x" % m0off)
    k.e("buffer_load_dwordx4 v%d, %s, s%d offen lds" % (vwo, srd(SRD_W), S_T0))


_pollid = [0]


def poll_all(k, g, vf):
    k.e("s_mov_b32 s%d, 0" % S_CNT)
    k.e("s_mov_b32 s%d, 0x%x" % (S_T2, FL_KV))
    k.label("L_pa_%s" % k.name)
    k.e("buffer_load_dwordx4 %s, v%d, %s, s%d offen sc1" % (vr(g.pv, 4), g.lin, srd(SRD_F), S_T2))
    k.e("s_waitcnt vmcnt(0)")
    for i in range(4):
        k.e("v_subrev_u32 v%d, v%d, v%d" % (g.pv + i, vf, g.pv + i))
    k.e("v_or3_b32 v%d, v%d, v%d, v%d" % (g.pv, g.pv, g.pv + 1, g.pv + 2))
    k.e("v_or_b32 v%d, v%d, v%d" % (g.pv, g.pv, g.pv + 3))
    k.e("v_and_b32 v%d, 0xffffff9f, v%d" % (g.pv, g.pv))
    k.e("v_cmp_ne_u32 vcc, 0, v%d" % g.pv)
    k.e("s_cbranch_vccz L_ga_%s" % k.name)
    k.e("s_sleep %d" % POLL_SLEEP)
    k.e("s_add_u32 s%d, s%d, 1" % (S_CNT, S_CNT))
    k.e("s_cmp_lt_u32 s%d, %d" % (S_CNT, POLL_MAX))
    k.e("s_cbranch_scc1 L_pa_%s" % k.name)
    k.label("L_ga_%s" % k.name)


def loader(k, g):
    v3072, v1024, v1024k, v2752 = k.alloc(), k.alloc(), k.alloc(), k.alloc()
    t, t2 = k.alloc(), k.alloc()
    g.pv = k.alloc(4, 4)
    w_lane(k, g, v3072, 3072, 3, t, t2)
    w_lane(k, g, v1024, 1024, 3, t, t2)
    w_lane(k, g, v1024k, 1024, 2, t, t2)
    w_lane(k, g, v2752, 2752, 3, t, t2)
    g.l4 = k.alloc()
    k.e("v_lshlrev_b32 v%d, 2, v%d" % (g.l4, g.l))
    vfk = k.alloc()
    k.e("v_and_b32 v%d, 0xffffffe0, v%d" % (vfk, g.tmp))
    k.e("v_add_u32 v%d, 0x%x, v%d" % (vfk, NONCE_K - 32, vfk))

    pz = k.alloc(4, 4)
    for i in range(4):
        k.e("v_mov_b32 v%d, -1" % (pz + i))

    def mark(sb, off, mod=None):
        k.e("s_add_u32 s%d, s%d, 0x%x" % (S_P0, sb, off & ~1023))
        k.e("buffer_store_dwordx4 %s, v%d, %s, s%d offen offset:%d%s" % (vr(pz, 4), g.lin, srd(SRD_SO), S_P0, off & 1023, PSC if mod is None else mod))

    def m_n(regs, sts):
        k.e("s_lshl_b32 s%d, s%d, 16" % (S_T1, S_RB))
        k.e("s_lshl_b32 s%d, s%d, 11" % (S_T2, S_CB))
        k.e("s_add_u32 s%d, s%d, s%d" % (S_T1, S_T1, S_T2))
        for r in regs:
            for wv in range(4):
                for u in range(2):
                    mark(S_T1, r + wv * 16384 + u * 1024, " sc1" if r == R_H and wv in (0, 3) else None)
        k.e("s_lshl_b32 s%d, s%d, 14" % (S_T1, S_CB))
        k.e("s_lshl_b32 s%d, s%d, 9" % (S_T2, S_RB))
        k.e("s_add_u32 s%d, s%d, s%d" % (S_T1, S_T1, S_T2))
        k.e("s_mov_b64 exec, 0xffffffff")
        for r in sts:
            mark(S_T1, r)
        k.e("s_mov_b64 exec, -1")

    def m_h3():
        k.e("s_mul_i32 s%d, s%d, %d" % (S_T1, S_RBW, 128 * 2752))
        k.e("s_lshl_b32 s%d, s%d, 10" % (S_T2, S_CU3))
        k.e("s_add_u32 s%d, s%d, s%d" % (S_T1, S_T1, S_T2))
        for j in range(8):
            for u in range(3):
                mark(S_T1, R_H3 + j * 16 * 2752 + u * 1024)

    def setw(idx, size, sreg, sh):
        make_srd(k, SRD_W, ("in", idx), size)
        k.e("s_lshl_b32 s%d, s%d, %d" % (S_WBASE, sreg, sh))

    def units(vwo, wrow, ucol, ub, us, js=range(8)):
        for j in js:
            for wv in range(4):
                for u in us:
                    dma(k, vwo, u * ucol + j * 64 * wrow + wv * 16 * wrow, ub[u] + j * 4096 + wv * 1024)

    def d_qkv(us, js=range(8)):
        setw(IN_WQKV, 512 * 3072, S_CBW, 6)
        units(v3072, 3072, 1024, U_QKV, us, js)

    def d_512(idx, vwo, ub, us, js=range(8)):
        setw(idx, 512 * 1024, S_CB, 7)
        units(vwo, 1024, 64, ub, us, js)

    def blocks(vwo, wrow, woff, bl):
        for s_ in sorted({b[1] for b in bl}):
            for hf in range(2):
                for u in sorted(b[0] for b in bl if b[1] == s_):
                    dma(k, vwo, u * 64 + (s_ * 32 + hf * 16) * wrow, woff(u, s_) + hf * 1024)

    def d_w2(half):
        setw(IN_W2, 512 * 1024, S_CB, 7)
        blocks(v1024, 1024, woffk(U_W2), [(u, s_) for s_ in range(8 * half, 8 * half + 8) for u in range(2)])

    def d_w3(bl):
        setw(IN_W3, 512 * 2752, S_CU3, 6)
        blocks(v2752, 2752, woff3, bl)

    wl = w_tb(k, g, False, 1, lambda u, s_: 65536 * s_, 3)
    ones = k.alloc(4, 4)
    fr = [k.alloc(4, 4) for _ in range(4)]
    caq, ca1, ca3 = [[k.alloc(4, 4) for _ in range(n_)] for n_ in (6, 4, 6)]
    wph, wph2 = k.alloc(4, 4), k.alloc(4, 4)
    vcw = k.alloc()
    seen = set()

    def colsum(woff, ca, bl):
        wl.woff = woff
        fl = [(u, s_, tt) for (u, s_) in bl for tt in range(2)]
        k.lg = []

        def rd(j):
            u, s_, tt = fl[j]
            tr_reads(k, wl, fr[j % 4], u, tt, s_, "c%d" % j)
        for j in range(3):
            rd(j)
        for j in range(len(fl)):
            u, s_, tt = fl[j]
            if j + 3 < len(fl):
                rd(j + 3)
            k.e("s_waitcnt lgkmcnt(%d)" % lgn(k, "c%d" % j))
            a = ca[2 * u + tt]
            k.e("v_mfma_f32_16x16x32_bf16 %s, %s, %s, %s" % (vr(a, 4), vr(fr[j % 4], 4), vr(ones, 4), vr(a, 4) if a in seen else "0"))
            seen.add(a)

    def cs_out(ca, base):
        k.e("s_nop 7")
        k.e("s_mov_b32 exec_lo, 0x00010001")
        k.e("s_mov_b32 exec_hi, 0x00010001")
        for c in range(len(ca)):
            k.e("ds_write_b128 v%d, %s offset:%d" % (vcw, vr(ca[c], 4), base - CSX_W + 64 * c))
        k.e("s_mov_b64 exec, -1")

    def d_w4(js):
        setw(IN_W4, F * 1024, S_CB, 7)
        for j in js:
            for wv in range(4):
                dma(k, v1024, j * 32 * 1024 + (wv & 1) * 64 + (wv >> 1) * 16384, woff4(wv & 1, j) + (wv >> 1) * 1024)

    def B():
        k.e("s_barrier")

    vpf = k.alloc()
    k.e("v_lshlrev_b32 v%d, %d, v%d" % (vpf, PFS, g.l))

    def warm(idx, size, bit):
        if not L2W & bit:
            return
        make_srd(k, SRD_R, ("in", idx), size)
        per = size // 32
        k.e("s_and_b32 s%d, s%d, 3" % (S_T0, S_RB))
        k.e("s_lshl_b32 s%d, s%d, 3" % (S_T0, S_T0))
        k.e("s_add_u32 s%d, s%d, s%d" % (S_T0, S_T0, S_CB))
        k.e("s_mul_i32 s%d, s%d, %d" % (S_T0, S_T0, per))
        step = 64 << PFS
        for o in range(0, per, step):
            k.e("buffer_load_dword v%d, v%d, %s, s%d offen" % (t2, vpf, srd(SRD_R), S_T0))
            if o + step < per:
                k.e("s_add_u32 s%d, s%d, %d" % (S_T0, S_T0, step))

    def phase(b1b, cnt=0):
        stamp(k, g, ld=True)
        k.e("s_waitcnt vmcnt(%d)" % cnt)
        stamp(k, g, ld=True)
        k.e("s_barrier")
        if b1b:
            k.e("s_barrier")
        stamp(k, g, ld=True)

    _nl = [0]

    def not_last(f):
        i = _nl[0]
        _nl[0] += 1
        k.e("s_cmp_lg_u32 s%d, 0" % S_LAYER)
        k.e("s_cbranch_scc1 L_nl%d_%s" % (i, k.name))
        f()
        k.label("L_nl%d_%s" % (i, k.name))

    _wb = [0]

    def wb(layer):
        i = _wb[0]
        _wb[0] += 1
        k.e("s_and_b32 s%d, s%d, 3" % (S_T0, S_RB))
        k.e("s_or_b32 s%d, s%d, s%d" % (S_T0, S_T0, S_CB))
        k.e("s_xor_b32 s%d, s%d, %d" % (S_T1, S_LAYER, layer))
        k.e("s_or_b32 s%d, s%d, s%d" % (S_T0, S_T0, S_T1))
        k.e("s_cmp_lg_u32 s%d, 0" % S_T0)
        k.e("s_cbranch_scc1 L_wb%d_%s" % (i, k.name))
        k.e("buffer_wbl2 sc1")
        k.label("L_wb%d_%s" % (i, k.name))

    def tch():
        for i in range(4):
            k.e("s_lshl_b32 s%d, s2, 2" % S_CNT)
            k.e("s_add_u32 s%d, s%d, %d" % (S_CNT, S_CNT, i))
            touch(k, g, t2, [(IN_W1, 128), (IN_W2, 128), (IN_W3, 344), (IN_W4, 344)])

    wq = woff512(U_QKV)
    kvs = lambda j: colsum(wq, caq, [(u, s_) for s_ in range(4 * j, 4 * j + 4) for u in (1, 2)])
    d_qkv([1, 2], range(PJ))
    for i in range(4):
        k.e("v_mov_b32 v%d, 0x3f803f80" % (ones + i))
    k.e("v_lshlrev_b32 v%d, 4, v%d" % (vcw, g.g))
    k.e("v_add_u32 v%d, 0x%x, v%d" % (vcw, CSX_W, vcw))
    if PCS:
        stamp(k, g, ld=True)
        k.e("s_waitcnt vmcnt(%d)" % (8 * (PJ - 2)))
        stamp(k, g, ld=True)
        kvs(0)
    d_qkv([1, 2], range(PJ, 8))
    make_srd(k, SRD_R, ("in", IN_WPHI), 32 * 512)
    k.e("v_lshlrev_b32 v%d, 7, v%d" % (t, g.g))
    k.e("v_lshl_add_u32 v%d, v%d, 1, v%d" % (t, g.m, t))
    k.e("s_lshl_b32 s%d, s%d, 10" % (S_T0, S_CBW))
    for hh in range(2):
        for j in range(4):
            k.e("buffer_load_ushort v%d, v%d, %s, s%d offen offset:%d" % (
                (wph if j & 1 == 0 else wph2) + 2 * hh + (j >> 1), t, srd(SRD_R), S_T0, 512 * hh + 32 * j))
    d_qkv([0], range(PQ))
    for j in range(1, PCS):
        stamp(k, g, ld=True)
        k.e("s_waitcnt vmcnt(%d)" % min(63, 8 * (6 - 2 * j) + 8 + 4 * PQ))
        stamp(k, g, ld=True)
        kvs(j)
    phase(False, cnt=min(63, 8 * (8 - QH) + 8 + 4 * PQ))
    k.label("L_llayer_%s" % k.name)
    make_srd(k, SRD_F, ("l", R_FL), FLSZ)
    make_srd(k, SRD_SO, ("l", 0), 2 * LSTRIDE)

    def pf2():
        if PQ < 8:
            d_qkv([0], range(PQ, 8))
        k.e("s_waitcnt vmcnt(32)")
        for i in range(4):
            k.e("v_lshl_or_b32 v%d, v%d, 16, v%d" % (wph + i, wph2 + i, wph + i))
        for j in range(PCS, 4):
            if BH and j == PBH:
                B()
            kvs(j)
        if BH and PBH == 4:
            B()
        k.e("s_waitcnt vmcnt(0)")
        if TP == 1:
            tch()
        k.e("s_lshl_b32 s%d, s%d, 5" % (S_T0, S_RB))
        k.e("s_lshl_b32 s%d, s%d, 2" % (S_T1, S_CB))
        k.e("s_add_u32 s%d, s%d, s%d" % (S_T0, S_T0, S_T1))
        k.e("s_add_u32 s%d, s%d, 0x%x" % (S_T0, S_T0, FL_KV))
        k.e("s_mov_b64 exec, 1")
        k.e("buffer_store_dword v%d, v%d, %s, s%d offen sc1" % (g.one, g.l64, srd(SRD_F), S_T0))
        k.e("s_mov_b64 exec, -1")
        colsum(wq, caq, [(0, s_) for s_ in range(16)])
    not_last(pf2)
    if BH:
        k.e("s_cmp_eq_u32 s%d, 0" % S_LAYER)
        k.e("s_cbranch_scc1 L_lh_%s" % k.name)
        k.e("s_waitcnt vmcnt(32)")
        B()
        k.label("L_lh_%s" % k.name)
    cs_out(caq, CSX_W)
    k.e("v_add_u32 v%d, 0x%x, v%d" % (t, CSX_W + 1024, g.lin))
    k.e("ds_write_b128 v%d, %s" % (t, vr(wph, 4)))
    k.e("s_cmp_eq_u32 s%d, 0" % S_LAYER)
    k.e("s_cbranch_scc1 L_lq_%s" % k.name)
    k.e("s_waitcnt vmcnt(0)")
    k.label("L_lq_%s" % k.name)
    k.e("s_waitcnt lgkmcnt(0)")
    B()
    if TP == 0:
        not_last(tch)
    B()
    stamp(k, g, ld=True)
    warm(IN_W1, 512 * 1024, 1)
    warm(IN_W2, 512 * 1024, 2)
    warm(IN_W3, 512 * 2752, 4)
    warm(IN_W4, F * 1024, 8)
    d_512(IN_WO, v1024k, U_WO, [0, 1], range(7))
    m_n([R_XA, R_H, R_X1], [ST_XA, ST_X1])
    d_512(IN_W1, v1024, U_W1, [0])
    k.e("s_waitcnt vmcnt(32)")
    B()
    d_512(IN_WO, v1024k, U_WO, [0, 1], range(7, 8))
    d_512(IN_W1, v1024, U_W1, [1])

    def hs():
        poll_all(k, g, vfk)
        B()
        colsum(woff512(U_W1), ca1, [(u, s_) for s_ in range(16) for u in range(2)])
    not_last(hs)
    k.e("s_waitcnt vmcnt(32)")
    B()
    B()
    d_w2(0)
    m_h3()
    k.e("s_waitcnt vmcnt(56)")
    B()
    stamp(k, g, ld=True)
    cs_out(ca1, CSX_1)
    if LV & 1:
        k.e("s_sleep %d" % LS1)
        d_w2(1)
        k.e("s_waitcnt lgkmcnt(0)")
        B()
    else:
        k.e("s_waitcnt lgkmcnt(0)")
        B()
        d_w2(1)
    d_w3([(u, s_) for s_ in range(6) for u in range(2)])
    k.e("s_waitcnt vmcnt(24)")
    B()
    stamp(k, g, ld=True)
    if LS2:
        k.e("s_sleep %d" % LS2)
    d_w3([(u, s_) for s_ in range(6, 8) for u in range(2)])
    d_w3([(u, s_) for s_ in range(8, 16) for u in range(3)])
    not_last(lambda: m_n([LSTRIDE + R_XIN], [LSTRIDE + ST_XIN]))
    k.e("s_waitcnt vmcnt(0)")
    B()
    stamp(k, g, ld=True)
    if LS3:
        k.e("s_sleep %d" % LS3)
    d_w3([(2, s_) for s_ in range(8)])

    def f4():
        colsum(woff3, ca3, [(u, s_) for s_ in range(16) for u in range(3) if u < 2 or s_ >= 8])
        k.e("s_waitcnt vmcnt(0)")
        colsum(woff3, ca3, [(2, s_) for s_ in range(8)])
    not_last(f4)
    cs_out(ca3, CSX_W)
    k.e("s_waitcnt vmcnt(0) lgkmcnt(0)")
    B()
    B()
    stamp(k, g, ld=True)
    warm(IN_W4, F * 1024, 32)
    if L2W & 16:
        not_last(lambda: warm(IN_WQKV, 512 * 3072, 16))
    d_w4(range(0, W4S))
    phase(False, cnt=min(63, 4 * (W4S - 10)))
    if LS4:
        k.e("s_sleep %d" % LS4)
    d_w4(range(W4S, 40))
    k.e("s_waitcnt vmcnt(63)")
    B()
    k.e("s_waitcnt vmcnt(0)")
    not_last(lambda: d_qkv([2], range(QH)))
    B()
    d_w4(range(40, 43))
    B()
    not_last(lambda: d_qkv([1], range(QH)))
    B()
    k.e("s_cmp_lg_u32 s%d, 0" % S_LAYER)
    k.e("s_cbranch_scc1 L_lw_%s" % k.name)
    k.e("s_waitcnt vmcnt(%d)" % (4 * QH))
    B()
    k.e("s_waitcnt vmcnt(0)")
    B()
    if LS5:
        k.e("s_sleep %d" % LS5)
    d_qkv([1, 2], range(QH, 8))
    d_qkv([0])
    stamp(k, g, ld=True)
    k.e("s_add_u32 s%d, s%d, 0x%x" % (S_WSL, S_WSL, LSTRIDE))
    k.e("s_addc_u32 s%d, s%d, 0" % (S_WSH, S_WSH))
    k.e("s_mov_b32 s%d, 1" % S_LAYER)
    k.e("s_branch L_llayer_%s" % k.name)
    k.label("L_lw_%s" % k.name)
    k.e("s_waitcnt vmcnt(0)")
    B()
    B()
    if STAMP and STAMPW == 4:
        stamp(k, g, ld=True)
        k.e("s_cmp_lg_u32 s2, %d" % (STAMP - 1))
        k.e("s_cbranch_scc1 L_lf2_%s" % k.name)
        make_srd(k, 8, ("in", DBG), 256)
        k.e("buffer_store_dword v%d, v%d, s[8:11], 0 offen" % (g.vst, g.l4))
        k.label("L_lf2_%s" % k.name)
    k.e("s_and_b32 s%d, s%d, 3" % (S_T0, S_RB))
    k.e("s_or_b32 s%d, s%d, s%d" % (S_T0, S_T0, S_CB))
    k.e("s_cmp_lg_u32 s%d, 0" % S_T0)
    k.e("s_cbranch_scc1 L_end_%s" % k.name)
    make_srd(k, SRD_F, ("ws", R_FL), FLSZ)
    k.e("s_lshl_b32 s%d, s%d, 5" % (S_T0, S_RB))
    k.e("s_add_u32 s%d, s%d, 0x%x" % (S_T0, S_T0, FL_TK))
    k.e("v_mov_b32 v%d, 96" % t)
    k.e("s_mov_b64 exec, 1")
    k.e("buffer_atomic_add v%d, v%d, %s, s%d offen%s" % (t, g.l64, srd(SRD_F), S_T0, ASC))


PF = int(os.environ.get("PF", "7"))
PFD = int(os.environ.get("PFD", "6"))


def touch(k, g, dst, parts):
    k.e("s_mov_b32 s%d, s%d" % (SRD_W, PTR(parts[0][0])))
    k.e("s_mov_b32 s%d, s%d" % (SRD_W + 1, PTR(parts[0][0]) + 1))
    k.e("s_mov_b32 s%d, s%d" % (S_T2, S_CNT))
    base = 0
    for j in range(1, len(parts)):
        base += parts[j - 1][1]
        k.e("s_sub_u32 s%d, s%d, %d" % (S_T1, S_CNT, base))
        k.e("s_cmp_ge_u32 s%d, %d" % (S_CNT, base))
        k.e("s_cselect_b32 s%d, s%d, s%d" % (SRD_W, PTR(parts[j][0]), SRD_W))
        k.e("s_cselect_b32 s%d, s%d, s%d" % (SRD_W + 1, PTR(parts[j][0]) + 1, SRD_W + 1))
        k.e("s_cselect_b32 s%d, s%d, s%d" % (S_T2, S_T1, S_T2))
    k.e("s_min_u32 s%d, s%d, %d" % (S_T2, S_T2, max(n for _, n in parts) - 1))
    if base + parts[-1][1] < 1024:
        k.e("s_cmp_ge_u32 s%d, %d" % (S_CNT, base + parts[-1][1]))
        k.e("s_cselect_b32 s%d, 0, s%d" % (S_T2, S_T2))
    k.e("s_lshl_b32 s%d, s%d, 12" % (S_T2, S_T2))
    k.e("s_mov_b32 s%d, 0x200000" % (SRD_W + 2))
    k.e("s_mov_b32 s%d, 0x00020000" % (SRD_W + 3))
    k.e("buffer_load_dword v%d, v%d, %s, s%d offen" % (dst, g.l64, srd(SRD_W), S_T2))


def k_main(name):
    k = Kern(name)
    k.stubs = []
    g = G()
    k.e("s_cmp_ge_u32 s2, 256")
    k.e("s_cbranch_scc1 L_end_%s" % k.name)
    if RT:
        k.e("s_memrealtime s[88:89]")
    k.e("s_load_dwordx16 s[64:79], s[0:1], 0")
    k.e("s_load_dwordx8 s[80:87], s[0:1], 64")
    g.w = k.alloc()
    g.l = k.alloc()
    g.g = k.alloc()
    g.m = k.alloc()
    g.lin = k.alloc()
    g.one = k.alloc()
    g.l128 = k.alloc()
    g.vsw = k.alloc()
    g.vst = k.alloc()
    g.l64 = k.alloc()
    g.tmp = 40
    t = g.w
    k.e("v_lshrrev_b32 v%d, 6, v0" % g.w)
    k.e("v_and_b32 v%d, 63, v0" % g.l)
    k.e("v_readfirstlane_b32 s%d, v%d" % (S_WAVE, g.w))
    k.e("v_lshlrev_b32 v%d, 6, v%d" % (g.l64, g.l))
    k.e("s_getreg_b32 s%d, hwreg(HW_REG_XCC_ID)" % S_T0)
    k.e("s_and_b32 s%d, s%d, 7" % (S_T0, S_T0))
    k.e("v_mov_b32 v%d, 1" % g.one)
    if STAMP:
        k.e("v_mov_b32 v%d, 0" % g.vst)
        k.e("s_mov_b32 s%d, 0" % S_STI)
    k.phase = STAMPG
    k.e("s_cmp_lg_u32 s%d, 4" % S_WAVE)
    k.e("s_cbranch_scc1 L_pf_%s" % k.name)
    k.e("s_lshl_b32 s%d, s%d, 7" % (S_T1, S_T0))
    k.e("s_add_u32 s%d, s%d, 0x%x" % (S_T1, S_T1, FL_TK))
    k.e("s_mov_b32 s%d, 0x%x" % (S_T2, FL_TK))
    k.e("v_lshrrev_b32 v%d, 3, v%d" % (g.tmp, g.l))
    k.e("v_lshlrev_b32 v%d, 7, v%d" % (g.tmp, g.tmp))
    k.e("s_mov_b32 s%d, 0x%x" % (SRD_F + 2, FLSZ))
    k.e("s_mov_b32 s%d, 0x00020000" % (SRD_F + 3))
    k.e("s_mov_b64 exec, 1")
    k.e("s_waitcnt lgkmcnt(0)")
    k.e("s_add_u32 s%d, s%d, 0x%x" % (SRD_F, PTR(WS), R_FL))
    k.e("s_addc_u32 s%d, s%d, 0" % (SRD_F + 1, PTR(WS) + 1))
    k.e("buffer_atomic_add v%d, v%d, %s, s%d offen sc0%s" % (g.one, g.l64, srd(SRD_F), S_T1, ASC))
    k.e("s_mov_b64 exec, -1")
    k.e("buffer_load_dword v%d, v%d, %s, s%d offen sc1" % (g.tmp, g.tmp, srd(SRD_F), S_T2))
    stamp(k, g)
    k.e("v_mov_b32 v%d, 0x%x" % (t, LDS_TK))
    k.e("s_mov_b64 exec, 1")
    k.e("s_waitcnt vmcnt(1)")
    k.e("ds_write_b32 v%d, v%d" % (t, g.one))
    k.e("s_mov_b64 exec, -1")
    stamp(k, g)
    k.e("s_branch L_nt_%s" % k.name)
    k.label("L_pf_%s" % k.name)
    if PF & 4:
        k.e("s_getpc_b64 s[%d:%d]" % (SRD_W, SRD_W + 1))
        k.label("L_pc_%s" % k.name)
        k.e("s_sub_u32 s%d, s%d, L_pc_%s-%s" % (SRD_W, SRD_W, k.name, k.name))
        k.e("s_subb_u32 s%d, s%d, 0" % (SRD_W + 1, SRD_W + 1))
        k.e("s_mov_b32 s%d, L_end_%s-%s" % (SRD_W + 2, k.name, k.name))
        k.e("s_mov_b32 s%d, 0x00020000" % (SRD_W + 3))
        k.e("s_lshr_b32 s%d, s2, 6" % S_T2)
        k.e("s_lshl_b32 s%d, s%d, 2" % (S_T2, S_T2))
        k.e("s_add_u32 s%d, s%d, s%d" % (S_T2, S_T2, S_WAVE))
        k.e("s_lshl_b32 s%d, s%d, 12" % (S_T2, S_T2))
        k.e("buffer_load_dword v%d, v%d, %s, s%d offen" % (42, g.l64, srd(SRD_W), S_T2))
        if PF & 32:
            k.e("s_add_u32 s%d, s%d, 0x10000" % (S_T2, S_T2))
            k.e("buffer_load_dword v%d, v%d, %s, s%d offen" % (43, g.l64, srd(SRD_W), S_T2))
    stamp(k, g)
    k.e("s_lshl_b32 s%d, s2, 2" % S_CNT)
    k.e("s_add_u32 s%d, s%d, s%d" % (S_CNT, S_CNT, S_WAVE))
    k.e("s_waitcnt lgkmcnt(0)")
    if PFD:
        k.e("s_sleep %d" % PFD)
    if PF & 1:
        touch(k, g, 41, [(IN_X, 512), (IN_WQKV, 384), (IN_WO, 128)])
    if PF & 8:
        k.e("s_getreg_b32 s%d, hwreg(HW_REG_HW_ID)" % S_T1)
        k.e("s_bfe_u32 s%d, s%d, 0x2000d" % (S_T2, S_T1))
        k.e("s_bfe_u32 s%d, s%d, 0x30008" % (S_T1, S_T1))
        k.e("s_lshl_b32 s%d, s%d, 3" % (S_T2, S_T2))
        k.e("s_add_u32 s%d, s%d, s%d" % (S_T1, S_T1, S_T2))
        k.e("s_lshl_b32 s%d, s%d, 2" % (S_T1, S_T1))
        k.e("s_add_u32 s%d, s%d, s%d" % (S_T1, S_T1, S_WAVE))
        k.e("v_lshlrev_b32 v%d, 7, v%d" % (g.l128, g.l))
        make_srd(k, SRD_W, ("in", IN_X), XBYTES)
        k.e("s_lshl_b32 s%d, s%d, 18" % (S_T2, S_T0))
        k.e("s_lshl_b32 s%d, s%d, 11" % (S_CNT, S_T1))
        k.e("s_add_u32 s%d, s%d, s%d" % (S_T2, S_T2, S_CNT))
        k.e("s_mov_b64 exec, 0xffff")
        k.e("buffer_load_dword v%d, v%d, %s, s%d offen" % (41, g.l128, srd(SRD_W), S_T2))
        k.e("s_mov_b64 exec, -1")
        make_srd(k, SRD_W, ("in", IN_WQKV), 512 * 3072)
        k.e("s_mul_i32 s%d, s%d, 12288" % (S_T2, S_T1))
        k.e("buffer_load_dword v%d, v%d, %s, s%d offen" % (43, g.l128, srd(SRD_W), S_T2))
        k.e("s_add_u32 s%d, s%d, 8192" % (S_T2, S_T2))
        k.e("s_mov_b64 exec, 0xffffffff")
        k.e("buffer_load_dword v%d, v%d, %s, s%d offen" % (44, g.l128, srd(SRD_W), S_T2))
        if PF & 16:
            make_srd(k, SRD_W, ("in", IN_WO), 512 * 1024)
            k.e("s_lshl_b32 s%d, s%d, 12" % (S_T2, S_T1))
            k.e("buffer_load_dword v%d, v%d, %s, s%d offen" % (45, g.l128, srd(SRD_W), S_T2))
        k.e("s_mov_b64 exec, -1")
    k.label("L_nt_%s" % k.name)
    k.e("v_lshrrev_b32 v%d, 4, v%d" % (g.g, g.l))
    k.e("v_and_b32 v%d, 15, v%d" % (g.m, g.l))
    k.e("v_lshlrev_b32 v%d, 4, v%d" % (g.lin, g.l))
    k.e("v_lshlrev_b32 v%d, 7, v%d" % (g.l128, g.l))
    k.e("v_and_b32 v%d, 1, v%d" % (t, g.g))
    k.e("v_lshlrev_b32 v%d, 9, v%d" % (g.vsw, t))
    k.e("v_lshrrev_b32 v%d, 1, v%d" % (t, g.g))
    k.e("v_lshl_add_u32 v%d, v%d, 8, v%d" % (g.vsw, t, g.vsw))
    k.e("v_lshl_add_u32 v%d, v%d, 4, v%d" % (g.vsw, g.m, g.vsw))
    k.e("v_mov_b32 v%d, 0x%x" % (t, LDS_TK))
    k.e("s_waitcnt lgkmcnt(0)")
    k.e("s_barrier")
    k.e("ds_read_b32 v%d, v%d" % (t, t))
    k.e("s_waitcnt lgkmcnt(0)")
    k.e("s_barrier")
    k.e("v_readfirstlane_b32 s%d, v%d" % (S_T1, t))
    k.e("v_and_b32 v%d, 0xffffffe0, v%d" % (g.one, t))
    k.e("v_add_u32 v%d, 0x%x, v%d" % (g.one, NONCE_K, g.one))
    k.e("v_readfirstlane_b32 s%d, v%d" % (S_FP, g.one))
    k.e("s_sub_u32 s%d, s%d, 32" % (S_FP, S_FP))
    k.e("s_and_b32 s%d, s%d, 31" % (S_T1, S_T1))
    k.e("s_lshr_b32 s%d, s%d, 3" % (S_RB, S_T1))
    k.e("s_lshl_b32 s%d, s%d, 2" % (S_T2, S_T0))
    k.e("s_add_u32 s%d, s%d, s%d" % (S_RB, S_RB, S_T2))
    k.e("s_and_b32 s%d, s%d, 7" % (S_CB, S_T1))
    k.e("s_lshr_b32 s%d, s%d, 4" % (S_RBW, S_T1))
    k.e("s_lshl_b32 s%d, s%d, 1" % (S_T2, S_T0))
    k.e("s_add_u32 s%d, s%d, s%d" % (S_RBW, S_RBW, S_T2))
    k.e("s_and_b32 s%d, s%d, 15" % (S_CBW, S_T1))
    k.e("s_lshl_b32 s%d, s%d, 6" % (S_TOKN, S_RB))
    k.e("s_lshl_b32 s%d, s%d, 4" % (S_T0, S_WAVE))
    k.e("s_add_u32 s%d, s%d, s%d" % (S_TOKN, S_TOKN, S_T0))
    k.e("s_lshl_b32 s%d, s%d, 7" % (S_TOKW, S_RBW))
    k.e("s_lshl_b32 s%d, s%d, 5" % (S_T0, S_WAVE))
    k.e("s_add_u32 s%d, s%d, s%d" % (S_TOKW, S_TOKW, S_T0))
    k.e("s_lshl_b32 s%d, s%d, 3" % (S_WGS, S_RB))
    k.e("s_add_u32 s%d, s%d, s%d" % (S_WGS, S_WGS, S_CB))
    k.e("s_lshl_b32 s%d, s%d, 11" % (S_WGS, S_WGS))
    k.e("s_mul_i32 s%d, s%d, 43" % (S_CU3, S_CBW))
    k.e("s_lshr_b32 s%d, s%d, 4" % (S_CU3, S_CU3))
    k.e("s_min_u32 s%d, s%d, 40" % (S_CU3, S_CU3))
    k.e("s_mov_b32 s%d, 0x3f803f80" % S_ONES)
    k.e("s_mov_b32 s%d, 0x%08x" % (S_L2E, f32bits(LOG2E)))
    k.e("s_mov_b32 s%d, 0x%08x" % (S_EPS, f32bits(1e-6)))
    k.e("s_mov_b32 s%d, 0x%08x" % (S_GC, f32bits(-2.0 * LOG2E * math.sqrt(2.0 / math.pi) * 0.044715)))
    k.e("s_mov_b32 s%d, 0x%08x" % (S_GC + 1, f32bits(-2.0 * LOG2E * math.sqrt(2.0 / math.pi))))
    k.e("s_mov_b32 s%d, 0x4000" % S_K16)
    k.e("s_mov_b32 s%d, 0" % S_LAYER)
    k.e("s_mov_b32 s%d, %d" % (S_BUD, BUDGET))
    stamp(k, g)
    k.e("s_waitcnt lgkmcnt(0)")
    k.e("s_mov_b32 s%d, s%d" % (S_WSL, PTR(WS)))
    k.e("s_mov_b32 s%d, s%d" % (S_WSH, PTR(WS) + 1))
    k.e("s_cmp_eq_u32 s%d, 4" % S_WAVE)
    k.e("s_cbranch_scc1 L_loader_%s" % k.name)
    mk = k.mark()
    k.started = True
    k.label("L_layer_%s" % k.name)
    k.e("s_nop 4")
    if STAMP and STAMPL:
        k.e("v_mov_b32 v%d, 0" % g.vst)
        k.e("s_mov_b32 s%d, 0" % S_STI)
    k.phase = "qkv"
    p_qkv(k, g)
    k.phase = "wo"
    p_wo(k, g)
    k.phase = "w1"
    p_w1(k, g)
    k.phase = "w2"
    p_w2(k, g)
    k.phase = "w3"
    p_w3(k, g)
    k.phase = "w4"
    p_w4(k, g)
    k.phase = STAMPG
    if STAMP and STAMPW != 4:
        stamp(k, g)
        k.e("s_waitcnt vmcnt(0)")
        stamp(k, g)
        if STAMP == 1000:
            make_srd(k, 8, ("ws", 128 * MB), MB)
            k.e("s_lshl_b32 s%d, s%d, 3" % (S_T0, S_RB))
            k.e("s_add_u32 s%d, s%d, s%d" % (S_T0, S_T0, S_CB))
            k.e("s_lshl_b32 s%d, s%d, 3" % (S_T0, S_T0))
            k.e("s_add_u32 s%d, s%d, s%d" % (S_T0, S_T0, S_WAVE))
            k.e("s_lshl_b32 s%d, s%d, 8" % (S_T0, S_T0))
            k.e("v_lshlrev_b32 v%d, 2, v%d" % (g.w, g.l))
            k.e("buffer_store_dword v%d, v%d, s[8:11], s%d offen" % (g.vst, g.w, S_T0))
            k.e("s_branch L_end_%s" % k.name)
        k.e("s_cmp_lg_u32 s2, %d" % (STAMP - 1))
        k.e("s_cbranch_scc1 L_end_%s" % k.name)
        k.e("s_cmp_lg_u32 s%d, 0" % S_WAVE)
        k.e("s_cbranch_scc1 L_end_%s" % k.name)
        make_srd(k, 8, ("in", DBG), 256)
        k.e("v_subrev_u32 v%d, %d, v%d" % (g.w, int(os.environ.get("STAMPOFF", "0")), g.l))
        k.e("v_lshlrev_b32 v%d, 2, v%d" % (g.w, g.w))
        k.e("buffer_store_dword v%d, v%d, s[8:11], 0 offen" % (g.vst, g.w))
    if RT:
        k.e("s_waitcnt vmcnt(0)")
        k.e("s_memrealtime s[90:91]")
        k.e("s_cmp_lg_u32 s%d, 0" % S_WAVE)
        k.e("s_cbranch_scc1 L_end_%s" % k.name)
        make_srd(k, 8, ("in", DBG), 65536)
        k.e("s_waitcnt lgkmcnt(0)")
        k.e("v_mov_b32 v0, s88")
        k.e("v_mov_b32 v1, s90")
        k.e("v_mov_b32 v2, s%d" % S_RB)
        k.e("v_mov_b32 v3, s%d" % S_CB)
        k.e("s_lshl_b32 s%d, s2, 4" % S_T0)
        k.e("s_mov_b64 exec, 1")
        k.e("buffer_store_dwordx4 v[0:3], v%d, s[8:11], s%d offen" % (g.lin, S_T0))
    k.e("s_branch L_end_%s" % k.name)
    if not PF & 64:
        k.lines += k.stubs
    k.release(mk)
    k.label("L_loader_%s" % k.name)
    k.e("s_waitcnt vmcnt(0)")
    loader(k, g)
    if PF & 64:
        k.e("s_branch L_end_%s" % k.name)
        k.lines += k.stubs
    k.label("L_end_%s" % k.name)
    k.e("s_endpgm")
    return k, 256, 320, 163840


HEADER = """; Kernarg layout for this problem (96 bytes, ptrs only, base s[0:1]):
;   offset  88: d_ws      268435456 bytes workspace
"""


def build():
    kernels = [k_main("main_kernel")]
    out = [HEADER.rstrip("\n")]
    for (k, nwg, blk, lds) in kernels:
        out.append("; @launch kernel=%s grid=(%d,1,1) block=(%d,1,1) lds=%d" % (k.name, nwg, blk, lds))
    out.append('.amdgcn_target "amdgcn-amd-amdhsa--gfx950"')
    out.append(".text")
    for (k, nwg, blk, lds) in kernels:
        out.append(".globl %s" % k.name)
        out.append(".p2align 8")
        out.append(".type %s,@function" % k.name)
        out.append("%s:" % k.name)
        out += hazard_pass(k.lines)
    out.append('.section .rodata,"a"')
    for (k, nwg, blk, lds) in kernels:
        nv = (k.maxv + 7) // 8 * 8
        out.append(".p2align 6")
        out.append(".amdhsa_kernel %s" % k.name)
        out.append("  .amdhsa_next_free_vgpr %d" % nv)
        out.append("  .amdhsa_next_free_sgpr 102")
        out.append("  .amdhsa_accum_offset %d" % nv)
        out.append("  .amdhsa_group_segment_fixed_size 0")
        out.append("  .amdhsa_kernarg_size 96")
        out.append("  .amdhsa_user_sgpr_count 2")
        out.append("  .amdhsa_user_sgpr_kernarg_segment_ptr 1")
        out.append("  .amdhsa_system_sgpr_workgroup_id_x 1")
        out.append(".end_amdhsa_kernel")
    return "\n".join(out) + "\n"


if __name__ == "__main__":
    path = sys.argv[1] if len(sys.argv) > 1 else "cdna_kernels/%s.s" % NAME
    open(path, "w").write(build())
    print("wrote", path)
```

```python
import sys
import os
import math
import struct

sys.path.insert(0, os.path.dirname(os.path.abspath(__file__)))
from asmlib import Kern, vr, interleave, hazard_pass

NAME = "interleave_layers__linear_kernel_hedgehog__mixer_s_mlp__prompt"
S, D, F = 2048, 512, 1376

IN_X, IN_WQKV, IN_WPHI, IN_WO, IN_BX, IN_W1, IN_W2, IN_W3, IN_W4, OUT, DBG, WS = range(12)


def PTR(i):
    return 64 + 2 * i


MB = 1 << 20
LSTRIDE = 32 * MB
R_XIN = 0 * MB
R_XA = 2 * MB
R_O = 4 * MB
R_KVP = 6 * MB
R_H = 8 * MB
R_X1 = 10 * MB
R_H3 = 12 * MB
R_ST = 18 * MB
ST_XIN, ST_XA, ST_X1 = [R_ST + i * 0x20000 for i in range(3)]
R_KVA = 19 * MB
R_FL = 20 * MB
FL_HX = 0xC000
FL_KV = 0x10000
FL_TK = 0xE000
FL_GT = 0xE400
FLSZ = 0x20000
NONCE_K = 0x5bd1e900
LDS_CS = 0x1F000
WS_CS = 64 * MB
CS_QKV, CS_W1, CS_W3 = WS_CS, WS_CS + 0x2000, WS_CS + 0x4000
E_X, E_O, E_XA, E_H, E_X1, E_H3 = range(6)
R512 = int(os.environ.get("R512", "6"))
BIG = 0x10000

XBYTES = S * D * 2
STBYTES = 8 * S * 8
LOG2E = 1.4426950408889634
UN = [i * 32768 for i in range(5)]
LDS_SCR = UN[2]
LDS_TK = 0x27F00
LDS_CSX = UN[3]
U_QKV, U_WO, U_W1, U_W2, U_W3 = [UN[1], UN[0], UN[2]], [UN[3], UN[4]], [UN[0], UN[1]], [UN[2], UN[3]], [UN[4], UN[0], UN[1]]
B_W4 = [UN[2], UN[3], UN[0], UN[4], UN[1], UN[3]]
CSX_W, CSX_1 = UN[3] + 30720, UN[4] + 30720


def woff512(ub):
    return lambda u, s: ub[u] + 2048 * s


def woffk(ub):
    return lambda u, s: ub[s // 8] + u * 16384 + (s % 8) * 2048


def woff3(u, s):
    return U_W3[s // 8] + u * 16384 + (s % 8) * 2048 if u < 2 else U_W3[2] + s * 2048


def woff4(u, s):
    return B_W4[s // 8] + u * 16384 + (s % 8) * 2048

LDS_KV = 0x10000
LDS_Z = 0x18000
POLL_MAX = 40000
PRE_SLEEP = int(os.environ.get("PRE_SLEEP", "0"))
POLL_SLEEP = int(os.environ.get("POLL_SLEEP", "2"))


def f32bits(x):
    return struct.unpack("<I", struct.pack("<f", x))[0]


S_WAVE, S_RB, S_CB, S_RBW, S_CBW, S_T0, S_T1, S_T2 = 32, 33, 34, 35, 36, 37, 38, 39
S_ONES, S_L2E, S_EPS, S_C1, S_C2, S_XO = 40, 41, 42, 43, 44, 45
S_TOKB, S_OB = 46, 47
SRD_X, SRD_W, SRD_O, SRD_R, SRD_R2, SRD_F = 8, 12, 16, 20, 24, 28
SRD_S, SRD_SO = 48, 52
SRD_C = 56
S_WSL, S_WSH, S_LAYER, S_CNT = 60, 61, 62, 63
S_STI, S_TOKN, S_TOKW, S_CU3, S_WBASE, S_K16 = 90, 92, 93, 94, 95, 96
S_GC = 98
S_FP, S_XST, S_WGS = 91, 97, 7

STAMP = int(os.environ.get("STAMP", "0"))
RT = int(os.environ.get("RT", "0"))
DSC = os.environ.get("DSC", "")
LSC = os.environ.get("LSC", " sc1")
PSC = os.environ.get("PSC", "")
S_BUD, S_P0 = 3, 4
BUDGET = 20000
PSL = int(os.environ.get("PSL", "0"))
ASC = os.environ.get("ASC", "")


def make_srd(k, slot, buf, size):
    kind = buf[0]
    if kind == "ws":
        k.e("s_add_u32 s%d, s%d, 0x%x" % (slot, PTR(WS), buf[1]))
        k.e("s_addc_u32 s%d, s%d, 0" % (slot + 1, PTR(WS) + 1))
    elif kind == "l":
        k.e("s_add_u32 s%d, s%d, 0x%x" % (slot, S_WSL, buf[1]))
        k.e("s_addc_u32 s%d, s%d, 0" % (slot + 1, S_WSH))
    elif kind == "n":
        k.e("s_add_u32 s%d, s%d, 0x%x" % (slot, S_WSL, buf[1] + LSTRIDE))
        k.e("s_addc_u32 s%d, s%d, 0" % (slot + 1, S_WSH))
    else:
        idx = buf[1]
        k.e("s_mov_b32 s%d, s%d" % (slot, PTR(idx)))
        k.e("s_mov_b32 s%d, s%d" % (slot + 1, PTR(idx) + 1))
    k.e("s_mov_b32 s%d, 0x%x" % (slot + 2, size))
    k.e("s_mov_b32 s%d, 0x00020000" % (slot + 3))


def srd(slot):
    return "s[%d:%d]" % (slot, slot + 3)


class G:
    pass


STAMPG = os.environ.get("STAMPG", "")


STAMPW = int(os.environ.get("STAMPW", "0"))
STAMPL = int(os.environ.get("STAMPL", "0"))


def stamp(k, g, fine=False, ld=False):
    if not STAMP:
        return
    if ld != (STAMPW == 4) and getattr(k, "started", False):
        return
    if STAMPG and getattr(k, "phase", "") != STAMPG:
        return
    if fine is True and not STAMPG:
        return
    if fine == 2 and not (STAMPG or STAMP == 1000):
        return
    k.e("s_memrealtime s[88:89]" if STAMP == 1000 else "s_memtime s[88:89]")
    k.e("s_waitcnt lgkmcnt(0)")
    k.e("s_mov_b32 m0, s%d" % S_STI)
    k.e("s_nop 0")
    k.e("v_writelane_b32 v%d, s88, m0" % g.vst)
    k.e("s_add_u32 s%d, s%d, 1" % (S_STI, S_STI))
    k.e("s_min_u32 s%d, s%d, 63" % (S_STI, S_STI))


def allreduce(x, t, op):
    return [
        "v_mov_b32 v%d, v%d" % (t, x),
        "v_permlane32_swap_b32 v%d, v%d" % (x, t),
        "%s v%d, v%d, v%d" % (op, x, x, t),
        "v_mov_b32 v%d, v%d" % (t, x),
        "v_permlane16_swap_b32 v%d, v%d" % (x, t),
        "%s v%d, v%d, v%d" % (op, x, x, t),
    ]


def stats_finish(st, double=False, part=True):
    o = []
    s_, q_, t0, t1 = st, st + 1, st + 2, st + 3
    if part:
        o.append("v_add_f32 v%d, v%d, v%d" % (s_, st, st + 2))
        o.append("v_add_f32 v%d, v%d, v%d" % (q_, st + 1, st + 3))
    o += interleave(allreduce(s_, t0, "v_add_f32"), allreduce(q_, t1, "v_add_f32"))
    o.append("v_mul_f32 v%d, 0x%08x, v%d" % (s_, f32bits(1.0 / 512), s_))
    o.append("v_mul_f32 v%d, 0x%08x, v%d" % (q_, f32bits(1.0 / 512), q_))
    o.append("v_fma_f32 v%d, -v%d, v%d, v%d" % (q_, s_, s_, q_))
    o.append("v_max_f32 v%d, 0, v%d" % (q_, q_))
    o.append("v_add_f32 v%d, 0x%08x, v%d" % (t0, f32bits(1e-5), q_))
    o.append("v_rsq_f32 v%d, v%d" % (t0, t0))
    if double:
        o.append("v_mul_f32 v%d, v%d, v%d" % (t1, t0, t0))
        o.append("v_mul_f32 v%d, v%d, v%d" % (t1, t1, q_))
        o.append("v_add_f32 v%d, 0x%08x, v%d" % (t1, f32bits(1e-5), t1))
        o.append("v_rsq_f32 v%d, v%d" % (t1, t1))
        o.append("s_nop 0")
        o.append("v_mul_f32 v%d, v%d, v%d" % (t0, t0, t1))
    o.append("v_mul_f32 v%d, v%d, v%d" % (st + 1, s_, t0))
    o.append("v_sub_f32 v%d, 0, v%d" % (st + 1, st + 1))
    o.append("v_mov_b32 v%d, v%d" % (st, t0))
    return o


def stats_fold(st, mode):
    o = []
    s_, q_, t0, t1 = st, st + 1, st + 2, st + 3
    o.append("v_add_f32 v%d, v%d, v%d" % (s_, st, st + 2))
    o.append("v_add_f32 v%d, v%d, v%d" % (q_, st + 1, st + 3))
    o += interleave(allreduce(s_, t0, "v_add_f32"), allreduce(q_, t1, "v_add_f32"))
    o.append("v_mul_f32 v%d, 0x%08x, v%d" % (t1, f32bits(-1.0 / 512), s_))
    o.append("v_mul_f32 v%d, 0x%08x, v%d" % (q_, f32bits(1.0 / 512), q_))
    o.append("v_fma_f32 v%d, -v%d, v%d, v%d" % (q_, t1, t1, q_))
    o.append("v_max_f32 v%d, 0, v%d" % (q_, q_))
    o.append("v_add_f32 v%d, 0x%08x, v%d" % (t0, f32bits(1e-5), q_))
    o.append("v_rsq_f32 v%d, v%d" % (s_, t0))
    if mode == "r":
        return o
    if mode == "g":
        o.append("v_mul_f32 v%d, v%d, v%d" % (t0, t0, s_))
    else:
        o.append("v_mul_f32 v%d, v%d, v%d" % (t0, s_, s_))
        o.append("v_mul_f32 v%d, v%d, v%d" % (t0, t0, q_))
        o.append("v_add_f32 v%d, 0x%08x, v%d" % (t0, f32bits(1e-5), t0))
        o.append("v_rsq_f32 v%d, v%d" % (t0, t0))
        o.append("v_mul_f32 v%d, v%d, v%d" % (s_, s_, t0))
        o.append("v_rcp_f32 v%d, v%d" % (t0, s_))
    o.append("v_mul_f32 v%d, s%d, v%d" % (q_, S_GC + 1, s_))
    o.append("v_mul_f32 v%d, v%d, v%d" % (s_, s_, s_))
    o.append("v_mul_f32 v%d, v%d, v%d" % (s_, s_, q_))
    o.append("v_mul_f32 v%d, 0x%08x, v%d" % (s_, f32bits(0.044715), s_))
    return o


def mean_fix(a, cs, st):
    return ["v_pk_fma_f32 %s, %s, %s, %s op_sel:[0,1,0] op_sel_hi:[1,1,1]" % (vr(a + i, 2), vr(cs + i, 2), vr(st + 2, 2), vr(a + i, 2)) for i in (0, 2)]


def scale4(a, st):
    return ["v_pk_mul_f32 %s, %s, %s op_sel_hi:[1,0]" % (vr(a + i, 2), vr(a + i, 2), vr(st, 2)) for i in (0, 2)]


def gelu4f(a, t, dst, st):
    o = []
    P = lambda r: vr(r, 2)
    for i in (0, 2):
        o.append("v_pk_mul_f32 %s, %s, %s" % (P(t + i), P(a + i), P(a + i)))
    for i in (0, 2):
        o.append("v_pk_fma_f32 %s, %s, %s, %s op_sel:[0,0,1] op_sel_hi:[1,0,1]" % (P(t + i), P(t + i), P(st), P(st)))
    for i in (0, 2):
        o.append("v_pk_mul_f32 %s, %s, %s" % (P(t + i), P(t + i), P(a + i)))
    for i in range(4):
        o.append("v_exp_f32 v%d, v%d" % (t + i, t + i))
    for i in (0, 2):
        o.append("v_pk_fma_f32 %s, %s, %s, %s op_sel_hi:[1,0,0]" % (P(t + i), P(t + i), P(st + 2), P(st + 2)))
    for i in range(4):
        o.append("v_rcp_f32 v%d, v%d" % (t + i, t + i))
    for i in (0, 2):
        o.append("v_pk_mul_f32 %s, %s, %s" % (P(t + i), P(t + i), P(a + i)))
    o.append("v_cvt_pk_bf16_f32 v%d, v%d, v%d" % (dst, t, t + 1))
    o.append("v_cvt_pk_bf16_f32 v%d, v%d, v%d" % (dst + 1, t + 2, t + 3))
    return o


def spread(lst, s0, n):
    return {s0 + i: lst[len(lst) * i // n:len(lst) * (i + 1) // n] for i in range(n)}


def fix_step(acc, cs, st, us, MT, s0):
    idx = [(u, t, mt) for u in us for t in (0, 1) for mt in range(MT)]
    nm = len(idx)
    o = []
    for j in range(nm):
        u, t, mt = idx[j]
        o += mean_fix(acc[u][t][mt], cs[u][t], st[mt])
    h = len(o) // 2
    return {s0: [None] * h + o[:h], s0 + 1: o[h:] + [None] * h}


def gelu4(a, t, dst):
    o = []
    P = lambda r: vr(r, 2)
    gc = "s[%d:%d]" % (S_GC, S_GC + 1)
    for i in (0, 2):
        o.append("v_pk_mul_f32 %s, %s, %s" % (P(t + i), P(a + i), P(a + i)))
    for i in (0, 2):
        o.append("v_pk_fma_f32 %s, %s, %s, %s op_sel:[0,0,1] op_sel_hi:[1,0,1]" % (P(t + i), P(t + i), gc, gc))
    for i in (0, 2):
        o.append("v_pk_mul_f32 %s, %s, %s" % (P(t + i), P(t + i), P(a + i)))
    for i in range(4):
        o.append("v_exp_f32 v%d, v%d" % (t + i, t + i))
    for i in (0, 2):
        o.append("v_pk_add_f32 %s, %s, 1.0 op_sel_hi:[1,0]" % (P(t + i), P(t + i)))
    for i in range(4):
        o.append("v_rcp_f32 v%d, v%d" % (t + i, t + i))
    for i in (0, 2):
        o.append("v_pk_mul_f32 %s, %s, %s" % (P(t + i), P(t + i), P(a + i)))
    o.append("v_cvt_pk_bf16_f32 v%d, v%d, v%d" % (dst, t, t + 1))
    o.append("v_cvt_pk_bf16_f32 v%d, v%d, v%d" % (dst + 1, t + 2, t + 3))
    return o


def ln_apply(a, cs, st, t):
    o = []
    P = lambda r: vr(r, 2)
    assert a % 2 == 0 and cs % 2 == 0 and st % 2 == 0 and t % 2 == 0
    for i in (0, 2):
        o.append("v_pk_mul_f32 %s, %s, %s op_sel:[0,1] op_sel_hi:[1,1]" % (P(t + i), P(cs + i), P(st)))
    for i in (0, 2):
        o.append("v_pk_fma_f32 %s, %s, %s, %s op_sel_hi:[1,0,1]" % (P(a + i), P(a + i), P(st), P(t + i)))
    return o


class W:
    pass


def w_tb(k, g, k2map, NU, woff, KS):
    w = W()
    w.NU = NU
    w.woff = woff
    w.k2map = k2map
    w.tb = {}
    w.his = sorted({woff(u, s) >> 16 for u in range(NU) for s in range(KS)})
    w.lin = getattr(k, "phase", "") in LINP and not getattr(k, "isld", False)
    if w.lin:
        for h in w.his:
            if h == 0:
                w.tb[h] = g.lin
            else:
                w.tb[h] = k.alloc()
                k.e("v_add_u32 v%d, 0x%x, v%d" % (w.tb[h], 65536 * h, g.lin))
        return w
    b0 = k.alloc()
    b1 = k.alloc()
    t = k.alloc()
    t2 = k.alloc()
    k.e("v_and_b32 v%d, 3, v%d" % (t2, g.l))
    k.e("v_lshrrev_b32 v%d, 2, v%d" % (t, g.l))
    k.e("v_and_b32 v%d, 3, v%d" % (t, t))
    k.e("v_lshlrev_b32 v%d, 6, v%d" % (t, t))
    k.e("v_lshl_add_u32 v%d, v%d, 3, v%d" % (t, t2, t))
    k.e("v_lshl_add_u32 v%d, v%d, %d, v%d" % (t, g.g, 8 if k2map else 9, t))
    h0 = w.his[0]
    if h0:
        k.e("v_add_u32 v%d, 0x%x, v%d" % (t, 65536 * h0, t))
    k.e("v_and_b32 v%d, 1, v%d" % (t2, g.g))
    k.e("v_lshl_add_u32 v%d, v%d, 5, v%d" % (b0, t2, t))
    k.e("v_xor_b32 v%d, 1, v%d" % (t2, t2))
    k.e("v_lshl_add_u32 v%d, v%d, 5, v%d" % (b1, t2, t))
    w.tb[(0, h0)] = b0
    w.tb[(1, h0)] = b1
    pool = [t, t2]
    for h in w.his[1:]:
        for tt in (0, 1):
            r = pool.pop() if pool else k.alloc()
            k.e("v_add_u32 v%d, 0x%x, v%d" % (r, 65536 * (h - h0), w.tb[(tt, h0)]))
            w.tb[(tt, h)] = r
    return w


def ds(k, text, tag="-"):
    k.e(text)
    k.lg.append(tag)


def lgn(k, tags):
    if isinstance(tags, str):
        tags = [tags]
    last = max(i for i, t in enumerate(k.lg) if t in tags)
    return min(15, len(k.lg) - 1 - last)


def put(k, e_):
    if e_ is None:
        return
    if isinstance(e_, str):
        k.e(e_)
    elif e_[0] == "ds":
        ds(k, e_[1], e_[2])
    elif e_[0] == "w":
        k.e("s_waitcnt lgkmcnt(%d)" % lgn(k, e_[1]))
    elif e_[0] == "vm":
        k.vmem(e_[1], e_[2])
    else:
        e_[1]()


LINP = os.environ.get("LINP", "").split(",")


def tr_reads(k, w, dst, u, t, s, tag="-"):
    if w.lin:
        off = w.woff(u, s) + 1024 * t
        ds(k, "ds_read_b128 %s, v%d offset:%d" % (vr(dst, 4), w.tb[off >> 16], off & 0xffff), tag)
        return
    for hs in (0, 1):
        off = w.woff(u, s) + (1024 if w.k2map else 256) * hs
        h, o = off >> 16, off & 0xffff
        ds(k, "ds_read_b64_tr_b16 %s, v%d offset:%d" % (vr(dst + 2 * hs, 2), w.tb[(t, h)], o), tag)


def gemm_pre(k, w, KS, R, us=None, u2=None):
    pay(k)
    frags = [(u, t) for u in (us or range(w.NU)) for t in (0, 1)]
    w.frags = frags
    w.R = R
    w.u2 = u2
    k.lg = []
    w.wb = [[k.alloc(4, 4) for _ in frags] for _ in range(R)]
    if u2 is not None:
        w.ring2 = w.wb[(KS - 3) % R] + w.wb[(KS - 2) % R]
        w.free = w.wb[(KS - 1) % R]
    for s in range(min(R, KS)):
        for i, (u, t) in enumerate(frags):
            tr_reads(k, w, w.wb[s][i], u, t, s, "w%d" % s)


def pass2(k, w, KS, MT, xfrag, acc, stream, pos):
    R2 = 4
    units = []
    for s in range(KS):
        for t in (0, 1):
            for mt in range(MT):
                o = []
                if t == 0 and mt == 0:
                    o.append(("w", "v%d" % s))
                a = acc[t][mt]
                wr = w.ring2[(s % R2) * 2 + t]
                o.append("v_mfma_f32_16x16x32_bf16 %s, %s, %s, %s" % (vr(a, 4), vr(wr, 4), vr(xfrag(s, mt), 4), vr(a, 4)))
                if mt == MT - 1 and s + R2 < KS:
                    o.append(("f", lambda wr=wr, t=t, s=s: tr_reads(k, w, wr, w.u2, t, s + R2, "v%d" % (s + R2))))
                units.append(o)
    j = 0
    for i in range(len(stream) + 1):
        while j < len(units) and (pos(j) <= i or i == len(stream)):
            for e_ in units[j]:
                put(k, e_)
            j += 1
        if i < len(stream):
            put(k, stream[i])


def cs_init(acc, st):
    o = []
    for t in (0, 1):
        for mt in (1, 0):
            o += ["v_pk_mul_f32 %s, %s, %s op_sel:[0,1] op_sel_hi:[1,1]" % (vr(acc[t][mt] + i, 2), vr(acc[t][0] + i, 2), vr(st[mt] + 2, 2)) for i in (0, 2)]
    return o


EXP = int(os.environ.get("EXP", "0"))
LV = int(os.environ.get("LV", "1"))
LS1 = int(os.environ.get("LS1", "4"))
LS2 = int(os.environ.get("LS2", "16"))
LS3 = int(os.environ.get("LS3", "4"))
LS4 = int(os.environ.get("LS4", "0"))
LS5 = int(os.environ.get("LS5", "0"))
XS = int(os.environ.get("XS", "4"))
NP = os.environ.get("NP", "wo,w2,w4").split(",")
XR = int(os.environ.get("XR", "3"))
RSL = int(os.environ.get("RSL", "0"))
SD = int(os.environ.get("SD", "4"))
PSW = int(os.environ.get("PSW", "3"))
PS1 = int(os.environ.get("PS1", "4"))
W3H = int(os.environ.get("W3H", "0"))
W4M = int(os.environ.get("W4M", "0"))
BL = os.environ.get("BL", "").split(",")
BLP = int(os.environ.get("BLP", "1"))
GN = int(os.environ.get("GN", "3"))
GW = int(os.environ.get("GW", "2"))
G0 = int(os.environ.get("G0", "1"))
TO1 = int(os.environ.get("TO1", "7"))
T1B = int(os.environ.get("T1B", "16"))
T2B = int(os.environ.get("T2B", "12"))
T3A = int(os.environ.get("T3A", "4"))
SM2 = int(os.environ.get("SM2", "1"))
LX = int(os.environ.get("LX", "1"))
LXJ = int(os.environ.get("LXJ", "7"))
LXW = int(os.environ.get("LXW", "4"))
W4S = int(os.environ.get("W4S", "28"))
XDW = int(os.environ.get("XDW", "6"))
XDN = int(os.environ.get("XDN", "12"))
XD4 = int(os.environ.get("XD4", "12"))
WB = int(os.environ.get("WB", "0"))
OSC = os.environ.get("OSC", "")
CKA = int(os.environ.get("CKA", "1"))
BD512 = int(os.environ.get("BD512", "4"))


_ckid = [0]


def budget(k, lab):
    k.e("s_cmp_eq_u32 s%d, 0" % S_BUD)
    k.e("s_cbranch_scc1 %s" % lab)
    k.e("s_sub_u32 s%d, s%d, 1" % (S_BUD, S_BUD))


def check_a(k, regs, mask=False):
    regs = list(regs)
    t = k.ckt
    while len(regs) > 1:
        if len(regs) >= 3:
            k.e("v_max3_u32 v%d, v%d, v%d, v%d" % (t, regs[0], regs[1], regs[2]))
            regs = [t] + regs[3:]
        else:
            k.e("v_max_u32 v%d, v%d, v%d" % (t, regs[0], regs[1]))
            regs = [t]
    k.e("v_cmp_eq_u32 vcc, -1, v%d" % regs[0])


def check_b(k, regs, reload, mask=False):
    i = _ckid[0]
    _ckid[0] += 1
    ok, rt = ["L_%s%d_%s" % (n, i, k.name) for n in ("ok", "rt")]

    def comb():
        if mask:
            k.e("s_and_b64 vcc, vcc, s[100:101]")
        k.e("s_cbranch_vccnz %s" % rt)
    comb()
    k.label(ok)
    main = k.lines
    k.lines = k.stubs
    k.label(rt)
    budget(k, ok)
    reload()
    k.e("s_waitcnt vmcnt(0)")
    check_a(k, regs, mask)
    comb()
    k.e("s_branch %s" % ok)
    k.lines = main


def check_r(k, regs, rl, c, last, MT, mask=False, c1=None):
    i = _ckid[0]
    _ckid[0] += 1
    ok, rt = ["L_%s%d_%s" % (n, i, k.name) for n in ("ok", "rt")]

    def comb():
        if mask:
            k.e("s_and_b64 vcc, vcc, s[100:101]")
        k.e("s_cbranch_vccnz %s" % rt)
    comb()
    k.label(ok)
    main = k.lines
    k.lines = k.stubs
    k.label(rt)
    budget(k, rt + "x")
    if RSL:
        k.e("s_sleep %d" % RSL)
    hd = min(last + 1, max(c + XR, c1 + 1))
    for s_ in range(c, hd):
        rl(s_)
    k.e("s_waitcnt vmcnt(%d)" % (MT * (hd - c1 - 1)))
    check_a(k, regs, mask)
    comb()
    k.label(rt + "x")
    for s_ in range(hd, last + 1):
        rl(s_)
    k.e("s_branch %s" % ok)
    k.lines = main


def stat_r(k, poll, rl, c, last, MT, n_after, mask=False):
    ok, rt = poll.lab("go"), poll.lab("pl")
    k.e("s_waitcnt vmcnt(%d)" % n_after)

    def tst():
        poll.test(True)
        if mask:
            k.e("s_and_b64 vcc, vcc, s[100:101]")
        k.e("s_cbranch_vccnz %s" % rt)
    tst()
    k.label(ok)
    main = k.lines
    k.lines = k.stubs
    k.label(rt)
    budget(k, rt + "x")
    if RSL:
        k.e("s_sleep %d" % RSL)
    poll.issue(lambda a_, b_: k.e(a_), True)
    hd = min(last + 1, c + XR)
    for s_ in range(c, hd):
        rl(s_)
    k.e("s_waitcnt vmcnt(%d)" % (MT * (hd - c)))
    tst()
    k.label(rt + "x")
    for s_ in range(hd, last + 1):
        rl(s_)
    k.e("s_branch %s" % ok)
    k.lines = main


def xreload(k, g, dst, K, mt, s):
    off = mt * K * 32 + s * 1024
    hi, lo = off // 4096 * 4096, off % 4096
    k.e("s_add_u32 s%d, s%d, 0x%x" % (S_P0, S_XO, hi))
    k.e("buffer_load_dwordx4 %s, v%d, %s, s%d offen offset:%d sc1" % (vr(dst, 4), g.lin, srd(SRD_X), S_P0, lo))


class Poll:
    def __init__(self, k, skip0=False):
        self.k = k
        self.i = _ckid[0]
        _ckid[0] += 1
        self.skip0 = skip0
        self.masked = False

    def lab(self, n):
        return "L_%s%d_%s" % (n, self.i, self.k.name)

    def l0(self, n):
        if self.skip0:
            self.k.e("s_cmp_eq_u32 s%d, 0" % S_LAYER)
            self.k.e("s_cbranch_scc1 %s" % self.lab(n))

    def first(self):
        self.l0("go")
        self.issue(self.k.vmem)

    def second(self, xlines):
        k = self.k
        k.wait_vm("stat")
        self.test()
        k.e("s_cbranch_vccnz %s" % self.lab("pl"))
        k.label(self.lab("go"))
        main = k.lines
        k.lines = k.stubs
        k.label(self.lab("pl"))
        budget(k, self.lab("px"))
        if PSL:
            k.e("s_sleep %d" % PSL)
        self.issue(lambda a_, b_: k.e(a_), True)
        if XS:
            head = [l for p_ in xlines[:XS] for l in p_]
            if self.masked:
                k.e("s_mov_b64 s[%d:%d], vcc" % (S_P0, S_P0 + 1))
                k.e("s_mov_b64 exec, -1")
            k.lines += head
            k.e("s_waitcnt vmcnt(%d)" % sum("buffer_load" in str(l) for l in head))
            self.test(True)
            if self.masked:
                k.e("s_and_b64 vcc, vcc, s[%d:%d]" % (S_P0, S_P0 + 1))
            k.e("s_cbranch_vccnz %s" % self.lab("pl"))
            k.lines += [l for p_ in xlines[XS:] for l in p_]
            k.e("s_branch %s" % self.lab("go"))
        else:
            k.e("s_waitcnt vmcnt(0)")
            self.test(True)
            k.e("s_cbranch_vccnz %s" % self.lab("pl"))
        k.label(self.lab("px"))
        k.e("s_mov_b64 exec, -1")
        k.lines += [l for p_ in xlines for l in p_]
        k.e("s_branch %s" % self.lab("go"))
        k.lines = main


def poll_stats(k, g, st, issue, t, skip0=False):
    p = Poll(k, skip0)
    p.issue = lambda f, again=False: issue(None if f == k.vmem else st)

    def test(again=False):
        k.e("v_max_u32 v%d, v%d, v%d" % (t, st[0] + 1, st[0] + 3))
        if len(st) == 2:
            k.e("v_max3_u32 v%d, v%d, v%d, v%d" % (t, t, st[1] + 1, st[1] + 3))
        k.e("v_cmp_eq_u32 vcc, -1, v%d" % t)
    p.test = test
    return p


def poll_blocks(k, g, va, soff, t, nl=16):
    p = Poll(k)
    p.masked = True

    def issue(f, again=False):
        k.e("s_mov_b64 exec, %s" % ("vcc" if again else "0x%x" % ((1 << nl) - 1)))
        f("buffer_load_dword v%d, v%d, %s, %s offen offset:1020 sc1" % (t, va, srd(SRD_X), soff), "stat")
        if not again:
            k.e("s_mov_b64 exec, -1")

    def test(again=False):
        k.e("v_cmp_eq_u32 vcc, -1, v%d" % t)
        if not again:
            k.e("s_and_b64 vcc, vcc, 0x%x" % ((1 << nl) - 1))
    p.issue = issue
    p.test = test
    return p


def gemm_loop(k, g, w, KS, MT, xfrag, acc, xl, mid=None, pre=None, extra=None, init=False, pro=None, top=None, rl=None, mask=False, poll=None, ps=None):
    frags = w.frags
    n = len(frags)
    R = w.R
    wb = w.wb
    first = set()
    D = XDW if MT == 2 else XD4 if KS > 16 else XDN
    k.vm = []
    relax = k.phase in NP
    last = min(D, KS) - 1
    if relax:
        poll.l0("pa")
        for s in range(min(D, KS)):
            xl(s)
        if poll.skip0:
            k.label(poll.lab("pa"))
    else:
        poll.first()
        xlines = []
        for s in range(min(D, KS)):
            n0 = len(k.lines)
            xl(s)
            xlines.append(k.lines[n0:])
        poll.second(xlines)

    k.ckt = g.l128
    gs = GW if MT == 2 else GN
    grp = {0: G0 - 1}
    c_ = G0
    while c_ < KS:
        grp[c_] = min(KS - 1, c_ + gs - 1)
        c_ += gs
    ckr = lambda c: [xfrag(s_, mt) + 3 for s_ in range(c, grp[c] + 1) for mt in range(MT)]

    def ckb(c):
        if relax:
            check_r(k, ckr(c), rl, c, last, MT, mask, grp[c])
        else:
            check_b(k, ckr(c), lambda: [rl(s_) for s_ in range(c, grp[c] + 1)], mask)
    stamp(k, g, 2)
    for s in range(min(D, KS)):
        if pro and s in pro:
            pro[s]()
    for s in range(KS):
        if s == 0:
            k.wait_vm(["x%d" % grp[0]])
            check_a(k, ckr(0), mask)
            ckb(0)
        if relax and ps is not None and s == ps:
            stat_r(k, poll, rl, min(c for c in grp if c > s), last, MT, len(k.vm) - st_idx, mask)
        k.e("s_waitcnt lgkmcnt(%d)" % lgn(k, ["w%d" % s] + ((top or {}).get(s, []))))
        if s % 4 == 0 and not (EXP & 16 and s):
            stamp(k, g, True)
        if pre and (s + R) in pre:
            pre[s + R]()
        ex = list(extra.get(s, [])) if extra and not (EXP & 4 and k.phase == STAMPG) else []
        xp = EXP if k.phase == STAMPG else 0
        nm = n * MT
        done = 0
        for i, (u, t) in enumerate(frags):
            for mt in range(MT):
                a = acc[u][t][mt]
                cin = vr(a, 4) if init or (u, t, mt) in first else "0"
                first.add((u, t, mt))
                k.e("v_mfma_f32_16x16x32_bf16 %s, %s, %s, %s" % (vr(a, 4), vr(wb[s % R][i], 4), vr(xfrag(s, mt), 4), cin))
                j = i * MT + mt + 1
                if None in ex and mt < MT - 1:
                    continue
                upto = (len(ex) * j + nm - 1) // nm
                for e_ in ex[done:upto]:
                    put(k, e_)
                done = max(done, upto)
            if i == 0 and s + D < KS and not xp & 2:
                xl(s + D)
                last = s + D
            if i == 0 and relax and ps is not None and s == max(0, ps - SD // MT):
                if mask:
                    k.e("s_mov_b64 exec, s[100:101]")
                    k.e("s_cbranch_execz %s" % poll.lab("sk"))
                poll.issue(lambda a_, b_: k.e(a_), True)
                if mask:
                    k.label(poll.lab("sk"))
                    k.e("s_mov_b64 exec, -1")
                st_idx = len(k.vm)
            if i == CKA and s + 1 in grp:
                k.wait_vm(["x%d" % grp[s + 1]])
                check_a(k, ckr(s + 1), mask)
            if i == CKA + 1 and s + 1 in grp:
                ckb(s + 1)
            if s + R < KS:
                tr_reads(k, w, wb[s % R][i], u, t, s + R, "w%d" % (s + R))
            elif w.u2 is not None and s < KS - 1:
                s2 = 2 * (s + R - KS) + i // 2
                tr_reads(k, w, wb[s % R][i], w.u2, i % 2, s2, "v%d" % s2)
        if mid and s in mid:
            mid[s]()
    return [r for l in wb for r in l]


def t16_base(k, sreg, K):
    k.e("s_mul_i32 s%d, s%d, %d" % (sreg, S_TOKB, K * 2))


def xload(k, g, dst, K, mt, s, tag):
    off = mt * K * 32 + s * 1024
    hi, lo = off // 4096 * 4096, off % 4096
    sr = (S_T1, S_T2)[mt]
    if getattr(k, "_xhi", None) is None:
        k._xhi = {}
    if k._xhi.get(mt) != hi:
        k.e("s_add_u32 s%d, s%d, 0x%x" % (sr, S_XO, hi))
        k._xhi[mt] = hi
    k.vmem("buffer_load_dwordx4 %s, v%d, %s, s%d offen offset:%d%s" % (vr(dst, 4), g.lin, srd(SRD_X), sr, lo, LSC), tag)


def stats_load(k, g, MT):
    v = k.alloc()
    k.e("v_add_u32 v%d, s%d, v%d" % (v, S_TOKB, g.m))
    k.e("v_lshlrev_b32 v%d, 3, v%d" % (v, v))
    k.e("v_lshl_add_u32 v%d, v%d, 15, v%d" % (v, g.g, v))
    st = [k.alloc(4, 4) for _ in range(MT)]

    def issue(dst=None):
        f = k.vmem if dst is None else (lambda a, b: k.e(a))
        dst = st if dst is None else dst
        for mt in range(MT):
            f("buffer_load_dwordx2 %s, v%d, %s, 0 offen offset:%d sc1" % (vr(dst[mt], 2), v, srd(SRD_S), 128 * mt), "stat")
            f("buffer_load_dwordx2 %s, v%d, %s, s%d offen offset:%d sc1" % (vr(dst[mt] + 2, 2), v, srd(SRD_S), S_K16, 128 * mt), "stat")
    return st, issue


def swap_pair(p):
    return ["v_permlane16_swap_b32 v%d, v%d" % (p, p + 2), "v_permlane16_swap_b32 v%d, v%d" % (p + 1, p + 3)]


def unpack2(dst, src):
    return [
        "v_lshlrev_b32 v%d, 16, v%d" % (dst, src),
        "v_and_b32 v%d, 0xffff0000, v%d" % (dst + 1, src),
        "v_lshlrev_b32 v%d, 16, v%d" % (dst + 2, src + 1),
        "v_and_b32 v%d, 0xffff0000, v%d" % (dst + 3, src + 1),
    ]


def pack2(dst, src):
    return [
        "v_cvt_pk_bf16_f32 v%d, v%d, v%d" % (dst, src, src + 1),
        "v_cvt_pk_bf16_f32 v%d, v%d, v%d" % (dst + 1, src + 2, src + 3),
    ]


def round4(a):
    return ["v_cvt_pk_bf16_f32 v%d, v%d, v%d" % (a, a, a + 1),
            "v_cvt_pk_bf16_f32 v%d, v%d, v%d" % (a + 2, a + 2, a + 3),
            "v_and_b32 v%d, 0xffff0000, v%d" % (a + 1, a),
            "v_and_b32 v%d, 0xffff0000, v%d" % (a + 3, a + 2),
            "v_lshlrev_b32 v%d, 16, v%d" % (a, a),
            "v_lshlrev_b32 v%d, 16, v%d" % (a + 2, a + 2)]


def add4(a, b):
    return ["v_pk_add_f32 %s, %s, %s" % (vr(a + i, 2), vr(a + i, 2), vr(b + i, 2)) for i in (0, 2)]


def stats_store(k, g, packed, t):
    s_, q_, t0, t1 = t, t + 1, t + 2, t + 3
    for i, r in enumerate(packed):
        k.e("v_dot2_f32_bf16 v%d, v%d, s%d, %s" % (s_, r, S_ONES, "0" if i == 0 else "v%d" % s_))
        k.e("v_dot2_f32_bf16 v%d, v%d, v%d, %s" % (q_, r, r, "0" if i == 0 else "v%d" % q_))
    for s in interleave(allreduce(s_, t0, "v_add_f32"), allreduce(q_, t1, "v_add_f32")):
        k.e(s)
    k.e("v_add_u32 v%d, s%d, v%d" % (t0, S_TOKB, g.m))
    k.e("v_lshlrev_b32 v%d, 3, v%d" % (t0, t0))
    k.e("s_lshl_b32 s%d, s%d, 14" % (S_T0, S_CB))
    k.e("s_mov_b64 exec, 0xffff")
    k.vmem("buffer_store_dwordx2 %s, v%d, %s, s%d offen%s" % (vr(s_, 2), t0, srd(SRD_SO), S_T0, DSC), "st")
    k.e("s_mov_b64 exec, -1")


TOUCH = int(os.environ.get('TOUCH', '0'))


def signal(k, g, edge, nblk, nxt=False, own=None):
    stamp(k, g, 2)
    if BLP == 1 or nxt:
        pay(k)
    k.vm = []
    k._xhi = None


def softmax_pair(p, t, outp):
    mx, mn, t0, t1 = t, t + 1, t + 2, t + 3
    ep = [t + 4 + i for i in range(4)]
    em = [t + 8 + i for i in range(4)]
    o = []
    o.append("v_max3_f32 v%d, v%d, v%d, v%d" % (mx, p, p + 1, p + 2))
    o.append("v_min3_f32 v%d, v%d, v%d, v%d" % (mn, p, p + 1, p + 2))
    o.append("v_max_f32 v%d, v%d, v%d" % (mx, mx, p + 3))
    o.append("v_min_f32 v%d, v%d, v%d" % (mn, mn, p + 3))
    o += interleave(allreduce(mx, t0, "v_max_f32"), allreduce(mn, t1, "v_min_f32"))
    o.append("v_mul_f32 v%d, s%d, v%d" % (mx, S_L2E, mx))
    o.append("v_mul_f32 v%d, s%d, v%d" % (mn, S_L2E, mn))
    for i in range(4):
        o.append("v_fma_f32 v%d, v%d, s%d, -v%d" % (ep[i], p + i, S_L2E, mx))
        o.append("v_fma_f32 v%d, -v%d, s%d, v%d" % (em[i], p + i, S_L2E, mn))
    for i in range(4):
        o.append("v_exp_f32 v%d, v%d" % (ep[i], ep[i]))
        o.append("v_exp_f32 v%d, v%d" % (em[i], em[i]))
    sp, sm = mx, mn
    o.append("v_add_f32 v%d, v%d, v%d" % (sp, ep[0], ep[1]))
    o.append("v_add_f32 v%d, v%d, v%d" % (sm, em[0], em[1]))
    o.append("v_add_f32 v%d, v%d, v%d" % (t0, ep[2], ep[3]))
    o.append("v_add_f32 v%d, v%d, v%d" % (t1, em[2], em[3]))
    o.append("v_add_f32 v%d, v%d, v%d" % (sp, sp, t0))
    o.append("v_add_f32 v%d, v%d, v%d" % (sm, sm, t1))
    o += interleave(allreduce(sp, t0, "v_add_f32"), allreduce(sm, t1, "v_add_f32"))
    o.append("v_rcp_f32 v%d, v%d" % (sp, sp))
    o.append("v_rcp_f32 v%d, v%d" % (sm, sm))
    o.append("s_nop 0")
    for i in range(4):
        o.append("v_mul_f32 v%d, v%d, v%d" % (ep[i], ep[i], sp))
        o.append("v_mul_f32 v%d, v%d, v%d" % (em[i], em[i], sm))
    o.append("v_cvt_pk_bf16_f32 v%d, v%d, v%d" % (outp, ep[0], ep[1]))
    o.append("v_cvt_pk_bf16_f32 v%d, v%d, v%d" % (outp + 1, ep[2], ep[3]))
    o.append("v_cvt_pk_bf16_f32 v%d, v%d, v%d" % (outp + 2, em[0], em[1]))
    o.append("v_cvt_pk_bf16_f32 v%d, v%d, v%d" % (outp + 3, em[2], em[3]))
    return o


def reduce4(a, c, op, mid):
    b, d = a + 1, c + 1
    o = ["v_permlane32_swap_b32 v%d, v%d" % (a, b),
         "v_permlane32_swap_b32 v%d, v%d" % (c, d),
         "%s v%d, v%d, v%d" % (op, a, a, b),
         "%s v%d, v%d, v%d" % (op, c, c, d),
         "v_permlane16_swap_b32 v%d, v%d" % (a, c),
         "%s v%d, v%d, v%d" % (op, a, a, c)]
    o += mid(a)
    o += ["v_mov_b32 v%d, v%d" % (c, a),
          "v_permlane16_swap_b32 v%d, v%d" % (a, c),
          "v_mov_b32 v%d, v%d" % (b, a),
          "v_mov_b32 v%d, v%d" % (d, c),
          "v_permlane32_swap_b32 v%d, v%d" % (a, b),
          "v_permlane32_swap_b32 v%d, v%d" % (c, d)]
    return o


def softmax2(ps, ts, outs):
    P = lambda r: vr(r, 2)
    L2 = "s[%d:%d]" % (S_L2E - 1, S_L2E)
    o = []
    for p, t in zip(ps, ts):
        o.append("v_max3_f32 v%d, v%d, v%d, v%d" % (t, p, p + 1, p + 2))
        o.append("v_max3_f32 v%d, -v%d, -v%d, -v%d" % (t + 1, p, p + 1, p + 2))
    for p, t in zip(ps, ts):
        o.append("v_max_f32 v%d, v%d, v%d" % (t, t, p + 3))
        o.append("v_max_f32_e64 v%d, v%d, -v%d" % (t + 1, t + 1, p + 3))
    o += reduce4(ts[0], ts[1], "v_max_f32", lambda x: ["v_mul_f32 v%d, s%d, v%d" % (x, S_L2E, x)])
    for p, t in zip(ps, ts):
        for i in (0, 2):
            o.append("v_pk_fma_f32 %s, %s, %s, %s op_sel:[0,1,0] op_sel_hi:[1,1,0] neg_lo:[0,0,1] neg_hi:[0,0,1]" % (P(t + 4 + i), P(p + i), L2, P(t)))
            o.append("v_pk_fma_f32 %s, %s, %s, %s op_sel:[0,1,1] op_sel_hi:[1,1,1] neg_lo:[1,0,1] neg_hi:[1,0,1]" % (P(t + 8 + i), P(p + i), L2, P(t)))
    for i in range(8):
        for t in ts:
            o.append("v_exp_f32 v%d, v%d" % (t + 4 + i, t + 4 + i))
    for t in ts:
        o.append("v_pk_add_f32 %s, %s, %s" % (P(t), P(t + 4), P(t + 6)))
    for t in ts:
        o.append("v_pk_add_f32 %s, %s, %s" % (P(t + 2), P(t + 8), P(t + 10)))
    for t in ts:
        o.append("v_add_f32 v%d, v%d, v%d" % (t, t, t + 1))
    for t in ts:
        o.append("v_add_f32 v%d, v%d, v%d" % (t + 1, t + 2, t + 3))
    o += reduce4(ts[0], ts[1], "v_add_f32", lambda x: ["v_rcp_f32 v%d, v%d" % (x, x), "s_nop 0"])
    for t in ts:
        for i in (0, 2):
            o.append("v_pk_mul_f32 %s, %s, %s op_sel_hi:[1,0]" % (P(t + 4 + i), P(t + 4 + i), P(t)))
            o.append("v_pk_mul_f32 %s, %s, %s op_sel:[0,1] op_sel_hi:[1,1]" % (P(t + 8 + i), P(t + 8 + i), P(t)))
    for t, outp in zip(ts, outs):
        for i in range(4):
            o.append("v_cvt_pk_bf16_f32 v%d, v%d, v%d" % (outp + i, t + 4 + 2 * i, t + 5 + 2 * i))
    return o


def xin_srd(k, slot):
    k.e("s_add_u32 s%d, s%d, 0x%x" % (slot, S_WSL, R_XIN))
    k.e("s_addc_u32 s%d, s%d, 0" % (slot + 1, S_WSH))
    k.e("s_cmp_eq_u32 s%d, 0" % S_LAYER)
    k.e("s_cselect_b32 s%d, s%d, s%d" % (slot, PTR(IN_X), slot))
    k.e("s_cselect_b32 s%d, s%d, s%d" % (slot + 1, PTR(IN_X) + 1, slot + 1))
    k.e("s_mov_b32 s%d, 0x%x" % (slot + 2, XBYTES))
    k.e("s_mov_b32 s%d, 0x00020000" % (slot + 3))


def cs_read(k, vcs, dst, c, tag):
    ds(k, "ds_read_b128 %s, v%d offset:%d" % (vr(dst, 4), vcs, 64 * c), tag)


def wide_hooks(k, acc, st, vcx, P1, P2, MT, mode, n_st):
    park = [acc[P2][t][mt] for t in (0, 1) for mt in range(MT)]
    cs = {u: [park[2 * i + t] for t in (0, 1)] for i, u in enumerate(P1)}

    def m10():
        k.e("s_barrier")
        for u in P1:
            for t in (0, 1):
                cs_read(k, vcx, cs[u][t], 2 * u + t, "cs")

    def m13():
        for t in (0, 1):
            cs_read(k, vcx, acc[P2][t][0], 2 * P2 + t, "c2")
    ex = spread(interleave(*[stats_fold(st[mt], mode) for mt in range(MT)]), PSW, n_st)
    ex.update(fix_step(acc, cs, st, P1, MT, 12))
    ex[15] = [("w", "c2")] + cs_init(acc[P2], st)
    return ex, {BDW: m10, 13: m13}, {12: ["cs"]}


BDW = int(os.environ.get("BDW", "10"))
QH = int(os.environ.get("QH", "5"))
BH = 2 * QH - 3 <= BDW
PJ = int(os.environ.get("PJ", "6"))
PCS = int(os.environ.get("PCS", "2"))
PQ = int(os.environ.get("PQ", "0"))
PBH = int(os.environ.get("PBH", "3"))
PRO = int(os.environ.get("PRO", "3"))
TP = int(os.environ.get("TP", "1"))
L2W = int(os.environ.get("L2W", "0"))
PFS = int(os.environ.get("PFS", "7"))
QCS = int(os.environ.get("QCS", "8"))
QTAIL = int(os.environ.get("QTAIL", "16"))
WTAIL = int(os.environ.get("WTAIL", "8"))
WPOS = int(os.environ.get("WPOS", "1"))


def bar(k):
    return lambda: k.e("s_barrier")


def p_qkv(k, g):
    MT, NU, KS, CS = 2, 3, 16, 4
    mk = k.mark()
    k.e("s_mov_b32 s%d, s%d" % (S_TOKB, S_TOKW))
    t16_base(k, S_XO, 512)
    w = w_tb(k, g, False, NU, woff512(U_QKV), KS)
    vph = k.alloc()
    k.e("v_add_u32 v%d, 0x%x, v%d" % (vph, CSX_W + 1024, g.lin))
    st, st_issue = stats_load(k, g, MT)
    vcs, vcx = k.alloc(), k.alloc()
    k.e("v_lshlrev_b32 v%d, 4, v%d" % (vcs, g.g))
    k.e("v_add_u32 v%d, 0x%x, v%d" % (vcx, CSX_W, vcs))
    k.e("s_cmp_eq_u32 s%d, 0" % S_LAYER)
    k.e("s_cselect_b32 s%d, 64, 1024" % S_XST)
    k.e("s_cselect_b64 s[100:101], 0, -1")
    X = [[k.alloc(4, 4) for _ in range(KS)] for _ in range(MT)]
    wphi = [X[0][0], X[0][0] + 2]
    acc = [[[k.alloc(4, 4) for _ in range(MT)] for _ in range(2)] for _ in range(NU)]
    xin_srd(k, SRD_X)
    make_srd(k, SRD_O, ("l", R_O), XBYTES)
    make_srd(k, SRD_R2, ("l", R_KVP), 2 * MB)
    make_srd(k, SRD_S, ("l", ST_XIN), STBYTES)
    make_srd(k, SRD_SO, ("l", 0), 2 * LSTRIDE)

    def xl(s):
        if s >= XDW:
            k.e("s_mov_b64 exec, s[100:101]")
            k.e("s_cbranch_execz L_sx%d_%s" % (s, k.name))
        for mt in range(MT):
            xload(k, g, X[mt][s], 512, mt, s, "x%d" % s)
        if s >= XDW:
            k.label("L_sx%d_%s" % (s, k.name))
            k.e("s_mov_b64 exec, -1")

    k.e("s_cmp_lg_u32 s%d, 0" % S_LAYER)
    k.e("s_cbranch_scc1 L_np_%s" % k.name)
    for mt in range(MT):
        for r in range(16):
            xload(k, g, X[mt][r], 512, mt, r, "r%d_%d" % (mt, r // 4))
    k._xhi = None
    ab = acc[0][0][0]
    pz, pl8 = ab + 32, ab + 36

    def marks():
        for i in range(4):
            k.e("v_mov_b32 v%d, -1" % (pz + i))
        k.e("v_lshlrev_b32 v%d, 3, v%d" % (pl8, g.l))
        k.e("s_lshl_b32 s%d, s%d, 2" % (S_T2, S_CBW))
        k.e("s_add_u32 s%d, s%d, s%d" % (S_T2, S_T2, S_WAVE))
        k.e("s_lshl_b32 s%d, s%d, 4" % (S_T2, S_T2))
        k.e("s_add_u32 s%d, s%d, s%d" % (S_T2, S_T2, S_RBW))
        k.e("s_lshl_b32 s%d, s%d, 6" % (S_T1, S_T2))
        k.e("s_lshl_b32 s%d, s%d, 9" % (S_T0, S_T2))
        k.e("s_add_u32 s%d, s%d, s%d" % (S_T2, S_TOKB, S_CBW))
        k.e("s_lshl_b32 s%d, s%d, 10" % (S_T2, S_T2))
        for L in range(2):
            k.e("s_add_u32 s%d, s%d, 0x%x" % (S_P0, S_T0, R_KVP + L * LSTRIDE))
            k.vmem("buffer_store_dwordx2 %s, v%d, %s, s%d offen sc1" % (vr(pz, 2), pl8, srd(SRD_SO), S_P0), "pz")
            k.e("s_add_u32 s%d, s%d, 0x%x" % (S_P0, S_T1, R_KVP + MB + L * LSTRIDE))
            k.e("s_mov_b32 exec_lo, 0x00010001")
            k.e("s_mov_b32 exec_hi, 0x00010001")
            k.vmem("buffer_store_dwordx4 %s, v%d, %s, s%d offen sc1" % (vr(pz, 4), vcs, srd(SRD_SO), S_P0), "pz")
            k.e("s_mov_b64 exec, -1")
            for mt in range(MT):
                k.e("s_add_u32 s%d, s%d, 0x%x" % (S_P0, S_T2, R_O + 0x4000 * mt + L * LSTRIDE))
                k.vmem("buffer_store_dwordx4 %s, v%d, %s, s%d offen%s" % (vr(pz, 4), g.lin, srd(SRD_SO), S_P0, PSC), "pz")
    def ctouch():
        k.e("s_lshl_b32 s%d, s2, 2" % S_CNT)
        k.e("s_add_u32 s%d, s%d, s%d" % (S_CNT, S_CNT, S_WAVE))
        touch(k, g, g.l128, [(IN_W1, 128), (IN_W2, 128), (IN_W3, 344), (IN_W4, 344)])
        k.vm.append("tch")
    if TP == 4:
        ctouch()
    if not PRO & 1:
        marks()
    ones4, mS, mQ = ab, [ab + 4, ab + 8], [ab + 12, ab + 16]
    vwb, vrd, tw = ab + 20, [ab + 21 + i for i in range(4)], [ab + 25 + i for i in range(4)]
    k.e("s_lshl_b32 s%d, s%d, 14" % (S_T0, S_WAVE))
    k.e("s_add_u32 s%d, s%d, 0x%x" % (S_T0, S_T0, UN[3]))
    k.e("v_add_u32 v%d, s%d, v%d" % (vwb, S_T0, g.lin))
    for b_ in range(4):
        k.e("v_add_u32 v%d, %d, v%d" % (vrd[b_], 4 * b_, g.g))
        k.e("v_xor_b32 v%d, v%d, v%d" % (vrd[b_], vrd[b_], g.m))
        k.e("v_lshlrev_b32 v%d, 4, v%d" % (vrd[b_], vrd[b_]))
        k.e("v_lshl_add_u32 v%d, v%d, 10, v%d" % (vrd[b_], g.m, vrd[b_]))
        k.e("v_add_u32 v%d, s%d, v%d" % (vrd[b_], S_T0, vrd[b_]))
    for i in range(4):
        k.e("v_mov_b32 v%d, 0x3f803f80" % (ones4 + i))

    def smf(mt, s):
        k.e("v_mfma_f32_16x16x32_bf16 %s, %s, %s, %s" % (vr(mS[mt], 4), vr(ones4, 4), vr(X[mt][s], 4), vr(mS[mt], 4) if s else "0"))
        k.e("v_mfma_f32_16x16x32_bf16 %s, %s, %s, %s" % (vr(mQ[mt], 4), vr(X[mt][s], 4), vr(X[mt][s], 4), vr(mQ[mt], 4) if s else "0"))
    for mt in range(MT):
        for r in range(16):
            if r % 4 == 0:
                if r == 0:
                    stamp(k, g, True)
                k.wait_vm("r%d_%d" % (mt, r // 4))
                if r in (0, 12):
                    stamp(k, g, True)
            k.e("v_xor_b32 v%d, %d, v%d" % (tw[r % 4], 16 * r, vwb))
            k.e("ds_write_b128 v%d, %s offset:%d" % (tw[r % 4], vr(X[mt][r], 4), 1024 * r))
            if mt == 1 and PRO & 2 and r < 12:
                smf(0, r)
        k.e("s_waitcnt lgkmcnt(0)")
        for s in range(KS):
            k.e("ds_read_b128 %s, v%d offset:%d" % (vr(X[mt][s], 4), vrd[s % 4], 256 * (s // 4)))
        if mt == 0 and PRO & 1:
            marks()
        if (mt, TP) in ((0, 2), (1, 3)):
            ctouch()
        if mt == 0 and PRO & 2:
            k.e("s_waitcnt lgkmcnt(0)")
            continue
        if PRO & 2:
            for s in range(12, 16):
                smf(0, s)
        for s in range(KS):
            k.e("s_waitcnt lgkmcnt(%d)" % (KS - 1 - s))
            smf(mt, s)
    k.e("v_and_b32 v%d, 3, v%d" % (tw[0], g.m))
    k.e("v_lshrrev_b32 v%d, 2, v%d" % (tw[1], g.m))
    for mt in range(MT):
        k.e("v_mul_f32 v%d, 0.25, v%d" % (st[mt], mS[mt]))
        k.e("v_mov_b32 v%d, 0" % (st[mt] + 2))
        k.e("v_mov_b32 v%d, 0" % (st[mt] + 3))
    for j in range(1, 4):
        k.e("v_cmp_eq_u32 vcc, %d, v%d" % (j, tw[0]))
        for mt in range(MT):
            k.e("v_cndmask_b32 v%d, v%d, v%d, vcc" % (mQ[mt], mQ[mt], mQ[mt] + j))
    k.e("v_cmp_eq_u32 vcc, v%d, v%d" % (tw[1], g.g))
    for mt in range(MT):
        k.e("v_cndmask_b32 v%d, 0, v%d, vcc" % (st[mt] + 1, mQ[mt]))
    stamp(k, g, True)
    k.e("s_waitcnt vmcnt(0)")
    k.vm = []
    stamp(k, g, True)
    if TP == 5:
        ctouch()
        k.vm = []
    k.e("s_barrier")
    k.label("L_np_%s" % k.name)
    k.e("s_nop 4")
    stamp(k, g)
    gemm_pre(k, w, KS, 3, [1, 2], 0)
    pl = poll_stats(k, g, st, st_issue, g.l128, True)
    stamp(k, g)

    def rl(s):
        for mt in range(MT):
            xreload(k, g, X[mt][s], 512, mt, s)

    ex, mid, top = wide_hooks(k, acc, st, vcx, [1, 2], 0, MT, "r", 5)
    gemm_loop(k, g, w, KS, MT, lambda s, mt: X[mt][s], acc, xl, mid=mid, top=top, extra=ex, rl=rl, mask=True, poll=pl, ps=PSW,
              pre={2 * QH: bar(k)} if BH else None)
    k.e("s_barrier")
    stamp(k, g)
    xb = X[0][0]
    ident, ones = X[1][0], X[1][0] + 2
    t, t2 = st[0] + 1, st[0] + 2
    C4 = [(mt, hh) for mt in range(MT) for hh in range(2)]
    kvacc = [[w.ring2[4 * hh + b] for b in range(4)] for hh in range(2)]
    oq = list(w.free)
    kb = [w.free[c // 2] + 2 * (c % 2) for c in range(4)]
    vb = [w.free[2 + c // 2] + 2 * (c % 2) for c in range(4)]
    T = [X[0][1], X[1][1], X[0][6], X[1][6]]
    ok = [X[0][4], X[1][4], X[0][5], X[1][5]]
    E1 = [("ds", "ds_read_b128 %s, v%d" % (vr(wphi[0], 4), vph), "ph")]
    E1 += ["v_mov_b32 v%d, 0x3f803f80" % ones,
           "v_mov_b32 v%d, 0x3f803f80" % (ones + 1),
           "v_and_b32 v%d, 1, v%d" % (t, g.m),
           "v_lshlrev_b32 v%d, 4, v%d" % (t, t),
           "v_mov_b32 v%d, 0x3f80" % t2,
           "v_lshlrev_b32 v%d, v%d, v%d" % (t2, t, t2),
           "v_lshrrev_b32 v%d, 2, v%d" % (t, g.m),
           "v_cmp_eq_u32 vcc, v%d, v%d" % (t, g.g),
           "v_cndmask_b32 v%d, 0, v%d, vcc" % (t2, t2),
           "v_and_b32 v%d, 2, v%d" % (t, g.m),
           "v_cmp_eq_u32 vcc, 0, v%d" % t,
           "v_cndmask_b32 v%d, 0, v%d, vcc" % (ident, t2),
           "v_cndmask_b32 v%d, v%d, 0, vcc" % (ident + 1, t2)]
    E1 += ["s_lshl_b32 s%d, s%d, 13" % (S_T0, S_WAVE),
           "s_add_u32 s%d, s%d, 0x%x" % (S_T0, S_T0, LDS_SCR),
           "v_add_u32 v%d, s%d, v%d" % (t, S_T0, g.lin),
           "s_lshr_b32 s%d, s%d, 1" % (S_T0, S_WAVE),
           "s_lshl_b32 s%d, s%d, 12" % (S_T0, S_T0),
           "s_and_b32 s%d, s%d, 1" % (S_T1, S_WAVE),
           "s_lshl_b32 s%d, s%d, 10" % (S_T1, S_T1),
           "s_add_u32 s%d, s%d, s%d" % (S_T0, S_T0, S_T1),
           "s_add_u32 s%d, s%d, 0x%x" % (S_T0, S_T0, LDS_SCR),
           "v_add_u32 v%d, s%d, v%d" % (t2, S_T0, g.lin)]
    pk = [acc[1][hh][mt] for (mt, hh) in C4]
    tv = [acc[2][hh][mt] for (mt, hh) in C4]
    E0 = interleave(*[scale4(pk[c], st[mt]) + pack2(kb[c], pk[c]) for c, (mt, hh) in enumerate(C4)])
    E1 += interleave(*[scale4(tv[c], st[mt]) + pack2(vb[c], tv[c]) for c, (mt, hh) in enumerate(C4)])
    E1.append(("w", "ph"))
    for c, (mt, hh) in enumerate(C4):
        E1.append("v_mfma_f32_16x16x16_bf16 %s, %s, %s, 0" % (vr(pk[c], 4), vr(wphi[hh], 2), vr(kb[c], 2)))
    for c in range(4):
        E1.append("v_mfma_f32_16x16x16_bf16 %s, %s, %s, 0" % (vr(tv[c], 4), vr(vb[c], 2), vr(ident, 2)))

    def tr_ph(c):
        return ["v_mfma_f32_16x16x16_bf16 %s, %s, %s, 0" % (vr(T[c], 4), vr(ok[c], 2), vr(ident, 2)),
                "v_mfma_f32_16x16x16_bf16 %s, %s, %s, 0" % (vr(T[c] + 4, 4), vr(ok[c] + 2, 2), vr(ident, 2))]

    def pk_ph(c):
        return pack2(T[c] + 8, T[c]) + pack2(T[c] + 10, T[c] + 4)
    R1 = softmax2(pk[:2], T[:2], ok[:2]) if SM2 else interleave(*[softmax_pair(pk[c], T[c], ok[c]) for c in range(2)])
    R1 = R1[:8] + [x_ for c in range(4) for x_ in pack2(vb[c], tv[c])] + R1[8:]
    R2 = softmax2(pk[2:], T[2:], ok[2:]) if SM2 else interleave(*[softmax_pair(pk[c], T[c], ok[c]) for c in range(2, 4)])
    R2 = R2[:2] + tr_ph(0) + tr_ph(1) + R2[2:24] + pk_ph(0) + pk_ph(1) + R2[24:]
    n0, n1, n2, n3 = len(E0), len(E1), len(R1), len(R2) - QTAIL

    def pos(j):
        if j < 4:
            return n0 * j // 4
        if j < 20:
            return n0 + 1 + (n1 - 9) * (j - 4) // 16
        if j < 42:
            return n0 + n1 + n2 * (j - 20) // 22
        return n0 + n1 + n2 + n3 * (j - 42) // 22
    pass2(k, w, KS, MT, lambda s, mt: X[mt][s], acc[0], E0 + E1 + R1 + R2, pos)
    stamp(k, g, True)
    for s_ in tr_ph(2) + tr_ph(3):
        k.e(s_)

    def kvm(c):
        mt, hh = C4[c]
        kk = kvacc[hh]
        for (dst, a_, b_) in ((kk[0], T[c] + 8, vb[c]), (kk[1], T[c] + 10, vb[c]), (kk[2], T[c] + 8, ones), (kk[3], T[c] + 10, ones)):
            k.e("v_mfma_f32_16x16x16_bf16 %s, %s, %s, %s" % (
                vr(dst, 4), vr(a_, 2), vr(b_, 2), "0" if mt == 0 else vr(dst, 4)))
    kvm(0)
    kvm(1)
    for s_ in pk_ph(2) + pk_ph(3):
        k.e(s_)
    kvm(2)
    kvm(3)
    kb = [X[c // 2][4] + 2 * (c % 2) for c in range(4)]
    for hh in range(2):
        for b in range(4):
            k.e("ds_write_b128 v%d, %s offset:%d" % (t, vr(kvacc[hh][b], 4), (hh * 4 + b) * 1024))
    seqs = []
    for c, (mt, hh) in enumerate(C4):
        a = acc[0][hh][mt]
        seqs.append(scale4(a, st[mt]) + pack2(kb[c], a))
    qa = interleave(*seqs)
    for c, (mt, hh) in enumerate(C4):
        qa.append("v_mfma_f32_16x16x16_bf16 %s, %s, %s, 0" % (vr(acc[0][hh][mt], 4), vr(wphi[hh], 2), vr(kb[c], 2)))
    qb = interleave(*[softmax_pair(acc[0][hh][mt], T[c], oq[c]) for c, (mt, hh) in enumerate(C4)])
    if SM2:
        aq = [acc[0][hh][mt] for (mt, hh) in C4]
        qb = interleave(softmax2(aq[:2], T[:2], oq[:2]), softmax2(aq[2:], T[2:], oq[2:]))
    k.e("s_waitcnt lgkmcnt(0)")
    stamp(k, g, True)
    k.e("s_barrier")
    stamp(k, g, True)
    rk = [acc[1][hh][mt] for (mt, hh) in C4]
    rz = [acc[2][hh][mt] for (mt, hh) in C4]
    for ww in range(4):
        k.e("ds_read_b128 %s, v%d offset:%d" % (vr(rk[ww], 4), t2, ww * 8192))
        k.e("ds_read_b128 %s, v%d offset:%d" % (vr(rz[ww], 4), t2, ww * 8192 + 2048))
    k.e("s_lshl_b32 s%d, s%d, 2" % (S_T2, S_CBW))
    k.e("s_add_u32 s%d, s%d, s%d" % (S_T2, S_T2, S_WAVE))
    k.e("s_lshl_b32 s%d, s%d, 4" % (S_T2, S_T2))
    k.e("s_add_u32 s%d, s%d, s%d" % (S_T0, S_T2, S_RBW))
    k.e("s_lshl_b32 s%d, s%d, 6" % (S_T1, S_T0))
    k.e("s_add_u32 s%d, s%d, 0x%x" % (S_T1, S_T1, MB))
    k.e("s_lshl_b32 s%d, s%d, 9" % (S_T0, S_T0))
    l8 = vph
    k.e("v_lshlrev_b32 v%d, 3, v%d" % (l8, g.l))
    for s_ in qa:
        k.e(s_)
    k.e("s_waitcnt lgkmcnt(0)")
    for R_ in (rk, rz):
        for i in (0, 2):
            k.e("v_pk_add_f32 %s, %s, %s" % (vr(R_[0] + i, 2), vr(R_[0] + i, 2), vr(R_[1] + i, 2)))
            k.e("v_pk_add_f32 %s, %s, %s" % (vr(R_[2] + i, 2), vr(R_[2] + i, 2), vr(R_[3] + i, 2)))
    for R_ in (rk, rz):
        for i in (0, 2):
            k.e("v_pk_add_f32 %s, %s, %s" % (vr(R_[0] + i, 2), vr(R_[0] + i, 2), vr(R_[2] + i, 2)))
    for s_ in pack2(rk[1], rk[0]):
        k.e(s_)
    k.e("buffer_store_dwordx2 %s, v%d, %s, s%d offen sc1" % (vr(rk[1], 2), l8, srd(SRD_R2), S_T0))
    k.e("s_mov_b32 exec_lo, 0x00010001")
    k.e("s_mov_b32 exec_hi, 0x00010001")
    k.e("buffer_store_dwordx4 %s, v%d, %s, s%d offen sc1" % (vr(rz[0], 4), vcs, srd(SRD_R2), S_T1))
    k.e("s_mov_b64 exec, -1")
    stamp(k, g, True)
    for s_ in qb:
        k.e(s_)
    vw_, vr_ = acc[1][0][0], acc[1][0][0] + 1
    k.e("s_lshr_b32 s%d, s%d, 1" % (S_T0, S_WAVE))
    k.e("s_lshl_b32 s%d, s%d, 11" % (S_T0, S_T0))
    k.e("s_and_b32 s%d, s%d, 1" % (S_T1, S_WAVE))
    k.e("s_lshl_b32 s%d, s%d, 3" % (S_T1, S_T1))
    k.e("s_add_u32 s%d, s%d, s%d" % (S_T0, S_T0, S_T1))
    k.e("s_add_u32 s%d, s%d, 0x%x" % (S_T0, S_T0, LDS_SCR))
    k.e("v_add_u32 v%d, s%d, v%d" % (vw_, S_T0, g.lin))
    k.e("v_add_u32 v%d, 0x%x, v%d" % (vr_, LDS_SCR, g.lin))
    vz = acc[1][0][0] + 2
    k.e("v_lshl_add_u32 v%d, v%d, 6, v%d" % (vz, g.m, vcs))
    k.e("s_lshl_b32 s%d, s%d, 9" % (S_T0, S_T2))
    k.e("s_lshl_b32 s%d, s%d, 6" % (S_T1, S_T2))
    k.e("s_add_u32 s%d, s%d, 0x%x" % (S_T1, S_T1, MB))
    k.e("s_mov_b32 s%d, 0x3f80" % S_C1)
    k.e("s_mov_b32 s%d, 0x3f800000" % S_C2)
    k.e("s_lshl_b32 s%d, s%d, 10" % (S_OB, S_TOKB))
    k.e("s_lshl_b32 s%d, s%d, 10" % (S_T2, S_CBW))
    k.e("s_add_u32 s%d, s%d, s%d" % (S_OB, S_OB, S_T2))
    stamp(k, g)
    k.e("s_cmp_lg_u32 s%d, 0" % S_LAYER)
    k.e("s_cbranch_scc1 L_ny_%s" % k.name)
    k.e("s_barrier")
    k.label("L_ny_%s" % k.name)
    k.vm = []
    P = [xb + 4 * r for r in range(16)]
    Z = [xb + 64 + 4 * r for r in range(16)]
    H = [xb + 96 + 2 * r for r in range(16)]
    k.e("s_add_u32 s%d, s%d, 4096" % (S_P0 + 1, S_T0))

    def zl(f):
        f("buffer_load_dwordx4 %s, v%d, %s, s%d offen sc1" % (vr(Z[0], 4), vz, srd(SRD_R2), S_T1), "z")

    def kvl(f):
        for r in range(16):
            f("buffer_load_dwordx2 %s, v%d, %s, s%d offen offset:%d sc1" % (vr(H[r], 2), l8, srd(SRD_R2), S_P0 + 1 if r >= 8 else S_T0, (r % 8) * 512), "p%d" % (r // 4))
    raw = lambda a_, b_: k.e(a_)
    zl(k.vmem)
    kvl(k.vmem)
    k.wait_vm("z")
    k.e("v_cmp_eq_u32 vcc, -1, v%d" % (Z[0] + 3))
    k.e("s_cbranch_vccnz L_zr_%s" % k.name)
    k.label("L_zo_%s" % k.name)
    stamp(k, g)
    main = k.lines
    k.lines = k.stubs
    k.label("L_zr_%s" % k.name)
    budget(k, "L_zo_%s" % k.name)
    if PSL:
        k.e("s_sleep %d" % PSL)
    zl(raw)
    k.e("s_waitcnt vmcnt(0)")
    k.e("v_cmp_eq_u32 vcc, -1, v%d" % (Z[0] + 3))
    k.e("s_cbranch_vccnz L_zr_%s" % k.name)
    kvl(raw)
    k.e("s_branch L_zo_%s" % k.name)
    k.label("L_kr_%s" % k.name)
    budget(k, "L_ko_%s" % k.name)
    kvl(raw)
    k.e("s_branch L_ks_%s" % k.name)
    k.lines = main
    for sh in (8, 4, 2, 1):
        for i in range(4):
            k.e("v_add_f32_dpp v%d, v%d, v%d row_ror:%d row_mask:0xf bank_mask:0xf" % (Z[0] + i, Z[0] + i, Z[0] + i, sh))
    k.label("L_ks_%s" % k.name)
    vmx = P[2]
    for q in range(4):
        k.wait_vm("p%d" % q)
        stamp(k, g, True)
        for r in range(4 * q, 4 * q + 4):
            a = P[r & 1]
            for i in range(4):
                k.e("v_dot2_f32_bf16 v%d, v%d, s%d, %s" % (a + i, H[r] + (i >> 1), S_C2 if i & 1 else S_C1, "0" if r < 2 else "v%d" % (a + i)))
            if r & 1:
                if r == 1:
                    k.e("v_max_u32 v%d, v%d, v%d" % (vmx, H[0], H[1]))
                else:
                    k.e("v_max3_u32 v%d, v%d, v%d, v%d" % (vmx, vmx, H[r - 1], H[r]))
    k.e("v_cmp_eq_u32 vcc, -1, v%d" % vmx)
    k.e("s_cbranch_vccnz L_kr_%s" % k.name)
    k.label("L_ko_%s" % k.name)
    for s_ in add4(P[0], P[1]):
        k.e(s_)
    for s_ in pack2(P[1], P[0]) + pack2(Z[1], Z[0]):
        k.e(s_)
    k.e("ds_write_b64 v%d, %s" % (vw_, vr(P[1], 2)))
    k.e("ds_write_b64 v%d, %s offset:1024" % (vw_, vr(Z[1], 2)))
    k.e("s_waitcnt lgkmcnt(0)")
    stamp(k, g, True)
    k.e("s_barrier")
    stamp(k, g, True)
    kvf = [P[2], P[3]]
    zf = [P[4], P[5]]
    for hh in range(2):
        k.e("ds_read_b128 %s, v%d offset:%d" % (vr(kvf[hh], 4), vr_, hh * 2048))
        k.e("ds_read_b128 %s, v%d offset:%d" % (vr(zf[hh], 4), vr_, hh * 2048 + 1024))
    num = [Z[c] for c in range(4)]
    den = [Z[4 + c] for c in range(4)]
    O = [Z[8], Z[9]]
    k.e("s_waitcnt lgkmcnt(0)")
    for c, (mt, hh) in enumerate(C4):
        k.e("v_mfma_f32_16x16x32_bf16 %s, %s, %s, 0" % (vr(den[c], 4), vr(zf[hh], 4), vr(oq[c], 4)))
    for c, (mt, hh) in enumerate(C4):
        k.e("v_mfma_f32_16x16x32_bf16 %s, %s, %s, 0" % (vr(num[c], 4), vr(kvf[hh], 4), vr(oq[c], 4)))
    for c in range(4):
        k.e("v_add_f32 v%d, s%d, v%d" % (den[c], S_EPS, den[c]))
    for c in range(4):
        k.e("v_rcp_f32 v%d, v%d" % (den[c], den[c]))
    for c in range(4):
        for j in (0, 2):
            k.e("v_pk_mul_f32 %s, %s, %s op_sel_hi:[1,0]" % (vr(num[c] + j, 2), vr(num[c] + j, 2), vr(den[c], 2)))
    for c, (mt, hh) in enumerate(C4):
        for s_ in pack2(O[mt] + 2 * hh, num[c]):
            k.e(s_)
    k.e("s_add_u32 s%d, s%d, 0x4000" % (S_T2, S_OB))
    for mt in range(MT):
        k.vmem("buffer_store_dwordx4 %s, v%d, %s, s%d offen%s" % (vr(O[mt], 4), g.lin, srd(SRD_O), S_T2 if mt else S_OB, DSC), "st")
    signal(k, g, E_O, 2, own=((S_OB, 1024), (S_T2, 1024)))
    k.release(mk)


def out_base(k):
    k.e("s_lshl_b32 s%d, s%d, 10" % (S_OB, S_TOKB))
    k.e("s_lshl_b32 s%d, s%d, 11" % (S_T0, S_CB))
    k.e("s_add_u32 s%d, s%d, s%d" % (S_OB, S_OB, S_T0))


def res_load(k, vsw, slot, tag, regs=None):
    r = regs if regs is not None else [k.alloc(4, 4) for _ in range(2)]

    def issue():
        for u in range(2):
            k.vmem("buffer_load_dwordx4 %s, v%d, %s, s%d offen offset:%d" % (vr(r[u], 4), vsw, srd(slot), S_OB, 1024 * u), tag)
    return r, issue


def store_pairs(k, vsw, pk, swap=True, mod=DSC):
    for u in range(2):
        for s_ in swap_pair(pk[u]) if swap else []:
            k.e(s_)
    for u in range(2):
        k.vmem("buffer_store_dwordx4 %s, v%d, %s, s%d offen offset:%d%s" % (vr(pk[u], 4), vsw, srd(SRD_O), S_OB, 1024 * u, mod), "st")


def fin(k, g, acc, pk):
    for u in range(2):
        for t in range(2):
            for s_ in pack2(pk[u] + 2 * t, acc[u][t][0]):
                k.e(s_)
    b2(k)
    stamp(k, g)


def b2(k):
    if k.phase in BL:
        k.owe = True
    else:
        k.e("s_barrier")


def pay(k):
    if getattr(k, "owe", False):
        k.e("s_barrier")
        k.owe = False


def p_wo(k, g):
    MT, NU, KS, CS = 1, 2, 16, 4
    mk0 = k.mark()
    vsw = g.vsw
    k.e("s_mov_b32 s%d, s%d" % (S_TOKB, S_TOKN))
    t16_base(k, S_XO, 512)
    out_base(k)
    w = w_tb(k, g, True, NU, woff512(U_WO), KS)
    X = [k.alloc(4, 4) for _ in range(KS)]
    acc = [[[k.alloc(4, 4)] for _ in range(2)] for _ in range(NU)]
    res = [k.alloc(4, 4) for _ in range(2)]
    vres, t = k.alloc(), k.alloc()
    k.e("v_and_b32 v%d, 1, v%d" % (t, g.g))
    k.e("v_lshlrev_b32 v%d, 10, v%d" % (vres, g.m))
    k.e("v_lshl_add_u32 v%d, v%d, 5, v%d" % (vres, t, vres))
    k.e("v_lshrrev_b32 v%d, 1, v%d" % (t, g.g))
    k.e("v_lshl_add_u32 v%d, v%d, 4, v%d" % (vres, t, vres))
    k.e("s_lshl_b32 s%d, s%d, 10" % (S_T1, S_TOKB))
    k.e("s_lshl_b32 s%d, s%d, 7" % (S_T0, S_CB))
    k.e("s_add_u32 s%d, s%d, s%d" % (S_T1, S_T1, S_T0))
    make_srd(k, SRD_X, ("l", R_O), XBYTES)
    xin_srd(k, SRD_R)
    k.e("s_cselect_b64 vcc, -1, 0")
    k.e("s_cselect_b32 s%d, s%d, s%d" % (S_T1, S_T1, S_OB))
    k.e("s_add_u32 s%d, s%d, s%d" % (S_T2, S_T1, S_XST))
    k.e("v_cndmask_b32 v%d, v%d, v%d, vcc" % (vres, vsw, vres))
    make_srd(k, SRD_O, ("l", R_XA), XBYTES)
    make_srd(k, SRD_SO, ("l", ST_XA), STBYTES)
    for u in range(2):
        k.vmem("buffer_load_dwordx4 %s, v%d, %s, s%d offen" % (vr(res[u], 4), vres, srd(SRD_R), (S_T1, S_T2)[u]), "res")
    stamp(k, g)
    gemm_pre(k, w, KS, R512)
    k.wait_vm("res")
    for u in range(2):
        for s_ in swap_pair(res[u]):
            k.e(s_)
    for u in range(2):
        for t in range(2):
            for s_ in unpack2(acc[u][t][0], res[u] + 2 * t):
                k.e(s_)
    k.e("v_lshlrev_b32 v%d, 10, v%d" % (vres, g.l))
    pl = poll_blocks(k, g, vres, "s%d" % S_XO, X[15])
    stamp(k, g)
    gemm_loop(k, g, w, KS, MT, lambda s, mt: X[s], acc, lambda s: xload(k, g, X[s], 512, 0, s, "x%d" % s), mid={BD512: bar(k)}, init=True,
              rl=lambda s: xreload(k, g, X[s], 512, 0, s), poll=pl)
    pk = [X[8], X[9]]
    fin(k, g, acc, pk)
    store_pairs(k, vsw, pk)
    stats_store(k, g, [pk[u] + i for u in range(2) for i in range(4)], X[10])
    signal(k, g, E_XA, 1)
    k.release(mk0)


def p_w1(k, g):
    MT, NU, KS, CS = 1, 2, 16, 4
    mk0 = k.mark()
    vsw = g.vsw
    t16_base(k, S_XO, 512)
    w = w_tb(k, g, False, NU, woff512(U_W1), KS)
    X = [k.alloc(4, 4) for _ in range(KS)]
    acc = [[[k.alloc(4, 4)] for _ in range(2)] for _ in range(NU)]
    st, st_issue = stats_load(k, g, MT)
    vcs = k.alloc()
    k.e("v_lshlrev_b32 v%d, 4, v%d" % (vcs, g.g))
    k.e("v_add_u32 v%d, 0x%x, v%d" % (vcs, CSX_1, vcs))
    cs = [[k.alloc(4, 4) for _ in range(2)] for _ in range(2)]
    make_srd(k, SRD_X, ("l", R_XA), XBYTES)
    make_srd(k, SRD_O, ("l", R_H), XBYTES)
    make_srd(k, SRD_S, ("l", ST_XA), STBYTES)
    stamp(k, g)
    gemm_pre(k, w, KS, R512)
    pl = poll_stats(k, g, st, st_issue, g.l128)
    stamp(k, g)

    def m4():
        k.e("s_barrier")
        for c in range(4):
            cs_read(k, vcs, cs[c // 2][c % 2], c, "cs")
    ex = spread(stats_fold(st[0], "gg"), PS1, 4)
    ex.update(fix_step(acc, cs, st, range(NU), MT, PS1 + 4))
    gemm_loop(k, g, w, KS, MT, lambda s, mt: X[s], acc, lambda s: xload(k, g, X[s], 512, 0, s, "x%d" % s), mid={BD512: m4},
              top={PS1 + 4: ["cs"]}, extra=ex, rl=lambda s: xreload(k, g, X[s], 512, 0, s), poll=pl, ps=PS1)
    b2(k)
    stamp(k, g)
    seqs = []
    pk = [X[8], X[9]]
    for u in range(2):
        for t in range(2):
            i = 2 * u + t
            a = acc[u][t][0]
            seqs.append(gelu4f(a, X[i], pk[u] + 2 * t, st[0]))
    for s_ in interleave(*seqs):
        k.e(s_)
    for u in range(2):
        for s_ in swap_pair(pk[u]):
            k.e(s_)
    if DSC == " sc1":
        store_pairs(k, vsw, pk, swap=False)
    else:
        k.e("s_add_u32 s%d, s%d, 16" % (S_T0, S_TOKB))
        k.e("s_and_b32 s%d, s%d, 0xe0" % (S_T0, S_T0))
        k.e("s_cmp_eq_u32 s%d, 0" % S_T0)
        k.e("s_cbranch_scc1 L_hb_%s" % k.name)
        store_pairs(k, vsw, pk, swap=False)
        k.e("s_branch L_hc_%s" % k.name)
        k.label("L_hb_%s" % k.name)
        store_pairs(k, vsw, pk, swap=False, mod=" sc1")
        k.label("L_hc_%s" % k.name)
    signal(k, g, E_H, 1)
    k.release(mk0)


def p_w2(k, g):
    MT, NU, KS, CS = 1, 2, 16, 4
    mk0 = k.mark()
    vsw = g.vsw
    w = w_tb(k, g, False, NU, woffk(U_W2), KS)
    X = [k.alloc(4, 4) for _ in range(KS)]
    acc = [[[k.alloc(4, 4)] for _ in range(2)] for _ in range(NU)]
    res, res_issue = res_load(k, vsw, SRD_R, "stat")
    st, st_issue = stats_load(k, g, MT)
    vsh = []
    t = k.alloc()
    for c, d in enumerate((-1, 1, -2, 2)):
        r = k.alloc()
        k.e("s_add_i32 s%d, s%d, %d" % (S_T0, S_TOKB, d))
        k.e("v_add_u32 v%d, s%d, v%d" % (t, S_T0, g.m))
        k.e("v_ashrrev_i32 v%d, 4, v%d" % (r, t))
        k.e("v_lshlrev_b32 v%d, 14, v%d" % (r, r))
        k.e("v_and_b32 v%d, 15, v%d" % (t, t))
        k.e("v_lshl_add_u32 v%d, v%d, 4, v%d" % (r, t, r))
        k.e("v_lshl_add_u32 v%d, v%d, 8, v%d" % (r, g.g, r))
        if c:
            k.e("v_add_u32 v%d, 0x%x, v%d" % (r, 4096 * c, r))
        vsh.append(r)
    vpl = k.alloc()
    k.e("v_and_b32 v%d, 7, v%d" % (vpl, g.l))
    k.e("v_lshlrev_b32 v%d, 11, v%d" % (vpl, vpl))
    k.e("s_lshl_b32 s%d, s%d, 10" % (S_T0, S_TOKB))
    k.e("s_add_u32 s%d, s%d, 1024" % (S_T0, S_T0))
    k.e("v_add_u32 v%d, s%d, v%d" % (vpl, S_T0, vpl))
    k.e("v_and_b32 v%d, 2, v%d" % (t, g.l))
    k.e("v_lshlrev_b32 v%d, 14, v%d" % (t, t))
    k.e("v_subrev_u32 v%d, 0x4000, v%d" % (t, t))
    k.e("v_cmp_lt_u32 vcc, 7, v%d" % g.l)
    k.e("v_cndmask_b32 v%d, 0, v%d, vcc" % (t, t))
    k.e("v_add_u32 v%d, v%d, v%d" % (vpl, vpl, t))
    make_srd(k, SRD_X, ("l", R_H), XBYTES)
    make_srd(k, SRD_O, ("l", R_X1), XBYTES)
    make_srd(k, SRD_R, ("l", R_XA), XBYTES)
    make_srd(k, SRD_S, ("l", ST_XA), STBYTES)
    make_srd(k, SRD_SO, ("l", ST_X1), STBYTES)
    res_issue()
    st_issue()
    stamp(k, g)
    gemm_pre(k, w, KS, R512)
    k.wait_vm("stat")
    for s_ in interleave(stats_finish(st[0]), swap_pair(res[0]) + swap_pair(res[1])):
        k.e(s_)
    seqs = []
    for u in range(2):
        for t in range(2):
            tt = acc[u][t][0]
            sq = unpack2(tt, res[u] + 2 * t)
            sq += ["v_pk_fma_f32 %s, %s, %s, %s op_sel:[0,0,1] op_sel_hi:[1,0,1]" % (vr(tt + j, 2), vr(tt + j, 2), vr(st[0], 2), vr(st[0], 2)) for j in (0, 2)]
            seqs.append(sq)
    for s_ in interleave(*seqs):
        k.e(s_)
    pl = poll_blocks(k, g, vpl, "0", X[15])
    stamp(k, g)

    def xl(s):
        k.vmem("buffer_load_dwordx4 %s, v%d, %s, 0 offen offset:%d sc1" % (vr(X[s], 4), vsh[s // 4], srd(SRD_X), 1024 * (s % 4)), "x%d" % s)

    def rl(s):
        k.e("buffer_load_dwordx4 %s, v%d, %s, 0 offen offset:%d sc1" % (vr(X[s], 4), vsh[s // 4], srd(SRD_X), 1024 * (s % 4)))
    gemm_loop(k, g, w, KS, MT, lambda s, mt: X[s], acc, xl, init=True, rl=rl, poll=pl)
    pk = [X[8], X[9]]
    fin(k, g, acc, pk)
    store_pairs(k, vsw, pk)
    stats_store(k, g, [pk[u] + i for u in range(2) for i in range(4)], X[10])
    signal(k, g, E_X1, 1)
    k.release(mk0)


def p_w3(k, g):
    MT, NU, KS, CS = 2, 3, 16, 4
    mk0 = k.mark()
    vsw = g.vsw
    k.e("s_mov_b32 s%d, s%d" % (S_TOKB, S_TOKW))
    t16_base(k, S_XO, 512)
    w = w_tb(k, g, False, NU, woff3, KS)
    k.e("s_mul_i32 s%d, s%d, %d" % (S_OB, S_TOKB, 2752))
    k.e("s_lshl_b32 s%d, s%d, 10" % (S_T0, S_CU3))
    k.e("s_add_u32 s%d, s%d, s%d" % (S_OB, S_OB, S_T0))
    st, st_issue = stats_load(k, g, MT)
    vcs = k.alloc()
    k.e("v_lshlrev_b32 v%d, 4, v%d" % (vcs, g.g))
    k.e("v_add_u32 v%d, 0x%x, v%d" % (vcs, CSX_W, vcs))
    X = [[k.alloc(4, 4) for _ in range(KS)] for _ in range(MT)]
    acc = [[[k.alloc(4, 4) for _ in range(MT)] for _ in range(2)] for _ in range(NU)]
    make_srd(k, SRD_X, ("l", R_X1), XBYTES)
    make_srd(k, SRD_O, ("l", R_H3), S * 2752)
    make_srd(k, SRD_S, ("l", ST_X1), STBYTES)
    stamp(k, g)
    gemm_pre(k, w, KS, 3, [0, 1], 2)
    pl = poll_stats(k, g, st, st_issue, g.l128)
    stamp(k, g)

    def rl(s):
        for mt in range(MT):
            xreload(k, g, X[mt][s], 512, mt, s)

    def xl(s):
        for mt in range(MT):
            xload(k, g, X[mt][s], 512, mt, s, "x%d" % s)

    ex, mid, top = wide_hooks(k, acc, st, vcs, [0, 1], 2, MT, "g", 6)
    gemm_loop(k, g, w, KS, MT, lambda s, mt: X[mt][s], acc, xl, mid=mid, top=top, extra=ex, rl=rl, poll=pl, ps=PSW,
              pre={8: bar(k)} if W3H else None)
    k.e("s_barrier")
    stamp(k, g)
    k.e("s_add_u32 s%d, s%d, %d" % (S_T2, S_OB, 16 * 2752))

    def epi(u):
        o = interleave(*[gelu4f(acc[u][t][mt], w.free[2 * mt + t], acc[u][0][mt] + 2 * t, st[mt]) for mt in range(MT) for t in range(2)])
        for mt in range(MT):
            o += swap_pair(acc[u][0][mt])
        for mt in range(MT):
            o.append(("vm", "buffer_store_dwordx4 %s, v%d, %s, s%d offen offset:%d%s" % (
                vr(acc[u][0][mt], 4), vsw, srd(SRD_O), S_T2 if mt else S_OB, 1024 * u, DSC), "st"))
        return o
    E = epi(0) + epi(1)
    tp = [i for i, e_ in enumerate(E) if isinstance(e_, str) and e_.split()[0] in ("v_exp_f32", "v_rcp_f32")]
    pass2(k, w, KS, MT, lambda s, mt: X[mt][s], acc[2], E, (lambda j: tp[j] + 1) if WPOS else (lambda j: (len(E) - WTAIL) * j // 64))
    for e_ in epi(2):
        put(k, e_)
    signal(k, g, E_H3, 2, own=((S_OB, 3072), (S_T2, 3072)))
    k.release(mk0)


KCAP4 = 40


def p_w4(k, g):
    MT, NU, KS, CS = 1, 2, 43, 4
    mk0 = k.mark()
    vsw = g.vsw
    k.e("s_mov_b32 s%d, s%d" % (S_TOKB, S_TOKN))
    t16_base(k, S_XO, F)
    out_base(k)
    w = w_tb(k, g, False, NU, woff4, KS)
    X = [k.alloc(4, 4) for _ in range(KS)]
    acc = [[[k.alloc(4, 4)] for _ in range(2)] for _ in range(NU)]
    res, res_issue = res_load(k, vsw, SRD_R, "res", [X[39], X[40]])
    res1, res1_issue = res_load(k, vsw, SRD_R2, "res", [X[41], X[42]])
    vro = k.alloc()
    t = k.alloc()
    k.e("v_add_u32 v%d, s%d, v%d" % (vro, S_TOKB, g.m))
    k.e("v_lshlrev_b32 v%d, 10, v%d" % (vro, vro))
    k.e("v_and_b32 v%d, 1, v%d" % (t, g.g))
    k.e("v_lshl_add_u32 v%d, v%d, 5, v%d" % (vro, t, vro))
    k.e("v_lshrrev_b32 v%d, 1, v%d" % (t, g.g))
    k.e("v_lshl_add_u32 v%d, v%d, 4, v%d" % (vro, t, vro))
    k.e("s_lshl_b32 s%d, s%d, 7" % (S_T0, S_CB))
    k.e("v_add_u32 v%d, s%d, v%d" % (vro, S_T0, vro))
    k.e("v_mul_u32_u24 v%d, 43, v%d" % (t, g.l))
    k.e("v_lshrrev_b32 v%d, 4, v%d" % (t, t))
    k.e("v_min_u32 v%d, 40, v%d" % (t, t))
    k.e("v_add_u32 v%d, 2, v%d" % (t, t))
    k.e("v_lshlrev_b32 v%d, 10, v%d" % (t, t))
    vpl = t
    make_srd(k, SRD_X, ("l", R_H3), S * 2752)
    make_srd(k, SRD_O, ("n", R_XIN), XBYTES)
    make_srd(k, SRD_R, ("l", R_XA), XBYTES)
    make_srd(k, SRD_R2, ("l", R_X1), XBYTES)
    make_srd(k, SRD_SO, ("n", ST_XIN), STBYTES)
    make_srd(k, SRD_S, ("in", OUT), XBYTES)
    res_issue()
    res1_issue()
    stamp(k, g)
    k.e("s_barrier")
    gemm_pre(k, w, KS, 2)
    k.wait_vm("res")
    for u in range(2):
        for s_ in swap_pair(res[u]) + swap_pair(res1[u]):
            k.e(s_)
    seqs = []
    for u in range(2):
        for t in range(2):
            a = acc[u][t][0]
            tt = X[30 + 2 * u + t]
            seqs.append(unpack2(a, res1[u] + 2 * t) + unpack2(tt, res[u] + 2 * t) + add4(a, tt))
    for s_ in interleave(*seqs):
        k.e(s_)
    pl = poll_blocks(k, g, vpl, "s%d" % S_XO, X[29])
    stamp(k, g)
    gemm_loop(k, g, w, KS, MT, lambda s, mt: X[s], acc, lambda s: xload(k, g, X[s], F, 0, s, "x%d" % s),
              mid={7: bar(k), 15: bar(k), 23: bar(k), 31: bar(k)}, pre={KCAP4: bar(k)}, init=True,
              rl=lambda s: xreload(k, g, X[s], F, 0, s), poll=pl)
    pk = [X[8], X[9]]
    fin(k, g, acc, pk)
    k.e("s_cmp_lg_u32 s%d, 0" % S_LAYER)
    k.e("s_cbranch_scc1 L_last_%s" % k.name)
    store_pairs(k, vsw, pk)
    stats_store(k, g, [pk[u] + i for u in range(2) for i in range(4)], X[10])
    signal(k, g, E_X, 1, nxt=True)
    k.e("s_add_u32 s%d, s%d, 0x%x" % (S_WSL, S_WSL, LSTRIDE))
    k.e("s_addc_u32 s%d, s%d, 0" % (S_WSH, S_WSH))
    k.e("s_mov_b32 s%d, 1" % S_LAYER)
    k.e("s_branch L_layer_%s" % k.name)
    k.label("L_last_%s" % k.name)
    k.e("s_nop 4")
    for u in range(2):
        for s_ in swap_pair(pk[u]):
            k.e(s_)
    for u in range(2):
        k.e("buffer_store_dwordx4 %s, v%d, %s, 0 offen offset:%d%s" % (vr(pk[u], 4), vro, srd(SRD_S), 64 * u, OSC))
    if "w4" in BL:
        k.e("s_barrier")
    k.release(mk0)


def w_lane(k, g, r, wrow, swz_bit, t, t2):
    k.e("v_lshrrev_b32 v%d, 2, v%d" % (t, g.l))
    k.e("s_mov_b32 s%d, %d" % (S_T0, wrow))
    k.e("v_mul_lo_u32 v%d, s%d, v%d" % (r, S_T0, t))
    k.e("v_lshrrev_b32 v%d, %d, v%d" % (t, 2 + swz_bit - 1, g.l))
    k.e("v_and_b32 v%d, 2, v%d" % (t, t))
    k.e("v_and_b32 v%d, 3, v%d" % (t2, g.l))
    k.e("v_xor_b32 v%d, v%d, v%d" % (t, t, t2))
    k.e("v_lshl_add_u32 v%d, v%d, 4, v%d" % (r, t, r))


def dma(k, vwo, soff, m0off):
    k.e("s_add_u32 s%d, s%d, 0x%x" % (S_T0, S_WBASE, soff))
    k.e("s_mov_b32 m0, 0x%x" % m0off)
    k.e("buffer_load_dwordx4 v%d, %s, s%d offen lds" % (vwo, srd(SRD_W), S_T0))


_pollid = [0]


def poll_all(k, g, vf):
    k.e("s_mov_b32 s%d, 0" % S_CNT)
    k.e("s_mov_b32 s%d, 0x%x" % (S_T2, FL_KV))
    k.label("L_pa_%s" % k.name)
    k.e("buffer_load_dwordx4 %s, v%d, %s, s%d offen sc1" % (vr(g.pv, 4), g.lin, srd(SRD_F), S_T2))
    k.e("s_waitcnt vmcnt(0)")
    for i in range(4):
        k.e("v_subrev_u32 v%d, v%d, v%d" % (g.pv + i, vf, g.pv + i))
    k.e("v_or3_b32 v%d, v%d, v%d, v%d" % (g.pv, g.pv, g.pv + 1, g.pv + 2))
    k.e("v_or_b32 v%d, v%d, v%d" % (g.pv, g.pv, g.pv + 3))
    k.e("v_and_b32 v%d, 0xffffff9f, v%d" % (g.pv, g.pv))
    k.e("v_cmp_ne_u32 vcc, 0, v%d" % g.pv)
    k.e("s_cbranch_vccz L_ga_%s" % k.name)
    k.e("s_sleep %d" % POLL_SLEEP)
    k.e("s_add_u32 s%d, s%d, 1" % (S_CNT, S_CNT))
    k.e("s_cmp_lt_u32 s%d, %d" % (S_CNT, POLL_MAX))
    k.e("s_cbranch_scc1 L_pa_%s" % k.name)
    k.label("L_ga_%s" % k.name)


def loader(k, g):
    k.isld = True
    v3072, v1024, v1024k, v2752 = k.alloc(), k.alloc(), k.alloc(), k.alloc()
    t, t2 = k.alloc(), k.alloc()
    g.pv = k.alloc(4, 4)
    w_lane(k, g, v3072, 3072, 3, t, t2)
    w_lane(k, g, v1024, 1024, 3, t, t2)
    w_lane(k, g, v1024k, 1024, 2, t, t2)
    w_lane(k, g, v2752, 2752, 3, t, t2)
    g.l4 = k.alloc()
    k.e("v_lshlrev_b32 v%d, 2, v%d" % (g.l4, g.l))
    vfk = k.alloc()
    k.e("v_and_b32 v%d, 0xffffffe0, v%d" % (vfk, g.tmp))
    k.e("v_add_u32 v%d, 0x%x, v%d" % (vfk, NONCE_K - 32, vfk))

    pz = k.alloc(4, 4)
    for i in range(4):
        k.e("v_mov_b32 v%d, -1" % (pz + i))

    def mark(sb, off, mod=None):
        k.e("s_add_u32 s%d, s%d, 0x%x" % (S_P0, sb, off & ~1023))
        k.e("buffer_store_dwordx4 %s, v%d, %s, s%d offen offset:%d%s" % (vr(pz, 4), g.lin, srd(SRD_SO), S_P0, off & 1023, PSC if mod is None else mod))

    def m_n(regs, sts):
        k.e("s_lshl_b32 s%d, s%d, 16" % (S_T1, S_RB))
        k.e("s_lshl_b32 s%d, s%d, 11" % (S_T2, S_CB))
        k.e("s_add_u32 s%d, s%d, s%d" % (S_T1, S_T1, S_T2))
        for r in regs:
            for wv in range(4):
                for u in range(2):
                    mark(S_T1, r + wv * 16384 + u * 1024, " sc1" if r == R_H and wv in (0, 3) else None)
        k.e("s_lshl_b32 s%d, s%d, 14" % (S_T1, S_CB))
        k.e("s_lshl_b32 s%d, s%d, 9" % (S_T2, S_RB))
        k.e("s_add_u32 s%d, s%d, s%d" % (S_T1, S_T1, S_T2))
        k.e("s_mov_b64 exec, 0xffffffff")
        for r in sts:
            mark(S_T1, r)
        k.e("s_mov_b64 exec, -1")

    def m_h3():
        k.e("s_mul_i32 s%d, s%d, %d" % (S_T1, S_RBW, 128 * 2752))
        k.e("s_lshl_b32 s%d, s%d, 10" % (S_T2, S_CU3))
        k.e("s_add_u32 s%d, s%d, s%d" % (S_T1, S_T1, S_T2))
        for j in range(8):
            for u in range(3):
                mark(S_T1, R_H3 + j * 16 * 2752 + u * 1024)

    def setw(idx, size, sreg, sh):
        make_srd(k, SRD_W, ("in", idx), size)
        k.e("s_lshl_b32 s%d, s%d, %d" % (S_WBASE, sreg, sh))

    def units(vwo, wrow, ucol, ub, us, js=range(8)):
        for j in js:
            for wv in range(4):
                for u in us:
                    dma(k, vwo, u * ucol + j * 64 * wrow + wv * 16 * wrow, ub[u] + j * 4096 + wv * 1024)

    def d_qkv(us, js=range(8)):
        setw(IN_WQKV, 512 * 3072, S_CBW, 6)
        units(v3072, 3072, 1024, U_QKV, us, js)

    def d_512(idx, vwo, ub, us, js=range(8)):
        setw(idx, 512 * 1024, S_CB, 7)
        units(vwo, 1024, 64, ub, us, js)

    def blocks(vwo, wrow, woff, bl):
        for s_ in sorted({b[1] for b in bl}):
            for hf in range(2):
                for u in sorted(b[0] for b in bl if b[1] == s_):
                    dma(k, vwo, u * 64 + (s_ * 32 + hf * 16) * wrow, woff(u, s_) + hf * 1024)

    def d_w2(half):
        setw(IN_W2, 512 * 1024, S_CB, 7)
        blocks(v1024, 1024, woffk(U_W2), [(u, s_) for s_ in range(8 * half, 8 * half + 8) for u in range(2)])

    def d_w3(bl):
        setw(IN_W3, 512 * 2752, S_CU3, 6)
        blocks(v2752, 2752, woff3, bl)

    wl = w_tb(k, g, False, 1, lambda u, s_: 65536 * s_, 3)
    ones = k.alloc(4, 4)
    fr = [k.alloc(4, 4) for _ in range(4)]
    caq, ca1, ca3 = [[k.alloc(4, 4) for _ in range(n_)] for n_ in (6, 4, 6)]
    wph, wph2 = k.alloc(4, 4), k.alloc(4, 4)
    vcw = k.alloc()
    seen = set()

    def colsum(woff, ca, bl):
        wl.woff = woff
        fl = [(u, s_, tt) for (u, s_) in bl for tt in range(2)]
        k.lg = []

        def rd(j):
            u, s_, tt = fl[j]
            tr_reads(k, wl, fr[j % 4], u, tt, s_, "c%d" % j)
        for j in range(3):
            rd(j)
        for j in range(len(fl)):
            u, s_, tt = fl[j]
            if j + 3 < len(fl):
                rd(j + 3)
            k.e("s_waitcnt lgkmcnt(%d)" % lgn(k, "c%d" % j))
            a = ca[2 * u + tt]
            k.e("v_mfma_f32_16x16x32_bf16 %s, %s, %s, %s" % (vr(a, 4), vr(fr[j % 4], 4), vr(ones, 4), vr(a, 4) if a in seen else "0"))
            seen.add(a)

    wk = w_tb(k, g, True, 1, lambda u, s_: 65536 * s_, 3) if LINP[0] else None
    ft = [k.alloc(4, 4) for _ in range(6)]
    lb = {0: g.lin}
    for h_ in (1, 2) if LINP[0] else ():
        lb[h_] = k.alloc()
        k.e("v_add_u32 v%d, 0x%x, v%d" % (lb[h_], 65536 * h_, g.lin))

    def trans(woff, wt, bl, ca=None):
        wt.woff = woff
        k.lg = []

        def rd(j):
            u, s_ = bl[j]
            for tt in range(2):
                tr_reads(k, wt, ft[(2 * j + tt) % 6], u, tt, s_, "c%d" % j)
        for j in range(min(2, len(bl))):
            rd(j)
        for j in range(len(bl)):
            u, s_ = bl[j]
            if j + 2 < len(bl):
                rd(j + 2)
            k.e("s_waitcnt lgkmcnt(%d)" % lgn(k, "c%d" % j))
            for tt in range(2):
                f_ = ft[(2 * j + tt) % 6]
                off = woff(u, s_) + 1024 * tt
                ds(k, "ds_write_b128 v%d, %s offset:%d" % (lb[off >> 16], vr(f_, 4), off & 0xffff))
                if ca:
                    a = ca[2 * u + tt]
                    k.e("v_mfma_f32_16x16x32_bf16 %s, %s, %s, %s" % (vr(a, 4), vr(f_, 4), vr(ones, 4), vr(a, 4) if a in seen else "0"))
                    seen.add(a)

    def cs_out(ca, base):
        k.e("s_nop 7")
        k.e("s_mov_b32 exec_lo, 0x00010001")
        k.e("s_mov_b32 exec_hi, 0x00010001")
        for c in range(len(ca)):
            k.e("ds_write_b128 v%d, %s offset:%d" % (vcw, vr(ca[c], 4), base - CSX_W + 64 * c))
        k.e("s_mov_b64 exec, -1")

    def d_w4(js):
        setw(IN_W4, F * 1024, S_CB, 7)
        for j in js:
            for wv in range(4):
                dma(k, v1024, j * 32 * 1024 + (wv & 1) * 64 + (wv >> 1) * 16384, woff4(wv & 1, j) + (wv >> 1) * 1024)

    def B():
        k.e("s_barrier")

    vpf = k.alloc()
    k.e("v_lshlrev_b32 v%d, %d, v%d" % (vpf, PFS, g.l))

    def warm(idx, size, bit):
        if not L2W & bit:
            return
        make_srd(k, SRD_R, ("in", idx), size)
        per = size // 32
        k.e("s_and_b32 s%d, s%d, 3" % (S_T0, S_RB))
        k.e("s_lshl_b32 s%d, s%d, 3" % (S_T0, S_T0))
        k.e("s_add_u32 s%d, s%d, s%d" % (S_T0, S_T0, S_CB))
        k.e("s_mul_i32 s%d, s%d, %d" % (S_T0, S_T0, per))
        step = 64 << PFS
        for o in range(0, per, step):
            k.e("buffer_load_dword v%d, v%d, %s, s%d offen" % (t2, vpf, srd(SRD_R), S_T0))
            if o + step < per:
                k.e("s_add_u32 s%d, s%d, %d" % (S_T0, S_T0, step))

    def phase(b1b, cnt=0):
        stamp(k, g, ld=True)
        k.e("s_waitcnt vmcnt(%d)" % cnt)
        stamp(k, g, ld=True)
        k.e("s_barrier")
        if b1b:
            k.e("s_barrier")
        stamp(k, g, ld=True)

    _nl = [0]

    def not_last(f):
        i = _nl[0]
        _nl[0] += 1
        k.e("s_cmp_lg_u32 s%d, 0" % S_LAYER)
        k.e("s_cbranch_scc1 L_nl%d_%s" % (i, k.name))
        f()
        k.label("L_nl%d_%s" % (i, k.name))

    _wb = [0]

    def wb(layer):
        i = _wb[0]
        _wb[0] += 1
        k.e("s_and_b32 s%d, s%d, 3" % (S_T0, S_RB))
        k.e("s_or_b32 s%d, s%d, s%d" % (S_T0, S_T0, S_CB))
        k.e("s_xor_b32 s%d, s%d, %d" % (S_T1, S_LAYER, layer))
        k.e("s_or_b32 s%d, s%d, s%d" % (S_T0, S_T0, S_T1))
        k.e("s_cmp_lg_u32 s%d, 0" % S_T0)
        k.e("s_cbranch_scc1 L_wb%d_%s" % (i, k.name))
        k.e("buffer_wbl2 sc1")
        k.label("L_wb%d_%s" % (i, k.name))

    def tch():
        for i in range(4):
            k.e("s_lshl_b32 s%d, s2, 2" % S_CNT)
            k.e("s_add_u32 s%d, s%d, %d" % (S_CNT, S_CNT, i))
            touch(k, g, t2, [(IN_W1, 128), (IN_W2, 128), (IN_W3, 344), (IN_W4, 344)])

    wq = woff512(U_QKV)
    kvs = lambda j: colsum(wq, caq, [(u, s_) for s_ in range(4 * j, 4 * j + 4) for u in (1, 2)])
    d_qkv([1, 2], range(PJ))
    for i in range(4):
        k.e("v_mov_b32 v%d, 0x3f803f80" % (ones + i))
    k.e("v_lshlrev_b32 v%d, 4, v%d" % (vcw, g.g))
    k.e("v_add_u32 v%d, 0x%x, v%d" % (vcw, CSX_W, vcw))
    if PCS:
        stamp(k, g, ld=True)
        k.e("s_waitcnt vmcnt(%d)" % (8 * (PJ - 2)))
        stamp(k, g, ld=True)
        kvs(0)
    d_qkv([1, 2], range(PJ, 8))
    make_srd(k, SRD_R, ("in", IN_WPHI), 32 * 512)
    k.e("v_lshlrev_b32 v%d, 7, v%d" % (t, g.g))
    k.e("v_lshl_add_u32 v%d, v%d, 1, v%d" % (t, g.m, t))
    k.e("s_lshl_b32 s%d, s%d, 10" % (S_T0, S_CBW))
    for hh in range(2):
        for j in range(4):
            k.e("buffer_load_ushort v%d, v%d, %s, s%d offen offset:%d" % (
                (wph if j & 1 == 0 else wph2) + 2 * hh + (j >> 1), t, srd(SRD_R), S_T0, 512 * hh + 32 * j))
    d_qkv([0], range(PQ))
    for j in range(1, PCS):
        stamp(k, g, ld=True)
        k.e("s_waitcnt vmcnt(%d)" % min(63, 8 * (6 - 2 * j) + 8 + 4 * PQ))
        stamp(k, g, ld=True)
        kvs(j)
    phase(False, cnt=min(63, 8 * (8 - QH) + 8 + 4 * PQ))
    k.label("L_llayer_%s" % k.name)
    make_srd(k, SRD_F, ("l", R_FL), FLSZ)
    make_srd(k, SRD_SO, ("l", 0), 2 * LSTRIDE)

    def pf2():
        if PQ < 8:
            d_qkv([0], range(PQ, 8))
        k.e("s_waitcnt vmcnt(32)")
        for i in range(4):
            k.e("v_lshl_or_b32 v%d, v%d, 16, v%d" % (wph + i, wph2 + i, wph + i))
        for j in range(PCS, 4):
            if BH and j == PBH:
                B()
            kvs(j)
        if BH and PBH == 4:
            B()
        k.e("s_waitcnt vmcnt(0)")
        if TP == 1:
            tch()
        k.e("s_lshl_b32 s%d, s%d, 5" % (S_T0, S_RB))
        k.e("s_lshl_b32 s%d, s%d, 2" % (S_T1, S_CB))
        k.e("s_add_u32 s%d, s%d, s%d" % (S_T0, S_T0, S_T1))
        k.e("s_add_u32 s%d, s%d, 0x%x" % (S_T0, S_T0, FL_KV))
        k.e("s_mov_b64 exec, 1")
        k.e("buffer_store_dword v%d, v%d, %s, s%d offen sc1" % (g.one, g.l64, srd(SRD_F), S_T0))
        k.e("s_mov_b64 exec, -1")
        colsum(wq, caq, [(0, s_) for s_ in range(16)])
    not_last(pf2)
    if BH:
        k.e("s_cmp_eq_u32 s%d, 0" % S_LAYER)
        k.e("s_cbranch_scc1 L_lh_%s" % k.name)
        k.e("s_waitcnt vmcnt(32)")
        B()
        k.label("L_lh_%s" % k.name)
    cs_out(caq, CSX_W)
    k.e("v_add_u32 v%d, 0x%x, v%d" % (t, CSX_W + 1024, g.lin))
    k.e("ds_write_b128 v%d, %s" % (t, vr(wph, 4)))
    k.e("s_cmp_eq_u32 s%d, 0" % S_LAYER)
    k.e("s_cbranch_scc1 L_lq_%s" % k.name)
    k.e("s_waitcnt vmcnt(0)")
    k.label("L_lq_%s" % k.name)
    k.e("s_waitcnt lgkmcnt(0)")
    B()
    if TP == 0:
        not_last(tch)
    if LX == 2:
        m_n([R_XA, R_H, R_X1], [ST_XA, ST_X1])
    B()
    stamp(k, g, ld=True)
    warm(IN_W1, 512 * 1024, 1)
    warm(IN_W2, 512 * 1024, 2)
    warm(IN_W3, 512 * 2752, 4)
    warm(IN_W4, F * 1024, 8)
    if LX:
        if LX == 1:
            m_n([R_XA, R_H, R_X1], [ST_XA, ST_X1])
        d_512(IN_WO, v1024k, U_WO, [0, 1], range(LXJ))
        k.e("s_waitcnt vmcnt(%d)" % (8 * LXJ))
        B()
        d_512(IN_WO, v1024k, U_WO, [0, 1], range(LXJ, 8))
        d_512(IN_W1, v1024, U_W1, [0, 1], range(LXW))

        def hs():
            poll_all(k, g, vfk)
            B()
        not_last(hs)
        d_512(IN_W1, v1024, U_W1, [0, 1], range(LXW, 8))
        k.e("s_waitcnt vmcnt(63)")
        B()

        def h1():
            k.e("s_waitcnt vmcnt(0)")
            colsum(woff512(U_W1), ca1, [(u, s_) for s_ in range(16) for u in range(2)])
        not_last(h1)
        B()
    else:
        d_512(IN_WO, v1024k, U_WO, [0, 1], range(7))
        m_n([R_XA, R_H, R_X1], [ST_XA, ST_X1])
        d_512(IN_W1, v1024, U_W1, [0])
        k.e("s_waitcnt vmcnt(32)")
        B()
        d_512(IN_WO, v1024k, U_WO, [0, 1], range(7, 8))
        d_512(IN_W1, v1024, U_W1, [1])

        two = lambda r: [(u, s_) for s_ in r for u in range(2)]
        if "wo" in LINP:
            trans(woff512(U_WO), wk, two(range(TO1)))

        def hs():
            poll_all(k, g, vfk)
            B()
            if "w1" not in LINP:
                colsum(woff512(U_W1), ca1, [(u, s_) for s_ in range(16) for u in range(2)])
        not_last(hs)
        k.e("s_waitcnt vmcnt(32)")
        if "wo" in LINP:
            trans(woff512(U_WO), wk, two(range(TO1, 16)))
            k.e("s_waitcnt lgkmcnt(0)")
        B()
        if "w1" in LINP:
            trans(woff512(U_W1), wl, [(0, s_) for s_ in range(16)], ca1)
            k.e("s_waitcnt vmcnt(0)")
            trans(woff512(U_W1), wl, [(1, s_) for s_ in range(T1B)], ca1)
        B()
    d_w2(0)
    m_h3()
    if "w1" in LINP:
        if T1B < 16:
            trans(woff512(U_W1), wl, [(1, s_) for s_ in range(T1B, 16)], ca1)
        k.e("s_waitcnt lgkmcnt(0)")
    k.e("s_waitcnt vmcnt(56)")
    B()
    stamp(k, g, ld=True)
    cs_out(ca1, CSX_1)
    if "w2" in LINP:
        d_w2(1)
        k.e("s_waitcnt vmcnt(56)")
        trans(woffk(U_W2), wl, two(range(8)))
        k.e("s_waitcnt vmcnt(0)")
        trans(woffk(U_W2), wl, two(range(8, T2B)))
        k.e("s_waitcnt lgkmcnt(0)")
        B()
        trans(woffk(U_W2), wl, two(range(T2B, 16)))
        d_w3([(u, s_) for s_ in range(T3A) for u in range(2)])
        k.e("s_waitcnt lgkmcnt(0)")
        B()
        d_w3([(u, s_) for s_ in range(T3A, 6) for u in range(2)])
    else:
        if LV & 1:
            k.e("s_sleep %d" % LS1)
            d_w2(1)
            k.e("s_waitcnt lgkmcnt(0)")
            B()
        else:
            k.e("s_waitcnt lgkmcnt(0)")
            B()
            d_w2(1)
        d_w3([(u, s_) for s_ in range(6) for u in range(2)])
        k.e("s_waitcnt vmcnt(24)")
        B()
    stamp(k, g, ld=True)
    if LS2:
        k.e("s_sleep %d" % LS2)
    if W3H:
        d_w3([(u, s_) for s_ in range(6, 8) for u in range(2)])
        not_last(lambda: m_n([LSTRIDE + R_XIN], [LSTRIDE + ST_XIN]))
        d_w3([(u, s_) for s_ in range(8, 16) for u in range(3)])
        if W3H == 1:
            d_w3([(2, s_) for s_ in range(8)])
        k.e("s_waitcnt vmcnt(%d)" % (63 if W3H == 1 else 48))
        B()
        stamp(k, g, ld=True)
        if W3H == 2:
            d_w3([(2, s_) for s_ in range(8)])
        not_last(lambda: colsum(woff3, ca3, [(u, s_) for s_ in range(8) for u in range(2)]))
        k.e("s_waitcnt vmcnt(16)")
        not_last(lambda: colsum(woff3, ca3, [(u, s_) for s_ in range(8, 12) for u in range(3)]))
        B()

        def f4():
            colsum(woff3, ca3, [(u, s_) for s_ in range(12, 16) for u in range(3)])
            k.e("s_waitcnt vmcnt(0)")
            colsum(woff3, ca3, [(2, s_) for s_ in range(8)])
        not_last(f4)
    else:
        d_w3([(u, s_) for s_ in range(6, 8) for u in range(2)])
        d_w3([(u, s_) for s_ in range(8, 16) for u in range(3)])
        not_last(lambda: m_n([LSTRIDE + R_XIN], [LSTRIDE + ST_XIN]))
        k.e("s_waitcnt vmcnt(0)")
        B()
        stamp(k, g, ld=True)
        if LS3:
            k.e("s_sleep %d" % LS3)
        d_w3([(2, s_) for s_ in range(8)])

        def f4():
            colsum(woff3, ca3, [(u, s_) for s_ in range(16) for u in range(3) if u < 2 or s_ >= 8])
            k.e("s_waitcnt vmcnt(0)")
            colsum(woff3, ca3, [(2, s_) for s_ in range(8)])
        not_last(f4)
    cs_out(ca3, CSX_W)
    k.e("s_waitcnt vmcnt(0) lgkmcnt(0)")
    B()
    B()
    stamp(k, g, ld=True)
    warm(IN_W4, F * 1024, 32)
    if L2W & 16:
        not_last(lambda: warm(IN_WQKV, 512 * 3072, 16))
    d_w4(range(0, W4S))
    phase(False, cnt=min(63, 4 * (W4S - 10)))
    if LS4:
        k.e("s_sleep %d" % LS4)
    if W4M:
        d_w4(range(W4S, W4M))
        k.e("s_waitcnt vmcnt(%d)" % min(63, 4 * (W4M - 18)))
        B()
        d_w4(range(W4M, 40))
        k.e("s_waitcnt vmcnt(56)")
        not_last(lambda: d_qkv([2], range(QH)))
        B()
        d_w4(range(40, 43))
        k.e("s_waitcnt vmcnt(36)")
        B()
        k.e("s_waitcnt vmcnt(12)")
    else:
        d_w4(range(W4S, 40))
        k.e("s_waitcnt vmcnt(63)")
        B()
        k.e("s_waitcnt vmcnt(0)")
        not_last(lambda: d_qkv([2], range(QH)))
        B()
        d_w4(range(40, 43))
        B()
    not_last(lambda: d_qkv([1], range(QH)))
    B()
    k.e("s_cmp_lg_u32 s%d, 0" % S_LAYER)
    k.e("s_cbranch_scc1 L_lw_%s" % k.name)
    k.e("s_waitcnt vmcnt(%d)" % (4 * QH))
    B()
    k.e("s_waitcnt vmcnt(0)")
    B()
    if LS5:
        k.e("s_sleep %d" % LS5)
    d_qkv([1, 2], range(QH, 8))
    d_qkv([0])
    stamp(k, g, ld=True)
    k.e("s_add_u32 s%d, s%d, 0x%x" % (S_WSL, S_WSL, LSTRIDE))
    k.e("s_addc_u32 s%d, s%d, 0" % (S_WSH, S_WSH))
    k.e("s_mov_b32 s%d, 1" % S_LAYER)
    k.e("s_branch L_llayer_%s" % k.name)
    k.label("L_lw_%s" % k.name)
    k.e("s_waitcnt vmcnt(0)")
    B()
    B()
    if STAMP and STAMPW == 4:
        stamp(k, g, ld=True)
        k.e("s_cmp_lg_u32 s2, %d" % (STAMP - 1))
        k.e("s_cbranch_scc1 L_lf2_%s" % k.name)
        make_srd(k, 8, ("in", DBG), 256)
        k.e("buffer_store_dword v%d, v%d, s[8:11], 0 offen" % (g.vst, g.l4))
        k.label("L_lf2_%s" % k.name)
    k.e("s_and_b32 s%d, s%d, 3" % (S_T0, S_RB))
    k.e("s_or_b32 s%d, s%d, s%d" % (S_T0, S_T0, S_CB))
    k.e("s_cmp_lg_u32 s%d, 0" % S_T0)
    k.e("s_cbranch_scc1 L_end_%s" % k.name)
    make_srd(k, SRD_F, ("ws", R_FL), FLSZ)
    k.e("s_lshl_b32 s%d, s%d, 5" % (S_T0, S_RB))
    k.e("s_add_u32 s%d, s%d, 0x%x" % (S_T0, S_T0, FL_TK))
    k.e("v_mov_b32 v%d, 96" % t)
    k.e("s_mov_b64 exec, 1")
    k.e("buffer_atomic_add v%d, v%d, %s, s%d offen%s" % (t, g.l64, srd(SRD_F), S_T0, ASC))


PF = int(os.environ.get("PF", "103"))
PFD = int(os.environ.get("PFD", "6"))


def touch(k, g, dst, parts):
    k.e("s_mov_b32 s%d, s%d" % (SRD_W, PTR(parts[0][0])))
    k.e("s_mov_b32 s%d, s%d" % (SRD_W + 1, PTR(parts[0][0]) + 1))
    k.e("s_mov_b32 s%d, s%d" % (S_T2, S_CNT))
    base = 0
    for j in range(1, len(parts)):
        base += parts[j - 1][1]
        k.e("s_sub_u32 s%d, s%d, %d" % (S_T1, S_CNT, base))
        k.e("s_cmp_ge_u32 s%d, %d" % (S_CNT, base))
        k.e("s_cselect_b32 s%d, s%d, s%d" % (SRD_W, PTR(parts[j][0]), SRD_W))
        k.e("s_cselect_b32 s%d, s%d, s%d" % (SRD_W + 1, PTR(parts[j][0]) + 1, SRD_W + 1))
        k.e("s_cselect_b32 s%d, s%d, s%d" % (S_T2, S_T1, S_T2))
    k.e("s_min_u32 s%d, s%d, %d" % (S_T2, S_T2, max(n for _, n in parts) - 1))
    if base + parts[-1][1] < 1024:
        k.e("s_cmp_ge_u32 s%d, %d" % (S_CNT, base + parts[-1][1]))
        k.e("s_cselect_b32 s%d, 0, s%d" % (S_T2, S_T2))
    k.e("s_lshl_b32 s%d, s%d, 12" % (S_T2, S_T2))
    k.e("s_mov_b32 s%d, 0x200000" % (SRD_W + 2))
    k.e("s_mov_b32 s%d, 0x00020000" % (SRD_W + 3))
    k.e("buffer_load_dword v%d, v%d, %s, s%d offen" % (dst, g.l64, srd(SRD_W), S_T2))


def k_main(name):
    k = Kern(name)
    k.stubs = []
    g = G()
    k.e("s_cmp_ge_u32 s2, 256")
    k.e("s_cbranch_scc1 L_end_%s" % k.name)
    if RT:
        k.e("s_memrealtime s[88:89]")
    k.e("s_load_dwordx16 s[64:79], s[0:1], 0")
    k.e("s_load_dwordx8 s[80:87], s[0:1], 64")
    g.w = k.alloc()
    g.l = k.alloc()
    g.g = k.alloc()
    g.m = k.alloc()
    g.lin = k.alloc()
    g.one = k.alloc()
    g.l128 = k.alloc()
    g.vsw = k.alloc()
    g.vst = k.alloc()
    g.l64 = k.alloc()
    g.tmp = 40
    t = g.w
    k.e("v_lshrrev_b32 v%d, 6, v0" % g.w)
    k.e("v_and_b32 v%d, 63, v0" % g.l)
    k.e("v_readfirstlane_b32 s%d, v%d" % (S_WAVE, g.w))
    k.e("v_lshlrev_b32 v%d, 6, v%d" % (g.l64, g.l))
    k.e("s_getreg_b32 s%d, hwreg(HW_REG_XCC_ID)" % S_T0)
    k.e("s_and_b32 s%d, s%d, 7" % (S_T0, S_T0))
    k.e("v_mov_b32 v%d, 1" % g.one)
    if STAMP:
        k.e("v_mov_b32 v%d, 0" % g.vst)
        k.e("s_mov_b32 s%d, 0" % S_STI)
    k.phase = STAMPG
    k.e("s_cmp_lg_u32 s%d, 4" % S_WAVE)
    k.e("s_cbranch_scc1 L_pf_%s" % k.name)
    k.e("s_lshl_b32 s%d, s%d, 7" % (S_T1, S_T0))
    k.e("s_add_u32 s%d, s%d, 0x%x" % (S_T1, S_T1, FL_TK))
    k.e("s_mov_b32 s%d, 0x%x" % (S_T2, FL_TK))
    k.e("v_lshrrev_b32 v%d, 3, v%d" % (g.tmp, g.l))
    k.e("v_lshlrev_b32 v%d, 7, v%d" % (g.tmp, g.tmp))
    k.e("s_mov_b32 s%d, 0x%x" % (SRD_F + 2, FLSZ))
    k.e("s_mov_b32 s%d, 0x00020000" % (SRD_F + 3))
    k.e("s_mov_b64 exec, 1")
    k.e("s_waitcnt lgkmcnt(0)")
    k.e("s_add_u32 s%d, s%d, 0x%x" % (SRD_F, PTR(WS), R_FL))
    k.e("s_addc_u32 s%d, s%d, 0" % (SRD_F + 1, PTR(WS) + 1))
    k.e("buffer_atomic_add v%d, v%d, %s, s%d offen sc0%s" % (g.one, g.l64, srd(SRD_F), S_T1, ASC))
    k.e("s_mov_b64 exec, -1")
    k.e("buffer_load_dword v%d, v%d, %s, s%d offen sc1" % (g.tmp, g.tmp, srd(SRD_F), S_T2))
    stamp(k, g)
    k.e("v_mov_b32 v%d, 0x%x" % (t, LDS_TK))
    k.e("s_mov_b64 exec, 1")
    k.e("s_waitcnt vmcnt(1)")
    k.e("ds_write_b32 v%d, v%d" % (t, g.one))
    k.e("s_mov_b64 exec, -1")
    stamp(k, g)
    k.e("s_branch L_nt_%s" % k.name)
    k.label("L_pf_%s" % k.name)
    if PF & 4:
        k.e("s_getpc_b64 s[%d:%d]" % (SRD_W, SRD_W + 1))
        k.label("L_pc_%s" % k.name)
        k.e("s_sub_u32 s%d, s%d, L_pc_%s-%s" % (SRD_W, SRD_W, k.name, k.name))
        k.e("s_subb_u32 s%d, s%d, 0" % (SRD_W + 1, SRD_W + 1))
        k.e("s_mov_b32 s%d, L_end_%s-%s" % (SRD_W + 2, k.name, k.name))
        k.e("s_mov_b32 s%d, 0x00020000" % (SRD_W + 3))
        k.e("s_lshr_b32 s%d, s2, 6" % S_T2)
        k.e("s_lshl_b32 s%d, s%d, 2" % (S_T2, S_T2))
        k.e("s_add_u32 s%d, s%d, s%d" % (S_T2, S_T2, S_WAVE))
        k.e("s_lshl_b32 s%d, s%d, 12" % (S_T2, S_T2))
        k.e("buffer_load_dword v%d, v%d, %s, s%d offen" % (42, g.l64, srd(SRD_W), S_T2))
        if PF & 32:
            k.e("s_add_u32 s%d, s%d, 0x10000" % (S_T2, S_T2))
            k.e("buffer_load_dword v%d, v%d, %s, s%d offen" % (43, g.l64, srd(SRD_W), S_T2))
    stamp(k, g)
    k.e("s_lshl_b32 s%d, s2, 2" % S_CNT)
    k.e("s_add_u32 s%d, s%d, s%d" % (S_CNT, S_CNT, S_WAVE))
    k.e("s_waitcnt lgkmcnt(0)")
    if PFD:
        k.e("s_sleep %d" % PFD)
    if PF & 1:
        touch(k, g, 41, [(IN_X, 512), (IN_WQKV, 384), (IN_WO, 128)])
    if PF & 8:
        k.e("s_getreg_b32 s%d, hwreg(HW_REG_HW_ID)" % S_T1)
        k.e("s_bfe_u32 s%d, s%d, 0x2000d" % (S_T2, S_T1))
        k.e("s_bfe_u32 s%d, s%d, 0x30008" % (S_T1, S_T1))
        k.e("s_lshl_b32 s%d, s%d, 3" % (S_T2, S_T2))
        k.e("s_add_u32 s%d, s%d, s%d" % (S_T1, S_T1, S_T2))
        k.e("s_lshl_b32 s%d, s%d, 2" % (S_T1, S_T1))
        k.e("s_add_u32 s%d, s%d, s%d" % (S_T1, S_T1, S_WAVE))
        k.e("v_lshlrev_b32 v%d, 7, v%d" % (g.l128, g.l))
        make_srd(k, SRD_W, ("in", IN_X), XBYTES)
        k.e("s_lshl_b32 s%d, s%d, 18" % (S_T2, S_T0))
        k.e("s_lshl_b32 s%d, s%d, 11" % (S_CNT, S_T1))
        k.e("s_add_u32 s%d, s%d, s%d" % (S_T2, S_T2, S_CNT))
        k.e("s_mov_b64 exec, 0xffff")
        k.e("buffer_load_dword v%d, v%d, %s, s%d offen" % (41, g.l128, srd(SRD_W), S_T2))
        k.e("s_mov_b64 exec, -1")
        make_srd(k, SRD_W, ("in", IN_WQKV), 512 * 3072)
        k.e("s_mul_i32 s%d, s%d, 12288" % (S_T2, S_T1))
        k.e("buffer_load_dword v%d, v%d, %s, s%d offen" % (43, g.l128, srd(SRD_W), S_T2))
        k.e("s_add_u32 s%d, s%d, 8192" % (S_T2, S_T2))
        k.e("s_mov_b64 exec, 0xffffffff")
        k.e("buffer_load_dword v%d, v%d, %s, s%d offen" % (44, g.l128, srd(SRD_W), S_T2))
        if PF & 16:
            make_srd(k, SRD_W, ("in", IN_WO), 512 * 1024)
            k.e("s_lshl_b32 s%d, s%d, 12" % (S_T2, S_T1))
            k.e("buffer_load_dword v%d, v%d, %s, s%d offen" % (45, g.l128, srd(SRD_W), S_T2))
        k.e("s_mov_b64 exec, -1")
    k.label("L_nt_%s" % k.name)
    k.e("v_lshrrev_b32 v%d, 4, v%d" % (g.g, g.l))
    k.e("v_and_b32 v%d, 15, v%d" % (g.m, g.l))
    k.e("v_lshlrev_b32 v%d, 4, v%d" % (g.lin, g.l))
    k.e("v_lshlrev_b32 v%d, 7, v%d" % (g.l128, g.l))
    k.e("v_and_b32 v%d, 1, v%d" % (t, g.g))
    k.e("v_lshlrev_b32 v%d, 9, v%d" % (g.vsw, t))
    k.e("v_lshrrev_b32 v%d, 1, v%d" % (t, g.g))
    k.e("v_lshl_add_u32 v%d, v%d, 8, v%d" % (g.vsw, t, g.vsw))
    k.e("v_lshl_add_u32 v%d, v%d, 4, v%d" % (g.vsw, g.m, g.vsw))
    k.e("v_mov_b32 v%d, 0x%x" % (t, LDS_TK))
    k.e("s_waitcnt lgkmcnt(0)")
    k.e("s_barrier")
    k.e("ds_read_b32 v%d, v%d" % (t, t))
    k.e("s_waitcnt lgkmcnt(0)")
    k.e("s_barrier")
    k.e("v_readfirstlane_b32 s%d, v%d" % (S_T1, t))
    k.e("v_and_b32 v%d, 0xffffffe0, v%d" % (g.one, t))
    k.e("v_add_u32 v%d, 0x%x, v%d" % (g.one, NONCE_K, g.one))
    k.e("v_readfirstlane_b32 s%d, v%d" % (S_FP, g.one))
    k.e("s_sub_u32 s%d, s%d, 32" % (S_FP, S_FP))
    k.e("s_and_b32 s%d, s%d, 31" % (S_T1, S_T1))
    k.e("s_lshr_b32 s%d, s%d, 3" % (S_RB, S_T1))
    k.e("s_lshl_b32 s%d, s%d, 2" % (S_T2, S_T0))
    k.e("s_add_u32 s%d, s%d, s%d" % (S_RB, S_RB, S_T2))
    k.e("s_and_b32 s%d, s%d, 7" % (S_CB, S_T1))
    k.e("s_lshr_b32 s%d, s%d, 4" % (S_RBW, S_T1))
    k.e("s_lshl_b32 s%d, s%d, 1" % (S_T2, S_T0))
    k.e("s_add_u32 s%d, s%d, s%d" % (S_RBW, S_RBW, S_T2))
    k.e("s_and_b32 s%d, s%d, 15" % (S_CBW, S_T1))
    k.e("s_lshl_b32 s%d, s%d, 6" % (S_TOKN, S_RB))
    k.e("s_lshl_b32 s%d, s%d, 4" % (S_T0, S_WAVE))
    k.e("s_add_u32 s%d, s%d, s%d" % (S_TOKN, S_TOKN, S_T0))
    k.e("s_lshl_b32 s%d, s%d, 7" % (S_TOKW, S_RBW))
    k.e("s_lshl_b32 s%d, s%d, 5" % (S_T0, S_WAVE))
    k.e("s_add_u32 s%d, s%d, s%d" % (S_TOKW, S_TOKW, S_T0))
    k.e("s_lshl_b32 s%d, s%d, 3" % (S_WGS, S_RB))
    k.e("s_add_u32 s%d, s%d, s%d" % (S_WGS, S_WGS, S_CB))
    k.e("s_lshl_b32 s%d, s%d, 11" % (S_WGS, S_WGS))
    k.e("s_mul_i32 s%d, s%d, 43" % (S_CU3, S_CBW))
    k.e("s_lshr_b32 s%d, s%d, 4" % (S_CU3, S_CU3))
    k.e("s_min_u32 s%d, s%d, 40" % (S_CU3, S_CU3))
    k.e("s_mov_b32 s%d, 0x3f803f80" % S_ONES)
    k.e("s_mov_b32 s%d, 0x%08x" % (S_L2E, f32bits(LOG2E)))
    k.e("s_mov_b32 s%d, 0x%08x" % (S_EPS, f32bits(1e-6)))
    k.e("s_mov_b32 s%d, 0x%08x" % (S_GC, f32bits(-2.0 * LOG2E * math.sqrt(2.0 / math.pi) * 0.044715)))
    k.e("s_mov_b32 s%d, 0x%08x" % (S_GC + 1, f32bits(-2.0 * LOG2E * math.sqrt(2.0 / math.pi))))
    k.e("s_mov_b32 s%d, 0x4000" % S_K16)
    k.e("s_mov_b32 s%d, 0" % S_LAYER)
    k.e("s_mov_b32 s%d, %d" % (S_BUD, BUDGET))
    stamp(k, g)
    k.e("s_waitcnt lgkmcnt(0)")
    k.e("s_mov_b32 s%d, s%d" % (S_WSL, PTR(WS)))
    k.e("s_mov_b32 s%d, s%d" % (S_WSH, PTR(WS) + 1))
    k.e("s_cmp_eq_u32 s%d, 4" % S_WAVE)
    k.e("s_cbranch_scc1 L_loader_%s" % k.name)
    mk = k.mark()
    k.started = True
    k.label("L_layer_%s" % k.name)
    k.e("s_nop 4")
    if STAMP and STAMPL:
        k.e("v_mov_b32 v%d, 0" % g.vst)
        k.e("s_mov_b32 s%d, 0" % S_STI)
    k.phase = "qkv"
    p_qkv(k, g)
    k.phase = "wo"
    p_wo(k, g)
    k.phase = "w1"
    p_w1(k, g)
    k.phase = "w2"
    p_w2(k, g)
    k.phase = "w3"
    p_w3(k, g)
    k.phase = "w4"
    p_w4(k, g)
    k.phase = STAMPG
    if STAMP and STAMPW != 4:
        stamp(k, g)
        k.e("s_waitcnt vmcnt(0)")
        stamp(k, g)
        if STAMP == 1000:
            make_srd(k, 8, ("ws", 128 * MB), MB)
            k.e("s_lshl_b32 s%d, s%d, 3" % (S_T0, S_RB))
            k.e("s_add_u32 s%d, s%d, s%d" % (S_T0, S_T0, S_CB))
            k.e("s_lshl_b32 s%d, s%d, 3" % (S_T0, S_T0))
            k.e("s_add_u32 s%d, s%d, s%d" % (S_T0, S_T0, S_WAVE))
            k.e("s_lshl_b32 s%d, s%d, 8" % (S_T0, S_T0))
            k.e("v_lshlrev_b32 v%d, 2, v%d" % (g.w, g.l))
            k.e("buffer_store_dword v%d, v%d, s[8:11], s%d offen" % (g.vst, g.w, S_T0))
            k.e("s_branch L_end_%s" % k.name)
        k.e("s_cmp_lg_u32 s2, %d" % (STAMP - 1))
        k.e("s_cbranch_scc1 L_end_%s" % k.name)
        k.e("s_cmp_lg_u32 s%d, 0" % S_WAVE)
        k.e("s_cbranch_scc1 L_end_%s" % k.name)
        make_srd(k, 8, ("in", DBG), 256)
        k.e("v_subrev_u32 v%d, %d, v%d" % (g.w, int(os.environ.get("STAMPOFF", "0")), g.l))
        k.e("v_lshlrev_b32 v%d, 2, v%d" % (g.w, g.w))
        k.e("buffer_store_dword v%d, v%d, s[8:11], 0 offen" % (g.vst, g.w))
    if RT:
        k.e("s_waitcnt vmcnt(0)")
        k.e("s_memrealtime s[90:91]")
        k.e("s_cmp_lg_u32 s%d, 0" % S_WAVE)
        k.e("s_cbranch_scc1 L_end_%s" % k.name)
        make_srd(k, 8, ("in", DBG), 65536)
        k.e("s_waitcnt lgkmcnt(0)")
        k.e("v_mov_b32 v0, s88")
        k.e("v_mov_b32 v1, s90")
        k.e("v_mov_b32 v2, s%d" % S_RB)
        k.e("v_mov_b32 v3, s%d" % S_CB)
        k.e("s_lshl_b32 s%d, s2, 4" % S_T0)
        k.e("s_mov_b64 exec, 1")
        k.e("buffer_store_dwordx4 v[0:3], v%d, s[8:11], s%d offen" % (g.lin, S_T0))
    k.e("s_branch L_end_%s" % k.name)
    if not PF & 64:
        k.lines += k.stubs
    k.release(mk)
    k.label("L_loader_%s" % k.name)
    k.e("s_waitcnt vmcnt(0)")
    loader(k, g)
    if PF & 64:
        k.e("s_branch L_end_%s" % k.name)
        k.lines += k.stubs
    k.label("L_end_%s" % k.name)
    k.e("s_endpgm")
    return k, 256, 320, 163840


HEADER = """; Kernarg layout for this problem (96 bytes, ptrs only, base s[0:1]):
;   offset  24: d_in[3] A_wo  shape=(512, 512) dtype=bfloat16 strides=(1024, 2) contiguous=True
;   offset  40: d_in[5] B_w1  shape=(512, 512) dtype=bfloat16 strides=(1024, 2) contiguous=True
;   offset  48: d_in[6] B_w2  shape=(512, 512) dtype=bfloat16 strides=(1024, 2) contiguous=True
;   offset  64: d_in[8] B_w4  shape=(1376, 512) dtype=bfloat16 strides=(1024, 2) contiguous=True
;   offset  88: d_ws      268435456 bytes workspace
"""


def build():
    kernels = [k_main("main_kernel")]
    out = [HEADER.rstrip("\n")]
    for (k, nwg, blk, lds) in kernels:
        out.append("; @launch kernel=%s grid=(%d,1,1) block=(%d,1,1) lds=%d" % (k.name, nwg, blk, lds))
    out.append('.amdgcn_target "amdgcn-amd-amdhsa--gfx950"')
    out.append(".text")
    for (k, nwg, blk, lds) in kernels:
        out.append(".globl %s" % k.name)
        out.append(".p2align 8")
        out.append(".type %s,@function" % k.name)
        out.append("%s:" % k.name)
        out += hazard_pass(k.lines)
    out.append('.section .rodata,"a"')
    for (k, nwg, blk, lds) in kernels:
        nv = (k.maxv + 7) // 8 * 8
        out.append(".p2align 6")
        out.append(".amdhsa_kernel %s" % k.name)
        out.append("  .amdhsa_next_free_vgpr %d" % nv)
        out.append("  .amdhsa_next_free_sgpr 102")
        out.append("  .amdhsa_accum_offset %d" % nv)
        out.append("  .amdhsa_group_segment_fixed_size 0")
        out.append("  .amdhsa_kernarg_size 96")
        out.append("  .amdhsa_user_sgpr_count 2")
        out.append("  .amdhsa_user_sgpr_kernarg_segment_ptr 1")
        out.append("  .amdhsa_system_sgpr_workgroup_id_x 1")
        out.append(".end_amdhsa_kernel")
    return "\n".join(out) + "\n"


if __name__ == "__main__":
    path = sys.argv[1] if len(sys.argv) > 1 else "cdna_kernels/%s.s" % NAME
    open(path, "w").write(build())
    print("wrote", path)
```
